```python
import torch

def _softmax(x, axis=-1):
    return torch.softmax(x, dim=axis)
def _gelu(x):
    return torch.nn.functional.gelu(x, approximate="tanh")
def _silu(x):
    return torch.nn.functional.silu(x)
def _sigmoid(x):
    return torch.sigmoid(x)
def _layernorm(x, axis=-1, eps=1e-5):
    m = x.mean(dim=axis, keepdim=True)
    v = x.var(dim=axis, keepdim=True, unbiased=False)
    return (x - m) / torch.sqrt(v + eps)
def _scatter_add(tgt, idx, src, axis=0):
    return tgt.clone().index_add_(axis, idx, src)
def _segment_sum(src, seg, n):
    out = torch.zeros((n,) + src.shape[1:], dtype=src.dtype)
    return out.index_add_(0, seg, src)
def _pad(x, pw):
    flat = tuple(v for pair in reversed(pw) for v in pair)
    return torch.nn.functional.pad(x, flat)

kernel_name = 'parallel_sum__sliding_local_dilated__mixer_s_mlp__prompt'

def setup_inputs():

    _w = (lambda a: (lambda t: t.to(torch.bfloat16) if t.is_floating_point() else t)(torch.as_tensor(a)))
    def _A_setup():
        B, S, D = 1, 2048, 512
        return {
            "x": _w((lambda *s: torch.randn(*s, dtype=torch.bfloat16) * 0.05)(B, S, D)),
            "wqkv": _w((lambda *s: torch.randn(*s, dtype=torch.bfloat16) * 0.05)(D, 3 * D)),
            "wo": _w((lambda *s: torch.randn(*s, dtype=torch.bfloat16) * 0.05)(D, D)),
        }
    _A_in = _A_setup()

    def _B_setup():
        B, S, D, F = 1, 2048, 512, 1376
        return {
            "x":  _w((lambda *s: torch.randn(*s, dtype=torch.bfloat16) * 0.05)(B, S, D)),
            "w1": _w((lambda *s: torch.randn(*s, dtype=torch.bfloat16) * 0.8)(D, D) * (D ** -0.5)),
            "w2": _w((lambda *s: torch.randn(*s, dtype=torch.bfloat16) * 0.8)(D, D) * (D ** -0.5)),
            "w3": _w((lambda *s: torch.randn(*s, dtype=torch.bfloat16) * 0.8)(D, F) * (D ** -0.5)),
            "w4": _w((lambda *s: torch.randn(*s, dtype=torch.bfloat16) * 0.8)(F, D) * (F ** -0.5)),
        }
    _B_in = _B_setup()

    return {
        "A_x": _A_in["x"],
        "A_wqkv": _A_in["wqkv"],
        "A_wo": _A_in["wo"],
        "B_x": _B_in["x"],
        "B_w1": _B_in["w1"],
        "B_w2": _B_in["w2"],
        "B_w3": _B_in["w3"],
        "B_w4": _B_in["w4"],
    }

def reference(A_x, A_wqkv, A_wo, B_x, B_w1, B_w2, B_w3, B_w4):
    def _A_ref(x, wqkv, wo):
        B, S, D = x.shape
        H = 32; Dh = D // H
        W, dil = 8, 2
        qkv = (lambda x, *d: x.permute(*d))((x @ wqkv).reshape(B, S, 3, H, Dh), 2, 0, 3, 1, 4)
        q, k, v = qkv[0], qkv[1], qkv[2]
        scale = Dh ** -0.5
        pos = torch.arange(S)
        off = torch.arange(W) * dil
        idx = pos[:, None] - off[None, :]
        mask = idx >= 0
        idx_c = torch.where(mask, idx, 0).reshape(-1)
        kg = k[:, :, idx_c, :].reshape(B, H, S, W, Dh)
        vg = v[:, :, idx_c, :].reshape(B, H, S, W, Dh)
        logits = torch.einsum("bhsd,bhswd->bhsw", q, kg) * scale
        logits = torch.where(mask[None, None, :, :], logits, -1e9)
        attn = _softmax(logits, axis=-1)
        o = torch.einsum("bhsw,bhswd->bhsd", attn, vg)
        return (lambda x, *d: x.permute(*d))(o, 0, 2, 1, 3).reshape(B, S, D) @ wo

    def _B_ref(x, w1, w2, w3, w4):
        B, S, D = x.shape
        h = _gelu(_layernorm(x, axis=-1) @ w1)
        c = D // 4
        g0 = _pad(h[:, :, 0*c:1*c], ((0, 0), (1, 0), (0, 0)))[:, :S, :]
        g1 = _pad(h[:, :, 1*c:2*c], ((0, 0), (0, 1), (0, 0)))[:, 1:, :]
        g2 = _pad(h[:, :, 2*c:3*c], ((0, 0), (2, 0), (0, 0)))[:, :S, :]
        g3 = _pad(h[:, :, 3*c:   ], ((0, 0), (0, 2), (0, 0)))[:, 2:, :]
        hs = torch.concatenate([g0, g1, g2, g3], axis=-1) @ w2
        x1 = x + hs
        h2 = _gelu(_layernorm(x1, axis=-1) @ w3) @ w4
        return x1 + h2

    x = A_x
    xn = _layernorm(x, axis=-1)
    return x + _A_ref(xn, A_wqkv, A_wo) + _B_ref(xn, B_w1, B_w2, B_w3, B_w4)
```

```python
import re

class Asm:
    def __init__(self):
        self.lines = []
        self.vm = 0
        self.lg = 0
        self.nlabel = 0

    def raw(self, text):
        self.lines.append(text)

    def __call__(self, text):
        t = text.strip()
        self.lines.append("    " + t)
        op = t.split()[0]
        if op.startswith(("buffer_", "global_")):
            self.vm += 1
        elif op.startswith("ds_"):
            self.lg += 1

    def opt(self, text):
        self.lines.append("    " + text.strip())

    def label(self, name):
        self.lines.append(name + ":")

    def newlabel(self, base):
        self.nlabel += 1
        return f"L_{base}_{self.nlabel}"

    def comment(self, text):
        self.lines.append("    ; " + text)

    def vm_pos(self):
        return self.vm

    def lg_pos(self):
        return self.lg

    def wait(self, vm=None, lg=None):
        parts = []
        if vm is not None:
            n = self.vm - vm
            assert n >= 0
            if n < 63:
                parts.append(f"vmcnt({n})")
        if lg is not None:
            n = self.lg - lg
            assert n >= 0
            parts.append(f"lgkmcnt({min(n, 15)})")
        if parts:
            self("s_waitcnt " + " ".join(parts))

    def wait_all_vm(self):
        self("s_waitcnt vmcnt(0)")

    def wait_all_lg(self):
        self("s_waitcnt lgkmcnt(0)")

    def nop(self, n):
        while n > 0:
            k = min(n, 16)
            self(f"s_nop {k-1}")
            n -= k

    def text(self):
        return "\n".join(self.lines) + "\n"


_REG = re.compile(r"^(-|abs\()?([vas])(\d+)\)?$")
_RNG = re.compile(r"^-?([vas])\[(\d+):(\d+)\]$")

def regs_of(tok):
    tok = tok.strip()
    m = _RNG.match(tok)
    if m:
        return [(m.group(1), i) for i in range(int(m.group(2)), int(m.group(3)) + 1)]
    m = _REG.match(tok)
    if m:
        return [(m.group(2), int(m.group(3)))]
    if tok == "vcc":
        return [("s", "vcc")]
    if tok == "exec":
        return [("s", "exec")]
    if tok == "m0":
        return [("s", "m0")]
    return []

TRANS = ("v_exp_f32", "v_log_f32", "v_rcp_f32", "v_rsq_f32", "v_sqrt_f32", "v_sin_f32", "v_cos_f32")

def parse(line):
    t = line.split(";")[0].strip()
    if not t or t.endswith(":") or t.startswith("."):
        return None
    parts = t.split(None, 1)
    op = parts[0]
    ops = []
    if len(parts) > 1:
        cur = ""; depth = 0
        for ch in parts[1]:
            if ch == "[": depth += 1
            if ch == "]": depth -= 1
            if ch == "," and depth == 0:
                ops.append(cur.strip()); cur = ""
            else:
                cur += ch
        ops.append(cur.strip())
        last = ops[-1].split()
        ops[-1] = last[0] if last else ""
        mods = last[1:]
    else:
        mods = []
    d = dict(op=op, ops=ops, mods=mods, w=[], r=[], cls="other")
    R = regs_of
    base = op.replace("_e32", "").replace("_e64", "")
    if base.startswith("v_mfma"):
        d["cls"] = "sgemm" if base.endswith("_f32") and "x2_f32" in base or base.endswith("x4_f32") else "xdl"
        d["w"] = R(ops[0]); d["A"] = R(ops[1]); d["B"] = R(ops[2]); d["C"] = R(ops[3])
        d["r"] = d["A"] + d["B"] + d["C"]
    elif base.startswith("v_cmp"):
        d["cls"] = "valu"; d["w"] = R(ops[0]); d["r"] = sum((R(o) for o in ops[1:]), [])
    elif base.startswith("v_permlane"):
        d["cls"] = "permlane"; d["w"] = R(ops[0]) + R(ops[1]); d["r"] = R(ops[0]) + R(ops[1])
    elif base in ("v_readfirstlane_b32", "v_readlane_b32"):
        d["cls"] = "readlane"; d["w"] = R(ops[0]); d["r"] = sum((R(o) for o in ops[1:]), [])
    elif base.startswith("v_dot2c") or base.startswith("v_fmac"):
        d["cls"] = "dot" if "dot" in base else "valu"
        d["w"] = R(ops[0]); d["r"] = sum((R(o) for o in ops), [])
    elif base.startswith("v_dot2"):
        d["cls"] = "dot"; d["w"] = R(ops[0]); d["r"] = sum((R(o) for o in ops[1:]), [])
    elif base.startswith("v_cndmask"):
        d["cls"] = "valu"; d["w"] = R(ops[0]); d["r"] = sum((R(o) for o in ops[1:]), [])
        if len(ops) == 3: d["r"] += [("s", "vcc")]
        d["mask"] = R(ops[3]) if len(ops) > 3 else [("s", "vcc")]
    elif base.startswith(("v_add_co", "v_addc_co", "v_sub_co")):
        d["cls"] = "valu"; d["w"] = R(ops[0]) + R(ops[1]); d["r"] = sum((R(o) for o in ops[2:]), [])
    elif base.startswith("v_accvgpr_write"):
        d["cls"] = "valu"; d["w"] = R(ops[0]); d["r"] = R(ops[1])
    elif base.startswith("v_accvgpr_read"):
        d["cls"] = "valu"; d["w"] = R(ops[0]); d["r"] = R(ops[1])
    elif base.startswith("v_"):
        d["cls"] = "trans" if base in TRANS else "valu"
        d["w"] = R(ops[0]); d["r"] = sum((R(o) for o in ops[1:]), [])
    elif base.startswith("ds_read") or base.startswith("ds_bpermute"):
        d["cls"] = "ds"; d["w"] = R(ops[0]); d["r"] = sum((R(o) for o in ops[1:]), []); d["load"] = True
    elif base.startswith("ds_write"):
        d["cls"] = "ds"; d["r"] = sum((R(o) for o in ops), [])
    elif base.startswith("buffer_load"):
        d["cls"] = "vmem"
        if "lds" in mods:
            d["r"] = sum((R(o) for o in ops), []) + [("s", "m0")]; d["dma"] = True
        else:
            d["w"] = R(ops[0]); d["r"] = sum((R(o) for o in ops[1:]), []); d["load"] = True
    elif base.startswith("buffer_store") or base.startswith("buffer_atomic"):
        d["cls"] = "vmem"; d["r"] = sum((R(o) for o in ops), []); d["sdata"] = R(ops[0])
        d["wide"] = base.endswith(("x3", "x4"))
    elif base.startswith("global_load"):
        d["cls"] = "vmem"; d["w"] = R(ops[0]); d["r"] = sum((R(o) for o in ops[1:]), []); d["load"] = True
    elif base.startswith("global_store"):
        d["cls"] = "vmem"; d["r"] = sum((R(o) for o in ops), [])
    elif base.startswith("s_nop"):
        d["cls"] = "nop"; d["n"] = int(ops[0]) + 1
    elif base.startswith("s_"):
        d["cls"] = "salu"
        if base.startswith(("s_cmp", "s_cbranch", "s_branch", "s_waitcnt", "s_barrier", "s_endpgm", "s_setprio", "s_sleep", "s_bitcmp")):
            d["r"] = sum((R(o) for o in ops), [])
        else:
            d["w"] = R(ops[0]) if ops else []; d["r"] = sum((R(o) for o in ops[1:]), [])
            if "saveexec" in base: d["w"] += [("s", "exec")]
    return d

def check_hazards(lines, verbose=True):
    probs = []
    hist = []
    t = 0
    lastw = {}
    last_mfma_c = {}
    last_store = {}
    for ln, line in enumerate(lines):
        d = parse(line)
        if d is None:
            continue
        cls = d["cls"]
        def need(reg, n, why):
            if reg in lastw:
                tw, iw, lw = lastw[reg]
                dist = t - tw - 1
                if dist < n:
                    probs.append(f"line {ln+1}: '{line.strip()}' needs {n} wait states after line {lw+1} '{lines[lw].strip()}' ({why}, reg {reg}), has {dist}")
        for reg in d["r"]:
            if reg not in lastw: continue
            tw, iw, lw = lastw[reg]
            pc = iw["cls"]
            valu_like = pc in ("valu", "trans", "permlane", "dot", "readlane")
            if pc in ("xdl", "sgemm"):
                passes16 = pc == "sgemm"
                if cls in ("xdl", "sgemm"):
                    inC = reg in d["C"]; inAB = reg in d["A"] or reg in d["B"]
                    if inAB:
                        need(reg, (18 if passes16 else 12), "mfma D -> mfma A/B")
                    if inC:
                        same = (d["C"] == iw["w"])
                        if pc == "xdl" and cls == "xdl":
                            if not same: need(reg, 10, "xdl D -> xdl C partial overlap")
                        elif pc == "xdl" and cls == "sgemm":
                            need(reg, 10, "xdl D -> sgemm C")
                        elif pc == "sgemm" and cls == "sgemm":
                            if not same: need(reg, 16, "sgemm D -> sgemm C partial")
                elif cls != "salu":
                    need(reg, (18 if passes16 else 12), "mfma D -> valu/vmem/ds read")
            if valu_like and cls in ("xdl", "sgemm") and reg[0] in "va":
                need(reg, 2, "valu write -> mfma read")
            if pc == "trans" and cls in ("valu", "permlane", "dot", "readlane", "xdl", "sgemm") and reg[0] == "v":
                need(reg, 1, "trans -> use")
            if valu_like and cls == "permlane" and reg[0] == "v":
                need(reg, 2, "valu write -> permlane")
            if valu_like and cls == "readlane" and reg[0] == "v":
                need(reg, 1, "valu write -> readlane")
            if pc == "dot" and reg[0] == "v":
                same_op = iw["op"].replace("_e32","") == d["op"].replace("_e32","")
                is_acc = cls == "dot" and reg in d["w"]
                if not (same_op and is_acc and reg not in sum((regs_of(o) for o in d["ops"][1:3]), [])):
                    need(reg, 3, "dot -> other use")
            if valu_like and reg[0] == "s" and cls == "vmem":
                need(reg, 5, "valu sgpr write -> vmem")
            if valu_like and reg[0] == "s" and cls in ("valu", "trans", "dot", "xdl", "sgemm", "permlane"):
                need(reg, 2, "valu sgpr write -> valu const/mask read")
            if pc == "salu" and reg == ("s", "m0") and d.get("dma"):
                need(reg, 1, "m0 write -> dma")
            if valu_like and reg == ("s", "exec") and cls in ("xdl", "sgemm"):
                need(reg, 4, "exec write -> mfma")
        for reg in d["w"]:
            if reg in lastw:
                tw, iw, lw = lastw[reg]
                pc = iw["cls"]
                if pc in ("xdl", "sgemm") and cls not in ("xdl", "sgemm") and cls != "salu":
                    need(reg, (18 if pc == "sgemm" else 12), "mfma D -> write (WAW)")
                if pc == "dot" and cls != "dot" and reg[0] == "v" and cls not in ("ds", "vmem"):
                    need(reg, 3, "dot -> overwrite")
            if reg in last_mfma_c and cls in ("valu", "trans", "permlane", "dot"):
                tw, iw, lw = last_mfma_c[reg]
                n = 15 if iw["cls"] == "sgemm" else 7
                if iw["cls"] == "xdl" and t - tw - 1 < n:
                    probs.append(f"line {ln+1}: '{line.strip()}' overwrites srcC of line {lw+1} within {n} states")
            if reg in last_store and cls in ("valu", "trans", "permlane", "dot"):
                tw, lw = last_store[reg]
                if t - tw - 1 < 2:
                    probs.append(f"line {ln+1}: '{line.strip()}' overwrites wide store data of line {lw+1} within 2 states")
        for reg in d["w"]:
            lastw[reg] = (t, d, ln)
        if cls in ("xdl", "sgemm"):
            for reg in d["C"]:
                last_mfma_c[reg] = (t, d, ln)
        if d.get("wide"):
            for reg in d["sdata"]:
                last_store[reg] = (t, ln)
        t += d["n"] if cls == "nop" else 1
    return probs
```

```python
import sys, os
from asmlib import Asm, check_hazards

NAME = "parallel_sum__sliding_local_dilated__mixer_s_mlp__prompt_kernel"

class Cfg:
    stamps = False
    stop_after = None
    spin_limit = 400000

WS_CNT  = 0x0
CNT_H, CNT_KV, CNT_X1, CNT_G, CNT_O = 0, 32, 64, 80, 96
CNT_STRIDE = 256
WS_H    = 0x100000
WS_O    = 0x300000
WS_X1   = 0x500000
WS_G    = 0x700000
WS_X1S  = 0xD00000
WS_KV   = 0xD40000
WS_STAMP= 0xF00000
WS_SIZE = 0x1000000

A0 = 0
B0 = 67584
C0 = 133120
SCR1 = 160768
LDS_TOTAL = 163840

sW, sRBK, sCG = 3, 4, 5
sRB64, sC, sRB128, sFT = 6, 7, 8, 9
SRD_X, SRD_WQKV, SRD_WO, SRD_W1, SRD_W2, SRD_W3, SRD_W4, SRD_OUT, SRD_WS, SRD_DBG = 40, 44, 48, 52, 56, 60, 64, 68, 72, 76
sONES, sPLO, sPHI = 80, 81, 82
sG, sG2, sT0, sT1, sT2, sT3 = 83, 84, 85, 86, 87, 88
sCB0, sNBLK = 89, 90
sSPIN = 91
sSTAMP = 92
sEXS = 94
sT4, sT5 = 96, 97

def srd(n): return f"s[{n}:{n+3}]"

vL, vM, vH, vL16 = 1, 2, 3, 4
vSTR, vSTRQ = 5, 6
vW3 = (7, 8, 9)
vTRN, vTRC0, vTRC1, vTR3 = 10, 11, 12, 13
vNMU, vR = 14, 15
vXRES = 16
vRESID = 24
vKP, vVP, vQP = 40, 48, 56
vRING = 64
vACC0, vACC1, vACC2 = 144, 160, 176
vT = 192

def v(i, n=1): return f"v{i}" if n == 1 else f"v[{i}:{i+n-1}]"
def a(i, n=1): return f"a{i}" if n == 1 else f"a[{i}:{i+n-1}]"

C0G = -2.0 * 0.7978845608028654 * 1.4426950408889634
C1G = C0G * 0.044715
import struct
def fbits(x): return "0x%08x" % struct.unpack("<I", struct.pack("<f", x))[0]

class K:
    def __init__(self, cfg):
        self.cfg = cfg
        self.A = Asm()
        self.side = []
        self.nstamp = 0

    def pump(self, n=1):
        for _ in range(n):
            if self.side:
                g = self.side.pop(0)
                for ins in g:
                    if callable(ins): ins()
                    else: self.A(ins)

    def flush_side(self):
        self.pump(len(self.side))

    def stamp(self, name):
        if not self.cfg.stamps: return
        A = self.A
        i = self.nstamp; self.nstamp += 1
        l = A.newlabel("st")
        A(f"s_cmp_lg_u32 s{sW}, 0"); A(f"s_cbranch_scc1 {l}")
        A(f"s_memrealtime s[{sSTAMP}:{sSTAMP+1}]")
        A("s_waitcnt lgkmcnt(0)")
        A(f"v_mov_b32 v255, s{sSTAMP}")
        A(f"s_lshl_b32 s{sT5}, s2, 7")
        A(f"s_add_u32 s{sT5}, s{sT5}, {WS_STAMP + 4*i}")
        A(f"v_mov_b32 v254, s{sT5}")
        A(f"s_mov_b64 s[{sEXS}:{sEXS+1}], exec"); A("s_mov_b64 exec, 1")
        A.opt(f"buffer_store_dword v255, v254, {srd(SRD_WS)}, 0 offen")
        A(f"s_mov_b64 exec, s[{sEXS}:{sEXS+1}]")
        A.label(l)

    def dma_units(self, srdn, vregs, gbase_code, gstep, lds0, n, lstep=None):
        m = len(vregs)
        if lstep is None: lstep = 1024 * m
        assert n >= 4
        groups = []
        rounds = (n + 3) // 4
        for j in range(rounds):
            if j == 0:
                g = list(gbase_code)
                g += [f"s_mul_i32 s{sT0}, s{sW}, {lstep}", f"s_add_u32 m0, s{sT0}, {lds0}",
                      f"s_mul_i32 s{sT0}, s{sW}, {gstep}", f"s_add_u32 s{sG}, s{sG2}, s{sT0}"]
            elif 4 * j + 3 < n:
                g = [f"s_add_u32 m0, m0, {4*lstep - (m-1)*1024}", f"s_add_u32 s{sG}, s{sG}, {4*gstep}"]
            else:
                g = [f"s_add_u32 s{sT0}, s{sW}, {4*j}", f"s_min_u32 s{sT0}, s{sT0}, {n-1}",
                     f"s_mul_i32 s{sT1}, s{sT0}, {lstep}", f"s_add_u32 m0, s{sT1}, {lds0}",
                     f"s_mul_i32 s{sT1}, s{sT0}, {gstep}", f"s_add_u32 s{sG}, s{sG2}, s{sT1}"]
            for i, vr in enumerate(vregs):
                if i > 0:
                    groups.append(g)
                    g = ["s_add_u32 m0, m0, 1024", "s_nop 0"]
                g = g + [f"buffer_load_dwordx4 v{vr}, {srd(srdn)}, s{sG} offen lds"]
            groups.append(g)
        return groups

    def poll(self, addr_code, nl, target, what):
        A = self.A
        skip = A.newlabel("pskip"); loop = A.newlabel("ploop"); done = A.newlabel("pdone")
        A(f"s_cmp_lg_u32 s{sW}, 3"); A(f"s_cbranch_scc1 {skip}")
        for ins in addr_code: A(ins)
        A(f"v_mov_b32 v251, {target}")
        A(f"s_mov_b64 s[{sEXS}:{sEXS+1}], exec"); A(f"s_mov_b64 exec, {(1 << nl) - 1}")
        A(f"s_mov_b32 s{sSPIN}, {self.cfg.spin_limit}")
        A.label(loop)
        A.opt(f"buffer_load_dword v252, v250, {srd(SRD_WS)}, 0 offen sc1")
        A("s_waitcnt vmcnt(0)")
        A("v_cmp_ge_u32 vcc, v252, v251")
        A(f"s_sub_u32 s{sSPIN}, s{sSPIN}, 1"); A(f"s_cbranch_scc1 {done}")
        A("s_cmp_eq_u64 vcc, exec"); A(f"s_cbranch_scc0 {loop}")
        A.label(done)
        A(f"s_mov_b64 exec, s[{sEXS}:{sEXS+1}]")
        A.label(skip)
        A("s_barrier")

    def arrive(self, cnt_code, pos, what, init_check=False):
        A = self.A
        A.wait(vm=pos)
        A("s_barrier")
        skip = A.newlabel("askip")
        A(f"s_cmp_lg_u32 s{sW}, 3"); A(f"s_cbranch_scc1 {skip}")
        A(f"s_mov_b64 s[{sEXS}:{sEXS+1}], exec"); A("s_mov_b64 exec, 1")
        if init_check:
            loop = A.newlabel("iloop"); done = A.newlabel("idone")
            A("v_mov_b32 v250, 0")
            A(f"s_mov_b32 s{sSPIN}, {self.cfg.spin_limit}")
            A.label(loop)
            A.opt(f"buffer_load_dword v252, v250, {srd(SRD_DBG)}, 0 offen sc1")
            A("s_waitcnt vmcnt(0)")
            A("v_cmp_eq_u32 vcc, 1, v252")
            A(f"s_sub_u32 s{sSPIN}, s{sSPIN}, 1"); A(f"s_cbranch_scc1 {done}")
            A("s_cmp_eq_u64 vcc, exec"); A(f"s_cbranch_scc0 {loop}")
            A.label(done)
        for ins in cnt_code: A(ins)
        A(f"v_mov_b32 v250, s{sT0}"); A("v_mov_b32 v251, 1")
        A.opt(f"buffer_atomic_add v251, v250, {srd(SRD_WS)}, 0 offen")
        A(f"s_mov_b64 exec, s[{sEXS}:{sEXS+1}]")
        A.label(skip)

    def swap_add(self, x, tmp):
        A = self.A
        A(f"v_mov_b32 v{tmp}, v{x}")
        A.nop(2)
        A(f"v_permlane32_swap_b32 v{x}, v{tmp}")
        A.nop(1)
        A(f"v_add_f32 v{x}, v{x}, v{tmp}")

    def prologue(self):
        A = self.A
        A("s_cmp_ge_u32 s2, 256"); A("s_cbranch_scc1 L_end")
        A("s_load_dwordx16 s[16:31], s[0:1], 0")
        A("s_load_dwordx4 s[32:35], s[0:1], 64")
        A("s_load_dwordx2 s[36:37], s[0:1], 80")
        A(f"v_lshrrev_b32 v5, 6, v0")
        A(f"v_and_b32 v{vL}, 63, v0")
        A(f"v_readfirstlane_b32 s{sW}, v5")
        A(f"v_and_b32 v{vM}, 31, v{vL}")
        A(f"v_lshrrev_b32 v{vH}, 5, v{vL}")
        A(f"v_lshlrev_b32 v{vL16}, 4, v{vL}")
        A("s_and_b32 s10, s2, 7"); A("s_lshr_b32 s11, s2, 3")
        A(f"s_lshr_b32 s12, s11, 3"); A(f"s_lshl_b32 s{sRB64}, s10, 2"); A(f"s_add_u32 s{sRB64}, s{sRB64}, s12")
        A(f"s_and_b32 s{sC}, s11, 7")
        A(f"s_lshr_b32 s12, s11, 4"); A(f"s_lshl_b32 s{sRB128}, s10, 1"); A(f"s_add_u32 s{sRB128}, s{sRB128}, s12")
        A(f"s_and_b32 s{sFT}, s11, 15")
        A(f"s_and_b32 s{sRBK}, s{sW}, 1"); A(f"s_lshr_b32 s{sCG}, s{sW}, 1")
        A("s_getpc_b64 s[12:13]")
        A.label("L_pc")
        A(f"v_lshlrev_b32 v6, 7, v{vL}")
        A(f"s_lshl_b32 s14, s{sW}, 13")
        A("v_add_u32 v6, s14, v6")
        A("v_min_u32 v6, L_end-L_pc, v6")
        A("global_load_dword v255, v6, s[12:13]")
        A(f"v_lshrrev_b32 v7, 3, v{vL}")
        A(f"v_and_b32 v8, 7, v{vL}")
        A(f"v_bfe_u32 v9, v{vL}, 4, 1"); A("v_lshlrev_b32 v9, 2, v9"); A("v_xor_b32 v9, v8, v9"); A("v_lshlrev_b32 v9, 4, v9")
        A(f"v_lshl_add_u32 v{vSTR}, v7, 10, v9")
        A(f"v_mul_u32_u24 v{vSTRQ}, 3072, v7"); A(f"v_add_u32 v{vSTRQ}, v{vSTRQ}, v9")
        A(f"v_lshrrev_b32 v9, 4, v{vL}"); A(f"s_lshl_b32 s14, s{sRBK}, 2"); A("v_add_u32 v9, s14, v9")
        A("v_xor_b32 v9, v8, v9"); A("v_lshlrev_b32 v9, 4, v9"); A("v_lshl_add_u32 v14, v7, 10, v9")
        A("s_waitcnt lgkmcnt(0)")
        for (n, p, size) in ((SRD_X, 16, 2097152), (SRD_WQKV, 18, 1572864), (SRD_WO, 20, 524288), (SRD_W1, 24, 524288),
                             (SRD_W2, 26, 524288), (SRD_W3, 28, 1409024), (SRD_W4, 30, 1409024), (SRD_OUT, 32, 2097152),
                             (SRD_DBG, 34, 256), (SRD_WS, 36, WS_SIZE)):
            A(f"s_mov_b32 s{n}, s{p}"); A(f"s_and_b32 s{n+1}, s{p+1}, 0xffff")
            A(f"s_mov_b32 s{n+2}, {size}"); A(f"s_mov_b32 s{n+3}, 0x20000")

    def t0_dma(self):
        A = self.A
        l = A.newlabel("zi")
        A(f"s_cmp_lg_u32 s2, 0"); A(f"s_cbranch_scc1 {l}")
        A(f"s_cmp_lg_u32 s{sW}, 3"); A(f"s_cbranch_scc1 {l}")
        A(f"v_lshlrev_b32 v250, 8, v{vL}"); A("v_mov_b32 v251, 0")
        A.opt(f"buffer_store_dword v251, v250, {srd(SRD_WS)}, 0 offen sc1")
        A("v_add_u32 v250, 16384, v250")
        A.opt(f"buffer_store_dword v251, v250, {srd(SRD_WS)}, 0 offen sc1")
        A.label(l)
        A(f"s_lshl_b32 s{sG}, s{sRB64}, 16"); A(f"s_lshl_b32 s{sT0}, s{sW}, 13"); A(f"s_add_u32 s{sG}, s{sG}, s{sT0}")
        A(f"s_lshl_b32 s{sG2}, s{sC}, 7"); A(f"s_add_u32 s{sG2}, s{sG2}, s{sT0}")
        A(f"s_lshl_b32 s{sT1}, s{sW}, 10")
        self.chunk_pos = []
        for q in range(8):
            for half in range(2):
                A(f"s_add_u32 m0, s{sT1}, {A0 + q*8192 + half*4096}")
                A(f"s_add_u32 s{sT0}, s{sG}, {q*128 + half*32768}")
                A(f"buffer_load_dwordx4 v14, {srd(SRD_X)}, s{sT0} offen lds")
            for half in range(2):
                A(f"s_add_u32 m0, s{sT1}, {B0 + q*8192 + half*4096}")
                A(f"s_add_u32 s{sT0}, s{sG2}, {q*65536 + half*32768}")
                A(f"buffer_load_dwordx4 v{vSTR}, {srd(SRD_W1)}, s{sT0} offen lds")
            self.chunk_pos.append(A.vm_pos())
        for g in self.job_strip_qkv(1, 0, 12, C0):
            for ins in g: A(ins)
        self.pos_kA = A.vm_pos()

    def job_strip_qkv(self, which, s0, ns, lds0):
        code = [f"s_lshl_b32 s{sG2}, s{sC}, 7", f"s_add_u32 s{sG2}, s{sG2}, {which*1024 + s0*16*3072}"]
        return self.dma_units(SRD_WQKV, [vSTRQ], code, 8*3072, lds0, 2*ns)

    def job_strip(self, srdn, k0, nunits, lds0):
        code = [f"s_lshl_b32 s{sG2}, s{sC}, 7", f"s_add_u32 s{sG2}, s{sG2}, {k0*1024}"]
        return self.dma_units(srdn, [vSTR], code, 8192, lds0, nunits)

    def job_w3(self, s0, ns, lds0):
        code = [f"s_lshl_b32 s{sG2}, s{sCB0}, 6", f"s_add_u32 s{sG2}, s{sG2}, {s0*16*2752}"]
        return self.dma_units(SRD_W3, list(vW3), code, 16*2752, lds0, ns)

    def setup2(self):
        A = self.A
        A(f"s_mov_b32 s{sONES}, 0x3f803f80"); A(f"s_mov_b32 s{sPLO}, 0x05040100"); A(f"s_mov_b32 s{sPHI}, 0x07060302")
        A(f"s_mul_i32 s{sCB0}, s{sFT}, 3"); A(f"s_mov_b32 s{sNBLK}, 3")
        A(f"s_cmp_lt_u32 s{sFT}, 11"); l = A.newlabel("ft"); A(f"s_cbranch_scc1 {l}")
        A(f"s_lshl_b32 s{sCB0}, s{sFT}, 1"); A(f"s_add_u32 s{sCB0}, s{sCB0}, 11"); A(f"s_mov_b32 s{sNBLK}, 2")
        A.label(l)
        T = vT
        A(f"v_bfe_u32 v{T}, v{vL}, 2, 2")
        A(f"v_and_b32 v{T+1}, 3, v{vL}"); A(f"v_lshlrev_b32 v{T+1}, 3, v{T+1}")
        A(f"v_bfe_u32 v{T+2}, v{vL}, 4, 1"); A(f"v_lshl_add_u32 v{T+1}, v{T+2}, 5, v{T+1}")
        A(f"v_lshrrev_b32 v{T+2}, 1, v{T}")
        A(f"v_xor_b32 v{T+3}, s{sCG}, v{T+2}")
        A(f"v_lshlrev_b32 v{T+3}, 6, v{T+3}")
        A(f"v_lshl_add_u32 v{T+4}, v{T}, 7, v{T+1}")
        A(f"v_add_u32 v{T+4}, v{T+4}, v{T+3}")
        A(f"v_lshl_add_u32 v{vTRN}, v{vH}, 10, v{T+4}")
        A(f"v_lshl_add_u32 v{vTRC0}, v{vH}, 9, v{T+4}")
        A(f"v_xor_b32 v{vTRC1}, 64, v{vTRC0}")
        A(f"v_mul_u32_u24 v{T+5}, 192, v{T}"); A(f"v_add_u32 v{T+5}, v{T+5}, v{T+1}")
        A(f"v_mul_u32_u24 v{T+6}, 768, v{vH}"); A(f"v_add_u32 v{vTR3}, v{T+5}, v{T+6}")
        A(f"s_mov_b32 s{sT0}, 43691"); A(f"s_movk_i32 s{sT1}, 2752")
        for j in range(3):
            A(f"v_add_u32 v{T}, {64*j}, v{vL}")
            A(f"v_mul_u32_u24 v{T+1}, s{sT0}, v{T}"); A(f"v_lshrrev_b32 v{T+1}, 19, v{T+1}")
            A(f"v_mul_u32_u24 v{T+2}, 12, v{T+1}"); A(f"v_sub_u32 v{T+2}, v{T}, v{T+2}")
            A(f"v_mul_u32_u24 v{T+1}, s{sT1}, v{T+1}")
            A(f"v_lshl_add_u32 v{vW3[j]}, v{T+2}, 4, v{T+1}")

    def p1_h(self):
        A = self.A
        T = vT
        vXA = [T, T+1, T+2, T+3]; vXS = [T+4, T+5]
        A(f"s_lshl_b32 s{sT0}, s{sRBK}, 5"); A(f"v_add_u32 v{T+6}, s{sT0}, v{vM}")
        A(f"v_bfe_u32 v{T+7}, v{T+6}, 1, 3"); A(f"v_xor_b32 v{T+7}, v{T+7}, v{vH}"); A(f"v_lshlrev_b32 v{T+7}, 4, v{T+7}")
        A(f"v_lshl_add_u32 v{vXA[0]}, v{T+6}, 7, v{T+7}")
        for s in range(1, 4): A(f"v_xor_b32 v{vXA[s]}, {32*s}, v{vXA[0]}")
        A(f"s_lshl_b32 s{sT0}, s{sCG}, 6"); A(f"v_xor_b32 v{vXS[0]}, s{sT0}, v{vXA[0]}"); A(f"v_xor_b32 v{vXS[1]}, 32, v{vXS[0]}")
        vXR = T+8
        A(f"v_bfe_u32 v{T+7}, v{T+6}, 1, 3"); A(f"s_lshl_b32 s{sT0}, s{sCG}, 2"); A(f"v_xor_b32 v{T+7}, s{sT0}, v{T+7}")
        A(f"v_lshlrev_b32 v{T+7}, 4, v{T+7}"); A(f"v_lshl_add_u32 v{T+7}, v{T+6}, 7, v{T+7}")
        A(f"v_lshl_add_u32 v{T+7}, v{vH}, 3, v{T+7}"); A(f"s_lshl_b32 s{sT0}, s{sC}, 13"); A(f"v_add_u32 v{vXR}, s{sT0}, v{T+7}")
        vWB = T+9
        A(f"v_add_u32 v{vWB}, {B0}, v{vTRN}")
        vS0, vS1, vQ0, vQ1, vC0, vC1 = T+10, T+11, T+12, T+13, T+14, T+15
        for r in (vS0, vS1, vQ0, vQ1, vC0, vC1): A(f"v_mov_b32 v{r}, 0")
        XT = T+16
        acc = vACC0
        def reads(q):
            L = []
            for s in range(4):
                b = vRING + 4*(4*(q & 1) + s)
                st = 4*q + s
                L.append([f"ds_read_b128 {a(4*st,4)}, v{vXA[s]} offset:{q*8192}",
                          f"ds_read_b64_tr_b16 {v(b,2)}, v{vWB} offset:{st*2048}",
                          f"ds_read_b64_tr_b16 {v(b+2,2)}, v{vWB} offset:{st*2048+512}"])
            L[0].append(f"ds_read_b128 {v(XT+8*(q&1),4)}, v{vXS[0]} offset:{q*8192}")
            L[1].append(f"ds_read_b128 {v(XT+8*(q&1)+4,4)}, v{vXS[1]} offset:{q*8192}")
            return L
        def burst(q):
            x = XT + 8*(q & 1)
            for i in range(8):
                A(f"v_dot2c_f32_bf16 v{vS0 + (i&1)}, s{sONES}, v{x+i}")
                A(f"v_dot2c_f32_bf16 v{vQ0 + (i&1)}, v{x+i}, v{x+i}")
            l1 = A.newlabel("cs"); l2 = A.newlabel("ce")
            b = vRING + 16*(q & 1)
            A(f"s_cmp_lg_u32 s{sRBK}, 0"); A(f"s_cbranch_scc1 {l1}")
            for i in range(8): A(f"v_dot2c_f32_bf16 v{vC0 + (i&1)}, s{sONES}, v{b+i}")
            A(f"s_branch {l2}")
            A.label(l1)
            for i in range(8): A(f"v_dot2c_f32_bf16 v{vC0 + (i&1)}, s{sONES}, v{b+8+i}")
            A.label(l2)
        for q in range(9):
            if q < 8:
                A.wait(vm=self.chunk_pos[q])
                if q == 0:
                    l = A.newlabel("fi")
                    A(f"s_cmp_lg_u32 s2, 0"); A(f"s_cbranch_scc1 {l}")
                    A(f"s_cmp_lg_u32 s{sW}, 3"); A(f"s_cbranch_scc1 {l}")
                    A("v_mov_b32 v250, 0"); A("v_mov_b32 v251, 1")
                    A(f"s_mov_b64 s[{sEXS}:{sEXS+1}], exec"); A("s_mov_b64 exec, 1")
                    A.opt(f"buffer_store_dword v251, v250, {srd(SRD_DBG)}, 0 offen sc1")
                    A(f"s_mov_b64 exec, s[{sEXS}:{sEXS+1}]")
                    A.label(l)
            A.wait_all_lg()
            if q < 8: A("s_barrier")
            rd = reads(q) if q < 8 else [[], [], [], []]
            if q < 8 and q == 0:
                self.stamp("chunk0")
            if q == 0:
                for g in rd:
                    for ins in g: A(ins)
                continue
            p = q - 1
            for s in range(4):
                st = 4*p + s
                b = vRING + 4*(4*(p & 1) + s)
                c = "0" if st == 0 else v(acc, 16)
                A(f"v_mfma_f32_32x32x16_bf16 {v(acc,16)}, {v(b,4)}, {a(4*st,4)}, {c}")
                for ins in rd[s]: A(ins)
            if q == 8:
                for g in range(4):
                    A(f"v_xor_b32 v{T+32}, {16*g}, v{vXR}")
                    A(f"ds_read_b64 {v(vXRES+2*g,2)}, v{T+32}")
            burst(p)
        self.vS = (vS0, vS1, vQ0, vQ1, vC0, vC1)

    def colsum_finish(self, vC0, vC1, scr_off, tmp):
        A = self.A
        A.nop(3)
        A(f"v_add_f32 v{vC0}, v{vC0}, v{vC1}")
        self.swap_add(vC0, tmp)
        A(f"s_lshl_b32 s{sT0}, s{sW}, 7"); A(f"v_lshl_add_u32 v{tmp}, v{vM}, 2, s{sT0}")
        A(f"v_add_u32 v{tmp}, {scr_off}, v{tmp}")
        A(f"ds_write_b32 v{tmp}, v{vC0}")
        A.wait_all_lg()
        A("s_barrier")
        A(f"v_xor_b32 v{tmp}, 128, v{tmp}")
        A(f"ds_read_b32 v{vC1}, v{tmp}")
        A(f"v_cmp_gt_u32 vcc, 32, v{vL}")
        A.wait_all_lg()
        A(f"v_add_f32 v{vC0}, v{vC0}, v{vC1}")
        A(f"v_cndmask_b32 v{vC0}, 0, v{vC0}, vcc")

    def p1_h_finish(self):
        A = self.A
        T = vT
        vS0, vS1, vQ0, vQ1, vC0, vC1 = self.vS
        acc = vACC0
        A.nop(3)
        A(f"v_add_f32 v{vS0}, v{vS0}, v{vS1}"); A(f"v_add_f32 v{vQ0}, v{vQ0}, v{vQ1}"); A(f"v_add_f32 v{vC0}, v{vC0}, v{vC1}")
        tmp = T+33
        self.swap_add(vS0, tmp); self.swap_add(vQ0, tmp); self.swap_add(vC0, tmp)
        A(f"s_lshl_b32 s{sT0}, s{sW}, 8"); A(f"v_lshl_add_u32 v{tmp}, v{vM}, 3, s{sT0}"); A(f"v_add_u32 v{tmp}, {SCR1}, v{tmp}")
        A(f"v_mov_b32 v{vS1}, v{vQ0}")
        A(f"ds_write_b64 v{tmp}, {v(vS0,2)}")
        A(f"s_lshl_b32 s{sT0}, s{sW}, 7"); A(f"v_lshl_add_u32 v{tmp+1}, v{vM}, 2, s{sT0}"); A(f"v_add_u32 v{tmp+1}, {SCR1+1024}, v{tmp+1}")
        A(f"ds_write_b32 v{tmp+1}, v{vC0}")
        A.wait_all_lg()
        A("s_barrier")
        A(f"v_xor_b32 v{tmp}, 512, v{tmp}"); A(f"v_xor_b32 v{tmp+1}, 128, v{tmp+1}")
        A(f"ds_read_b64 {v(vQ0,2)}, v{tmp}")
        A(f"ds_read_b32 v{vC1}, v{tmp+1}")
        for g in self.job_strip_qkv(1, 12, 20, A0):
            for ins in g: A(ins)
        self.pos_kB = A.vm_pos()
        A(f"v_cmp_gt_u32 vcc, 32, v{vL}")
        A.wait_all_lg()
        A(f"v_add_f32 v{vS0}, v{vS0}, v{vQ0}"); A(f"v_add_f32 v{vS1}, v{vS1}, v{vQ1}"); A(f"v_add_f32 v{vC0}, v{vC0}, v{vC1}")
        A(f"v_cndmask_b32 v{vC0}, 0, v{vC0}, vcc")
        A(f"v_mul_f32 v{vS0}, {fbits(1/512)}, v{vS0}")
        A(f"v_mul_f32 v{vS1}, {fbits(1/512)}, v{vS1}")
        A(f"v_sub_f32 v{vNMU}, 0, v{vS0}")
        A(f"v_fma_f32 v{vS1}, v{vNMU}, v{vS0}, v{vS1}")
        A(f"v_max_f32 v{vS1}, 0, v{vS1}")
        A(f"v_mfma_f32_32x32x2_f32 {v(acc,16)}, v{vC0}, v{vNMU}, {v(acc,16)}")
        A(f"v_add_f32 v{vQ0}, {fbits(1e-5)}, v{vS1}")
        A(f"v_rsq_f32 v{vR}, v{vQ0}")
        A.nop(1)
        A(f"v_mul_f32 v{vQ0}, v{vR}, v{vR}"); A(f"v_mul_f32 v{vQ0}, v{vQ0}, v{vS1}")
        A(f"v_add_f32 v{vQ0}, {fbits(1e-5)}, v{vQ0}")
        A(f"v_rsq_f32 v{vQ0}, v{vQ0}")
        A.nop(1)
        A(f"v_mul_f32 v{vQ0}, v{vQ0}, v{vR}")
        self.gelu_block(acc, vQ0, T+34, wait_states=18 - 8)
        A(f"s_lshl_b32 s{sT0}, s{sRB64}, 1"); A(f"s_add_u32 s{sT0}, s{sT0}, s{sRBK}"); A(f"s_lshl_b32 s{sT0}, s{sT0}, 15")
        A(f"s_lshl_b32 s{sT1}, s{sC}, 12"); A(f"s_add_u32 s{sT0}, s{sT0}, s{sT1}")
        A(f"s_lshl_b32 s{sT1}, s{sCG}, 11"); A(f"s_add_u32 s{sT0}, s{sT0}, s{sT1}"); A(f"s_add_u32 s{sT0}, s{sT0}, {WS_H}")
        A(f"buffer_store_dwordx4 {v(acc,4)}, v{vL16}, {srd(SRD_WS)}, s{sT0} offen sc1")
        A(f"buffer_store_dwordx4 {v(acc+4,4)}, v{vL16}, {srd(SRD_WS)}, s{sT0} offen offset:1024 sc1")
        pos = A.vm_pos()
        self.side += self.job_strip_qkv(2, 0, 32, B0)
        self.pump(4)
        self.arrive([f"s_lshl_b32 s{sT0}, s{sRB64}, 8", f"s_add_u32 s{sT0}, s{sT0}, {WS_CNT + CNT_H*CNT_STRIDE}"], pos, "h", init_check=True)

    def gelu_block(self, acc, vS, tmp, wait_states):
        A = self.A
        K1, K0, RI = tmp, tmp+2, tmp+4
        t = tmp + 6
        A(f"v_mul_f32 v{K0}, {fbits(C0G)}, v{vS}")
        A(f"v_mul_f32 v{K1}, v{vS}, v{vS}"); A(f"v_mul_f32 v{K1}, v{K1}, v{vS}"); A(f"v_mul_f32 v{K1}, {fbits(C1G)}, v{K1}")
        A(f"v_rcp_f32 v{RI}, v{vS}")
        A(f"v_mov_b32 v{K0+1}, v{K0}"); A(f"v_mov_b32 v{K1+1}, v{K1}"); A(f"v_mov_b32 v{RI+1}, v{RI}")
        if wait_states - 8 > 0: A.nop(wait_states - 8)
        for p in range(0, 16, 4):
            x0, x1 = acc + p, acc + p + 2
            u0, u1 = t, t + 2
            A(f"v_pk_mul_f32 {v(u0,2)}, {v(x0,2)}, {v(x0,2)}")
            A(f"v_pk_mul_f32 {v(u1,2)}, {v(x1,2)}, {v(x1,2)}")
            A(f"v_pk_fma_f32 {v(u0,2)}, {v(u0,2)}, {v(K1,2)}, {v(K0,2)}")
            A(f"v_pk_fma_f32 {v(u1,2)}, {v(u1,2)}, {v(K1,2)}, {v(K0,2)}")
            A(f"v_pk_mul_f32 {v(u0,2)}, {v(u0,2)}, {v(x0,2)}")
            A(f"v_pk_mul_f32 {v(u1,2)}, {v(u1,2)}, {v(x1,2)}")
            for r in (u0, u0+1, u1, u1+1): A(f"v_exp_f32 v{r}, v{r}")
            A(f"v_pk_fma_f32 {v(u0,2)}, {v(u0,2)}, {v(RI,2)}, {v(RI,2)}")
            A(f"v_pk_fma_f32 {v(u1,2)}, {v(u1,2)}, {v(RI,2)}, {v(RI,2)}")
            for r in (u0, u0+1, u1, u1+1): A(f"v_rcp_f32 v{r}, v{r}")
            A(f"v_pk_mul_f32 {v(u0,2)}, {v(u0,2)}, {v(x0,2)}")
            A(f"v_pk_mul_f32 {v(u1,2)}, {v(u1,2)}, {v(x1,2)}")
            A(f"v_cvt_pk_bf16_f32 v{acc + p//2}, v{u0}, v{u0+1}")
            A(f"v_cvt_pk_bf16_f32 v{acc + p//2 + 1}, v{u1}, v{u1+1}")

    def qkv_block(self, addr, hooks, dst, scr_off, side_rate=2):
        A = self.A
        T = vT
        acc = vACC0
        PD = 3
        bases = {}
        for st in range(32):
            for d in (0, 512):
                win = (addr(st) + d) // 65536
                if win not in bases:
                    r = T + 40 + len(bases)
                    if win: A(f"v_add_u32 v{r}, {win*65536}, v{vTRN}")
                    else: A(f"v_mov_b32 v{r}, v{vTRN}")
                    bases[win] = r
        vC0, vC1 = T+14, T+15
        A(f"v_mov_b32 v{vC0}, 0"); A(f"v_mov_b32 v{vC1}, 0")
        lgpos = {}
        def burst(steps):
            for st in steps:
                b = vRING + 4*(st % 20)
                for i in range(4): A(f"v_dot2c_f32_bf16 v{vC0 + (i&1)}, s{sONES}, v{b+i}")
        for s in range(32 + PD):
            if s < 32:
                if s in hooks: hooks[s]()
                ad = addr(s)
                b = vRING + 4*(s % 20)
                for (kk, d) in ((0, 0), (2, 512)):
                    x = ad + d
                    A(f"ds_read_b64_tr_b16 {v(b+kk,2)}, v{bases[x // 65536]} offset:{x % 65536}")
                lgpos[s] = A.lg_pos()
            if s >= PD:
                t = s - PD
                A.wait(lg=lgpos[t])
                b = vRING + 4*(t % 20)
                c = "0" if t == 0 else v(acc, 16)
                A(f"v_mfma_f32_32x32x16_bf16 {v(acc,16)}, {v(b,4)}, {a(4*t,4)}, {c}")
                if t % side_rate == 0: self.pump(1)
                if t == 15:
                    l = A.newlabel("b0")
                    A(f"s_cmp_lg_u32 s{sRBK}, 0"); A(f"s_cbranch_scc1 {l}")
                    burst(range(0, 16))
                    A.label(l)
        l = A.newlabel("b1")
        A(f"s_cmp_lg_u32 s{sRBK}, 1"); A(f"s_cbranch_scc1 {l}")
        burst(range(16, 32))
        A.label(l)
        self.colsum_finish(vC0, vC1, scr_off, T+33)
        A.nop(2)
        A(f"v_mfma_f32_32x32x2_f32 {v(acc,16)}, v{vC0}, v{vNMU}, {v(acc,16)}")
        A.nop(18)
        for i in range(8):
            A(f"v_mul_f32 v{acc+2*i}, v{vR}, v{acc+2*i}"); A(f"v_mul_f32 v{acc+2*i+1}, v{vR}, v{acc+2*i+1}")
            A(f"v_cvt_pk_bf16_f32 v{dst+i}, v{acc+2*i}, v{acc+2*i+1}")
        A.nop(2)
        for i in range(4): A(f"v_permlane32_swap_b32 v{dst+i}, v{dst+4+i}")

    def shadow1(self):
        A = self.A
        def addr_k(s): return C0 + s*2048 if s < 12 else A0 + (s-12)*2048
        def hk0(): A.wait(vm=self.pos_kA); A("s_barrier")
        def hk12(): A.wait(vm=self.pos_kB); A("s_barrier")
        self.qkv_block(addr_k, {0: hk0, 12: hk12}, vKP, SCR1 + 1024)
        self.flush_side()
        self.pos_v = A.vm_pos()
        self.stamp("k done")
        self.side += self.job_strip(SRD_W2, 0, 64, A0)
        def hv0(): A.wait(vm=self.pos_v); A("s_barrier")
        self.qkv_block(lambda s: B0 + s*2048, {0: hv0}, vVP, SCR1 + 2048)
        self.flush_side()
        self.pos_w2 = A.vm_pos()
        self.stamp("v done")
        l = A.newlabel("halo")
        A(f"s_cmp_lg_u32 s{sRBK}, 1"); A(f"s_cbranch_scc1 {l}")
        T = vT
        A(f"s_lshl_b32 s{sT0}, s{sRB64}, 3"); A(f"s_add_u32 s{sT0}, s{sT0}, s{sC}"); A(f"s_lshl_b32 s{sT0}, s{sT0}, 12")
        A(f"s_lshl_b32 s{sT1}, s{sCG}, 10"); A(f"s_add_u32 s{sT0}, s{sT0}, s{sT1}"); A(f"s_add_u32 s{sT0}, s{sT0}, {WS_KV}")
        A(f"v_subrev_u32 v{T}, 16, v{vM}"); A(f"v_lshlrev_b32 v{T}, 4, v{T}"); A(f"v_lshl_add_u32 v{T}, v{vH}, 9, v{T}")
        A(f"v_cmp_le_u32 vcc, 16, v{vM}")
        A(f"s_and_saveexec_b64 s[{sEXS}:{sEXS+1}], vcc")
        A.opt(f"buffer_store_dwordx4 {v(vKP,4)}, v{T}, {srd(SRD_WS)}, s{sT0} offen sc1")
        A.opt(f"buffer_store_dwordx4 {v(vKP+4,4)}, v{T}, {srd(SRD_WS)}, s{sT0} offen offset:256 sc1")
        A.opt(f"buffer_store_dwordx4 {v(vVP,4)}, v{T}, {srd(SRD_WS)}, s{sT0} offen offset:2048 sc1")
        A.opt(f"buffer_store_dwordx4 {v(vVP+4,4)}, v{T}, {srd(SRD_WS)}, s{sT0} offen offset:2304 sc1")
        A(f"s_mov_b64 exec, s[{sEXS}:{sEXS+1}]")
        A.label(l)
        self.arrive([f"s_lshl_b32 s{sT0}, s{sRB64}, 8", f"s_add_u32 s{sT0}, s{sT0}, {WS_CNT + CNT_KV*CNT_STRIDE}"], A.vm_pos(), "kv halo")

    def ksplit_gemm(self, nsteps, wbase_vregs, waddr, act_load, first, nring_regs, PDL, hooks=None, side_rate=1, tail=None):
        A = self.A
        hooks = hooks or {}
        acts = {}; apos = {}
        def issue(i):
            acts[i] = act_load(i); apos[i] = A.vm_pos()
        for i in range(min(PDL, nsteps)): issue(i)
        PD = 2
        lgpos = {}
        for s in range(nsteps + PD):
            if s < nsteps:
                if s in hooks: hooks[s]()
                ad = waddr(s)
                if ad is not None:
                    for cb in range(2):
                        b = vRING + 4*(2*(s % 4) + cb)
                        A(f"ds_read_b64_tr_b16 {v(b,2)}, v{wbase_vregs[cb]} offset:{ad}")
                        A(f"ds_read_b64_tr_b16 {v(b+2,2)}, v{wbase_vregs[cb]} offset:{ad+1024}")
                lgpos[s] = A.lg_pos()
            if s >= PD:
                t = s - PD
                A.wait(vm=apos[t], lg=lgpos[t] if waddr(t) is not None else None)
                for cb in range(2):
                    acc = (vACC0, vACC1)[cb]
                    c = "0" if (first and t == 0) else v(acc, 16)
                    if waddr(t) is not None:
                        wa = v(vRING + 4*(2*(t % 4) + cb), 4)
                    else:
                        wa = a(tail(t)[cb], 4)
                    A(f"v_mfma_f32_32x32x16_bf16 {v(acc,16)}, {wa}, {a(acts[t],4)}, {c}")
                if t + PDL < nsteps: issue(t + PDL)
                elif t % side_rate == 0: self.pump(1)

    def pair_reduce(self, scr):
        A = self.A
        T = vT
        A(f"s_lshl_b32 s{sT0}, s{sW}, 12"); A(f"s_add_u32 s{sT1}, s{sT0}, {scr}"); A(f"v_add_u32 v{T}, s{sT1}, v{vL16}")
        A(f"s_xor_b32 s{sT0}, s{sT0}, 8192"); A(f"s_add_u32 s{sT0}, s{sT0}, {scr}"); A(f"v_add_u32 v{T+1}, s{sT0}, v{vL16}")
        A.nop(12 - 6)
        for j in range(4): A(f"ds_write_b128 v{T}, {v(vACC1+4*j,4)} offset:{1024*j}")
        A.wait_all_lg()
        A("s_barrier")
        for j in range(4): A(f"ds_read_b128 {v(T+4+4*j,4)}, v{T+1} offset:{1024*j}")
        for j in range(4):
            A.wait(lg=A.lg_pos() - (3 - j))
            for i in range(4): A(f"v_add_f32 v{vACC0+4*j+i}, v{vACC0+4*j+i}, v{T+4+4*j+i}")

    def p2(self):
        A = self.A
        T = vT
        code = [f"s_add_u32 s{sT0}, s{sRB64}, -1", f"v_add_u32 v250, s{sT0}, v{vL}",
                "v_max_i32 v250, 0, v250", "v_min_i32 v250, 31, v250",
                "v_lshlrev_b32 v250, 8, v250", f"v_add_u32 v250, {WS_CNT + CNT_H*CNT_STRIDE}, v250"]
        A.wait(vm=self.pos_w2)
        self.poll(code, 3, 8, "h")
        self.stamp("sync1")
        vA, vB = T+50, T+51
        A(f"s_lshl_b32 s{sT0}, s{sRB64}, 6"); A(f"s_lshl_b32 s{sT1}, s{sRBK}, 5"); A(f"s_add_u32 s{sT0}, s{sT0}, s{sT1}")
        A(f"s_add_u32 s{sT1}, s{sCG}, 1")
        for (dst, sign) in ((vA, -1), (vB, +1)):
            A(f"v_add_u32 v{T}, s{sT0}, v{vM}")
            if sign < 0: A(f"v_subrev_u32 v{T}, s{sT1}, v{T}")
            else: A(f"v_add_u32 v{T}, s{sT1}, v{T}")
            A(f"v_lshrrev_b32 v{T+1}, 5, v{T}"); A(f"v_lshlrev_b32 v{T+1}, 15, v{T+1}")
            A(f"v_and_b32 v{T+2}, 31, v{T}"); A(f"v_lshl_add_u32 v{T+1}, v{T+2}, 4, v{T+1}")
            A(f"v_lshl_add_u32 v{T+1}, v{vH}, 9, v{T+1}")
            A(f"v_mov_b32 v{T+2}, 0x80000000")
            A(f"s_movk_i32 s{sT2}, 2048"); A(f"v_cmp_gt_u32 vcc, s{sT2}, v{T}")
            A.nop(2)
            A(f"v_cndmask_b32 v{dst}, v{T+2}, v{T+1}, vcc")
        vW0, vW1 = T+52, T+53
        A(f"s_lshl_b32 s{sT0}, s{sCG}, 15"); A(f"v_add_u32 v{vW0}, s{sT0}, v{vTRC0}"); A(f"v_add_u32 v{vW1}, s{sT0}, v{vTRC1}")
        A(f"s_lshl_b32 s{sG}, s{sCG}, 14"); A(f"s_add_u32 s{sG}, s{sG}, {WS_H}")
        def act(i):
            if i % 4 == 0 and i > 0: A(f"s_add_u32 s{sG}, s{sG}, 4096")
            r = 128 + 4*i
            A(f"buffer_load_dwordx4 {a(r,4)}, v{vA if i < 8 else vB}, {srd(SRD_WS)}, s{sG} offen offset:{(i%4)*1024} sc1")
            return r
        q_job = self.job_strip_qkv(0, 0, 32, B0)
        w3c = self.job_w3(0, 8, C0)
        self.side += q_job + w3c
        self.ksplit_gemm(16, (vW0, vW1), lambda i: i*2048, act, True, 0, 16, side_rate=1)
        A("s_barrier")
        self.stamp("p2 main")
        self.pair_reduce(A0 + 51200)
        X = T+20
        for j in range(8):
            A(f"v_lshlrev_b32 v{X+2*j}, 16, v{vXRES+j}"); A(f"v_and_b32 v{X+2*j+1}, 0xffff0000, v{vXRES+j}")
        S0, S1 = T+40, T+41
        A(f"v_mov_b32 v{S0}, 0"); A(f"v_mov_b32 v{S1}, 0")
        for i in range(16):
            A(f"v_add_f32 v{T+42}, v{vNMU}, v{X+i}")
            A(f"v_fmac_f32 v{vACC0+i}, v{vR}, v{T+42}")
            A(f"v_add_f32 v{vRESID+i}, v{X+i}, v{vACC0+i}")
            A(f"v_add_f32 v{S0}, v{S0}, v{vACC0+i}")
            A(f"v_fmac_f32 v{S1}, v{vACC0+i}, v{vACC0+i}")
        for i in range(8): A(f"v_cvt_pk_bf16_f32 v{X+i}, v{vACC0+2*i}, v{vACC0+2*i+1}")
        A(f"s_lshl_b32 s{sT0}, s{sRB64}, 1"); A(f"s_add_u32 s{sT0}, s{sT0}, s{sRBK}"); A(f"s_lshl_b32 s{sT2}, s{sT0}, 15")
        A(f"s_lshl_b32 s{sT1}, s{sC}, 12"); A(f"s_add_u32 s{sT2}, s{sT2}, s{sT1}")
        A(f"s_lshl_b32 s{sT1}, s{sCG}, 11"); A(f"s_add_u32 s{sT2}, s{sT2}, s{sT1}"); A(f"s_add_u32 s{sT2}, s{sT2}, {WS_X1}")
        A(f"buffer_store_dwordx4 {v(X,4)}, v{vL16}, {srd(SRD_WS)}, s{sT2} offen sc1")
        A(f"buffer_store_dwordx4 {v(X+4,4)}, v{vL16}, {srd(SRD_WS)}, s{sT2} offen offset:1024 sc1")
        self.swap_add(S0, T+42); self.swap_add(S1, T+42)
        A(f"s_lshl_b32 s{sT0}, s{sT0}, 12"); A(f"s_lshl_b32 s{sT1}, s{sC}, 9"); A(f"s_add_u32 s{sT0}, s{sT0}, s{sT1}")
        A(f"s_lshl_b32 s{sT1}, s{sCG}, 8"); A(f"s_add_u32 s{sT0}, s{sT0}, s{sT1}"); A(f"s_add_u32 s{sT0}, s{sT0}, {WS_X1S}")
        A(f"v_lshlrev_b32 v{T+42}, 3, v{vM}")
        A(f"buffer_store_dwordx2 {v(S0,2)}, v{T+42}, {srd(SRD_WS)}, s{sT0} offen sc1")
        pos = A.vm_pos()
        self.flush_side()
        self.pos_q = A.vm_pos()
        for g in self.job_w3(8, 16, A0):
            for ins in g: A(ins)
        self.arrive([f"s_lshl_b32 s{sT0}, s{sRB128}, 8", f"s_add_u32 s{sT0}, s{sT0}, {WS_CNT + CNT_X1*CNT_STRIDE}"], pos, "x1")

    def shadow2(self):
        A = self.A
        T = vT
        self.side += self.job_w3(24, 4, A0 + 49152)
        j2 = self.job_w3_small(28, 2, A0 + 61440)
        self.side += j2
        def hq0(): A.wait(vm=self.pos_q); A("s_barrier")
        self.qkv_block(lambda s: B0 + s*2048, {0: hq0}, vQP, SCR1 + 1024)
        self.flush_side()
        self.stamp("q done")
        code = [f"s_add_u32 s{sT0}, s{sRB64}, -1", f"s_max_i32 s{sT0}, s{sT0}, 0", f"s_lshl_b32 s{sT0}, s{sT0}, 8",
                f"s_add_u32 s{sT0}, s{sT0}, {WS_CNT + CNT_KV*CNT_STRIDE}", f"v_mov_b32 v250, s{sT0}"]
        self.poll(code, 1, 8, "kv halo")
        for g in self.job_w3_small(30, 2, C0 + 8*3072):
            for ins in g: A(ins)
        self.pos_w3 = A.vm_pos()
        KV = B0
        vKA = T
        A(f"s_lshl_b32 s{sT0}, s{sCG}, 1"); A(f"v_add_u32 v{T+1}, s{sT0}, v{vH}")
        A(f"v_mul_u32_u24 v{T+1}, 2560, v{T+1}")
        A(f"s_lshl_b32 s{sT0}, s{sRBK}, 5"); A(f"s_add_u32 s{sT0}, s{sT0}, 16"); A(f"v_add_u32 v{T+2}, s{sT0}, v{vM}")
        A(f"v_lshl_add_u32 v{vKA}, v{T+2}, 4, v{T+1}"); A(f"v_add_u32 v{vKA}, {KV}, v{vKA}")
        A(f"ds_write_b128 v{vKA}, {v(vKP,4)}"); A(f"ds_write_b128 v{vKA}, {v(vKP+4,4)} offset:1280")
        A(f"ds_write_b128 v{vKA}, {v(vVP,4)} offset:10240"); A(f"ds_write_b128 v{vKA}, {v(vVP+4,4)} offset:11520")
        H = T+4
        A(f"v_mov_b32 v{H}, 0"); A(f"v_mov_b32 v{H+1}, 0"); A(f"v_mov_b32 v{H+2}, 0"); A(f"v_mov_b32 v{H+3}, 0")
        l = A.newlabel("nohalo")
        A(f"s_cmp_eq_u32 s{sRB64}, 0"); A(f"s_cbranch_scc1 {l}")
        A(f"s_add_u32 s{sT0}, s{sRB64}, -1"); A(f"s_lshl_b32 s{sT0}, s{sT0}, 3"); A(f"s_add_u32 s{sT0}, s{sT0}, s{sC}")
        A(f"s_lshl_b32 s{sT0}, s{sT0}, 12"); A(f"s_add_u32 s{sT0}, s{sT0}, {WS_KV}")
        A(f"v_lshlrev_b32 v{T+8}, 4, v0")
        A.opt(f"buffer_load_dwordx4 {v(H,4)}, v{T+8}, {srd(SRD_WS)}, s{sT0} offen sc1")
        A("s_waitcnt vmcnt(0)")
        A.label(l)
        A(f"v_lshrrev_b32 v{T+8}, 4, v0"); A(f"v_mul_u32_u24 v{T+8}, 1280, v{T+8}")
        A(f"v_and_b32 v{T+9}, 15, v0"); A(f"v_lshl_add_u32 v{T+8}, v{T+9}, 4, v{T+8}"); A(f"v_add_u32 v{T+8}, {KV}, v{T+8}")
        A(f"ds_write_b128 v{T+8}, {v(H,4)}")
        A.wait_all_lg()
        A("s_barrier")
        self.stamp("kv staged")
        Q = vQP
        KB = vRING
        LG = T+12
        A(f"v_subrev_u32 v{T+10}, {14*16}, v{vKA}")
        for w in range(8):
            off = (14 - 2*w) * 16
            A(f"ds_read_b128 {v(KB+8*w,4)}, v{T+10} offset:{off}")
            A(f"ds_read_b128 {v(KB+8*w+4,4)}, v{T+10} offset:{off+1280}")
        base_lg = A.lg_pos() - 16
        for w in range(8): A(f"v_mov_b32 v{LG+w}, 0")
        for w in range(8):
            A.wait(lg=base_lg + 2*(w+1))
            for i in range(8): A(f"v_dot2c_f32_bf16 v{LG+w}, v{Q+i}, v{KB+8*w+i}")
        A.nop(3)
        for w in range(8):
            off = (14 - 2*w) * 16
            A(f"ds_read_b128 {v(KB+8*w,4)}, v{T+10} offset:{off+10240}")
            A(f"ds_read_b128 {v(KB+8*w+4,4)}, v{T+10} offset:{off+11520}")
        base_lg = A.lg_pos() - 16
        l = A.newlabel("nomask")
        A(f"s_cmp_lg_u32 s{sRB64}, 0"); A(f"s_cbranch_scc1 {l}")
        A(f"s_lshl_b32 s{sT0}, s{sRBK}, 5"); A(f"v_add_u32 v{T+11}, s{sT0}, v{vM}")
        A(f"v_mov_b32 v{T+20}, 0xff800000")
        for w in range(1, 8):
            A(f"v_cmp_le_u32 vcc, {2*w}, v{T+11}")
            A.nop(2)
            A(f"v_cndmask_b32 v{LG+w}, v{T+20}, v{LG+w}, vcc")
        A.label(l)
        MX = T+20
        A(f"v_max3_f32 v{MX}, v{LG}, v{LG+1}, v{LG+2}"); A(f"v_max3_f32 v{MX}, v{MX}, v{LG+3}, v{LG+4}")
        A(f"v_max3_f32 v{MX}, v{MX}, v{LG+5}, v{LG+6}"); A(f"v_max_f32 v{MX}, v{MX}, v{LG+7}")
        cs = 0.25 * 1.4426950408889634
        A(f"s_mov_b32 s{sT0}, {fbits(cs)}")
        A(f"v_mul_f32 v{MX}, {fbits(-cs)}, v{MX}")
        for w in range(8): A(f"v_fma_f32 v{LG+w}, v{LG+w}, s{sT0}, v{MX}")
        for w in range(8): A(f"v_exp_f32 v{LG+w}, v{LG+w}")
        SM = T+21
        A(f"v_add_f32 v{SM}, v{LG}, v{LG+1}")
        for w in range(2, 8): A(f"v_add_f32 v{SM}, v{SM}, v{LG+w}")
        A(f"v_rcp_f32 v{SM}, v{SM}")
        A.nop(1)
        for w in range(8): A(f"v_mul_f32 v{LG+w}, v{SM}, v{LG+w}")
        PP = T+22
        for u in range(4): A(f"v_cvt_pk_bf16_f32 v{PP+u}, v{LG+2*u}, v{LG+2*u+1}")
        O = vACC0
        TP = T+26
        for u in range(4):
            A.wait(lg=base_lg + 4*(u+1))
            va, vb = KB + 16*u, KB + 16*u + 8
            for i in range(8):
                t0, t1 = TP + 2*(i & 1), TP + 2*(i & 1) + 1
                A(f"v_perm_b32 v{t0}, v{vb+i}, v{va+i}, s{sPLO}")
                A(f"v_perm_b32 v{t1}, v{vb+i}, v{va+i}, s{sPHI}")
                if u == 0:
                    A(f"v_dot2_f32_bf16 v{O+2*i}, v{t0}, v{PP+u}, 0"); A(f"v_dot2_f32_bf16 v{O+2*i+1}, v{t1}, v{PP+u}, 0")
                else:
                    A(f"v_dot2c_f32_bf16 v{O+2*i}, v{t0}, v{PP+u}"); A(f"v_dot2c_f32_bf16 v{O+2*i+1}, v{t1}, v{PP+u}")
        A.nop(3)
        OP = T+32
        for i in range(8): A(f"v_cvt_pk_bf16_f32 v{OP+i}, v{O+2*i}, v{O+2*i+1}")
        A.nop(2)
        for i in range(4): A(f"v_permlane32_swap_b32 v{OP+i}, v{OP+4+i}")
        A(f"s_lshl_b32 s{sT0}, s{sRB64}, 1"); A(f"s_add_u32 s{sT0}, s{sT0}, s{sRBK}"); A(f"s_lshl_b32 s{sT0}, s{sT0}, 15")
        A(f"s_lshl_b32 s{sT1}, s{sC}, 12"); A(f"s_add_u32 s{sT0}, s{sT0}, s{sT1}")
        A(f"s_lshl_b32 s{sT1}, s{sCG}, 11"); A(f"s_add_u32 s{sT0}, s{sT0}, s{sT1}"); A(f"s_add_u32 s{sT0}, s{sT0}, {WS_O}")
        A(f"buffer_store_dwordx4 {v(OP,4)}, v{vL16}, {srd(SRD_WS)}, s{sT0} offen sc1")
        A(f"buffer_store_dwordx4 {v(OP+4,4)}, v{vL16}, {srd(SRD_WS)}, s{sT0} offen offset:1024 sc1")
        self.arrive([f"s_lshl_b32 s{sT0}, s{sRB64}, 8", f"s_add_u32 s{sT0}, s{sT0}, {WS_CNT + CNT_O*CNT_STRIDE}"], A.vm_pos(), "o")
        self.stamp("attn done")
        vB3 = [T, T+1, T+2]
        A(f"s_lshl_b32 s{sT0}, s{sW}, 3")
        CS = T+8
        for i in range(6): A(f"v_mov_b32 v{CS+i}, 0")
        for i in range(8):
            A(f"s_add_u32 s{sT1}, s{sT0}, {i}")
            A(f"s_mul_i32 s{sT2}, s{sT1}, 3072")
            A(f"s_add_u32 s{sT3}, s{sT2}, {C0}")
            A(f"s_sub_u32 s{sT4}, s{sT2}, {8*3072}")
            A(f"s_cmp_lt_u32 s{sT1}, 8"); A(f"s_cselect_b32 s{sT4}, s{sT3}, s{sT4}")
            A(f"s_add_u32 s{sT3}, s{sT2}, {C0 - 22*3072}")
            A(f"s_cmp_ge_u32 s{sT1}, 30"); A(f"s_cselect_b32 s{sT4}, s{sT3}, s{sT4}")
            A(f"v_add_u32 v{T+3}, s{sT4}, v{vTR3}")
            for blk in range(3):
                b = vRING + 4*(3*(i % 2) + blk)
                A(f"ds_read_b64_tr_b16 {v(b,2)}, v{T+3} offset:{blk*64}")
                A(f"ds_read_b64_tr_b16 {v(b+2,2)}, v{T+3} offset:{blk*64+1536}")
            A.wait_all_lg()
            for blk in range(3):
                b = vRING + 4*(3*(i % 2) + blk)
                for r in range(4): A(f"v_dot2c_f32_bf16 v{CS+2*blk+(r&1)}, s{sONES}, v{b+r}")
        A.nop(3)
        SC3 = B0 + 24576
        for blk in range(3):
            A(f"v_add_f32 v{CS+2*blk}, v{CS+2*blk}, v{CS+2*blk+1}")
            self.swap_add(CS+2*blk, T+4)
        A(f"s_mul_i32 s{sT0}, s{sW}, 384"); A(f"v_lshl_add_u32 v{T+4}, v{vM}, 2, s{sT0}"); A(f"v_add_u32 v{T+4}, {SC3}, v{T+4}")
        for blk in range(3): A(f"ds_write_b32 v{T+4}, v{CS+2*blk} offset:{128*blk}")
        A.wait_all_lg()
        A("s_barrier")
        A(f"v_lshlrev_b32 v{T+4}, 2, v{vM}"); A(f"v_add_u32 v{T+4}, {SC3}, v{T+4}")
        for w in range(4):
            for blk in range(3): A(f"ds_read_b32 v{T+16+4*blk+w}, v{T+4} offset:{384*w+128*blk}")
        A(f"v_cmp_gt_u32 vcc, 32, v{vL}")
        A.wait_all_lg()
        self.vC3 = [T+46, T+47, T+48]
        for blk in range(3):
            b = T+16+4*blk
            A(f"v_add_f32 v{b}, v{b}, v{b+1}"); A(f"v_add_f32 v{b+2}, v{b+2}, v{b+3}"); A(f"v_add_f32 v{b}, v{b}, v{b+2}")
            A(f"v_cndmask_b32 v{self.vC3[blk]}, 0, v{b}, vcc")
        A("s_barrier")
        self.side += self.job_strip(SRD_WO, 0, 64, B0)
        self.flush_side()
        self.pos_wo = A.vm_pos()
        self.stamp("c3 done")

    def job_w3_small(self, s0, ns, lds0):
        groups = []
        g = [f"s_lshl_b32 s{sG2}, s{sCB0}, 6", f"s_add_u32 s{sG2}, s{sG2}, {s0*16*2752}",
             f"s_min_u32 s{sT0}, s{sW}, {ns-1}", f"s_mul_i32 s{sT1}, s{sT0}, {16*2752}", f"s_add_u32 s{sG}, s{sG2}, s{sT1}",
             f"s_mul_i32 s{sT0}, s{sT0}, 3072", f"s_add_u32 m0, s{sT0}, {lds0}", "s_nop 0"]
        for i in range(3):
            if i: g = ["s_add_u32 m0, m0, 1024", "s_nop 0"]
            g.append(f"buffer_load_dwordx4 v{vW3[i]}, {srd(SRD_W3)}, s{sG} offen lds")
            groups.append(g)
        return groups

    def w3_addr(self, s):
        if s < 8: return C0 + s*3072
        if s < 30: return A0 + (s-8)*3072
        return C0 + (s-22)*3072

    def p3(self):
        A = self.A
        T = vT
        code = [f"s_lshl_b32 s{sT0}, s{sRB128}, 8", f"s_add_u32 s{sT0}, s{sT0}, {WS_CNT + CNT_X1*CNT_STRIDE}", f"v_mov_b32 v250, s{sT0}"]
        self.poll(code, 1, 16, "x1")
        self.stamp("sync2")
        A(f"s_lshl_b32 s{sT0}, s{sRB128}, 2"); A(f"s_add_u32 s{sT0}, s{sT0}, s{sW}")
        A(f"s_lshl_b32 s{sG}, s{sT0}, 15"); A(f"s_add_u32 s{sG}, s{sG}, {WS_X1}")
        A(f"s_lshl_b32 s{sT3}, s{sT0}, 12"); A(f"s_add_u32 s{sT3}, s{sT3}, {WS_X1S}")
        A(f"s_mul_i32 s{sT4}, s{sT0}, {86*1024}"); A(f"s_add_u32 s{sT4}, s{sT4}, {WS_G}")
        A(f"s_lshl_b32 s{sT1}, s{sCB0}, 11"); A(f"s_add_u32 s{sT4}, s{sT4}, s{sT1}")
        apos = {}
        def act(i):
            if i % 4 == 0 and i > 0: A(f"s_add_u32 s{sG}, s{sG}, 4096")
            A(f"buffer_load_dwordx4 {a(4*i,4)}, v{vL16}, {srd(SRD_WS)}, s{sG} offen offset:{(i%4)*1024} sc1")
            apos[i] = A.vm_pos()
        PDL = 14
        for i in range(PDL): act(i)
        vB = [T, T+1, T+2]
        A(f"v_mov_b32 v{vB[0]}, v{vTR3}"); A(f"v_add_u32 v{vB[1]}, 65536, v{vTR3}"); A(f"v_add_u32 v{vB[2]}, 131072, v{vTR3}")
        def wread(s, blk, buf):
            ad = self.w3_addr(s) + blk*64
            for (k, d) in ((0, 0), (2, 1536)):
                x = ad + d
                A(f"ds_read_b64_tr_b16 {v(buf+k,2)}, v{vB[x // 65536]} offset:{x % 65536}")
        PD = 2
        lgpos = {}
        stats_issued = False
        for s in range(32 + PD):
            if s < 32:
                for blk in range(2): wread(s, blk, vRING + 4*(2*(s % 4) + blk))
                lgpos[s] = A.lg_pos()
            if s >= PD:
                t = s - PD
                A.wait(vm=apos[t], lg=lgpos[t])
                for blk in range(2):
                    acc = (vACC0, vACC1)[blk]
                    c = "0" if t == 0 else v(acc, 16)
                    A(f"v_mfma_f32_32x32x16_bf16 {v(acc,16)}, {v(vRING + 4*(2*(t % 4) + blk),4)}, {a(4*t,4)}, {c}")
                if t + PDL < 32: act(t + PDL)
                elif not stats_issued:
                    stats_issued = True
                    A(f"v_lshlrev_b32 v{T+3}, 3, v{vM}"); A(f"v_lshl_add_u32 v{T+3}, v{vH}, 11, v{T+3}")
                    for j in range(8):
                        A(f"buffer_load_dwordx2 {v(T+20+2*j,2)}, v{T+3}, {srd(SRD_WS)}, s{sT3} offen offset:{256*j} sc1")
                    spos = A.vm_pos()
        A.wait(vm=spos)
        S0, S1 = T+20, T+21
        for j in range(1, 8):
            A(f"v_add_f32 v{S0}, v{S0}, v{T+20+2*j}"); A(f"v_add_f32 v{S1}, v{S1}, v{T+21+2*j}")
        self.swap_add(S0, T+4); self.swap_add(S1, T+4)
        NMU1, R1 = T+5, T+6
        A(f"v_mul_f32 v{S0}, {fbits(1/512)}, v{S0}"); A(f"v_mul_f32 v{S1}, {fbits(1/512)}, v{S1}")
        A(f"v_sub_f32 v{NMU1}, 0, v{S0}"); A(f"v_fma_f32 v{S1}, v{NMU1}, v{S0}, v{S1}"); A(f"v_max_f32 v{S1}, 0, v{S1}")
        A(f"v_add_f32 v{S1}, {fbits(1e-5)}, v{S1}"); A(f"v_rsq_f32 v{R1}, v{S1}")
        lskip = A.newlabel("nob2")
        A(f"s_cmp_lt_u32 s{sNBLK}, 3"); A(f"s_cbranch_scc1 {lskip}")
        lg_save = A.lg
        for s in range(32 + PD):
            if s < 32:
                wread(s, 2, vRING + 4*(s % 4))
                lgpos[s] = A.lg_pos()
            if s >= PD:
                t = s - PD
                A.wait(lg=lgpos[t])
                c = "0" if t == 0 else v(vACC2, 16)
                A(f"v_mfma_f32_32x32x16_bf16 {v(vACC2,16)}, {v(vRING + 4*(t % 4),4)}, {a(4*t,4)}, {c}")
        A.label(lskip)
        A("s_barrier")
        self.stamp("p3 main")
        for blk in range(3):
            acc = (vACC0, vACC1, vACC2)[blk]
            if blk == 2:
                lskip2 = A.newlabel("nog2")
                A(f"s_cmp_lt_u32 s{sNBLK}, 3"); A(f"s_cbranch_scc1 {lskip2}")
            A.nop(10)
            A(f"v_mfma_f32_32x32x2_f32 {v(acc,16)}, v{self.vC3[blk]}, v{NMU1}, {v(acc,16)}")
            self.gelu_block(acc, R1, T+34, wait_states=18)
            st = A if blk < 2 else None
            i1 = f"buffer_store_dwordx4 {v(acc,4)}, v{vL16}, {srd(SRD_WS)}, s{sT4} offen offset:{blk*2048 % 4096} sc1"
            i2 = f"buffer_store_dwordx4 {v(acc+4,4)}, v{vL16}, {srd(SRD_WS)}, s{sT4} offen offset:{blk*2048 % 4096 + 1024} sc1"
            if blk == 2:
                A(f"s_add_u32 s{sT4}, s{sT4}, 4096")
                A.opt(i1); A.opt(i2)
                A.label(lskip2)
            else:
                A(i1); A(i2)
        pos = A.vm_pos()
        self.side += self.job_w4(39, 4, A0 + 12*4096) + self.job_w4(0, 12, A0) + self.job_w4(12, 7, C0)
        self.pump(6)
        self.arrive([f"s_lshl_b32 s{sT0}, s{sRB128}, 8", f"s_add_u32 s{sT0}, s{sT0}, {WS_CNT + CNT_G*CNT_STRIDE}"], pos, "g")
        self.flush_side()
        self.pos_w4e = A.vm_pos()

    def job_w4(self, i0, ni, lds0):
        groups = []
        for j in range(ni):
            g = []
            if j == 0:
                g += [f"s_mul_i32 s{sG}, s{sCG}, {43*16*1024}", f"s_lshl_b32 s{sT0}, s{sRBK}, 13", f"s_add_u32 s{sG}, s{sG}, s{sT0}",
                      f"s_lshl_b32 s{sT0}, s{sC}, 7", f"s_add_u32 s{sG}, s{sG}, s{sT0}", f"s_add_u32 s{sG}, s{sG}, {i0*16*1024}",
                      f"s_lshl_b32 s{sT0}, s{sW}, 10", f"s_add_u32 m0, s{sT0}, {lds0}", "s_nop 0"]
            else:
                g += [f"s_add_u32 s{sG}, s{sG}, {16*1024}", "s_add_u32 m0, m0, 4096", "s_nop 0"]
            g.append(f"buffer_load_dwordx4 v{vSTR}, {srd(SRD_W4)}, s{sG} offen lds")
            groups.append(g)
        return groups

    def w4_slot(self, i):
        if i < 12: return A0 + i*4096
        if i < 19: return C0 + (i-12)*4096
        if i < 35: return B0 + (i-19)*4096
        return A0 + 12*4096 + (i-35)*4096

    def p4(self):
        A = self.A
        T = vT
        code = [f"s_lshl_b32 s{sT0}, s{sRB64}, 8", f"s_add_u32 s{sT0}, s{sT0}, {WS_CNT + CNT_O*CNT_STRIDE}", f"v_mov_b32 v250, s{sT0}"]
        A.wait(vm=self.pos_wo)
        self.poll(code, 1, 8, "o")
        vW0, vW1 = T+52, T+53
        A(f"s_lshl_b32 s{sT0}, s{sCG}, 15"); A(f"s_add_u32 s{sT0}, s{sT0}, {B0}")
        A(f"v_add_u32 v{vW0}, s{sT0}, v{vTRC0}"); A(f"v_add_u32 v{vW1}, s{sT0}, v{vTRC1}")
        A(f"s_lshl_b32 s{sT0}, s{sRB64}, 1"); A(f"s_add_u32 s{sT0}, s{sT0}, s{sRBK}")
        A(f"s_lshl_b32 s{sT3}, s{sT0}, 15"); A(f"s_lshl_b32 s{sT1}, s{sCG}, 14"); A(f"s_add_u32 s{sT3}, s{sT3}, s{sT1}"); A(f"s_add_u32 s{sT3}, s{sT3}, {WS_O}")
        A(f"s_mul_i32 s{sT4}, s{sT0}, {86*1024}"); A(f"s_mul_i32 s{sT1}, s{sCG}, {43*1024}"); A(f"s_add_u32 s{sT4}, s{sT4}, s{sT1}"); A(f"s_add_u32 s{sT4}, s{sT4}, {WS_G}")
        def act_o(i):
            if i % 4 == 0 and i > 0: A(f"s_add_u32 s{sT3}, s{sT3}, 4096")
            r = 128 + 4*i
            A(f"buffer_load_dwordx4 {a(r,4)}, v{vL16}, {srd(SRD_WS)}, s{sT3} offen offset:{(i%4)*1024} sc1")
            return r
        self.ksplit_gemm(16, (vW0, vW1), lambda i: i*2048, act_o, True, 0, 16)
        self.stamp("wo done")
        A.wait(vm=self.pos_w4e)
        A("s_barrier")
        vA0, vA1 = T+54, T+55
        A(f"s_lshl_b32 s{sT0}, s{sCG}, 11"); A(f"v_add_u32 v{vA0}, s{sT0}, v{vTRC0}"); A(f"v_add_u32 v{vA1}, s{sT0}, v{vTRC1}")
        for i in range(4):
            for cb in range(2):
                r = 192 + 8*i + 4*cb
                A(f"ds_read_b64_tr_b16 {a(r,2)}, v{(vA0,vA1)[cb]} offset:{12*4096 + i*4096}")
                A(f"ds_read_b64_tr_b16 {a(r+2,2)}, v{(vA0,vA1)[cb]} offset:{12*4096 + i*4096 + 1024}")
        A.wait_all_lg()
        A("s_barrier")
        for g in self.job_w4(19, 16, B0) + self.job_w4(35, 4, A0 + 12*4096):
            for ins in g: A(ins)
        pos_late = A.vm_pos()
        code = [f"s_lshl_b32 s{sT0}, s{sRB128}, 8", f"s_add_u32 s{sT0}, s{sT0}, {WS_CNT + CNT_G*CNT_STRIDE}", f"v_mov_b32 v250, s{sT0}"]
        self.poll(code, 1, 16, "g")
        self.stamp("sync3")
        vb = {}
        for win in range(3):
            for cb in range(2):
                r = T + 56 + 2*win + cb
                A(f"v_add_u32 v{r}, {win*65536}, v{(vA0,vA1)[cb]}")
                vb[(win, cb)] = r
        acts = {}; apos = {}
        def act_g(i):
            if i % 4 == 0 and i > 0: A(f"s_add_u32 s{sT4}, s{sT4}, 4096")
            r = 4*(i % 32)
            A(f"buffer_load_dwordx4 {a(r,4)}, v{vL16}, {srd(SRD_WS)}, s{sT4} offen offset:{(i%4)*1024} sc1")
            acts[i] = r; apos[i] = A.vm_pos()
        PDL = 14; PD = 2; N = 43
        for i in range(PDL): act_g(i)
        lgpos = {}
        for s in range(N + PD):
            if s < N:
                if s == 19:
                    A("s_barrier")
                if s < 39:
                    ad = self.w4_slot(s)
                    for cb in range(2):
                        b = vRING + 4*(2*(s % 4) + cb)
                        for (k, d) in ((0, 0), (2, 1024)):
                            x = ad + d
                            A(f"ds_read_b64_tr_b16 {v(b+k,2)}, v{vb[(x // 65536, cb)]} offset:{x % 65536}")
                lgpos[s] = A.lg_pos()
            if s >= PD:
                t = s - PD
                A.wait(vm=apos[t], lg=lgpos[t] if t < 39 else None)
                for cb in range(2):
                    acc = (vACC0, vACC1)[cb]
                    wa = v(vRING + 4*(2*(t % 4) + cb), 4) if t < 39 else a(192 + 8*(t-39) + 4*cb, 4)
                    A(f"v_mfma_f32_32x32x16_bf16 {v(acc,16)}, {wa}, {a(acts[t],4)}, {v(acc,16)}")
                if t + PDL < N: act_g(t + PDL)
        A("s_barrier")
        self.stamp("p4 main")
        self.pair_reduce(A0)
        for i in range(16): A(f"v_add_f32 v{vACC0+i}, v{vACC0+i}, v{vRESID+i}")
        P = T+24
        for i in range(8): A(f"v_cvt_pk_bf16_f32 v{P+i}, v{vACC0+2*i}, v{vACC0+2*i+1}")
        A.nop(2)
        for (x, y) in ((0, 2), (1, 3), (4, 6), (5, 7)):
            A(f"v_permlane32_swap_b32 v{P+x}, v{P+y}")
        A(f"s_lshl_b32 s{sT0}, s{sRB64}, 6"); A(f"s_lshl_b32 s{sT1}, s{sRBK}, 5"); A(f"s_add_u32 s{sT0}, s{sT0}, s{sT1}")
        A(f"v_add_u32 v{T}, s{sT0}, v{vM}"); A(f"v_lshlrev_b32 v{T}, 10, v{T}"); A(f"v_lshl_add_u32 v{T}, v{vH}, 4, v{T}")
        A(f"s_lshl_b32 s{sT0}, s{sC}, 7"); A(f"s_lshl_b32 s{sT1}, s{sCG}, 6"); A(f"s_add_u32 s{sT0}, s{sT0}, s{sT1}")
        A(f"buffer_store_dwordx4 {v(P,4)}, v{T}, {srd(SRD_OUT)}, s{sT0} offen")
        A(f"buffer_store_dwordx4 {v(P+4,4)}, v{T}, {srd(SRD_OUT)}, s{sT0} offen offset:32")
        self.stamp("end")

    def build(self):
        A = self.A
        stop = self.cfg.stop_after
        self.prologue()
        self.t0_dma()
        self.setup2()
        self.stamp("start")
        self.p1_h(); self.stamp("h main")
        self.p1_h_finish(); self.stamp("h pub")
        if stop != "h":
            self.shadow1(); self.stamp("kv pub")
            if stop != "kv":
                self.p2(); self.stamp("x1 pub")
                if stop != "x1":
                    self.shadow2()
                    if stop != "o":
                        self.p3(); self.stamp("g pub")
                        if stop != "g":
                            self.p4()
        self.flush_side()
        A("s_waitcnt vmcnt(0)")
        A.label("L_end")
        A("s_endpgm")
        return A

HEADER = """; Fused persistent kernel: x + attn(LN x) + mixer(LN x).  256 workgroups (one per CU), 4 waves each.
; @launch grid=(256,1,1) block=(256,1,1) lds=163840
.amdgcn_target "amdgcn-amd-amdhsa--gfx950"
.text
.globl {name}
.p2align 8
.type {name},@function
{name}:
"""
FOOTER = """
.section .rodata,"a"
.p2align 6
.amdhsa_kernel {name}
  .amdhsa_next_free_vgpr 512
  .amdhsa_next_free_sgpr 102
  .amdhsa_accum_offset 256
  .amdhsa_group_segment_fixed_size 0
  .amdhsa_kernarg_size 88
  .amdhsa_user_sgpr_count 2
  .amdhsa_user_sgpr_kernarg_segment_ptr 1
  .amdhsa_system_sgpr_workgroup_id_x 1
.end_amdhsa_kernel
"""

def generate(cfg):
    k = K(cfg)
    A = k.build()
    probs = check_hazards(A.lines)
    return HEADER.format(name=NAME) + A.text() + FOOTER.format(name=NAME), probs

if __name__ == "__main__":
    cfg = Cfg()
    out = sys.argv[1] if len(sys.argv) > 1 else "parallel_sum__sliding_local_dilated__mixer_s_mlp__prompt.s"
    for arg in sys.argv[2:]:
        k, val = arg.split("=")
        setattr(cfg, k, {"True": True, "False": False, "None": None}.get(val, int(val) if val.isdigit() else val))
    txt, probs = generate(cfg)
    for p in probs: print("HAZARD:", p)
    open(out, "w").write(txt)
    print("wrote", out, len(txt), "bytes;", txt.count("\n"), "lines;", len(probs), "hazards")
```

```python
import sys, os
from asmlib import Asm, check_hazards

NAME = "parallel_sum__sliding_local_dilated__mixer_s_mlp__prompt_kernel"

class Cfg:
    stamps = False
    stop_after = None
    spin_limit = 400000
    dbgtime = False

WS_CNT  = 0x0
CNT_H, CNT_KV, CNT_X1, CNT_G, CNT_O = 0, 32, 64, 80, 96
CNT_STRIDE = 256
WS_H    = 0x100000
WS_O    = 0x300000
WS_X1   = 0x500000
WS_G    = 0x700000
WS_X1S  = 0xD00000
WS_KV   = 0xD40000
WS_STAMP= 0xF00000
WS_SIZE = 0x1000000

A0 = 0
B0 = 67584
C0 = 133120
SCR1 = 160768
LDS_TOTAL = 163840

sW, sRBK, sCG = 3, 4, 5
sRB64, sC, sRB128, sFT = 6, 7, 8, 9
SRD_X, SRD_WQKV, SRD_WO, SRD_W1, SRD_W2, SRD_W3, SRD_W4, SRD_OUT, SRD_WS, SRD_DBG = 40, 44, 48, 52, 56, 60, 64, 68, 72, 76
sONES, sPLO, sPHI = 80, 81, 82
sG, sG2, sT0, sT1, sT2, sT3 = 83, 84, 85, 86, 87, 88
sCB0, sNBLK = 89, 90
sSPIN = 91
sSTAMP = 12
sEXS = 94
sT4, sT5 = 96, 97
sRT0, sCY0 = 98, 100
vST = 253

def srd(n): return f"s[{n}:{n+3}]"

vL, vM, vH, vL16 = 1, 2, 3, 4
vSTR, vSTRQ = 5, 6
vW3 = (7, 8, 9)
vTRN, vTRC0, vTRC1, vTR3 = 10, 11, 12, 13
vNMU, vR = 14, 15
vXRES = 16
vRESID = 24
vKP, vVP, vQP = 40, 48, 56
vRING = 64
vACC0, vACC1, vACC2 = 144, 160, 176
vT = 192

def v(i, n=1): return f"v{i}" if n == 1 else f"v[{i}:{i+n-1}]"
def a(i, n=1): return f"a{i}" if n == 1 else f"a[{i}:{i+n-1}]"

C0G = -2.0 * 0.7978845608028654 * 1.4426950408889634
C1G = C0G * 0.044715
import struct
def fbits(x): return "0x%08x" % struct.unpack("<I", struct.pack("<f", x))[0]

class K:
    def __init__(self, cfg):
        self.cfg = cfg
        self.A = Asm()
        self.side = []
        self.nstamp = 0
        self.stamp_names = []

    def pump(self, n=1):
        for _ in range(n):
            if self.side:
                g = self.side.pop(0)
                for ins in g:
                    if callable(ins): ins()
                    else: self.A(ins)

    def flush_side(self):
        self.pump(len(self.side))

    def stamp(self, name):
        if not self.cfg.stamps: return
        A = self.A
        i = self.nstamp; self.nstamp += 1
        self.stamp_names.append(name)
        cur = sSTAMP + 2*(i & 1); prev = sSTAMP + 2*((i+1) & 1)
        if i > 0: A(f"v_writelane_b32 v{vST}, s{prev}, {i-1}")
        A(f"s_memtime s[{cur}:{cur+1}]")

    def stamp_end(self):
        A = self.A
        if self.cfg.stamps:
            i = self.nstamp
            prev = sSTAMP + 2*((i+1) & 1)
            A("s_waitcnt lgkmcnt(0)")
            A(f"v_writelane_b32 v{vST}, s{prev}, {i-1}")
            A(f"s_memrealtime s[{sSTAMP}:{sSTAMP+1}]")
            A("s_waitcnt lgkmcnt(0)")
            A(f"v_writelane_b32 v{vST}, s{sSTAMP}, 62")
            A(f"v_writelane_b32 v{vST}, s{sRT0}, 61")
            A(f"v_writelane_b32 v{vST}, s{sCY0}, 60")
            A(f"s_lshl_b32 s{sT5}, s2, 2"); A(f"s_add_u32 s{sT5}, s{sT5}, s{sW}"); A(f"s_lshl_b32 s{sT5}, s{sT5}, 8")
            A(f"s_add_u32 s{sT5}, s{sT5}, {WS_STAMP}")
            A(f"v_lshlrev_b32 v254, 2, v{vL}")
            A(f"buffer_store_dword v{vST}, v254, {srd(SRD_WS)}, s{sT5} offen")
        if self.cfg.dbgtime:
            l = A.newlabel("dt")
            A("s_cmp_ge_u32 s2, 7"); A(f"s_cbranch_scc1 {l}")
            A(f"s_cmp_lg_u32 s{sW}, 0"); A(f"s_cbranch_scc1 {l}")
            A(f"s_memrealtime s[{sSTAMP}:{sSTAMP+1}]"); A(f"s_memtime s[{sSTAMP+2}:{sSTAMP+3}]")
            A("s_waitcnt lgkmcnt(0)")
            A(f"s_sub_u32 s{sT0}, s{sSTAMP}, s{sRT0}"); A(f"s_sub_u32 s{sT1}, s{sSTAMP+2}, s{sCY0}")
            A(f"v_mov_b32 v250, s{sT0}"); A(f"v_mov_b32 v251, s{sT1}")
            A(f"s_lshl_b32 s{sT0}, s2, 3"); A(f"s_add_u32 s{sT0}, s{sT0}, 8"); A(f"v_mov_b32 v252, s{sT0}")
            A("s_mov_b64 exec, 1")
            A(f"buffer_store_dwordx2 v[250:251], v252, {srd(SRD_DBG)}, 0 offen")
            A.label(l)

    def dma_units(self, srdn, vregs, gbase_code, gstep, lds0, n, lstep=None):
        m = len(vregs)
        if lstep is None: lstep = 1024 * m
        assert n >= 4
        groups = []
        rounds = (n + 3) // 4
        for j in range(rounds):
            if j == 0:
                g = list(gbase_code)
                g += [f"s_mul_i32 s{sT0}, s{sW}, {lstep}", f"s_add_u32 m0, s{sT0}, {lds0}",
                      f"s_mul_i32 s{sT0}, s{sW}, {gstep}", f"s_add_u32 s{sG}, s{sG2}, s{sT0}"]
            elif 4 * j + 3 < n:
                g = [f"s_add_u32 m0, m0, {4*lstep - (m-1)*1024}", f"s_add_u32 s{sG}, s{sG}, {4*gstep}"]
            else:
                g = [f"s_add_u32 s{sT0}, s{sW}, {4*j}", f"s_min_u32 s{sT0}, s{sT0}, {n-1}",
                     f"s_mul_i32 s{sT1}, s{sT0}, {lstep}", f"s_add_u32 m0, s{sT1}, {lds0}",
                     f"s_mul_i32 s{sT1}, s{sT0}, {gstep}", f"s_add_u32 s{sG}, s{sG2}, s{sT1}"]
            for i, vr in enumerate(vregs):
                if i > 0:
                    groups.append(g)
                    g = ["s_add_u32 m0, m0, 1024", "s_nop 0"]
                g = g + [f"buffer_load_dwordx4 v{vr}, {srd(srdn)}, s{sG} offen lds"]
            groups.append(g)
        return groups

    def poll(self, addr_code, nl, target, what):
        A = self.A
        skip = A.newlabel("pskip"); loop = A.newlabel("ploop"); done = A.newlabel("pdone")
        A(f"s_cmp_lg_u32 s{sW}, 3"); A(f"s_cbranch_scc1 {skip}")
        for ins in addr_code: A(ins)
        A(f"v_mov_b32 v251, {target}")
        A(f"s_mov_b64 s[{sEXS}:{sEXS+1}], exec"); A(f"s_mov_b64 exec, {(1 << nl) - 1}")
        A(f"s_mov_b32 s{sSPIN}, {self.cfg.spin_limit}")
        A.label(loop)
        A.opt(f"buffer_load_dword v252, v250, {srd(SRD_WS)}, 0 offen sc1")
        A("s_waitcnt vmcnt(0)")
        A("v_cmp_ge_u32 vcc, v252, v251")
        A(f"s_sub_u32 s{sSPIN}, s{sSPIN}, 1"); A(f"s_cbranch_scc1 {done}")
        A("s_cmp_eq_u64 vcc, exec"); A(f"s_cbranch_scc0 {loop}")
        A.label(done)
        A(f"s_mov_b64 exec, s[{sEXS}:{sEXS+1}]")
        A.label(skip)
        A("s_barrier")

    def arrive(self, cnt_code, pos, what, init_check=False):
        A = self.A
        A.wait(vm=pos)
        A("s_barrier")
        skip = A.newlabel("askip")
        A(f"s_cmp_lg_u32 s{sW}, 3"); A(f"s_cbranch_scc1 {skip}")
        A(f"s_mov_b64 s[{sEXS}:{sEXS+1}], exec"); A("s_mov_b64 exec, 1")
        if init_check:
            loop = A.newlabel("iloop"); done = A.newlabel("idone")
            A("v_mov_b32 v250, 0")
            A(f"s_mov_b32 s{sSPIN}, {self.cfg.spin_limit}")
            A.label(loop)
            A.opt(f"buffer_load_dword v252, v250, {srd(SRD_DBG)}, 0 offen sc1")
            A("s_waitcnt vmcnt(0)")
            A("v_cmp_eq_u32 vcc, 1, v252")
            A(f"s_sub_u32 s{sSPIN}, s{sSPIN}, 1"); A(f"s_cbranch_scc1 {done}")
            A("s_cmp_eq_u64 vcc, exec"); A(f"s_cbranch_scc0 {loop}")
            A.label(done)
        for ins in cnt_code: A(ins)
        A(f"v_mov_b32 v250, s{sT0}"); A("v_mov_b32 v251, 1")
        A.opt(f"buffer_atomic_add v251, v250, {srd(SRD_WS)}, 0 offen")
        A(f"s_mov_b64 exec, s[{sEXS}:{sEXS+1}]")
        A.label(skip)

    def swap_add(self, x, tmp):
        A = self.A
        A(f"v_mov_b32 v{tmp}, v{x}")
        A.nop(2)
        A(f"v_permlane32_swap_b32 v{x}, v{tmp}")
        A.nop(1)
        A(f"v_add_f32 v{x}, v{x}, v{tmp}")

    def prologue(self):
        A = self.A
        A("s_cmp_ge_u32 s2, 256"); A("s_cbranch_scc1 L_end")
        if self.cfg.stamps or self.cfg.dbgtime:
            A(f"s_memrealtime s[{sRT0}:{sRT0+1}]"); A(f"s_memtime s[{sCY0}:{sCY0+1}]")
        A("s_load_dwordx16 s[16:31], s[0:1], 0")
        A("s_load_dwordx4 s[32:35], s[0:1], 64")
        A("s_load_dwordx2 s[36:37], s[0:1], 80")
        A(f"v_lshrrev_b32 v5, 6, v0")
        A(f"v_and_b32 v{vL}, 63, v0")
        A(f"v_readfirstlane_b32 s{sW}, v5")
        A(f"v_and_b32 v{vM}, 31, v{vL}")
        A(f"v_lshrrev_b32 v{vH}, 5, v{vL}")
        A(f"v_lshlrev_b32 v{vL16}, 4, v{vL}")
        A("s_and_b32 s10, s2, 7"); A("s_lshr_b32 s11, s2, 3")
        A(f"s_lshr_b32 s12, s11, 3"); A(f"s_lshl_b32 s{sRB64}, s10, 2"); A(f"s_add_u32 s{sRB64}, s{sRB64}, s12")
        A(f"s_and_b32 s{sC}, s11, 7")
        A(f"s_lshr_b32 s12, s11, 4"); A(f"s_lshl_b32 s{sRB128}, s10, 1"); A(f"s_add_u32 s{sRB128}, s{sRB128}, s12")
        A(f"s_and_b32 s{sFT}, s11, 15")
        A(f"s_and_b32 s{sRBK}, s{sW}, 1"); A(f"s_lshr_b32 s{sCG}, s{sW}, 1")
        A("s_getpc_b64 s[12:13]")
        A.label("L_pc")
        A(f"v_lshlrev_b32 v6, 7, v{vL}")
        A(f"s_lshl_b32 s14, s{sW}, 13")
        A("v_add_u32 v6, s14, v6")
        A("v_min_u32 v6, L_end-L_pc, v6")
        A("global_load_dword v255, v6, s[12:13]")
        A(f"v_lshrrev_b32 v7, 3, v{vL}")
        A(f"v_and_b32 v8, 7, v{vL}")
        A(f"v_bfe_u32 v9, v{vL}, 4, 1"); A("v_lshlrev_b32 v9, 2, v9"); A("v_xor_b32 v9, v8, v9"); A("v_lshlrev_b32 v9, 4, v9")
        A(f"v_lshl_add_u32 v{vSTR}, v7, 10, v9")
        A(f"v_mul_u32_u24 v{vSTRQ}, 3072, v7"); A(f"v_add_u32 v{vSTRQ}, v{vSTRQ}, v9")
        A(f"v_lshrrev_b32 v9, 4, v{vL}"); A(f"s_lshl_b32 s14, s{sRBK}, 2"); A("v_add_u32 v9, s14, v9")
        A("v_xor_b32 v9, v8, v9"); A("v_lshlrev_b32 v9, 4, v9"); A("v_lshl_add_u32 v14, v7, 10, v9")
        A("s_waitcnt lgkmcnt(0)")
        for (n, p, size) in ((SRD_X, 16, 2097152), (SRD_WQKV, 18, 1572864), (SRD_WO, 20, 524288), (SRD_W1, 24, 524288),
                             (SRD_W2, 26, 524288), (SRD_W3, 28, 1409024), (SRD_W4, 30, 1409024), (SRD_OUT, 32, 2097152),
                             (SRD_DBG, 34, 256), (SRD_WS, 36, WS_SIZE)):
            A(f"s_mov_b32 s{n}, s{p}"); A(f"s_and_b32 s{n+1}, s{p+1}, 0xffff")
            A(f"s_mov_b32 s{n+2}, {size}"); A(f"s_mov_b32 s{n+3}, 0x20000")

    def t0_dma(self):
        A = self.A
        l = A.newlabel("zi")
        A(f"s_cmp_lg_u32 s2, 0"); A(f"s_cbranch_scc1 {l}")
        A(f"s_cmp_lg_u32 s{sW}, 3"); A(f"s_cbranch_scc1 {l}")
        A(f"v_lshlrev_b32 v250, 8, v{vL}"); A("v_mov_b32 v251, 0")
        A.opt(f"buffer_store_dword v251, v250, {srd(SRD_WS)}, 0 offen sc1")
        A("v_add_u32 v250, 16384, v250")
        A.opt(f"buffer_store_dword v251, v250, {srd(SRD_WS)}, 0 offen sc1")
        A.label(l)
        A(f"s_lshl_b32 s{sG}, s{sRB64}, 16"); A(f"s_lshl_b32 s{sT0}, s{sW}, 13"); A(f"s_add_u32 s{sG}, s{sG}, s{sT0}")
        A(f"s_lshl_b32 s{sG2}, s{sC}, 7"); A(f"s_add_u32 s{sG2}, s{sG2}, s{sT0}")
        A(f"s_lshl_b32 s{sT1}, s{sW}, 10")
        self.chunk_pos = []
        for q in range(8):
            for half in range(2):
                A(f"s_add_u32 m0, s{sT1}, {A0 + q*8192 + half*4096}")
                A(f"s_add_u32 s{sT0}, s{sG}, {q*128 + half*32768}")
                A(f"buffer_load_dwordx4 v14, {srd(SRD_X)}, s{sT0} offen lds")
            for half in range(2):
                A(f"s_add_u32 m0, s{sT1}, {B0 + q*8192 + half*4096}")
                A(f"s_add_u32 s{sT0}, s{sG2}, {q*65536 + half*32768}")
                A(f"buffer_load_dwordx4 v{vSTR}, {srd(SRD_W1)}, s{sT0} offen lds")
            self.chunk_pos.append(A.vm_pos())
        for g in self.job_strip_qkv(1, 0, 12, C0):
            for ins in g: A(ins)
        self.pos_kA = A.vm_pos()

    def job_strip_qkv(self, which, s0, ns, lds0):
        code = [f"s_lshl_b32 s{sG2}, s{sC}, 7", f"s_add_u32 s{sG2}, s{sG2}, {which*1024 + s0*16*3072}"]
        return self.dma_units(SRD_WQKV, [vSTRQ], code, 8*3072, lds0, 2*ns)

    def job_strip(self, srdn, k0, nunits, lds0):
        code = [f"s_lshl_b32 s{sG2}, s{sC}, 7", f"s_add_u32 s{sG2}, s{sG2}, {k0*1024}"]
        return self.dma_units(srdn, [vSTR], code, 8192, lds0, nunits)

    def job_w3(self, s0, ns, lds0):
        code = [f"s_lshl_b32 s{sG2}, s{sCB0}, 6", f"s_add_u32 s{sG2}, s{sG2}, {s0*16*2752}"]
        return self.dma_units(SRD_W3, list(vW3), code, 16*2752, lds0, ns)

    def setup2(self):
        A = self.A
        A(f"s_mov_b32 s{sONES}, 0x3f803f80"); A(f"s_mov_b32 s{sPLO}, 0x05040100"); A(f"s_mov_b32 s{sPHI}, 0x07060302")
        A(f"s_mul_i32 s{sCB0}, s{sFT}, 3"); A(f"s_mov_b32 s{sNBLK}, 3")
        A(f"s_cmp_lt_u32 s{sFT}, 11"); l = A.newlabel("ft"); A(f"s_cbranch_scc1 {l}")
        A(f"s_lshl_b32 s{sCB0}, s{sFT}, 1"); A(f"s_add_u32 s{sCB0}, s{sCB0}, 11"); A(f"s_mov_b32 s{sNBLK}, 2")
        A.label(l)
        T = vT
        A(f"v_bfe_u32 v{T}, v{vL}, 2, 2")
        A(f"v_and_b32 v{T+1}, 3, v{vL}"); A(f"v_lshlrev_b32 v{T+1}, 3, v{T+1}")
        A(f"v_bfe_u32 v{T+2}, v{vL}, 4, 1"); A(f"v_lshl_add_u32 v{T+1}, v{T+2}, 5, v{T+1}")
        A(f"v_lshrrev_b32 v{T+2}, 1, v{T}")
        A(f"v_xor_b32 v{T+3}, s{sCG}, v{T+2}")
        A(f"v_lshlrev_b32 v{T+3}, 6, v{T+3}")
        A(f"v_lshl_add_u32 v{T+4}, v{T}, 7, v{T+1}")
        A(f"v_add_u32 v{T+4}, v{T+4}, v{T+3}")
        A(f"v_lshl_add_u32 v{vTRN}, v{vH}, 10, v{T+4}")
        A(f"v_lshl_add_u32 v{vTRC0}, v{vH}, 9, v{T+4}")
        A(f"v_xor_b32 v{vTRC1}, 64, v{vTRC0}")
        A(f"v_mul_u32_u24 v{T+5}, 192, v{T}"); A(f"v_add_u32 v{T+5}, v{T+5}, v{T+1}")
        A(f"v_mul_u32_u24 v{T+6}, 768, v{vH}"); A(f"v_add_u32 v{vTR3}, v{T+5}, v{T+6}")
        A(f"s_mov_b32 s{sT0}, 43691"); A(f"s_movk_i32 s{sT1}, 2752")
        for j in range(3):
            A(f"v_add_u32 v{T}, {64*j}, v{vL}")
            A(f"v_mul_u32_u24 v{T+1}, s{sT0}, v{T}"); A(f"v_lshrrev_b32 v{T+1}, 19, v{T+1}")
            A(f"v_mul_u32_u24 v{T+2}, 12, v{T+1}"); A(f"v_sub_u32 v{T+2}, v{T}, v{T+2}")
            A(f"v_mul_u32_u24 v{T+1}, s{sT1}, v{T+1}")
            A(f"v_lshl_add_u32 v{vW3[j]}, v{T+2}, 4, v{T+1}")

    def p1_h(self):
        A = self.A
        T = vT
        vXA = [T, T+1, T+2, T+3]; vXS = [T+4, T+5]
        A(f"s_lshl_b32 s{sT0}, s{sRBK}, 5"); A(f"v_add_u32 v{T+6}, s{sT0}, v{vM}")
        A(f"v_bfe_u32 v{T+7}, v{T+6}, 1, 3"); A(f"v_xor_b32 v{T+7}, v{T+7}, v{vH}"); A(f"v_lshlrev_b32 v{T+7}, 4, v{T+7}")
        A(f"v_lshl_add_u32 v{vXA[0]}, v{T+6}, 7, v{T+7}")
        for s in range(1, 4): A(f"v_xor_b32 v{vXA[s]}, {32*s}, v{vXA[0]}")
        A(f"s_lshl_b32 s{sT0}, s{sCG}, 6"); A(f"v_xor_b32 v{vXS[0]}, s{sT0}, v{vXA[0]}"); A(f"v_xor_b32 v{vXS[1]}, 32, v{vXS[0]}")
        vXR = T+8
        A(f"v_bfe_u32 v{T+7}, v{T+6}, 1, 3"); A(f"s_lshl_b32 s{sT0}, s{sCG}, 2"); A(f"v_xor_b32 v{T+7}, s{sT0}, v{T+7}")
        A(f"v_lshlrev_b32 v{T+7}, 4, v{T+7}"); A(f"v_lshl_add_u32 v{T+7}, v{T+6}, 7, v{T+7}")
        A(f"v_lshl_add_u32 v{T+7}, v{vH}, 3, v{T+7}"); A(f"s_lshl_b32 s{sT0}, s{sC}, 13"); A(f"v_add_u32 v{vXR}, s{sT0}, v{T+7}")
        vWB = T+9
        A(f"v_add_u32 v{vWB}, {B0}, v{vTRN}")
        vS0, vS1, vQ0, vQ1, vC0, vC1 = T+10, T+11, T+12, T+13, T+14, T+15
        for r in (vS0, vS1, vQ0, vQ1, vC0, vC1): A(f"v_mov_b32 v{r}, 0")
        XT = T+16
        acc = vACC0
        def reads(q):
            L = []
            for s in range(4):
                b = vRING + 4*(4*(q & 1) + s)
                st = 4*q + s
                L.append([f"ds_read_b128 {a(4*st,4)}, v{vXA[s]} offset:{q*8192}",
                          f"ds_read_b64_tr_b16 {v(b,2)}, v{vWB} offset:{st*2048}",
                          f"ds_read_b64_tr_b16 {v(b+2,2)}, v{vWB} offset:{st*2048+512}"])
            L[0].append(f"ds_read_b128 {v(XT+8*(q&1),4)}, v{vXS[0]} offset:{q*8192}")
            L[1].append(f"ds_read_b128 {v(XT+8*(q&1)+4,4)}, v{vXS[1]} offset:{q*8192}")
            return L
        def burst(q):
            x = XT + 8*(q & 1)
            for i in range(8):
                A(f"v_dot2c_f32_bf16 v{vS0 + (i&1)}, s{sONES}, v{x+i}")
                A(f"v_dot2c_f32_bf16 v{vQ0 + (i&1)}, v{x+i}, v{x+i}")
            l1 = A.newlabel("cs"); l2 = A.newlabel("ce")
            b = vRING + 16*(q & 1)
            A(f"s_cmp_lg_u32 s{sRBK}, 0"); A(f"s_cbranch_scc1 {l1}")
            for i in range(8): A(f"v_dot2c_f32_bf16 v{vC0 + (i&1)}, s{sONES}, v{b+i}")
            A(f"s_branch {l2}")
            A.label(l1)
            for i in range(8): A(f"v_dot2c_f32_bf16 v{vC0 + (i&1)}, s{sONES}, v{b+8+i}")
            A.label(l2)
        for q in range(9):
            if q < 8:
                A.wait(vm=self.chunk_pos[q])
                if q == 0:
                    l = A.newlabel("fi")
                    A(f"s_cmp_lg_u32 s2, 0"); A(f"s_cbranch_scc1 {l}")
                    A(f"s_cmp_lg_u32 s{sW}, 3"); A(f"s_cbranch_scc1 {l}")
                    A("v_mov_b32 v250, 0"); A("v_mov_b32 v251, 1")
                    A(f"s_mov_b64 s[{sEXS}:{sEXS+1}], exec"); A("s_mov_b64 exec, 1")
                    A.opt(f"buffer_store_dword v251, v250, {srd(SRD_DBG)}, 0 offen sc1")
                    A(f"s_mov_b64 exec, s[{sEXS}:{sEXS+1}]")
                    A.label(l)
            A.wait_all_lg()
            if q < 8: A("s_barrier")
            rd = reads(q) if q < 8 else [[], [], [], []]
            if q < 8 and q == 0:
                self.stamp("chunk0")
            if q == 0:
                for g in rd:
                    for ins in g: A(ins)
                continue
            p = q - 1
            for s in range(4):
                st = 4*p + s
                b = vRING + 4*(4*(p & 1) + s)
                c = "0" if st == 0 else v(acc, 16)
                A(f"v_mfma_f32_32x32x16_bf16 {v(acc,16)}, {v(b,4)}, {a(4*st,4)}, {c}")
                for ins in rd[s]: A(ins)
            if q == 8:
                for g in range(4):
                    A(f"v_xor_b32 v{T+32}, {16*g}, v{vXR}")
                    A(f"ds_read_b64 {v(vXRES+2*g,2)}, v{T+32}")
            burst(p)
        self.vS = (vS0, vS1, vQ0, vQ1, vC0, vC1)

    def colsum_finish(self, vC0, vC1, scr_off, tmp):
        A = self.A
        A.nop(3)
        A(f"v_add_f32 v{vC0}, v{vC0}, v{vC1}")
        self.swap_add(vC0, tmp)
        A(f"s_lshl_b32 s{sT0}, s{sW}, 7"); A(f"v_lshl_add_u32 v{tmp}, v{vM}, 2, s{sT0}")
        A(f"v_add_u32 v{tmp}, {scr_off}, v{tmp}")
        A(f"ds_write_b32 v{tmp}, v{vC0}")
        A.wait_all_lg()
        A("s_barrier")
        A(f"v_xor_b32 v{tmp}, 128, v{tmp}")
        A(f"ds_read_b32 v{vC1}, v{tmp}")
        A(f"v_cmp_gt_u32 vcc, 32, v{vL}")
        A.wait_all_lg()
        A(f"v_add_f32 v{vC0}, v{vC0}, v{vC1}")
        A(f"v_cndmask_b32 v{vC0}, 0, v{vC0}, vcc")

    def p1_h_finish(self):
        A = self.A
        T = vT
        vS0, vS1, vQ0, vQ1, vC0, vC1 = self.vS
        acc = vACC0
        A.nop(3)
        A(f"v_add_f32 v{vS0}, v{vS0}, v{vS1}"); A(f"v_add_f32 v{vQ0}, v{vQ0}, v{vQ1}"); A(f"v_add_f32 v{vC0}, v{vC0}, v{vC1}")
        tmp = T+33
        self.swap_add(vS0, tmp); self.swap_add(vQ0, tmp); self.swap_add(vC0, tmp)
        A(f"s_lshl_b32 s{sT0}, s{sW}, 8"); A(f"v_lshl_add_u32 v{tmp}, v{vM}, 3, s{sT0}"); A(f"v_add_u32 v{tmp}, {SCR1}, v{tmp}")
        A(f"v_mov_b32 v{vS1}, v{vQ0}")
        A(f"ds_write_b64 v{tmp}, {v(vS0,2)}")
        A(f"s_lshl_b32 s{sT0}, s{sW}, 7"); A(f"v_lshl_add_u32 v{tmp+1}, v{vM}, 2, s{sT0}"); A(f"v_add_u32 v{tmp+1}, {SCR1+1024}, v{tmp+1}")
        A(f"ds_write_b32 v{tmp+1}, v{vC0}")
        A.wait_all_lg()
        A("s_barrier")
        A(f"v_xor_b32 v{tmp}, 512, v{tmp}"); A(f"v_xor_b32 v{tmp+1}, 128, v{tmp+1}")
        A(f"ds_read_b64 {v(vQ0,2)}, v{tmp}")
        A(f"ds_read_b32 v{vC1}, v{tmp+1}")
        for g in self.job_strip_qkv(1, 12, 20, A0):
            for ins in g: A(ins)
        self.pos_kB = A.vm_pos()
        A(f"v_cmp_gt_u32 vcc, 32, v{vL}")
        A.wait_all_lg()
        A(f"v_add_f32 v{vS0}, v{vS0}, v{vQ0}"); A(f"v_add_f32 v{vS1}, v{vS1}, v{vQ1}"); A(f"v_add_f32 v{vC0}, v{vC0}, v{vC1}")
        A(f"v_cndmask_b32 v{vC0}, 0, v{vC0}, vcc")
        A(f"v_mul_f32 v{vS0}, {fbits(1/512)}, v{vS0}")
        A(f"v_mul_f32 v{vS1}, {fbits(1/512)}, v{vS1}")
        A(f"v_sub_f32 v{vNMU}, 0, v{vS0}")
        A(f"v_fma_f32 v{vS1}, v{vNMU}, v{vS0}, v{vS1}")
        A(f"v_max_f32 v{vS1}, 0, v{vS1}")
        A(f"v_mfma_f32_32x32x2_f32 {v(acc,16)}, v{vC0}, v{vNMU}, {v(acc,16)}")
        A(f"v_add_f32 v{vQ0}, {fbits(1e-5)}, v{vS1}")
        A(f"v_rsq_f32 v{vR}, v{vQ0}")
        A.nop(1)
        A(f"v_mul_f32 v{vQ0}, v{vR}, v{vR}"); A(f"v_mul_f32 v{vQ0}, v{vQ0}, v{vS1}")
        A(f"v_add_f32 v{vQ0}, {fbits(1e-5)}, v{vQ0}")
        A(f"v_rsq_f32 v{vQ0}, v{vQ0}")
        A.nop(1)
        A(f"v_mul_f32 v{vQ0}, v{vQ0}, v{vR}")
        self.gelu_block(acc, vQ0, T+34, wait_states=18 - 8)
        A(f"s_lshl_b32 s{sT0}, s{sRB64}, 1"); A(f"s_add_u32 s{sT0}, s{sT0}, s{sRBK}"); A(f"s_lshl_b32 s{sT0}, s{sT0}, 15")
        A(f"s_lshl_b32 s{sT1}, s{sC}, 12"); A(f"s_add_u32 s{sT0}, s{sT0}, s{sT1}")
        A(f"s_lshl_b32 s{sT1}, s{sCG}, 11"); A(f"s_add_u32 s{sT0}, s{sT0}, s{sT1}"); A(f"s_add_u32 s{sT0}, s{sT0}, {WS_H}")
        A(f"buffer_store_dwordx4 {v(acc,4)}, v{vL16}, {srd(SRD_WS)}, s{sT0} offen sc1")
        A(f"buffer_store_dwordx4 {v(acc+4,4)}, v{vL16}, {srd(SRD_WS)}, s{sT0} offen offset:1024 sc1")
        pos = A.vm_pos()
        self.side += self.job_strip_qkv(2, 0, 32, B0)
        self.pump(4)
        self.arrive([f"s_lshl_b32 s{sT0}, s{sRB64}, 8", f"s_add_u32 s{sT0}, s{sT0}, {WS_CNT + CNT_H*CNT_STRIDE}"], pos, "h", init_check=True)

    def gelu_block(self, acc, vS, tmp, wait_states):
        A = self.A
        K1, K0, RI = tmp, tmp+2, tmp+4
        t = tmp + 6
        A(f"v_mul_f32 v{K0}, {fbits(C0G)}, v{vS}")
        A(f"v_mul_f32 v{K1}, v{vS}, v{vS}"); A(f"v_mul_f32 v{K1}, v{K1}, v{vS}"); A(f"v_mul_f32 v{K1}, {fbits(C1G)}, v{K1}")
        A(f"v_rcp_f32 v{RI}, v{vS}")
        A(f"v_mov_b32 v{K0+1}, v{K0}"); A(f"v_mov_b32 v{K1+1}, v{K1}"); A(f"v_mov_b32 v{RI+1}, v{RI}")
        if wait_states - 8 > 0: A.nop(wait_states - 8)
        for p in range(0, 16, 4):
            x0, x1 = acc + p, acc + p + 2
            u0, u1 = t, t + 2
            A(f"v_pk_mul_f32 {v(u0,2)}, {v(x0,2)}, {v(x0,2)}")
            A(f"v_pk_mul_f32 {v(u1,2)}, {v(x1,2)}, {v(x1,2)}")
            A(f"v_pk_fma_f32 {v(u0,2)}, {v(u0,2)}, {v(K1,2)}, {v(K0,2)}")
            A(f"v_pk_fma_f32 {v(u1,2)}, {v(u1,2)}, {v(K1,2)}, {v(K0,2)}")
            A(f"v_pk_mul_f32 {v(u0,2)}, {v(u0,2)}, {v(x0,2)}")
            A(f"v_pk_mul_f32 {v(u1,2)}, {v(u1,2)}, {v(x1,2)}")
            for r in (u0, u0+1, u1, u1+1): A(f"v_exp_f32 v{r}, v{r}")
            A(f"v_pk_fma_f32 {v(u0,2)}, {v(u0,2)}, {v(RI,2)}, {v(RI,2)}")
            A(f"v_pk_fma_f32 {v(u1,2)}, {v(u1,2)}, {v(RI,2)}, {v(RI,2)}")
            for r in (u0, u0+1, u1, u1+1): A(f"v_rcp_f32 v{r}, v{r}")
            A(f"v_pk_mul_f32 {v(u0,2)}, {v(u0,2)}, {v(x0,2)}")
            A(f"v_pk_mul_f32 {v(u1,2)}, {v(u1,2)}, {v(x1,2)}")
            A(f"v_cvt_pk_bf16_f32 v{acc + p//2}, v{u0}, v{u0+1}")
            A(f"v_cvt_pk_bf16_f32 v{acc + p//2 + 1}, v{u1}, v{u1+1}")

    def qkv_block(self, addr, hooks, dst, scr_off, side_rate=2):
        A = self.A
        T = vT
        acc = vACC0
        PD = 3
        bases = {}
        for st in range(32):
            for d in (0, 512):
                win = (addr(st) + d) // 65536
                if win not in bases:
                    r = T + 40 + len(bases)
                    if win: A(f"v_add_u32 v{r}, {win*65536}, v{vTRN}")
                    else: A(f"v_mov_b32 v{r}, v{vTRN}")
                    bases[win] = r
        vC0, vC1 = T+14, T+15
        A(f"v_mov_b32 v{vC0}, 0"); A(f"v_mov_b32 v{vC1}, 0")
        lgpos = {}
        def burst(steps):
            for st in steps:
                b = vRING + 4*(st % 20)
                for i in range(4): A(f"v_dot2c_f32_bf16 v{vC0 + (i&1)}, s{sONES}, v{b+i}")
        for s in range(32 + PD):
            if s < 32:
                if s in hooks: hooks[s]()
                ad = addr(s)
                b = vRING + 4*(s % 20)
                for (kk, d) in ((0, 0), (2, 512)):
                    x = ad + d
                    A(f"ds_read_b64_tr_b16 {v(b+kk,2)}, v{bases[x // 65536]} offset:{x % 65536}")
                lgpos[s] = A.lg_pos()
            if s >= PD:
                t = s - PD
                A.wait(lg=lgpos[t])
                b = vRING + 4*(t % 20)
                c = "0" if t == 0 else v(acc, 16)
                A(f"v_mfma_f32_32x32x16_bf16 {v(acc,16)}, {v(b,4)}, {a(4*t,4)}, {c}")
                if t % side_rate == 0: self.pump(1)
                if t == 15:
                    l = A.newlabel("b0")
                    A(f"s_cmp_lg_u32 s{sRBK}, 0"); A(f"s_cbranch_scc1 {l}")
                    burst(range(0, 16))
                    A.label(l)
        l = A.newlabel("b1")
        A(f"s_cmp_lg_u32 s{sRBK}, 1"); A(f"s_cbranch_scc1 {l}")
        burst(range(16, 32))
        A.label(l)
        self.colsum_finish(vC0, vC1, scr_off, T+33)
        A.nop(2)
        A(f"v_mfma_f32_32x32x2_f32 {v(acc,16)}, v{vC0}, v{vNMU}, {v(acc,16)}")
        A.nop(18)
        for i in range(8):
            A(f"v_mul_f32 v{acc+2*i}, v{vR}, v{acc+2*i}"); A(f"v_mul_f32 v{acc+2*i+1}, v{vR}, v{acc+2*i+1}")
            A(f"v_cvt_pk_bf16_f32 v{dst+i}, v{acc+2*i}, v{acc+2*i+1}")
        A.nop(2)
        for i in range(4): A(f"v_permlane32_swap_b32 v{dst+i}, v{dst+4+i}")

    def shadow1(self):
        A = self.A
        def addr_k(s): return C0 + s*2048 if s < 12 else A0 + (s-12)*2048
        def hk0(): A.wait(vm=self.pos_kA); A("s_barrier")
        def hk12(): A.wait(vm=self.pos_kB); A("s_barrier")
        self.qkv_block(addr_k, {0: hk0, 12: hk12}, vKP, SCR1 + 1024)
        self.flush_side()
        self.pos_v = A.vm_pos()
        self.stamp("k done")
        self.side += self.job_strip(SRD_W2, 0, 64, A0)
        def hv0(): A.wait(vm=self.pos_v); A("s_barrier")
        self.qkv_block(lambda s: B0 + s*2048, {0: hv0}, vVP, SCR1 + 2048)
        self.flush_side()
        self.pos_w2 = A.vm_pos()
        self.stamp("v done")
        l = A.newlabel("halo")
        A(f"s_cmp_lg_u32 s{sRBK}, 1"); A(f"s_cbranch_scc1 {l}")
        T = vT
        A(f"s_lshl_b32 s{sT0}, s{sRB64}, 3"); A(f"s_add_u32 s{sT0}, s{sT0}, s{sC}"); A(f"s_lshl_b32 s{sT0}, s{sT0}, 12")
        A(f"s_lshl_b32 s{sT1}, s{sCG}, 10"); A(f"s_add_u32 s{sT0}, s{sT0}, s{sT1}"); A(f"s_add_u32 s{sT0}, s{sT0}, {WS_KV}")
        A(f"v_subrev_u32 v{T}, 16, v{vM}"); A(f"v_lshlrev_b32 v{T}, 4, v{T}"); A(f"v_lshl_add_u32 v{T}, v{vH}, 9, v{T}")
        A(f"v_cmp_le_u32 vcc, 16, v{vM}")
        A(f"s_and_saveexec_b64 s[{sEXS}:{sEXS+1}], vcc")
        A.opt(f"buffer_store_dwordx4 {v(vKP,4)}, v{T}, {srd(SRD_WS)}, s{sT0} offen sc1")
        A.opt(f"buffer_store_dwordx4 {v(vKP+4,4)}, v{T}, {srd(SRD_WS)}, s{sT0} offen offset:256 sc1")
        A.opt(f"buffer_store_dwordx4 {v(vVP,4)}, v{T}, {srd(SRD_WS)}, s{sT0} offen offset:2048 sc1")
        A.opt(f"buffer_store_dwordx4 {v(vVP+4,4)}, v{T}, {srd(SRD_WS)}, s{sT0} offen offset:2304 sc1")
        A(f"s_mov_b64 exec, s[{sEXS}:{sEXS+1}]")
        A.label(l)
        self.arrive([f"s_lshl_b32 s{sT0}, s{sRB64}, 8", f"s_add_u32 s{sT0}, s{sT0}, {WS_CNT + CNT_KV*CNT_STRIDE}"], A.vm_pos(), "kv halo")

    def ksplit_gemm(self, nsteps, wbase_vregs, waddr, act_load, first, nring_regs, PDL, hooks=None, side_rate=1, tail=None):
        A = self.A
        hooks = hooks or {}
        acts = {}; apos = {}
        def issue(i):
            acts[i] = act_load(i); apos[i] = A.vm_pos()
        for i in range(min(PDL, nsteps)): issue(i)
        PD = 2
        lgpos = {}
        for s in range(nsteps + PD):
            if s < nsteps:
                if s in hooks: hooks[s]()
                ad = waddr(s)
                if ad is not None:
                    for cb in range(2):
                        b = vRING + 4*(2*(s % 4) + cb)
                        A(f"ds_read_b64_tr_b16 {v(b,2)}, v{wbase_vregs[cb]} offset:{ad}")
                        A(f"ds_read_b64_tr_b16 {v(b+2,2)}, v{wbase_vregs[cb]} offset:{ad+1024}")
                lgpos[s] = A.lg_pos()
            if s >= PD:
                t = s - PD
                A.wait(vm=apos[t], lg=lgpos[t] if waddr(t) is not None else None)
                for cb in range(2):
                    acc = (vACC0, vACC1)[cb]
                    c = "0" if (first and t == 0) else v(acc, 16)
                    if waddr(t) is not None:
                        wa = v(vRING + 4*(2*(t % 4) + cb), 4)
                    else:
                        wa = a(tail(t)[cb], 4)
                    A(f"v_mfma_f32_32x32x16_bf16 {v(acc,16)}, {wa}, {a(acts[t],4)}, {c}")
                if t + PDL < nsteps: issue(t + PDL)
                elif t % side_rate == 0: self.pump(1)

    def pair_reduce(self, scr):
        A = self.A
        T = vT
        A(f"s_lshl_b32 s{sT0}, s{sW}, 12"); A(f"s_add_u32 s{sT1}, s{sT0}, {scr}"); A(f"v_add_u32 v{T}, s{sT1}, v{vL16}")
        A(f"s_xor_b32 s{sT0}, s{sT0}, 8192"); A(f"s_add_u32 s{sT0}, s{sT0}, {scr}"); A(f"v_add_u32 v{T+1}, s{sT0}, v{vL16}")
        A.nop(12 - 6)
        for j in range(4): A(f"ds_write_b128 v{T}, {v(vACC1+4*j,4)} offset:{1024*j}")
        A.wait_all_lg()
        A("s_barrier")
        for j in range(4): A(f"ds_read_b128 {v(T+4+4*j,4)}, v{T+1} offset:{1024*j}")
        for j in range(4):
            A.wait(lg=A.lg_pos() - (3 - j))
            for i in range(4): A(f"v_add_f32 v{vACC0+4*j+i}, v{vACC0+4*j+i}, v{T+4+4*j+i}")

    def p2(self):
        A = self.A
        T = vT
        code = [f"s_add_u32 s{sT0}, s{sRB64}, -1", f"v_add_u32 v250, s{sT0}, v{vL}",
                "v_max_i32 v250, 0, v250", "v_min_i32 v250, 31, v250",
                "v_lshlrev_b32 v250, 8, v250", f"v_add_u32 v250, {WS_CNT + CNT_H*CNT_STRIDE}, v250"]
        A.wait(vm=self.pos_w2)
        self.poll(code, 3, 8, "h")
        self.stamp("sync1")
        vA, vB = T+50, T+51
        A(f"s_lshl_b32 s{sT0}, s{sRB64}, 6"); A(f"s_lshl_b32 s{sT1}, s{sRBK}, 5"); A(f"s_add_u32 s{sT0}, s{sT0}, s{sT1}")
        A(f"s_add_u32 s{sT1}, s{sCG}, 1")
        for (dst, sign) in ((vA, -1), (vB, +1)):
            A(f"v_add_u32 v{T}, s{sT0}, v{vM}")
            if sign < 0: A(f"v_subrev_u32 v{T}, s{sT1}, v{T}")
            else: A(f"v_add_u32 v{T}, s{sT1}, v{T}")
            A(f"v_lshrrev_b32 v{T+1}, 5, v{T}"); A(f"v_lshlrev_b32 v{T+1}, 15, v{T+1}")
            A(f"v_and_b32 v{T+2}, 31, v{T}"); A(f"v_lshl_add_u32 v{T+1}, v{T+2}, 4, v{T+1}")
            A(f"v_lshl_add_u32 v{T+1}, v{vH}, 9, v{T+1}")
            A(f"v_mov_b32 v{T+2}, 0x80000000")
            A(f"s_movk_i32 s{sT2}, 2048"); A(f"v_cmp_gt_u32 vcc, s{sT2}, v{T}")
            A.nop(2)
            A(f"v_cndmask_b32 v{dst}, v{T+2}, v{T+1}, vcc")
        vW0, vW1 = T+52, T+53
        A(f"s_lshl_b32 s{sT0}, s{sCG}, 15"); A(f"v_add_u32 v{vW0}, s{sT0}, v{vTRC0}"); A(f"v_add_u32 v{vW1}, s{sT0}, v{vTRC1}")
        A(f"s_lshl_b32 s{sG}, s{sCG}, 14"); A(f"s_add_u32 s{sG}, s{sG}, {WS_H}")
        def act(i):
            if i % 4 == 0 and i > 0: A(f"s_add_u32 s{sG}, s{sG}, 4096")
            r = 128 + 4*i
            A(f"buffer_load_dwordx4 {a(r,4)}, v{vA if i < 8 else vB}, {srd(SRD_WS)}, s{sG} offen offset:{(i%4)*1024} sc1")
            return r
        q_job = self.job_strip_qkv(0, 0, 32, B0)
        w3c = self.job_w3(0, 8, C0)
        self.side += q_job + w3c
        self.ksplit_gemm(16, (vW0, vW1), lambda i: i*2048, act, True, 0, 16, side_rate=1)
        A("s_barrier")
        self.stamp("p2 main")
        self.pair_reduce(A0 + 51200)
        X = T+20
        for j in range(8):
            A(f"v_lshlrev_b32 v{X+2*j}, 16, v{vXRES+j}"); A(f"v_and_b32 v{X+2*j+1}, 0xffff0000, v{vXRES+j}")
        S0, S1 = T+40, T+41
        A(f"v_mov_b32 v{S0}, 0"); A(f"v_mov_b32 v{S1}, 0")
        for i in range(16):
            A(f"v_add_f32 v{T+42}, v{vNMU}, v{X+i}")
            A(f"v_fmac_f32 v{vACC0+i}, v{vR}, v{T+42}")
            A(f"v_add_f32 v{vRESID+i}, v{X+i}, v{vACC0+i}")
            A(f"v_add_f32 v{S0}, v{S0}, v{vACC0+i}")
            A(f"v_fmac_f32 v{S1}, v{vACC0+i}, v{vACC0+i}")
        for i in range(8): A(f"v_cvt_pk_bf16_f32 v{X+i}, v{vACC0+2*i}, v{vACC0+2*i+1}")
        A(f"s_lshl_b32 s{sT0}, s{sRB64}, 1"); A(f"s_add_u32 s{sT0}, s{sT0}, s{sRBK}"); A(f"s_lshl_b32 s{sT2}, s{sT0}, 15")
        A(f"s_lshl_b32 s{sT1}, s{sC}, 12"); A(f"s_add_u32 s{sT2}, s{sT2}, s{sT1}")
        A(f"s_lshl_b32 s{sT1}, s{sCG}, 11"); A(f"s_add_u32 s{sT2}, s{sT2}, s{sT1}"); A(f"s_add_u32 s{sT2}, s{sT2}, {WS_X1}")
        A(f"buffer_store_dwordx4 {v(X,4)}, v{vL16}, {srd(SRD_WS)}, s{sT2} offen sc1")
        A(f"buffer_store_dwordx4 {v(X+4,4)}, v{vL16}, {srd(SRD_WS)}, s{sT2} offen offset:1024 sc1")
        self.swap_add(S0, T+42); self.swap_add(S1, T+42)
        A(f"s_lshl_b32 s{sT0}, s{sT0}, 12"); A(f"s_lshl_b32 s{sT1}, s{sC}, 9"); A(f"s_add_u32 s{sT0}, s{sT0}, s{sT1}")
        A(f"s_lshl_b32 s{sT1}, s{sCG}, 8"); A(f"s_add_u32 s{sT0}, s{sT0}, s{sT1}"); A(f"s_add_u32 s{sT0}, s{sT0}, {WS_X1S}")
        A(f"v_lshlrev_b32 v{T+42}, 3, v{vM}")
        A(f"buffer_store_dwordx2 {v(S0,2)}, v{T+42}, {srd(SRD_WS)}, s{sT0} offen sc1")
        pos = A.vm_pos()
        self.flush_side()
        self.pos_q = A.vm_pos()
        for g in self.job_w3(8, 16, A0):
            for ins in g: A(ins)
        self.arrive([f"s_lshl_b32 s{sT0}, s{sRB128}, 8", f"s_add_u32 s{sT0}, s{sT0}, {WS_CNT + CNT_X1*CNT_STRIDE}"], pos, "x1")

    def shadow2(self):
        A = self.A
        T = vT
        self.side += self.job_w3(24, 4, A0 + 49152)
        j2 = self.job_w3_small(28, 2, A0 + 61440)
        self.side += j2
        def hq0(): A.wait(vm=self.pos_q); A("s_barrier")
        self.qkv_block(lambda s: B0 + s*2048, {0: hq0}, vQP, SCR1 + 1024)
        self.flush_side()
        self.stamp("q done")
        code = [f"s_add_u32 s{sT0}, s{sRB64}, -1", f"s_max_i32 s{sT0}, s{sT0}, 0", f"s_lshl_b32 s{sT0}, s{sT0}, 8",
                f"s_add_u32 s{sT0}, s{sT0}, {WS_CNT + CNT_KV*CNT_STRIDE}", f"v_mov_b32 v250, s{sT0}"]
        self.poll(code, 1, 8, "kv halo")
        for g in self.job_w3_small(30, 2, C0 + 8*3072):
            for ins in g: A(ins)
        self.pos_w3 = A.vm_pos()
        KV = B0
        vKA = T
        A(f"s_lshl_b32 s{sT0}, s{sCG}, 1"); A(f"v_add_u32 v{T+1}, s{sT0}, v{vH}")
        A(f"v_mul_u32_u24 v{T+1}, 2560, v{T+1}")
        A(f"s_lshl_b32 s{sT0}, s{sRBK}, 5"); A(f"s_add_u32 s{sT0}, s{sT0}, 16"); A(f"v_add_u32 v{T+2}, s{sT0}, v{vM}")
        A(f"v_lshl_add_u32 v{vKA}, v{T+2}, 4, v{T+1}"); A(f"v_add_u32 v{vKA}, {KV}, v{vKA}")
        A(f"ds_write_b128 v{vKA}, {v(vKP,4)}"); A(f"ds_write_b128 v{vKA}, {v(vKP+4,4)} offset:1280")
        A(f"ds_write_b128 v{vKA}, {v(vVP,4)} offset:10240"); A(f"ds_write_b128 v{vKA}, {v(vVP+4,4)} offset:11520")
        H = T+4
        A(f"v_mov_b32 v{H}, 0"); A(f"v_mov_b32 v{H+1}, 0"); A(f"v_mov_b32 v{H+2}, 0"); A(f"v_mov_b32 v{H+3}, 0")
        l = A.newlabel("nohalo")
        A(f"s_cmp_eq_u32 s{sRB64}, 0"); A(f"s_cbranch_scc1 {l}")
        A(f"s_add_u32 s{sT0}, s{sRB64}, -1"); A(f"s_lshl_b32 s{sT0}, s{sT0}, 3"); A(f"s_add_u32 s{sT0}, s{sT0}, s{sC}")
        A(f"s_lshl_b32 s{sT0}, s{sT0}, 12"); A(f"s_add_u32 s{sT0}, s{sT0}, {WS_KV}")
        A(f"v_lshlrev_b32 v{T+8}, 4, v0")
        A.opt(f"buffer_load_dwordx4 {v(H,4)}, v{T+8}, {srd(SRD_WS)}, s{sT0} offen sc1")
        A("s_waitcnt vmcnt(0)")
        A.label(l)
        A(f"v_lshrrev_b32 v{T+8}, 4, v0"); A(f"v_mul_u32_u24 v{T+8}, 1280, v{T+8}")
        A(f"v_and_b32 v{T+9}, 15, v0"); A(f"v_lshl_add_u32 v{T+8}, v{T+9}, 4, v{T+8}"); A(f"v_add_u32 v{T+8}, {KV}, v{T+8}")
        A(f"ds_write_b128 v{T+8}, {v(H,4)}")
        A.wait_all_lg()
        A("s_barrier")
        self.stamp("kv staged")
        Q = vQP
        KB = vRING
        LG = T+12
        A(f"v_subrev_u32 v{T+10}, {14*16}, v{vKA}")
        for w in range(8):
            off = (14 - 2*w) * 16
            A(f"ds_read_b128 {v(KB+8*w,4)}, v{T+10} offset:{off}")
            A(f"ds_read_b128 {v(KB+8*w+4,4)}, v{T+10} offset:{off+1280}")
        base_lg = A.lg_pos() - 16
        for w in range(8): A(f"v_mov_b32 v{LG+w}, 0")
        for w in range(8):
            A.wait(lg=base_lg + 2*(w+1))
            for i in range(8): A(f"v_dot2c_f32_bf16 v{LG+w}, v{Q+i}, v{KB+8*w+i}")
        A.nop(3)
        for w in range(8):
            off = (14 - 2*w) * 16
            A(f"ds_read_b128 {v(KB+8*w,4)}, v{T+10} offset:{off+10240}")
            A(f"ds_read_b128 {v(KB+8*w+4,4)}, v{T+10} offset:{off+11520}")
        base_lg = A.lg_pos() - 16
        l = A.newlabel("nomask")
        A(f"s_cmp_lg_u32 s{sRB64}, 0"); A(f"s_cbranch_scc1 {l}")
        A(f"s_lshl_b32 s{sT0}, s{sRBK}, 5"); A(f"v_add_u32 v{T+11}, s{sT0}, v{vM}")
        A(f"v_mov_b32 v{T+20}, 0xff800000")
        for w in range(1, 8):
            A(f"v_cmp_le_u32 vcc, {2*w}, v{T+11}")
            A.nop(2)
            A(f"v_cndmask_b32 v{LG+w}, v{T+20}, v{LG+w}, vcc")
        A.label(l)
        MX = T+20
        A(f"v_max3_f32 v{MX}, v{LG}, v{LG+1}, v{LG+2}"); A(f"v_max3_f32 v{MX}, v{MX}, v{LG+3}, v{LG+4}")
        A(f"v_max3_f32 v{MX}, v{MX}, v{LG+5}, v{LG+6}"); A(f"v_max_f32 v{MX}, v{MX}, v{LG+7}")
        cs = 0.25 * 1.4426950408889634
        A(f"s_mov_b32 s{sT0}, {fbits(cs)}")
        A(f"v_mul_f32 v{MX}, {fbits(-cs)}, v{MX}")
        for w in range(8): A(f"v_fma_f32 v{LG+w}, v{LG+w}, s{sT0}, v{MX}")
        for w in range(8): A(f"v_exp_f32 v{LG+w}, v{LG+w}")
        SM = T+21
        A(f"v_add_f32 v{SM}, v{LG}, v{LG+1}")
        for w in range(2, 8): A(f"v_add_f32 v{SM}, v{SM}, v{LG+w}")
        A(f"v_rcp_f32 v{SM}, v{SM}")
        A.nop(1)
        for w in range(8): A(f"v_mul_f32 v{LG+w}, v{SM}, v{LG+w}")
        PP = T+22
        for u in range(4): A(f"v_cvt_pk_bf16_f32 v{PP+u}, v{LG+2*u}, v{LG+2*u+1}")
        O = vACC0
        TP = T+26
        for u in range(4):
            A.wait(lg=base_lg + 4*(u+1))
            va, vb = KB + 16*u, KB + 16*u + 8
            for i in range(8):
                t0, t1 = TP + 2*(i & 1), TP + 2*(i & 1) + 1
                A(f"v_perm_b32 v{t0}, v{vb+i}, v{va+i}, s{sPLO}")
                A(f"v_perm_b32 v{t1}, v{vb+i}, v{va+i}, s{sPHI}")
                if u == 0:
                    A(f"v_dot2_f32_bf16 v{O+2*i}, v{t0}, v{PP+u}, 0"); A(f"v_dot2_f32_bf16 v{O+2*i+1}, v{t1}, v{PP+u}, 0")
                else:
                    A(f"v_dot2c_f32_bf16 v{O+2*i}, v{t0}, v{PP+u}"); A(f"v_dot2c_f32_bf16 v{O+2*i+1}, v{t1}, v{PP+u}")
        A.nop(3)
        OP = T+32
        for i in range(8): A(f"v_cvt_pk_bf16_f32 v{OP+i}, v{O+2*i}, v{O+2*i+1}")
        A.nop(2)
        for i in range(4): A(f"v_permlane32_swap_b32 v{OP+i}, v{OP+4+i}")
        A(f"s_lshl_b32 s{sT0}, s{sRB64}, 1"); A(f"s_add_u32 s{sT0}, s{sT0}, s{sRBK}"); A(f"s_lshl_b32 s{sT0}, s{sT0}, 15")
        A(f"s_lshl_b32 s{sT1}, s{sC}, 12"); A(f"s_add_u32 s{sT0}, s{sT0}, s{sT1}")
        A(f"s_lshl_b32 s{sT1}, s{sCG}, 11"); A(f"s_add_u32 s{sT0}, s{sT0}, s{sT1}"); A(f"s_add_u32 s{sT0}, s{sT0}, {WS_O}")
        A(f"buffer_store_dwordx4 {v(OP,4)}, v{vL16}, {srd(SRD_WS)}, s{sT0} offen sc1")
        A(f"buffer_store_dwordx4 {v(OP+4,4)}, v{vL16}, {srd(SRD_WS)}, s{sT0} offen offset:1024 sc1")
        self.arrive([f"s_lshl_b32 s{sT0}, s{sRB64}, 8", f"s_add_u32 s{sT0}, s{sT0}, {WS_CNT + CNT_O*CNT_STRIDE}"], A.vm_pos(), "o")
        self.stamp("attn done")
        vB3 = [T, T+1, T+2]
        A(f"s_lshl_b32 s{sT0}, s{sW}, 3")
        CS = T+8
        for i in range(6): A(f"v_mov_b32 v{CS+i}, 0")
        for i in range(8):
            A(f"s_add_u32 s{sT1}, s{sT0}, {i}")
            A(f"s_mul_i32 s{sT2}, s{sT1}, 3072")
            A(f"s_add_u32 s{sT3}, s{sT2}, {C0}")
            A(f"s_sub_u32 s{sT4}, s{sT2}, {8*3072}")
            A(f"s_cmp_lt_u32 s{sT1}, 8"); A(f"s_cselect_b32 s{sT4}, s{sT3}, s{sT4}")
            A(f"s_add_u32 s{sT3}, s{sT2}, {C0 - 22*3072}")
            A(f"s_cmp_ge_u32 s{sT1}, 30"); A(f"s_cselect_b32 s{sT4}, s{sT3}, s{sT4}")
            A(f"v_add_u32 v{T+3}, s{sT4}, v{vTR3}")
            for blk in range(3):
                b = vRING + 4*(3*(i % 2) + blk)
                A(f"ds_read_b64_tr_b16 {v(b,2)}, v{T+3} offset:{blk*64}")
                A(f"ds_read_b64_tr_b16 {v(b+2,2)}, v{T+3} offset:{blk*64+1536}")
            A.wait_all_lg()
            for blk in range(3):
                b = vRING + 4*(3*(i % 2) + blk)
                for r in range(4): A(f"v_dot2c_f32_bf16 v{CS+2*blk+(r&1)}, s{sONES}, v{b+r}")
        A.nop(3)
        SC3 = B0 + 24576
        for blk in range(3):
            A(f"v_add_f32 v{CS+2*blk}, v{CS+2*blk}, v{CS+2*blk+1}")
            self.swap_add(CS+2*blk, T+4)
        A(f"s_mul_i32 s{sT0}, s{sW}, 384"); A(f"v_lshl_add_u32 v{T+4}, v{vM}, 2, s{sT0}"); A(f"v_add_u32 v{T+4}, {SC3}, v{T+4}")
        for blk in range(3): A(f"ds_write_b32 v{T+4}, v{CS+2*blk} offset:{128*blk}")
        A.wait_all_lg()
        A("s_barrier")
        A(f"v_lshlrev_b32 v{T+4}, 2, v{vM}"); A(f"v_add_u32 v{T+4}, {SC3}, v{T+4}")
        for w in range(4):
            for blk in range(3): A(f"ds_read_b32 v{T+16+4*blk+w}, v{T+4} offset:{384*w+128*blk}")
        A(f"v_cmp_gt_u32 vcc, 32, v{vL}")
        A.wait_all_lg()
        self.vC3 = [T+46, T+47, T+48]
        for blk in range(3):
            b = T+16+4*blk
            A(f"v_add_f32 v{b}, v{b}, v{b+1}"); A(f"v_add_f32 v{b+2}, v{b+2}, v{b+3}"); A(f"v_add_f32 v{b}, v{b}, v{b+2}")
            A(f"v_cndmask_b32 v{self.vC3[blk]}, 0, v{b}, vcc")
        A("s_barrier")
        self.side += self.job_strip(SRD_WO, 0, 64, B0)
        self.flush_side()
        self.pos_wo = A.vm_pos()
        self.stamp("c3 done")

    def job_w3_small(self, s0, ns, lds0):
        groups = []
        g = [f"s_lshl_b32 s{sG2}, s{sCB0}, 6", f"s_add_u32 s{sG2}, s{sG2}, {s0*16*2752}",
             f"s_min_u32 s{sT0}, s{sW}, {ns-1}", f"s_mul_i32 s{sT1}, s{sT0}, {16*2752}", f"s_add_u32 s{sG}, s{sG2}, s{sT1}",
             f"s_mul_i32 s{sT0}, s{sT0}, 3072", f"s_add_u32 m0, s{sT0}, {lds0}", "s_nop 0"]
        for i in range(3):
            if i: g = ["s_add_u32 m0, m0, 1024", "s_nop 0"]
            g.append(f"buffer_load_dwordx4 v{vW3[i]}, {srd(SRD_W3)}, s{sG} offen lds")
            groups.append(g)
        return groups

    def w3_addr(self, s):
        if s < 8: return C0 + s*3072
        if s < 30: return A0 + (s-8)*3072
        return C0 + (s-22)*3072

    def p3(self):
        A = self.A
        T = vT
        code = [f"s_lshl_b32 s{sT0}, s{sRB128}, 8", f"s_add_u32 s{sT0}, s{sT0}, {WS_CNT + CNT_X1*CNT_STRIDE}", f"v_mov_b32 v250, s{sT0}"]
        self.poll(code, 1, 16, "x1")
        self.stamp("sync2")
        A(f"s_lshl_b32 s{sT0}, s{sRB128}, 2"); A(f"s_add_u32 s{sT0}, s{sT0}, s{sW}")
        A(f"s_lshl_b32 s{sG}, s{sT0}, 15"); A(f"s_add_u32 s{sG}, s{sG}, {WS_X1}")
        A(f"s_lshl_b32 s{sT3}, s{sT0}, 12"); A(f"s_add_u32 s{sT3}, s{sT3}, {WS_X1S}")
        A(f"s_mul_i32 s{sT4}, s{sT0}, {86*1024}"); A(f"s_add_u32 s{sT4}, s{sT4}, {WS_G}")
        A(f"s_lshl_b32 s{sT1}, s{sCB0}, 11"); A(f"s_add_u32 s{sT4}, s{sT4}, s{sT1}")
        apos = {}
        def act(i):
            if i % 4 == 0 and i > 0: A(f"s_add_u32 s{sG}, s{sG}, 4096")
            A(f"buffer_load_dwordx4 {a(4*i,4)}, v{vL16}, {srd(SRD_WS)}, s{sG} offen offset:{(i%4)*1024} sc1")
            apos[i] = A.vm_pos()
        PDL = 14
        for i in range(PDL): act(i)
        vB = [T, T+1, T+2]
        A(f"v_mov_b32 v{vB[0]}, v{vTR3}"); A(f"v_add_u32 v{vB[1]}, 65536, v{vTR3}"); A(f"v_add_u32 v{vB[2]}, 131072, v{vTR3}")
        def wread(s, blk, buf):
            ad = self.w3_addr(s) + blk*64
            for (k, d) in ((0, 0), (2, 1536)):
                x = ad + d
                A(f"ds_read_b64_tr_b16 {v(buf+k,2)}, v{vB[x // 65536]} offset:{x % 65536}")
        PD = 2
        lgpos = {}
        stats_issued = False
        for s in range(32 + PD):
            if s < 32:
                for blk in range(2): wread(s, blk, vRING + 4*(2*(s % 4) + blk))
                lgpos[s] = A.lg_pos()
            if s >= PD:
                t = s - PD
                A.wait(vm=apos[t], lg=lgpos[t])
                for blk in range(2):
                    acc = (vACC0, vACC1)[blk]
                    c = "0" if t == 0 else v(acc, 16)
                    A(f"v_mfma_f32_32x32x16_bf16 {v(acc,16)}, {v(vRING + 4*(2*(t % 4) + blk),4)}, {a(4*t,4)}, {c}")
                if t + PDL < 32: act(t + PDL)
                elif not stats_issued:
                    stats_issued = True
                    A(f"v_lshlrev_b32 v{T+3}, 3, v{vM}"); A(f"v_lshl_add_u32 v{T+3}, v{vH}, 11, v{T+3}")
                    for j in range(8):
                        A(f"buffer_load_dwordx2 {v(T+20+2*j,2)}, v{T+3}, {srd(SRD_WS)}, s{sT3} offen offset:{256*j} sc1")
                    spos = A.vm_pos()
        A.wait(vm=spos)
        S0, S1 = T+20, T+21
        for j in range(1, 8):
            A(f"v_add_f32 v{S0}, v{S0}, v{T+20+2*j}"); A(f"v_add_f32 v{S1}, v{S1}, v{T+21+2*j}")
        self.swap_add(S0, T+4); self.swap_add(S1, T+4)
        NMU1, R1 = T+5, T+6
        A(f"v_mul_f32 v{S0}, {fbits(1/512)}, v{S0}"); A(f"v_mul_f32 v{S1}, {fbits(1/512)}, v{S1}")
        A(f"v_sub_f32 v{NMU1}, 0, v{S0}"); A(f"v_fma_f32 v{S1}, v{NMU1}, v{S0}, v{S1}"); A(f"v_max_f32 v{S1}, 0, v{S1}")
        A(f"v_add_f32 v{S1}, {fbits(1e-5)}, v{S1}"); A(f"v_rsq_f32 v{R1}, v{S1}")
        lskip = A.newlabel("nob2")
        A(f"s_cmp_lt_u32 s{sNBLK}, 3"); A(f"s_cbranch_scc1 {lskip}")
        lg_save = A.lg
        for s in range(32 + PD):
            if s < 32:
                wread(s, 2, vRING + 4*(s % 4))
                lgpos[s] = A.lg_pos()
            if s >= PD:
                t = s - PD
                A.wait(lg=lgpos[t])
                c = "0" if t == 0 else v(vACC2, 16)
                A(f"v_mfma_f32_32x32x16_bf16 {v(vACC2,16)}, {v(vRING + 4*(t % 4),4)}, {a(4*t,4)}, {c}")
        A.label(lskip)
        A("s_barrier")
        self.stamp("p3 main")
        for blk in range(3):
            acc = (vACC0, vACC1, vACC2)[blk]
            if blk == 2:
                lskip2 = A.newlabel("nog2")
                A(f"s_cmp_lt_u32 s{sNBLK}, 3"); A(f"s_cbranch_scc1 {lskip2}")
            A.nop(10)
            A(f"v_mfma_f32_32x32x2_f32 {v(acc,16)}, v{self.vC3[blk]}, v{NMU1}, {v(acc,16)}")
            self.gelu_block(acc, R1, T+34, wait_states=18)
            st = A if blk < 2 else None
            i1 = f"buffer_store_dwordx4 {v(acc,4)}, v{vL16}, {srd(SRD_WS)}, s{sT4} offen offset:{blk*2048 % 4096} sc1"
            i2 = f"buffer_store_dwordx4 {v(acc+4,4)}, v{vL16}, {srd(SRD_WS)}, s{sT4} offen offset:{blk*2048 % 4096 + 1024} sc1"
            if blk == 2:
                A(f"s_add_u32 s{sT4}, s{sT4}, 4096")
                A.opt(i1); A.opt(i2)
                A.label(lskip2)
            else:
                A(i1); A(i2)
        pos = A.vm_pos()
        self.side += self.job_w4(39, 4, A0 + 12*4096) + self.job_w4(0, 12, A0) + self.job_w4(12, 7, C0)
        self.pump(6)
        self.arrive([f"s_lshl_b32 s{sT0}, s{sRB128}, 8", f"s_add_u32 s{sT0}, s{sT0}, {WS_CNT + CNT_G*CNT_STRIDE}"], pos, "g")
        self.flush_side()
        self.pos_w4e = A.vm_pos()

    def job_w4(self, i0, ni, lds0):
        groups = []
        for j in range(ni):
            g = []
            if j == 0:
                g += [f"s_mul_i32 s{sG}, s{sCG}, {43*16*1024}", f"s_lshl_b32 s{sT0}, s{sRBK}, 13", f"s_add_u32 s{sG}, s{sG}, s{sT0}",
                      f"s_lshl_b32 s{sT0}, s{sC}, 7", f"s_add_u32 s{sG}, s{sG}, s{sT0}", f"s_add_u32 s{sG}, s{sG}, {i0*16*1024}",
                      f"s_lshl_b32 s{sT0}, s{sW}, 10", f"s_add_u32 m0, s{sT0}, {lds0}", "s_nop 0"]
            else:
                g += [f"s_add_u32 s{sG}, s{sG}, {16*1024}", "s_add_u32 m0, m0, 4096", "s_nop 0"]
            g.append(f"buffer_load_dwordx4 v{vSTR}, {srd(SRD_W4)}, s{sG} offen lds")
            groups.append(g)
        return groups

    def w4_slot(self, i):
        if i < 12: return A0 + i*4096
        if i < 19: return C0 + (i-12)*4096
        if i < 35: return B0 + (i-19)*4096
        return A0 + 12*4096 + (i-35)*4096

    def p4(self):
        A = self.A
        T = vT
        code = [f"s_lshl_b32 s{sT0}, s{sRB64}, 8", f"s_add_u32 s{sT0}, s{sT0}, {WS_CNT + CNT_O*CNT_STRIDE}", f"v_mov_b32 v250, s{sT0}"]
        A.wait(vm=self.pos_wo)
        self.poll(code, 1, 8, "o")
        vW0, vW1 = T+52, T+53
        A(f"s_lshl_b32 s{sT0}, s{sCG}, 15"); A(f"s_add_u32 s{sT0}, s{sT0}, {B0}")
        A(f"v_add_u32 v{vW0}, s{sT0}, v{vTRC0}"); A(f"v_add_u32 v{vW1}, s{sT0}, v{vTRC1}")
        A(f"s_lshl_b32 s{sT0}, s{sRB64}, 1"); A(f"s_add_u32 s{sT0}, s{sT0}, s{sRBK}")
        A(f"s_lshl_b32 s{sT3}, s{sT0}, 15"); A(f"s_lshl_b32 s{sT1}, s{sCG}, 14"); A(f"s_add_u32 s{sT3}, s{sT3}, s{sT1}"); A(f"s_add_u32 s{sT3}, s{sT3}, {WS_O}")
        A(f"s_mul_i32 s{sT4}, s{sT0}, {86*1024}"); A(f"s_mul_i32 s{sT1}, s{sCG}, {43*1024}"); A(f"s_add_u32 s{sT4}, s{sT4}, s{sT1}"); A(f"s_add_u32 s{sT4}, s{sT4}, {WS_G}")
        def act_o(i):
            if i % 4 == 0 and i > 0: A(f"s_add_u32 s{sT3}, s{sT3}, 4096")
            r = 128 + 4*i
            A(f"buffer_load_dwordx4 {a(r,4)}, v{vL16}, {srd(SRD_WS)}, s{sT3} offen offset:{(i%4)*1024} sc1")
            return r
        self.ksplit_gemm(16, (vW0, vW1), lambda i: i*2048, act_o, True, 0, 16)
        self.stamp("wo done")
        A.wait(vm=self.pos_w4e)
        A("s_barrier")
        vA0, vA1 = T+54, T+55
        A(f"s_lshl_b32 s{sT0}, s{sCG}, 11"); A(f"v_add_u32 v{vA0}, s{sT0}, v{vTRC0}"); A(f"v_add_u32 v{vA1}, s{sT0}, v{vTRC1}")
        for i in range(4):
            for cb in range(2):
                r = 192 + 8*i + 4*cb
                A(f"ds_read_b64_tr_b16 {a(r,2)}, v{(vA0,vA1)[cb]} offset:{12*4096 + i*4096}")
                A(f"ds_read_b64_tr_b16 {a(r+2,2)}, v{(vA0,vA1)[cb]} offset:{12*4096 + i*4096 + 1024}")
        A.wait_all_lg()
        A("s_barrier")
        for g in self.job_w4(19, 16, B0) + self.job_w4(35, 4, A0 + 12*4096):
            for ins in g: A(ins)
        pos_late = A.vm_pos()
        code = [f"s_lshl_b32 s{sT0}, s{sRB128}, 8", f"s_add_u32 s{sT0}, s{sT0}, {WS_CNT + CNT_G*CNT_STRIDE}", f"v_mov_b32 v250, s{sT0}"]
        self.poll(code, 1, 16, "g")
        self.stamp("sync3")
        vb = {}
        for win in range(3):
            for cb in range(2):
                r = T + 44 + 2*win + cb
                A(f"v_add_u32 v{r}, {win*65536}, v{(vA0,vA1)[cb]}")
                vb[(win, cb)] = r
        acts = {}; apos = {}
        def act_g(i):
            if i % 4 == 0 and i > 0: A(f"s_add_u32 s{sT4}, s{sT4}, 4096")
            r = 4*(i % 32)
            A(f"buffer_load_dwordx4 {a(r,4)}, v{vL16}, {srd(SRD_WS)}, s{sT4} offen offset:{(i%4)*1024} sc1")
            acts[i] = r; apos[i] = A.vm_pos()
        PDL = 14; PD = 2; N = 43
        for i in range(PDL): act_g(i)
        lgpos = {}
        for s in range(N + PD):
            if s < N:
                if s == 19:
                    A("s_barrier")
                if s < 39:
                    ad = self.w4_slot(s)
                    for cb in range(2):
                        b = vRING + 4*(2*(s % 4) + cb)
                        for (k, d) in ((0, 0), (2, 1024)):
                            x = ad + d
                            A(f"ds_read_b64_tr_b16 {v(b+k,2)}, v{vb[(x // 65536, cb)]} offset:{x % 65536}")
                lgpos[s] = A.lg_pos()
            if s >= PD:
                t = s - PD
                A.wait(vm=apos[t], lg=lgpos[t] if t < 39 else None)
                for cb in range(2):
                    acc = (vACC0, vACC1)[cb]
                    wa = v(vRING + 4*(2*(t % 4) + cb), 4) if t < 39 else a(192 + 8*(t-39) + 4*cb, 4)
                    A(f"v_mfma_f32_32x32x16_bf16 {v(acc,16)}, {wa}, {a(acts[t],4)}, {v(acc,16)}")
                if t + PDL < N: act_g(t + PDL)
        A("s_barrier")
        self.stamp("p4 main")
        self.pair_reduce(A0)
        for i in range(16): A(f"v_add_f32 v{vACC0+i}, v{vACC0+i}, v{vRESID+i}")
        P = T+24
        for i in range(8): A(f"v_cvt_pk_bf16_f32 v{P+i}, v{vACC0+2*i}, v{vACC0+2*i+1}")
        A.nop(2)
        for (x, y) in ((0, 2), (1, 3), (4, 6), (5, 7)):
            A(f"v_permlane32_swap_b32 v{P+x}, v{P+y}")
        A(f"s_lshl_b32 s{sT0}, s{sRB64}, 6"); A(f"s_lshl_b32 s{sT1}, s{sRBK}, 5"); A(f"s_add_u32 s{sT0}, s{sT0}, s{sT1}")
        A(f"v_add_u32 v{T}, s{sT0}, v{vM}"); A(f"v_lshlrev_b32 v{T}, 10, v{T}"); A(f"v_lshl_add_u32 v{T}, v{vH}, 4, v{T}")
        A(f"s_lshl_b32 s{sT0}, s{sC}, 7"); A(f"s_lshl_b32 s{sT1}, s{sCG}, 6"); A(f"s_add_u32 s{sT0}, s{sT0}, s{sT1}")
        A(f"buffer_store_dwordx4 {v(P,4)}, v{T}, {srd(SRD_OUT)}, s{sT0} offen")
        A(f"buffer_store_dwordx4 {v(P+4,4)}, v{T}, {srd(SRD_OUT)}, s{sT0} offen offset:32")
        self.stamp("stored")

    def build(self):
        A = self.A
        stop = self.cfg.stop_after
        self.prologue()
        self.t0_dma()
        self.setup2()
        self.stamp("start")
        self.p1_h(); self.stamp("h main")
        self.p1_h_finish(); self.stamp("h pub")
        if stop != "h":
            self.shadow1(); self.stamp("kv pub")
            if stop != "kv":
                self.p2(); self.stamp("x1 pub")
                if stop != "x1":
                    self.shadow2()
                    if stop != "o":
                        self.p3(); self.stamp("g pub")
                        if stop != "g":
                            self.p4()
        self.flush_side()
        A("s_waitcnt vmcnt(0)")
        self.stamp("end")
        self.stamp_end()
        A.label("L_end")
        A("s_endpgm")
        return A

HEADER = """; Fused persistent kernel: x + attn(LN x) + mixer(LN x).  256 workgroups (one per CU), 4 waves each.
; @launch grid=(256,1,1) block=(256,1,1) lds=163840
.amdgcn_target "amdgcn-amd-amdhsa--gfx950"
.text
.globl {name}
.p2align 8
.type {name},@function
{name}:
"""
FOOTER = """
.section .rodata,"a"
.p2align 6
.amdhsa_kernel {name}
  .amdhsa_next_free_vgpr 512
  .amdhsa_next_free_sgpr 102
  .amdhsa_accum_offset 256
  .amdhsa_group_segment_fixed_size 0
  .amdhsa_kernarg_size 88
  .amdhsa_user_sgpr_count 2
  .amdhsa_user_sgpr_kernarg_segment_ptr 1
  .amdhsa_system_sgpr_workgroup_id_x 1
.end_amdhsa_kernel
"""

def generate(cfg):
    k = K(cfg)
    A = k.build()
    probs = check_hazards(A.lines)
    generate.names = k.stamp_names
    return HEADER.format(name=NAME) + A.text() + FOOTER.format(name=NAME), probs

if __name__ == "__main__":
    cfg = Cfg()
    out = sys.argv[1] if len(sys.argv) > 1 else "parallel_sum__sliding_local_dilated__mixer_s_mlp__prompt.s"
    for arg in sys.argv[2:]:
        k, val = arg.split("=")
        setattr(cfg, k, {"True": True, "False": False, "None": None}.get(val, int(val) if val.isdigit() else val))
    txt, probs = generate(cfg)
    for p in probs: print("HAZARD:", p)
    open(out, "w").write(txt)
    print("wrote", out, len(txt), "bytes;", txt.count("\n"), "lines;", len(probs), "hazards")
```

```python
import re

class Asm:
    def __init__(self):
        self.lines = []
        self.vm = 0
        self.lg = 0
        self.nlabel = 0
        self.auto = 0
        self._cost = 0
        self._inpump = False
        self.pump_cb = None

    def raw(self, text):
        self.lines.append(text)

    def __call__(self, text):
        t = text.strip()
        self.lines.append("    " + t)
        op = t.split()[0]
        if op.startswith(("buffer_", "global_")):
            self.vm += 1
        elif op.startswith("ds_"):
            self.lg += 1
        if self.auto and not self._inpump:
            if op.startswith("v_"):
                self._cost += {"v_exp_f32": 8, "v_rcp_f32": 8, "v_rsq_f32": 8}.get(op, 32 if op.startswith("v_mfma") else 4)
            elif op.startswith("ds_"):
                self._cost += 12 if "b128" in op else 8
            elif op.startswith("s_nop"):
                self._cost += 4 * (int(t.split()[1]) + 1)
            else:
                self._cost += 4
            safe = (op.startswith("v_") and not op.startswith(("v_cmp", "v_readfirstlane", "v_readlane"))) or op.startswith("ds_")
            if safe and self._cost >= self.auto:
                self._inpump = True
                if self.pump_cb(self._cost): self._cost = 0
                self._inpump = False

    def opt(self, text):
        self.lines.append("    " + text.strip())

    def label(self, name):
        self.lines.append(name + ":")

    def newlabel(self, base):
        self.nlabel += 1
        return f"L_{base}_{self.nlabel}"

    def comment(self, text):
        self.lines.append("    ; " + text)

    def vm_pos(self):
        return self.vm

    def lg_pos(self):
        return self.lg

    def wait(self, vm=None, lg=None):
        parts = []
        if vm is not None:
            n = self.vm - vm
            assert n >= 0
            if n < 63:
                parts.append(f"vmcnt({n})")
        if lg is not None:
            n = self.lg - lg
            assert n >= 0
            parts.append(f"lgkmcnt({min(n, 15)})")
        if parts:
            self("s_waitcnt " + " ".join(parts))

    def wait_all_vm(self):
        self("s_waitcnt vmcnt(0)")

    def wait_all_lg(self):
        self("s_waitcnt lgkmcnt(0)")

    def nop(self, n):
        while n > 0:
            k = min(n, 16)
            self(f"s_nop {k-1}")
            n -= k

    def mark(self):
        return len(self.lines)

    def pad(self, mark, n):
        cnt = 0
        for l in self.lines[mark:]:
            d = parse(l)
            if d is None: continue
            cnt += d["n"] if d["cls"] == "nop" else 1
        if cnt < n: self.nop(n - cnt)

    def text(self):
        return "\n".join(self.lines) + "\n"


_REG = re.compile(r"^(-|abs\()?([vas])(\d+)\)?$")
_RNG = re.compile(r"^-?([vas])\[(\d+):(\d+)\]$")

def regs_of(tok):
    tok = tok.strip()
    m = _RNG.match(tok)
    if m:
        return [(m.group(1), i) for i in range(int(m.group(2)), int(m.group(3)) + 1)]
    m = _REG.match(tok)
    if m:
        return [(m.group(2), int(m.group(3)))]
    if tok == "vcc":
        return [("s", "vcc")]
    if tok == "exec":
        return [("s", "exec")]
    if tok == "m0":
        return [("s", "m0")]
    return []

TRANS = ("v_exp_f32", "v_log_f32", "v_rcp_f32", "v_rsq_f32", "v_sqrt_f32", "v_sin_f32", "v_cos_f32")

def parse(line):
    t = line.split(";")[0].strip()
    if not t or t.endswith(":") or t.startswith("."):
        return None
    parts = t.split(None, 1)
    op = parts[0]
    ops = []
    if len(parts) > 1:
        cur = ""; depth = 0
        for ch in parts[1]:
            if ch == "[": depth += 1
            if ch == "]": depth -= 1
            if ch == "," and depth == 0:
                ops.append(cur.strip()); cur = ""
            else:
                cur += ch
        ops.append(cur.strip())
        last = ops[-1].split()
        ops[-1] = last[0] if last else ""
        mods = last[1:]
    else:
        mods = []
    d = dict(op=op, ops=ops, mods=mods, w=[], r=[], cls="other")
    R = regs_of
    base = op.replace("_e32", "").replace("_e64", "")
    if base.startswith("v_mfma"):
        d["cls"] = "sgemm" if base.endswith("_f32") and "x2_f32" in base or base.endswith("x4_f32") else "xdl"
        d["w"] = R(ops[0]); d["A"] = R(ops[1]); d["B"] = R(ops[2]); d["C"] = R(ops[3])
        d["r"] = d["A"] + d["B"] + d["C"]
    elif base.startswith("v_cmp"):
        d["cls"] = "valu"; d["w"] = R(ops[0]); d["r"] = sum((R(o) for o in ops[1:]), [])
    elif base.startswith("v_permlane"):
        d["cls"] = "permlane"; d["w"] = R(ops[0]) + R(ops[1]); d["r"] = R(ops[0]) + R(ops[1])
    elif base in ("v_readfirstlane_b32", "v_readlane_b32"):
        d["cls"] = "readlane"; d["w"] = R(ops[0]); d["r"] = sum((R(o) for o in ops[1:]), [])
    elif base.startswith("v_dot2c") or base.startswith("v_fmac"):
        d["cls"] = "dot" if "dot" in base else "valu"
        d["w"] = R(ops[0]); d["r"] = sum((R(o) for o in ops), [])
    elif base.startswith("v_dot2"):
        d["cls"] = "dot"; d["w"] = R(ops[0]); d["r"] = sum((R(o) for o in ops[1:]), [])
    elif base.startswith("v_cndmask"):
        d["cls"] = "valu"; d["w"] = R(ops[0]); d["r"] = sum((R(o) for o in ops[1:]), [])
        if len(ops) == 3: d["r"] += [("s", "vcc")]
        d["mask"] = R(ops[3]) if len(ops) > 3 else [("s", "vcc")]
    elif base.startswith(("v_add_co", "v_addc_co", "v_sub_co")):
        d["cls"] = "valu"; d["w"] = R(ops[0]) + R(ops[1]); d["r"] = sum((R(o) for o in ops[2:]), [])
    elif base.startswith("v_accvgpr_write"):
        d["cls"] = "valu"; d["w"] = R(ops[0]); d["r"] = R(ops[1])
    elif base.startswith("v_accvgpr_read"):
        d["cls"] = "valu"; d["w"] = R(ops[0]); d["r"] = R(ops[1])
    elif base.startswith("v_"):
        d["cls"] = "trans" if base in TRANS else "valu"
        d["w"] = R(ops[0]); d["r"] = sum((R(o) for o in ops[1:]), [])
    elif base.startswith("ds_read") or base.startswith("ds_bpermute"):
        d["cls"] = "ds"; d["w"] = R(ops[0]); d["r"] = sum((R(o) for o in ops[1:]), []); d["load"] = True
    elif base.startswith("ds_write"):
        d["cls"] = "ds"; d["r"] = sum((R(o) for o in ops), [])
    elif base.startswith("buffer_load"):
        d["cls"] = "vmem"
        if "lds" in mods:
            d["r"] = sum((R(o) for o in ops), []) + [("s", "m0")]; d["dma"] = True
        else:
            d["w"] = R(ops[0]); d["r"] = sum((R(o) for o in ops[1:]), []); d["load"] = True
    elif base.startswith("buffer_store") or base.startswith("buffer_atomic"):
        d["cls"] = "vmem"; d["r"] = sum((R(o) for o in ops), []); d["sdata"] = R(ops[0])
        d["wide"] = base.endswith(("x3", "x4"))
    elif base.startswith("global_load"):
        d["cls"] = "vmem"; d["w"] = R(ops[0]); d["r"] = sum((R(o) for o in ops[1:]), []); d["load"] = True
    elif base.startswith("global_store"):
        d["cls"] = "vmem"; d["r"] = sum((R(o) for o in ops), [])
    elif base.startswith("s_nop"):
        d["cls"] = "nop"; d["n"] = int(ops[0]) + 1
    elif base.startswith("s_"):
        d["cls"] = "salu"
        if base.startswith(("s_cmp", "s_cbranch", "s_branch", "s_waitcnt", "s_barrier", "s_endpgm", "s_setprio", "s_sleep", "s_bitcmp")):
            d["r"] = sum((R(o) for o in ops), [])
        else:
            d["w"] = R(ops[0]) if ops else []; d["r"] = sum((R(o) for o in ops[1:]), [])
            if "saveexec" in base: d["w"] += [("s", "exec")]
    return d

def check_hazards(lines, verbose=True):
    probs = []
    hist = []
    t = 0
    lastw = {}
    last_mfma_c = {}
    last_store = {}
    for ln, line in enumerate(lines):
        d = parse(line)
        if d is None:
            continue
        cls = d["cls"]
        def need(reg, n, why):
            if reg in lastw:
                tw, iw, lw = lastw[reg]
                dist = t - tw - 1
                if dist < n:
                    probs.append(f"line {ln+1}: '{line.strip()}' needs {n} wait states after line {lw+1} '{lines[lw].strip()}' ({why}, reg {reg}), has {dist}")
        for reg in d["r"]:
            if reg not in lastw: continue
            tw, iw, lw = lastw[reg]
            pc = iw["cls"]
            valu_like = pc in ("valu", "trans", "permlane", "dot", "readlane")
            if pc in ("xdl", "sgemm"):
                passes16 = pc == "sgemm"
                if cls in ("xdl", "sgemm"):
                    inC = reg in d["C"]; inAB = reg in d["A"] or reg in d["B"]
                    if inAB:
                        need(reg, (18 if passes16 else 12), "mfma D -> mfma A/B")
                    if inC:
                        same = (d["C"] == iw["w"])
                        if pc == "xdl" and cls == "xdl":
                            if not same: need(reg, 10, "xdl D -> xdl C partial overlap")
                        elif pc == "xdl" and cls == "sgemm":
                            need(reg, 10, "xdl D -> sgemm C")
                        elif pc == "sgemm" and cls == "sgemm":
                            if not same: need(reg, 16, "sgemm D -> sgemm C partial")
                elif cls != "salu":
                    need(reg, (18 if passes16 else 12), "mfma D -> valu/vmem/ds read")
            if valu_like and cls in ("xdl", "sgemm") and reg[0] in "va":
                need(reg, 2, "valu write -> mfma read")
            if pc == "trans" and cls in ("valu", "permlane", "dot", "readlane", "xdl", "sgemm") and reg[0] == "v":
                need(reg, 1, "trans -> use")
            if valu_like and cls == "permlane" and reg[0] == "v":
                need(reg, 2, "valu write -> permlane")
            if valu_like and cls == "readlane" and reg[0] == "v":
                need(reg, 1, "valu write -> readlane")
            if pc == "dot" and reg[0] == "v":
                same_op = iw["op"].replace("_e32","") == d["op"].replace("_e32","")
                is_acc = cls == "dot" and reg in d["w"]
                if not (same_op and is_acc and reg not in sum((regs_of(o) for o in d["ops"][1:3]), [])):
                    need(reg, 3, "dot -> other use")
            if valu_like and reg[0] == "s" and cls == "vmem":
                need(reg, 5, "valu sgpr write -> vmem")
            if valu_like and reg[0] == "s" and cls in ("valu", "trans", "dot", "xdl", "sgemm", "permlane"):
                need(reg, 2, "valu sgpr write -> valu const/mask read")
            if pc == "salu" and reg == ("s", "m0") and d.get("dma"):
                need(reg, 1, "m0 write -> dma")
            if valu_like and reg == ("s", "exec") and cls in ("xdl", "sgemm"):
                need(reg, 4, "exec write -> mfma")
        for reg in d["w"]:
            if reg in lastw:
                tw, iw, lw = lastw[reg]
                pc = iw["cls"]
                if pc in ("xdl", "sgemm") and cls not in ("xdl", "sgemm") and cls != "salu":
                    need(reg, (18 if pc == "sgemm" else 12), "mfma D -> write (WAW)")
                if pc == "dot" and cls != "dot" and reg[0] == "v" and cls not in ("ds", "vmem"):
                    need(reg, 3, "dot -> overwrite")
            if reg in last_mfma_c and cls in ("valu", "trans", "permlane", "dot"):
                tw, iw, lw = last_mfma_c[reg]
                n = 15 if iw["cls"] == "sgemm" else 7
                if iw["cls"] == "xdl" and t - tw - 1 < n:
                    probs.append(f"line {ln+1}: '{line.strip()}' overwrites srcC of line {lw+1} within {n} states")
            if reg in last_store and cls in ("valu", "trans", "permlane", "dot"):
                tw, lw = last_store[reg]
                if t - tw - 1 < 2:
                    probs.append(f"line {ln+1}: '{line.strip()}' overwrites wide store data of line {lw+1} within 2 states")
        for reg in d["w"]:
            lastw[reg] = (t, d, ln)
        if cls in ("xdl", "sgemm"):
            for reg in d["C"]:
                last_mfma_c[reg] = (t, d, ln)
        if d.get("wide"):
            for reg in d["sdata"]:
                last_store[reg] = (t, ln)
        t += d["n"] if cls == "nop" else 1
    return probs
```

```python
import sys, os
from asmlib import Asm, check_hazards

NAME = "parallel_sum__sliding_local_dilated__mixer_s_mlp__prompt_kernel"

class Cfg:
    stamps = False
    stop_after = None
    spin_limit = 400000
    dbgtime = False
    wallonly = False
    pre_chunks = 3
    preA = 1
    touch = 1
    hpoll_at = 26
    auto = 64
    pdl2 = 10
    pdl3 = 22
    pdl4 = 14
    kvchk_at = 16
    kvpoll_at = 2
    auto_g = 40
    rot = 1
    chunkstamps = 0
    touch_mode = "late"
    stouch = 0
    stouch_wave = 1
    early_touch = 0

SLAB_SH = 21
WS_H    = 0x000000
WS_O    = 0x040000
WS_X1   = 0x080000
WS_G    = 0x0C0000
WS_X1S  = 0x170000
WS_KV   = 0x180000
WS_CNT  = 0x1A0000
CNT_H, CNT_KV, CNT_X1, CNT_G, CNT_O = 0, 4, 8, 10, 12
CNT_STRIDE = 256
WS_STAMP= 0x1000000
WS_SIZE = 0x1100000

A0 = 0
B0 = 67584
C0 = 133120
SCR1 = 160768
LDS_TOTAL = 163840

sW, sRBK, sCG = 3, 4, 5
sRB64, sC, sRB128, sFT = 6, 7, 8, 9
SRD_X, SRD_WQKV, SRD_WO, SRD_W1, SRD_W2, SRD_W3, SRD_W4, SRD_OUT, SRD_WS, SRD_DBG = 40, 44, 48, 52, 56, 60, 64, 68, 72, 76
sONES, sPLO, sPHI = 80, 81, 82
sG, sG2, sT0, sT1, sT2, sT3 = 83, 84, 85, 86, 87, 88
sCB0, sNBLK = 89, 90
sSPIN = 91
sSTAMP = 22
sEXS = 94
sT4, sT5 = 96, 97
sXG, sW1G, sWL = 10, 11, 38
sD0, sD1 = 39, 92
sP2, sP3, sP4 = 16, 17, 18
sSLAB, sR32L, sR32P = 19, 20, 21
sOA = 93
sROT = 14
sROT8 = 15
sRT0, sCY0 = 98, 100
vST = 253

def srd(n): return f"s[{n}:{n+3}]"

vL, vM, vH, vL16 = 1, 2, 3, 4
vSTR, vSTRQ = 5, 6
vW3 = (7, 8, 9)
vTRN, vTRC0, vTRC1, vTR3 = 10, 11, 12, 13
vNMU, vR = 14, 15
vXRES = 16
vRESID = 24
vKP, vVP, vQP = 40, 48, 56
vRING = 64
vACC0, vACC1, vACC2 = 144, 160, 176
vT = 192

def v(i, n=1): return f"v{i}" if n == 1 else f"v[{i}:{i+n-1}]"
def a(i, n=1): return f"a{i}" if n == 1 else f"a[{i}:{i+n-1}]"

C0G = -2.0 * 0.7978845608028654 * 1.4426950408889634
C1G = C0G * 0.044715
import struct
def fbits(x): return "0x%08x" % struct.unpack("<I", struct.pack("<f", x))[0]

class K:
    def __init__(self, cfg):
        self.cfg = cfg
        self.A = Asm()
        self.side = []
        self.nstamp = 0
        self.stamp_names = []
        self.kA_queued = False
        self.A.pump_cb = lambda: self.pump(1)

    def pump(self, n=1):
        for _ in range(n):
            if self.side:
                g = self.side.pop(0)
                for ins in g:
                    if callable(ins): ins()
                    else: self.A(ins)

    def queue(self, groups, mark=None):
        groups = [list(g) for g in groups]
        if mark:
            def m(mark=mark): setattr(self, mark, self.A.vm_pos())
            groups[-1].append(m)
        self.side += groups

    def flush_side(self):
        self.pump(len(self.side))

    def stamp(self, name):
        if not self.cfg.stamps: return
        if self.cfg.wallonly and name != "end": return
        A = self.A
        i = self.nstamp; self.nstamp += 1
        self.stamp_names.append(name)
        cur = sSTAMP + 2*(i & 1); prev = sSTAMP + 2*((i+1) & 1)
        if i > 0: A(f"v_writelane_b32 v{vST}, s{prev}, {i-1}")
        A(f"s_memtime s[{cur}:{cur+1}]")

    def stamp_end(self):
        A = self.A
        if self.cfg.stamps:
            i = self.nstamp
            prev = sSTAMP + 2*((i+1) & 1)
            A("s_waitcnt lgkmcnt(0)")
            A(f"v_writelane_b32 v{vST}, s{prev}, {i-1}")
            A(f"s_memrealtime s[{sSTAMP}:{sSTAMP+1}]")
            A("s_waitcnt lgkmcnt(0)")
            A(f"v_writelane_b32 v{vST}, s{sSTAMP}, 62")
            A(f"v_writelane_b32 v{vST}, s{sRT0}, 61")
            A(f"v_writelane_b32 v{vST}, s{sCY0}, 60")
            A(f"s_lshl_b32 s{sT5}, s2, 2"); A(f"s_add_u32 s{sT5}, s{sT5}, s{sW}"); A(f"s_lshl_b32 s{sT5}, s{sT5}, 8")
            A(f"s_add_u32 s{sT5}, s{sT5}, {WS_STAMP}")
            A(f"v_lshlrev_b32 v254, 2, v{vL}")
            A(f"buffer_store_dword v{vST}, v254, {srd(SRD_WS)}, s{sT5} offen")
        if self.cfg.dbgtime:
            l = A.newlabel("dt")
            A("s_cmp_ge_u32 s2, 7"); A(f"s_cbranch_scc1 {l}")
            A(f"s_cmp_lg_u32 s{sW}, 0"); A(f"s_cbranch_scc1 {l}")
            A(f"s_memrealtime s[{sSTAMP}:{sSTAMP+1}]"); A(f"s_memtime s[{sSTAMP+2}:{sSTAMP+3}]")
            A("s_waitcnt lgkmcnt(0)")
            A(f"s_sub_u32 s{sT0}, s{sSTAMP}, s{sRT0}"); A(f"s_sub_u32 s{sT1}, s{sSTAMP+2}, s{sCY0}")
            A(f"v_mov_b32 v250, s{sT0}"); A(f"v_mov_b32 v251, s{sT1}")
            A(f"s_lshl_b32 s{sT0}, s2, 3"); A(f"s_add_u32 s{sT0}, s{sT0}, 8"); A(f"v_mov_b32 v252, s{sT0}")
            A("s_mov_b64 exec, 1")
            A(f"buffer_store_dwordx2 v[250:251], v252, {srd(SRD_DBG)}, 0 offen")
            A.label(l)

    def dma_units(self, srdn, vregs, gbase_code, gstep, lds0, n, lstep=None):
        m = len(vregs)
        if lstep is None: lstep = 1024 * m
        assert n >= 4
        groups = []
        rounds = (n + 3) // 4
        for j in range(rounds):
            if j == 0:
                g = list(gbase_code)
                g += [f"s_mul_i32 s{sD0}, s{sW}, {lstep}", f"s_add_u32 m0, s{sD0}, {lds0}",
                      f"s_mul_i32 s{sD0}, s{sW}, {gstep}", f"s_add_u32 s{sG}, s{sG2}, s{sD0}"]
            elif 4 * j + 3 < n:
                g = [f"s_add_u32 m0, m0, {4*lstep - (m-1)*1024}", f"s_add_u32 s{sG}, s{sG}, {4*gstep}"]
            else:
                g = [f"s_add_u32 s{sD0}, s{sW}, {4*j}", f"s_min_u32 s{sD0}, s{sD0}, {n-1}",
                     f"s_mul_i32 s{sD1}, s{sD0}, {lstep}", f"s_add_u32 m0, s{sD1}, {lds0}",
                     f"s_mul_i32 s{sD1}, s{sD0}, {gstep}", f"s_add_u32 s{sG}, s{sG2}, s{sD1}"]
            for i, vr in enumerate(vregs):
                if i > 0:
                    groups.append(g)
                    g = ["s_add_u32 m0, m0, 1024", "s_nop 0"]
                g = g + [f"buffer_load_dwordx4 v{vr}, {srd(srdn)}, s{sG} offen lds"]
            groups.append(g)
        return groups

    def poll_issue(self, addr_code, nl, target, what):
        A = self.A
        skip = A.newlabel("piskip")
        A(f"s_cmp_lg_u32 s{sW}, 3"); A(f"s_cbranch_scc1 {skip}")
        for ins in addr_code: A(ins)
        A(f"v_mov_b32 v251, {target}")
        A(f"s_mov_b64 s[{sEXS}:{sEXS+1}], exec"); A(f"s_mov_b64 exec, {(1 << nl) - 1}")
        A.opt(f"buffer_load_dword v252, v250, {srd(SRD_WS)}, 0 offen sc1")
        A(f"s_mov_b64 exec, s[{sEXS}:{sEXS+1}]")
        A.label(skip)
        self.poll_state = (nl, A.vm_pos(), what)

    def poll_check(self, srdn=None):
        A = self.A
        nl, pos, what = self.poll_state
        skip = A.newlabel("pskip"); loop = A.newlabel("ploop"); done = A.newlabel("pdone"); chk = A.newlabel("pchk")
        A(f"s_cmp_lg_u32 s{sW}, 3"); A(f"s_cbranch_scc1 {skip}")
        A(f"s_mov_b64 s[{sEXS}:{sEXS+1}], exec"); A(f"s_mov_b64 exec, {(1 << nl) - 1}")
        A(f"s_mov_b32 s{sSPIN}, {self.cfg.spin_limit}")
        A.wait(vm=pos)
        A(f"s_branch {chk}")
        A.label(loop)
        A.opt(f"buffer_load_dword v252, v250, {srd(SRD_WS)}, 0 offen sc1")
        A("s_waitcnt vmcnt(0)")
        A.label(chk)
        A("v_cmp_ge_u32 vcc, v252, v251")
        A(f"s_sub_u32 s{sSPIN}, s{sSPIN}, 1"); A(f"s_cbranch_scc1 {done}")
        A("s_cmp_eq_u64 vcc, exec"); A(f"s_cbranch_scc0 {loop}")
        A.label(done)
        A(f"s_mov_b64 exec, s[{sEXS}:{sEXS+1}]")
        A.label(skip)
        A("s_barrier")

    def poll(self, addr_code, nl, target, what):
        self.poll_issue(addr_code, nl, target, what)
        self.poll_check()

    def signal(self, cnt, sidx, what, init_check=False):
        A = self.A
        skip = A.newlabel("askip")
        A(f"s_cmp_lg_u32 s{sW}, 3"); A(f"s_cbranch_scc1 {skip}")
        A(f"s_mov_b64 s[{sEXS}:{sEXS+1}], exec"); A("s_mov_b64 exec, 1")
        if init_check:
            loop = A.newlabel("iloop"); done = A.newlabel("idone"); chk = A.newlabel("ichk")
            A(f"s_mov_b32 s{sSPIN}, {self.cfg.spin_limit}")
            A(f"s_branch {chk}")
            A.label(loop)
            A.opt(f"buffer_load_dword v247, v246, {srd(SRD_DBG)}, 0 offen sc1")
            A("s_waitcnt vmcnt(0)")
            A.label(chk)
            A("v_cmp_eq_u32 vcc, 1, v247")
            A(f"s_sub_u32 s{sSPIN}, s{sSPIN}, 1"); A(f"s_cbranch_scc1 {done}")
            A("s_cmp_eq_u64 vcc, exec"); A(f"s_cbranch_scc0 {loop}")
            A.label(done)
        A(f"s_and_b32 s{sT5}, s{sidx}, {3 if sidx == sRB64 else 1}"); A(f"s_lshl_b32 s{sT5}, s{sT5}, 8"); A(f"s_add_u32 s{sT5}, s{sT5}, s{sSLAB}")
        A(f"s_add_u32 s{sT5}, s{sT5}, {WS_CNT + cnt*CNT_STRIDE}")
        A(f"v_mov_b32 v248, s{sT5}"); A("v_mov_b32 v249, 1")
        A.opt(f"buffer_atomic_add v249, v248, {srd(SRD_WS)}, 0 offen")
        A(f"s_mov_b64 exec, s[{sEXS}:{sEXS+1}]")
        A.label(skip)

    def init_poll_issue(self):
        A = self.A
        skip = A.newlabel("iiskip")
        A(f"s_cmp_lg_u32 s{sW}, 3"); A(f"s_cbranch_scc1 {skip}")
        A.opt(f"buffer_load_dword v247, v246, {srd(SRD_DBG)}, 0 offen sc1")
        A.label(skip)

    def cnt_addr(self, cnt, sidx, delta=0):
        if delta == 0:
            return [f"s_and_b32 s{sT5}, s{sidx}, {3 if sidx == sRB64 else 1}", f"s_lshl_b32 s{sT5}, s{sT5}, 8", f"s_add_u32 s{sT5}, s{sT5}, s{sSLAB}",
                    f"s_add_u32 s{sT5}, s{sT5}, {WS_CNT + cnt*CNT_STRIDE}", f"v_mov_b32 v250, s{sT5}"]
        assert sidx == sRB64
        return [f"s_add_u32 s{sT5}, s{sidx}, {delta}", f"s_max_i32 s{sT5}, s{sT5}, 0", f"v_mov_b32 v250, s{sT5}"] + self.cnt64_v(cnt)

    def cnt64_v(self, cnt):
        return ["v_lshrrev_b32 v251, 2, v250", f"v_lshlrev_b32 v251, {SLAB_SH}, v251", "v_and_b32 v250, 3, v250",
                "v_lshl_add_u32 v250, v250, 8, v251", f"v_add_u32 v250, {WS_CNT + cnt*CNT_STRIDE}, v250"]

    def frag_dest(self, sdst, region):
        A = self.A
        A(f"s_lshl_b32 s{sdst}, s{sR32L}, 15"); A(f"s_lshl_b32 s{sT1}, s{sC}, 12"); A(f"s_add_u32 s{sdst}, s{sdst}, s{sT1}")
        A(f"s_lshl_b32 s{sT1}, s{sCG}, 11"); A(f"s_add_u32 s{sdst}, s{sdst}, s{sT1}"); A(f"s_add_u32 s{sdst}, s{sdst}, s{sSLAB}")
        A(f"s_add_u32 s{sdst}, s{sdst}, {region}")

    def swap_add(self, x, tmp):
        A = self.A
        A(f"v_mov_b32 v{tmp}, v{x}")
        A.nop(2)
        A(f"v_permlane32_swap_b32 v{x}, v{tmp}")
        A.nop(1)
        A(f"v_add_f32 v{x}, v{x}, v{tmp}")

    def prologue(self):
        A = self.A
        A("s_cmp_ge_u32 s2, 256"); A("s_cbranch_scc1 L_end")
        if self.cfg.stamps or self.cfg.dbgtime:
            A(f"s_memrealtime s[{sRT0}:{sRT0+1}]"); A(f"s_memtime s[{sCY0}:{sCY0+1}]")
        A("s_load_dwordx16 s[16:31], s[0:1], 0")
        A("s_load_dwordx4 s[32:35], s[0:1], 64")
        A("s_load_dwordx2 s[36:37], s[0:1], 80")
        A(f"v_lshrrev_b32 v5, 6, v0")
        A(f"v_and_b32 v{vL}, 63, v0")
        A(f"v_readfirstlane_b32 s{sW}, v5")
        A(f"v_and_b32 v{vM}, 31, v{vL}")
        A(f"v_lshrrev_b32 v{vH}, 5, v{vL}")
        A(f"v_lshlrev_b32 v{vL16}, 4, v{vL}")
        A("s_and_b32 s10, s2, 7"); A("s_lshr_b32 s11, s2, 3")
        A(f"s_lshr_b32 s{sT0}, s11, 3"); A(f"s_lshl_b32 s{sRB64}, s10, 2"); A(f"s_add_u32 s{sRB64}, s{sRB64}, s{sT0}")
        A(f"s_and_b32 s{sC}, s11, 7")
        A(f"s_lshr_b32 s{sT0}, s11, 4"); A(f"s_lshl_b32 s{sRB128}, s10, 1"); A(f"s_add_u32 s{sRB128}, s{sRB128}, s{sT0}")
        A(f"s_and_b32 s{sFT}, s11, 15")
        A(f"s_and_b32 s{sRBK}, s{sW}, 1"); A(f"s_lshr_b32 s{sCG}, s{sW}, 1")
        if self.cfg.rot:
            A(f"s_and_b32 s{sROT}, s{sRB64}, 3"); A(f"s_lshl_b32 s{sROT}, s{sROT}, 1"); A(f"s_add_u32 s{sROT}, s{sROT}, s{sC}"); A(f"s_and_b32 s{sROT}, s{sROT}, 7")
        else:
            A(f"s_mov_b32 s{sROT}, 0")
        A(f"s_lshl_b32 s{sROT8}, s{sROT}, 3"); A(f"s_add_u32 s{sROT8}, s{sROT8}, s{sW}")
        A(f"s_lshr_b32 s{sT3}, s2, 3")
        A(f"v_lshrrev_b32 v7, 3, v{vL}")
        A(f"v_and_b32 v8, 7, v{vL}")
        A(f"v_bfe_u32 v9, v{vL}, 4, 1"); A("v_lshlrev_b32 v9, 2, v9"); A("v_xor_b32 v9, v8, v9"); A("v_lshlrev_b32 v9, 4, v9")
        A(f"v_lshl_add_u32 v{vSTR}, v7, 10, v9")
        A(f"v_mul_u32_u24 v{vSTRQ}, 3072, v7"); A(f"v_add_u32 v{vSTRQ}, v{vSTRQ}, v9")
        A(f"v_lshrrev_b32 v9, 4, v{vL}"); A(f"s_lshl_b32 s{sT0}, s{sRBK}, 2"); A(f"v_add_u32 v9, s{sT0}, v9")
        A("v_xor_b32 v9, v8, v9"); A("v_lshlrev_b32 v9, 4, v9"); A("v_lshl_add_u32 v14, v7, 10, v9")
        A("s_waitcnt lgkmcnt(0)")
        self.stamp("kernarg")
        self.build_srds(((SRD_X, 16, 2097152), (SRD_W1, 24, 524288), (SRD_WQKV, 18, 1572864)))

    def scalar_touch(self):
        A = self.A
        if not self.cfg.stouch: return
        l = A.newlabel("st")
        A(f"s_cmp_lg_u32 s{sW}, {self.cfg.stouch_wave}"); A(f"s_cbranch_scc1 {l}")
        for p in (18, 26, 28, 20, 30, 32, 34):
            A(f"s_load_dword s{sT4}, s[{p}:{p+1}], 0")
        A("s_mov_b32 s12, s36"); A("s_mov_b32 s13, s37")
        for i in range(8):
            A(f"s_load_dword s{sT4}, s[12:13], 0")
            if i < 7: A("s_add_u32 s12, s12, 0x200000"); A("s_addc_u32 s13, s13, 0")
        A.label(l)

    def build_srds(self, lst):
        A = self.A
        for (n, p, size) in lst:
            A(f"s_mov_b32 s{n}, s{p}"); A(f"s_and_b32 s{n+1}, s{p+1}, 0xffff")
            A(f"s_mov_b32 s{n+2}, {size}"); A(f"s_mov_b32 s{n+3}, 0x20000")

    def emit_groups(self, gs):
        for g in gs:
            for ins in g:
                if callable(ins): ins()
                else: self.A(ins)

    def t0_dma(self):
        A = self.A
        self.stamp("touched")
        A(f"s_lshl_b32 s{sXG}, s{sRB64}, 16"); A(f"s_lshl_b32 s{sT0}, s{sW}, 13"); A(f"s_add_u32 s{sXG}, s{sXG}, s{sT0}")
        A(f"s_lshl_b32 s{sW1G}, s{sC}, 7"); A(f"s_add_u32 s{sW1G}, s{sW1G}, s{sT0}")
        A(f"s_lshl_b32 s{sWL}, s{sW}, 10")
        self.chunk_pos = {}
        for q in range(self.cfg.preA): self.emit_groups(self.chunk_dma(q))
        self.scalar_touch()
        self.start_touch()
        self.stamp("preA")
        self.build_srds(((SRD_WS, 36, WS_SIZE), (SRD_DBG, 34, 256), (SRD_WO, 20, 524288), (SRD_W2, 26, 524288),
                         (SRD_W3, 28, 1409024), (SRD_W4, 30, 1409024), (SRD_OUT, 32, 2097152)))
        A(f"s_lshr_b32 s{sSLAB}, s{sRB64}, 2"); A(f"s_lshl_b32 s{sSLAB}, s{sSLAB}, {SLAB_SH}")
        A(f"s_and_b32 s{sR32L}, s{sRB64}, 3"); A(f"s_lshl_b32 s{sR32L}, s{sR32L}, 1"); A(f"s_add_u32 s{sR32L}, s{sR32L}, s{sRBK}")
        A(f"s_and_b32 s{sR32P}, s{sRB128}, 1"); A(f"s_lshl_b32 s{sR32P}, s{sR32P}, 2"); A(f"s_add_u32 s{sR32P}, s{sR32P}, s{sW}")
        l = A.newlabel("zi")
        A(f"s_cmp_lg_u32 s2, 0"); A(f"s_cbranch_scc1 {l}")
        A(f"s_cmp_lg_u32 s{sW}, 3"); A(f"s_cbranch_scc1 {l}")
        A(f"v_lshrrev_b32 v250, 4, v{vL}"); A(f"v_lshlrev_b32 v250, {SLAB_SH}, v250"); A(f"v_and_b32 v251, 15, v{vL}")
        A("v_lshl_add_u32 v250, v251, 8, v250"); A(f"v_add_u32 v250, {WS_CNT}, v250"); A("v_mov_b32 v251, 0")
        A.opt(f"buffer_store_dword v251, v250, {srd(SRD_WS)}, 0 offen sc1")
        A(f"v_add_u32 v250, {4 << SLAB_SH}, v250")
        A.opt(f"buffer_store_dword v251, v250, {srd(SRD_WS)}, 0 offen sc1")
        A.label(l)
        A("v_mov_b32 v246, 0"); A("v_mov_b32 v250, 0")
        self.pos_zero = A.vm_pos()
        if self.cfg.touch_mode == "early": self.weight_touch(False, True)
        elif self.cfg.touch_mode == "split": self.weight_touch(True, True)

    def start_touch(self):
        A = self.A
        if not self.cfg.touch: return
        le = A.newlabel("te")
        A(f"s_cmp_eq_u32 s{sW}, 3"); A(f"s_cbranch_scc0 {le}")
        A(f"s_mov_b64 s[{sEXS}:{sEXS+1}], exec")
        A("s_mov_b64 exec, 0xff")
        A("s_getpc_b64 s[12:13]")
        A.label("L_pc")
        A(f"s_lshl_b32 s{sT0}, s{sT3}, 10"); A(f"v_lshlrev_b32 v250, 7, v{vL}"); A(f"v_add_u32 v250, s{sT0}, v250")
        A("v_min_u32 v250, L_end-L_pc, v250")
        A.opt("global_load_dword v255, v250, s[12:13]")
        A("s_bfm_b64 exec, 48, 0")
        A(f"s_mul_i32 s{sT0}, s2, {48*128}"); A(f"v_lshlrev_b32 v250, 7, v{vL}")
        A.opt(f"buffer_load_dword v255, v250, {srd(SRD_WQKV)}, s{sT0} offen")
        A(f"s_mov_b64 exec, s[{sEXS}:{sEXS+1}]")
        A.label(le)

    def t0_dma2(self):
        for q in range(self.cfg.preA, self.cfg.pre_chunks): self.emit_groups(self.chunk_dma(q))

    def weight_touch(self, tlb_only, with_ws):
        A = self.A
        if not self.cfg.touch: return
        le = A.newlabel("lte")
        labels = [A.newlabel("lt") for _ in range(4)]
        A(f"s_mov_b64 s[{sEXS}:{sEXS+1}], exec")
        A(f"v_lshlrev_b32 v250, 7, v{vL}")
        for w, items in enumerate((((SRD_W2, 16), (SRD_WO, 16)), ((SRD_W3, 43),), ((SRD_W4, 43),), ())):
            A.label(labels[w])
            if w < 3:
                A(f"s_cmp_eq_u32 s{sW}, {w}"); A(f"s_cbranch_scc0 {labels[w+1]}")
            for (srdn, n) in items:
                A(f"s_bfm_b64 exec, {1 if tlb_only else n}, 0")
                A(f"s_mul_i32 s{sT5}, s2, {n*128}")
                A.opt(f"buffer_load_dword v255, v250, {srd(srdn)}, s{sT5} offen")
            if w == 3:
                if with_ws:
                    A("s_mov_b64 exec, 1"); A(f"v_mov_b32 v250, 0")
                    A.opt(f"buffer_load_dword v255, v250, {srd(SRD_WS)}, s{sSLAB} offen")
                    A("s_mov_b64 exec, 3"); A(f"v_lshlrev_b32 v250, 20, v{vL}")
                    A.opt(f"buffer_load_dword v255, v250, {srd(SRD_OUT)}, 0 offen")
            else:
                A(f"s_branch {le}")
        A.label(le)
        A(f"s_mov_b64 exec, s[{sEXS}:{sEXS+1}]")

    def chunk_dma(self, q):
        gs = [[f"s_add_u32 s{sD1}, s{sROT}, {q}", f"s_and_b32 s{sD1}, s{sD1}, 7", f"s_lshl_b32 s{sD0}, s{sD1}, 7",
               f"s_add_u32 m0, s{sWL}, {A0 + q*8192}", f"s_add_u32 s{sD0}, s{sD0}, s{sXG}",
               f"buffer_load_dwordx4 v14, {srd(SRD_X)}, s{sD0} offen lds"],
              [f"s_add_u32 m0, s{sWL}, {A0 + q*8192 + 4096}", f"s_add_u32 s{sD0}, s{sD0}, 32768",
               f"buffer_load_dwordx4 v14, {srd(SRD_X)}, s{sD0} offen lds"],
              [f"s_lshl_b32 s{sD0}, s{sD1}, 16",
               f"s_add_u32 m0, s{sWL}, {B0 + q*8192}", f"s_add_u32 s{sD0}, s{sD0}, s{sW1G}",
               f"buffer_load_dwordx4 v{vSTR}, {srd(SRD_W1)}, s{sD0} offen lds"],
              [f"s_add_u32 m0, s{sWL}, {B0 + q*8192 + 4096}", f"s_add_u32 s{sD0}, s{sD0}, 32768",
               f"buffer_load_dwordx4 v{vSTR}, {srd(SRD_W1)}, s{sD0} offen lds"]]
        def mark(q=q): self.chunk_pos[q] = self.A.vm_pos()
        gs[-1].append(mark)
        return gs

    def job_strip_qkv(self, which, s0, ns, lds0):
        groups = []
        for j in range(2*ns//4):
            g = []
            if j == 0:
                g += [f"s_lshl_b32 s{sG2}, s{sC}, 7", f"s_add_u32 s{sG2}, s{sG2}, {which*1024}", f"s_add_u32 m0, s{sWL}, {lds0}"]
            else:
                g += ["s_add_u32 m0, m0, 4096"]
            g += [f"s_add_u32 s{sD0}, s{sROT8}, {2*s0 + 4*j}", f"s_and_b32 s{sD0}, s{sD0}, 63", f"s_mul_i32 s{sD0}, s{sD0}, {8*3072}",
                  f"s_add_u32 s{sG}, s{sG2}, s{sD0}", f"buffer_load_dwordx4 v{vSTRQ}, {srd(SRD_WQKV)}, s{sG} offen lds"]
            groups.append(g)
        return groups

    def job_strip(self, srdn, k0, nunits, lds0):
        code = [f"s_lshl_b32 s{sG2}, s{sC}, 7", f"s_add_u32 s{sG2}, s{sG2}, {k0*1024}"]
        return self.dma_units(srdn, [vSTR], code, 8192, lds0, nunits)

    def job_w3(self, s0, ns, lds0):
        code = [f"s_lshl_b32 s{sG2}, s{sCB0}, 6", f"s_add_u32 s{sG2}, s{sG2}, {s0*16*2752}"]
        return self.dma_units(SRD_W3, list(vW3), code, 16*2752, lds0, ns)

    def setup2(self):
        A = self.A
        A(f"s_mov_b32 s{sONES}, 0x3f803f80"); A(f"s_mov_b32 s{sPLO}, 0x05040100"); A(f"s_mov_b32 s{sPHI}, 0x07060302")
        A(f"s_mul_i32 s{sCB0}, s{sFT}, 3"); A(f"s_mov_b32 s{sNBLK}, 3")
        A(f"s_cmp_lt_u32 s{sFT}, 11"); l = A.newlabel("ft"); A(f"s_cbranch_scc1 {l}")
        A(f"s_lshl_b32 s{sCB0}, s{sFT}, 1"); A(f"s_add_u32 s{sCB0}, s{sCB0}, 11"); A(f"s_mov_b32 s{sNBLK}, 2")
        A.label(l)
        T = vT
        A(f"v_bfe_u32 v{T}, v{vL}, 2, 2")
        A(f"v_and_b32 v{T+1}, 3, v{vL}"); A(f"v_lshlrev_b32 v{T+1}, 3, v{T+1}")
        A(f"v_bfe_u32 v{T+2}, v{vL}, 4, 1"); A(f"v_lshl_add_u32 v{T+1}, v{T+2}, 5, v{T+1}")
        A(f"v_lshrrev_b32 v{T+2}, 1, v{T}")
        A(f"v_xor_b32 v{T+3}, s{sCG}, v{T+2}")
        A(f"v_lshlrev_b32 v{T+3}, 6, v{T+3}")
        A(f"v_lshl_add_u32 v{T+4}, v{T}, 7, v{T+1}")
        A(f"v_add_u32 v{T+4}, v{T+4}, v{T+3}")
        A(f"v_lshl_add_u32 v{vTRN}, v{vH}, 10, v{T+4}")
        A(f"v_lshl_add_u32 v{vTRC0}, v{vH}, 9, v{T+4}")
        A(f"v_xor_b32 v{vTRC1}, 64, v{vTRC0}")
        A(f"v_mul_u32_u24 v{T+5}, 192, v{T}"); A(f"v_add_u32 v{T+5}, v{T+5}, v{T+1}")
        A(f"v_mul_u32_u24 v{T+6}, 768, v{vH}"); A(f"v_add_u32 v{vTR3}, v{T+5}, v{T+6}")
        A(f"s_mov_b32 s{sT0}, 43691"); A(f"s_movk_i32 s{sT1}, 2752")
        for j in range(3):
            A(f"v_add_u32 v{T}, {64*j}, v{vL}")
            A(f"v_mul_u32_u24 v{T+1}, s{sT0}, v{T}"); A(f"v_lshrrev_b32 v{T+1}, 19, v{T+1}")
            A(f"v_mul_u32_u24 v{T+2}, 12, v{T+1}"); A(f"v_sub_u32 v{T+2}, v{T}, v{T+2}")
            A(f"v_mul_u32_u24 v{T+1}, s{sT1}, v{T+1}")
            A(f"v_lshl_add_u32 v{vW3[j]}, v{T+2}, 4, v{T+1}")

    def p1_h(self):
        A = self.A
        T = vT
        vXA = [T, T+1, T+2, T+3]; vXS = [T+4, T+5]
        A(f"s_lshl_b32 s{sT0}, s{sRBK}, 5"); A(f"v_add_u32 v{T+6}, s{sT0}, v{vM}")
        A(f"v_bfe_u32 v{T+7}, v{T+6}, 1, 3"); A(f"v_xor_b32 v{T+7}, v{T+7}, v{vH}"); A(f"v_lshlrev_b32 v{T+7}, 4, v{T+7}")
        A(f"v_lshl_add_u32 v{vXA[0]}, v{T+6}, 7, v{T+7}")
        for s in range(1, 4): A(f"v_xor_b32 v{vXA[s]}, {32*s}, v{vXA[0]}")
        A(f"s_lshl_b32 s{sT0}, s{sCG}, 6"); A(f"v_xor_b32 v{vXS[0]}, s{sT0}, v{vXA[0]}"); A(f"v_xor_b32 v{vXS[1]}, 32, v{vXS[0]}")
        vXR = T+8
        A(f"v_bfe_u32 v{T+7}, v{T+6}, 1, 3"); A(f"s_lshl_b32 s{sT0}, s{sCG}, 2"); A(f"v_xor_b32 v{T+7}, s{sT0}, v{T+7}")
        A(f"v_lshlrev_b32 v{T+7}, 4, v{T+7}"); A(f"v_lshl_add_u32 v{T+7}, v{T+6}, 7, v{T+7}")
        A(f"v_lshl_add_u32 v{T+7}, v{vH}, 3, v{T+7}")
        A(f"s_sub_u32 s{sT0}, s{sC}, s{sROT}"); A(f"s_and_b32 s{sT0}, s{sT0}, 7"); A(f"s_lshl_b32 s{sT0}, s{sT0}, 13"); A(f"v_add_u32 v{vXR}, s{sT0}, v{T+7}")
        vWB = T+9
        A(f"v_add_u32 v{vWB}, {B0}, v{vTRN}")
        vS0, vS1, vQ0, vQ1, vC0, vC1 = T+10, T+11, T+12, T+13, T+14, T+15
        for r in (vS0, vS1, vQ0, vQ1, vC0, vC1): A(f"v_mov_b32 v{r}, 0")
        XT = T+16
        acc = vACC0
        def reads(q):
            L = []
            for s in range(4):
                b = vRING + 4*(4*(q & 1) + s)
                st = 4*q + s
                L.append([f"ds_read_b128 {a(4*st,4)}, v{vXA[s]} offset:{q*8192}",
                          f"ds_read_b64_tr_b16 {v(b,2)}, v{vWB} offset:{st*2048}",
                          f"ds_read_b64_tr_b16 {v(b+2,2)}, v{vWB} offset:{st*2048+512}"])
            L[0].append(f"ds_read_b128 {v(XT+8*(q&1),4)}, v{vXS[0]} offset:{q*8192}")
            L[1].append(f"ds_read_b128 {v(XT+8*(q&1)+4,4)}, v{vXS[1]} offset:{q*8192}")
            return L
        def burst(q):
            x = XT + 8*(q & 1)
            for i in range(8):
                A(f"v_dot2c_f32_bf16 v{vS0 + (i&1)}, s{sONES}, v{x+i}")
                A(f"v_dot2c_f32_bf16 v{vQ0 + (i&1)}, v{x+i}, v{x+i}")
            l1 = A.newlabel("cs"); l2 = A.newlabel("ce")
            b = vRING + 16*(q & 1)
            A(f"s_cmp_lg_u32 s{sRBK}, 0"); A(f"s_cbranch_scc1 {l1}")
            for i in range(8): A(f"v_dot2c_f32_bf16 v{vC0 + (i&1)}, s{sONES}, v{b+i}")
            A(f"s_branch {l2}")
            A.label(l1)
            for i in range(8): A(f"v_dot2c_f32_bf16 v{vC0 + (i&1)}, s{sONES}, v{b+8+i}")
            A.label(l2)
        for q in range(9):
            if q < 8:
                A.wait(vm=self.chunk_pos[q])
                if q == self.cfg.preA:
                    l = A.newlabel("fi")
                    A(f"s_cmp_lg_u32 s2, 0"); A(f"s_cbranch_scc1 {l}")
                    A(f"s_cmp_lg_u32 s{sW}, 3"); A(f"s_cbranch_scc1 {l}")
                    A("v_mov_b32 v250, 0"); A("v_mov_b32 v251, 1")
                    A(f"s_mov_b64 s[{sEXS}:{sEXS+1}], exec"); A("s_mov_b64 exec, 1")
                    A.opt(f"buffer_store_dword v251, v250, {srd(SRD_DBG)}, 0 offen sc1")
                    A(f"s_mov_b64 exec, s[{sEXS}:{sEXS+1}]")
                    A.label(l)
            A.wait_all_lg()
            if q < 8: A("s_barrier")
            rd = reads(q) if q < 8 else [[], [], [], []]
            if q < 8 and (q == 0 or self.cfg.chunkstamps):
                self.stamp(f"chunk{q}")
            if q == 0:
                for g in rd:
                    for ins in g: A(ins)
                continue
            p = q - 1
            nxt = q + self.cfg.pre_chunks - 1
            if nxt <= 7: self.side += self.chunk_dma(nxt)
            elif not self.kA_queued:
                self.kA_queued = True
                self.side += self.job_strip_qkv(1, 0, 12, C0)
            if q == 6: self.init_poll_issue()
            for s in range(4):
                st = 4*p + s
                b = vRING + 4*(4*(p & 1) + s)
                c = "0" if st == 0 else v(acc, 16)
                A(f"v_mfma_f32_32x32x16_bf16 {v(acc,16)}, {v(b,4)}, {a(4*st,4)}, {c}")
                for ins in rd[s]: A(ins)
                self.pump(1)
            if q == 8:
                for g in range(4):
                    A(f"v_xor_b32 v{T+32}, {16*g}, v{vXR}")
                    A(f"ds_read_b64 {v(vXRES+2*g,2)}, v{T+32}")
            burst(p)
        self.flush_side()
        self.pos_kA = A.vm_pos()
        self.vS = (vS0, vS1, vQ0, vQ1, vC0, vC1)

    def colsum_finish(self, vC0, vC1, scr_off, tmp, pre=None, post=None):
        A = self.A
        A.nop(3)
        A(f"v_add_f32 v{vC0}, v{vC0}, v{vC1}")
        self.swap_add(vC0, tmp)
        A(f"s_lshl_b32 s{sT0}, s{sW}, 7"); A(f"v_lshl_add_u32 v{tmp}, v{vM}, 2, s{sT0}")
        A(f"v_add_u32 v{tmp}, {scr_off}, v{tmp}")
        A(f"ds_write_b32 v{tmp}, v{vC0}")
        if pre: pre()
        A.wait_all_lg()
        A("s_barrier")
        A(f"v_xor_b32 v{tmp}, 128, v{tmp}")
        A(f"ds_read_b32 v{vC1}, v{tmp}")
        if post: post()
        A(f"v_cmp_gt_u32 vcc, 32, v{vL}")
        A.wait_all_lg()
        A(f"v_add_f32 v{vC0}, v{vC0}, v{vC1}")
        A(f"v_cndmask_b32 v{vC0}, 0, v{vC0}, vcc")

    def p1_h_finish(self):
        A = self.A
        T = vT
        vS0, vS1, vQ0, vQ1, vC0, vC1 = self.vS
        acc = vACC0
        A.nop(3)
        A(f"v_add_f32 v{vS0}, v{vS0}, v{vS1}"); A(f"v_add_f32 v{vQ0}, v{vQ0}, v{vQ1}"); A(f"v_add_f32 v{vC0}, v{vC0}, v{vC1}")
        tmp = T+33
        self.swap_add(vS0, tmp); self.swap_add(vQ0, tmp); self.swap_add(vC0, tmp)
        A(f"s_lshl_b32 s{sT0}, s{sW}, 8"); A(f"v_lshl_add_u32 v{tmp}, v{vM}, 3, s{sT0}"); A(f"v_add_u32 v{tmp}, {SCR1}, v{tmp}")
        A(f"v_mov_b32 v{vS1}, v{vQ0}")
        A(f"ds_write_b64 v{tmp}, {v(vS0,2)}")
        A(f"s_lshl_b32 s{sT0}, s{sW}, 7"); A(f"v_lshl_add_u32 v{tmp+1}, v{vM}, 2, s{sT0}"); A(f"v_add_u32 v{tmp+1}, {SCR1+1024}, v{tmp+1}")
        A(f"ds_write_b32 v{tmp+1}, v{vC0}")
        A.wait_all_lg()
        A("s_barrier")
        A(f"v_xor_b32 v{tmp}, 512, v{tmp}"); A(f"v_xor_b32 v{tmp+1}, 128, v{tmp+1}")
        A(f"ds_read_b64 {v(vQ0,2)}, v{tmp}")
        A(f"ds_read_b32 v{vC1}, v{tmp+1}")
        if self.cfg.touch_mode == "split": self.weight_touch(False, False)
        elif self.cfg.touch_mode == "late": self.weight_touch(False, not self.cfg.stouch)
        self.queue(self.job_strip_qkv(1, 12, 20, A0), "pos_kB")
        self.queue(self.job_strip_qkv(2, 0, 32, B0), "pos_v")
        A.auto = self.cfg.auto
        A(f"v_cmp_gt_u32 vcc, 32, v{vL}")
        A.wait_all_lg()
        A(f"v_add_f32 v{vS0}, v{vS0}, v{vQ0}"); A(f"v_add_f32 v{vS1}, v{vS1}, v{vQ1}"); A(f"v_add_f32 v{vC0}, v{vC0}, v{vC1}")
        A(f"v_cndmask_b32 v{vC0}, 0, v{vC0}, vcc")
        A(f"v_mul_f32 v{vS0}, {fbits(1/512)}, v{vS0}")
        A(f"v_mul_f32 v{vS1}, {fbits(1/512)}, v{vS1}")
        A(f"v_sub_f32 v{vNMU}, 0, v{vS0}")
        A(f"v_fma_f32 v{vS1}, v{vNMU}, v{vS0}, v{vS1}")
        A(f"v_max_f32 v{vS1}, 0, v{vS1}")
        A(f"v_mfma_f32_32x32x2_f32 {v(acc,16)}, v{vC0}, v{vNMU}, {v(acc,16)}")
        mk = A.mark()
        A(f"v_add_f32 v{vQ0}, {fbits(1e-5)}, v{vS1}")
        A(f"v_rsq_f32 v{vR}, v{vQ0}")
        A.nop(1)
        A(f"v_mul_f32 v{vQ0}, v{vR}, v{vR}"); A(f"v_mul_f32 v{vQ0}, v{vQ0}, v{vS1}")
        A(f"v_add_f32 v{vQ0}, {fbits(1e-5)}, v{vQ0}")
        A(f"v_rsq_f32 v{vQ0}, v{vQ0}")
        A.nop(1)
        A(f"v_mul_f32 v{vQ0}, v{vQ0}, v{vR}")
        self.gelu_block(acc, vQ0, T+34, mk)
        self.frag_dest(sT0, WS_H)
        A(f"buffer_store_dwordx4 {v(acc,4)}, v{vL16}, {srd(SRD_WS)}, s{sT0} offen sc1")
        A(f"buffer_store_dwordx4 {v(acc+4,4)}, v{vL16}, {srd(SRD_WS)}, s{sT0} offen offset:1024 sc1")
        self.pos_h = A.vm_pos()
        A.auto = 0

    def gelu_consts(self, vS, tmp):
        A = self.A
        K1, K0, RI = tmp, tmp+2, tmp+4
        A(f"v_mul_f32 v{K0}, {fbits(C0G)}, v{vS}")
        A(f"v_mul_f32 v{K1}, v{vS}, v{vS}"); A(f"v_mul_f32 v{K1}, v{K1}, v{vS}"); A(f"v_mul_f32 v{K1}, {fbits(C1G)}, v{K1}")
        A(f"v_rcp_f32 v{RI}, v{vS}")
        A(f"v_mov_b32 v{K0+1}, v{K0}"); A(f"v_mov_b32 v{K1+1}, v{K1}"); A(f"v_mov_b32 v{RI+1}, v{RI}")
        return (K1, K0, RI, tmp + 6)

    def gelu_body(self, acc, GK):
        A = self.A
        K1, K0, RI, t = GK
        for p in range(0, 16, 4):
            x0, x1 = acc + p, acc + p + 2
            u0, u1 = t, t + 2
            A(f"v_pk_mul_f32 {v(u0,2)}, {v(x0,2)}, {v(x0,2)}")
            A(f"v_pk_mul_f32 {v(u1,2)}, {v(x1,2)}, {v(x1,2)}")
            A(f"v_pk_fma_f32 {v(u0,2)}, {v(u0,2)}, {v(K1,2)}, {v(K0,2)}")
            A(f"v_pk_fma_f32 {v(u1,2)}, {v(u1,2)}, {v(K1,2)}, {v(K0,2)}")
            A(f"v_pk_mul_f32 {v(u0,2)}, {v(u0,2)}, {v(x0,2)}")
            A(f"v_pk_mul_f32 {v(u1,2)}, {v(u1,2)}, {v(x1,2)}")
            for r in (u0, u0+1, u1, u1+1): A(f"v_exp_f32 v{r}, v{r}")
            A(f"v_pk_fma_f32 {v(u0,2)}, {v(u0,2)}, {v(RI,2)}, {v(RI,2)}")
            A(f"v_pk_fma_f32 {v(u1,2)}, {v(u1,2)}, {v(RI,2)}, {v(RI,2)}")
            for r in (u0, u0+1, u1, u1+1): A(f"v_rcp_f32 v{r}, v{r}")
            A(f"v_pk_mul_f32 {v(u0,2)}, {v(u0,2)}, {v(x0,2)}")
            A(f"v_pk_mul_f32 {v(u1,2)}, {v(u1,2)}, {v(x1,2)}")
            A(f"v_cvt_pk_bf16_f32 v{acc + p//2}, v{u0}, v{u0+1}")
            A(f"v_cvt_pk_bf16_f32 v{acc + p//2 + 1}, v{u1}, v{u1+1}")

    def gelu_block(self, acc, vS, tmp, mk):
        GK = self.gelu_consts(vS, tmp)
        self.A.pad(mk, 18)
        self.gelu_body(acc, GK)

    def qkv_main(self, addr, hooks, side_rate=2, mid=None):
        A = self.A
        T = vT
        acc = vACC0
        PD = 3
        bases = {}
        for st in range(32):
            for d in (0, 512):
                win = (addr(st) + d) // 65536
                if win not in bases:
                    r = T + 40 + len(bases)
                    if win: A(f"v_add_u32 v{r}, {win*65536}, v{vTRN}")
                    else: A(f"v_mov_b32 v{r}, v{vTRN}")
                    bases[win] = r
        vC0, vC1 = T+14, T+15
        A(f"v_mov_b32 v{vC0}, 0"); A(f"v_mov_b32 v{vC1}, 0")
        lgpos = {}
        def burst(steps):
            for st in steps:
                b = vRING + 4*(st % 20)
                for i in range(4): A(f"v_dot2c_f32_bf16 v{vC0 + (i&1)}, s{sONES}, v{b+i}")
        for s in range(32 + PD):
            if s < 32:
                if s in hooks: hooks[s]()
                ad = addr(s)
                b = vRING + 4*(s % 20)
                for (kk, d) in ((0, 0), (2, 512)):
                    x = ad + d
                    A(f"ds_read_b64_tr_b16 {v(b+kk,2)}, v{bases[x // 65536]} offset:{x % 65536}")
                lgpos[s] = A.lg_pos()
            if s >= PD:
                t = s - PD
                A.wait(lg=lgpos[t])
                b = vRING + 4*(t % 20)
                c = "0" if t == 0 else v(acc, 16)
                A(f"v_mfma_f32_32x32x16_bf16 {v(acc,16)}, {v(b,4)}, {a(4*t,4)}, {c}")
                if t % side_rate == 0: self.pump(1)
                if mid and t in mid: mid[t]()
                if t == 15: burst(range(0, 16))
        burst(range(16, 32))

    def qkv_tail(self, dst, keep_auto=False):
        A = self.A
        T = vT
        acc = vACC0
        vC0, vC1 = T+14, T+15
        A(f"v_cmp_gt_u32 vcc, 32, v{vL}")
        A.nop(2)
        A(f"v_add_f32 v{vC0}, v{vC0}, v{vC1}")
        self.swap_add(vC0, T+33)
        A(f"v_cndmask_b32 v{vC0}, 0, v{vC0}, vcc")
        A.nop(2)
        A(f"v_mfma_f32_32x32x2_f32 {v(acc,16)}, v{vC0}, v{vNMU}, {v(acc,16)}")
        mk = A.mark()
        A.auto = 0
        self.pump(3)
        A.pad(mk, 18)
        A.auto = self.cfg.auto
        for i in range(8):
            A(f"v_mul_f32 v{acc+2*i}, v{vR}, v{acc+2*i}"); A(f"v_mul_f32 v{acc+2*i+1}, v{vR}, v{acc+2*i+1}")
            A(f"v_cvt_pk_bf16_f32 v{dst+i}, v{acc+2*i}, v{acc+2*i+1}")
        A.auto = 0
        A.nop(2)
        for i in range(4): A(f"v_permlane32_swap_b32 v{dst+i}, v{dst+4+i}")

    def shadow1(self):
        A = self.A
        def addr_k(s): return C0 + s*2048 if s < 12 else A0 + (s-12)*2048
        def hk0(): A.wait(vm=self.pos_kA); A("s_barrier"); self.stamp("hk0")
        def hk12(): self.stamp("hk12>"); A.wait(vm=self.pos_kB); A("s_barrier"); self.stamp("hk12<")
        self.qkv_main(addr_k, {0: hk0, 12: hk12})
        self.flush_side()
        self.stamp("k loop")
        A.wait(vm=self.pos_h)
        A("s_barrier")
        self.stamp("h drained")
        self.signal(CNT_H, sRB64, "h", init_check=True)
        self.queue(self.job_strip(SRD_W2, 0, 64, A0), "pos_w2")
        self.qkv_tail(vKP)
        self.stamp("k done")
        self.p2_setup()
        def hv0(): A.wait(vm=self.pos_v); A("s_barrier"); self.stamp("hv0")
        hcode = [f"s_add_u32 s{sT5}, s{sRB64}, -1", f"v_add_u32 v250, s{sT5}, v{vL}",
                 "v_max_i32 v250, 0, v250", "v_min_i32 v250, 31, v250"] + self.cnt64_v(CNT_H)
        self.qkv_main(lambda s: B0 + s*2048, {0: hv0}, mid={self.cfg.hpoll_at: lambda: self.poll_issue(hcode, 3, 8, "h")})
        self.flush_side()
        self.stamp("v loop")

    def halo_publish(self):
        A = self.A
        l = A.newlabel("halo")
        A(f"s_cmp_lg_u32 s{sRBK}, 1"); A(f"s_cbranch_scc1 {l}")
        T = vT
        A(f"s_and_b32 s{sT0}, s{sRB64}, 3"); A(f"s_lshl_b32 s{sT0}, s{sT0}, 3"); A(f"s_add_u32 s{sT0}, s{sT0}, s{sC}"); A(f"s_lshl_b32 s{sT0}, s{sT0}, 12")
        A(f"s_lshl_b32 s{sT1}, s{sCG}, 10"); A(f"s_add_u32 s{sT0}, s{sT0}, s{sT1}"); A(f"s_add_u32 s{sT0}, s{sT0}, s{sSLAB}"); A(f"s_add_u32 s{sT0}, s{sT0}, {WS_KV}")
        A(f"v_subrev_u32 v{T}, 16, v{vM}"); A(f"v_lshlrev_b32 v{T}, 4, v{T}"); A(f"v_lshl_add_u32 v{T}, v{vH}, 9, v{T}")
        A(f"v_cmp_le_u32 vcc, 16, v{vM}")
        A(f"s_and_saveexec_b64 s[{sEXS}:{sEXS+1}], vcc")
        A.opt(f"buffer_store_dwordx4 {v(vKP,4)}, v{T}, {srd(SRD_WS)}, s{sT0} offen sc1")
        A.opt(f"buffer_store_dwordx4 {v(vKP+4,4)}, v{T}, {srd(SRD_WS)}, s{sT0} offen offset:256 sc1")
        A.opt(f"buffer_store_dwordx4 {v(vVP,4)}, v{T}, {srd(SRD_WS)}, s{sT0} offen offset:2048 sc1")
        A.opt(f"buffer_store_dwordx4 {v(vVP+4,4)}, v{T}, {srd(SRD_WS)}, s{sT0} offen offset:2304 sc1")
        A(f"s_mov_b64 exec, s[{sEXS}:{sEXS+1}]")
        A.label(l)
        self.pos_halo = A.vm_pos()

    def ksplit_gemm(self, nsteps, wbase_vregs, waddr, act_load, first, nring_regs, PDL, hooks=None, side_rate=1, tail=None, pre=None, window=None):
        A = self.A
        hooks = hooks or {}
        acts = {}; apos = {}
        def issue(i):
            acts[i] = act_load(i); apos[i] = A.vm_pos()
        if act_load is None:
            acts, apos = pre
        elif window:
            rest = self.side
            self.side = [[(lambda i=i: issue(i))] for i in range(min(PDL, nsteps))]
            self.pump(2)
            assert not rest
            window()
            while len(apos) < min(PDL, nsteps): self.pump(1)
        else:
            for i in range(min(PDL, nsteps)): issue(i)
        PD = 2
        lgpos = {}
        for s in range(nsteps + PD):
            if s < nsteps:
                if s in hooks: hooks[s]()
                ad = waddr(s)
                if ad is not None:
                    for cb in range(2):
                        b = vRING + 4*(2*(s % 4) + cb)
                        A(f"ds_read_b64_tr_b16 {v(b,2)}, v{wbase_vregs[cb]} offset:{ad}")
                        A(f"ds_read_b64_tr_b16 {v(b+2,2)}, v{wbase_vregs[cb]} offset:{ad+1024}")
                lgpos[s] = A.lg_pos()
            if s >= PD:
                t = s - PD
                A.wait(vm=apos[t], lg=lgpos[t] if waddr(t) is not None else None)
                for cb in range(2):
                    acc = (vACC0, vACC1)[cb]
                    c = "0" if (first and t == 0) else v(acc, 16)
                    if waddr(t) is not None:
                        wa = v(vRING + 4*(2*(t % 4) + cb), 4)
                    else:
                        wa = a(tail(t)[cb], 4)
                    A(f"v_mfma_f32_32x32x16_bf16 {v(acc,16)}, {wa}, {a(acts[t],4)}, {c}")
                if t + PDL < nsteps: issue(t + PDL)
                elif t % side_rate == 0: self.pump(1)

    def pair_reduce(self, scr, pre=None, post=None):
        A = self.A
        T = vT
        A(f"s_lshl_b32 s{sT0}, s{sW}, 12"); A(f"s_add_u32 s{sT1}, s{sT0}, {scr}"); A(f"v_add_u32 v{T}, s{sT1}, v{vL16}")
        A(f"s_xor_b32 s{sT0}, s{sT0}, 8192"); A(f"s_add_u32 s{sT0}, s{sT0}, {scr}"); A(f"v_add_u32 v{T+1}, s{sT0}, v{vL16}")
        A.nop(12 - 6)
        for j in range(4): A(f"ds_write_b128 v{T}, {v(vACC1+4*j,4)} offset:{1024*j}")
        if pre: pre()
        A.wait_all_lg()
        A("s_barrier")
        for j in range(4): A(f"ds_read_b128 {v(T+4+4*j,4)}, v{T+1} offset:{1024*j}")
        if post: post()
        for j in range(4):
            A.wait(lg=A.lg_pos() - (3 - j))
            for i in range(4): A(f"v_add_f32 v{vACC0+4*j+i}, v{vACC0+4*j+i}, v{T+4+4*j+i}")

    def p2_setup(self):
        A = self.A
        T = vT
        vA, vB = T+50, T+51
        A(f"s_lshl_b32 s{sT0}, s{sRB64}, 6"); A(f"s_lshl_b32 s{sT1}, s{sRBK}, 5"); A(f"s_add_u32 s{sT0}, s{sT0}, s{sT1}")
        A(f"s_add_u32 s{sT1}, s{sCG}, 1")
        for (dst, sign) in ((vA, -1), (vB, +1)):
            A(f"v_add_u32 v{T}, s{sT0}, v{vM}")
            if sign < 0: A(f"v_subrev_u32 v{T}, s{sT1}, v{T}")
            else: A(f"v_add_u32 v{T}, s{sT1}, v{T}")
            A(f"v_lshrrev_b32 v{T+1}, 8, v{T}"); A(f"v_lshlrev_b32 v{T+1}, {SLAB_SH}, v{T+1}")
            A(f"v_bfe_u32 v{T+2}, v{T}, 5, 3"); A(f"v_lshl_add_u32 v{T+1}, v{T+2}, 15, v{T+1}")
            A(f"v_and_b32 v{T+2}, 31, v{T}"); A(f"v_lshl_add_u32 v{T+1}, v{T+2}, 4, v{T+1}")
            A(f"v_lshl_add_u32 v{T+1}, v{vH}, 9, v{T+1}")
            A(f"v_mov_b32 v{T+2}, 0x80000000")
            A(f"s_movk_i32 s{sT2}, 2048"); A(f"v_cmp_gt_u32 vcc, s{sT2}, v{T}")
            A.nop(2)
            A(f"v_cndmask_b32 v{dst}, v{T+2}, v{T+1}, vcc")
        vW0, vW1 = T+52, T+53
        A(f"s_lshl_b32 s{sT0}, s{sCG}, 15"); A(f"v_add_u32 v{vW0}, s{sT0}, v{vTRC0}"); A(f"v_add_u32 v{vW1}, s{sT0}, v{vTRC1}")

    def p2(self):
        A = self.A
        T = vT
        vA, vB = T+50, T+51
        vW0, vW1 = T+52, T+53
        A(f"s_lshl_b32 s{sT3}, s{sCG}, 14"); A(f"s_add_u32 s{sT3}, s{sT3}, {WS_H}")
        A.wait(vm=self.pos_w2)
        self.poll_check()
        self.stamp("sync1")
        def act(i):
            if i % 4 == 0 and i > 0: A(f"s_add_u32 s{sT3}, s{sT3}, 4096")
            r = 128 + 4*i
            A(f"buffer_load_dwordx4 {a(r,4)}, v{vA if i < 8 else vB}, {srd(SRD_WS)}, s{sT3} offen offset:{(i%4)*1024} sc1")
            return r
        def window():
            A.auto = self.cfg.auto
            self.qkv_tail(vVP, keep_auto=True)
            A.auto = 0
            self.halo_publish()
            self.queue(self.job_strip_qkv(0, 0, 32, B0), "pos_q")
            self.queue(self.job_w3(0, 8, C0) + self.job_w3_small(30, 2, C0 + 8*3072))
            self.stamp("v tail")
        self.ksplit_gemm(16, (vW0, vW1), lambda i: i*2048, act, True, 0, self.cfg.pdl2, side_rate=1, window=window)
        A("s_barrier")
        self.stamp("p2 main")
        self.pair_reduce(A0 + 51200, pre=lambda: A.wait(vm=self.pos_halo), post=lambda: self.signal(CNT_KV, sRB64, "kv halo"))
        A.auto = self.cfg.auto
        X = T+20
        for j in range(8):
            A(f"v_lshlrev_b32 v{X+2*j}, 16, v{vXRES+j}"); A(f"v_and_b32 v{X+2*j+1}, 0xffff0000, v{vXRES+j}")
        S0, S1 = T+40, T+41
        A(f"v_mov_b32 v{S0}, 0"); A(f"v_mov_b32 v{S1}, 0")
        for i in range(16):
            A(f"v_add_f32 v{T+42}, v{vNMU}, v{X+i}")
            A(f"v_fmac_f32 v{vACC0+i}, v{vR}, v{T+42}")
            A(f"v_add_f32 v{vRESID+i}, v{X+i}, v{vACC0+i}")
            A(f"v_add_f32 v{S0}, v{S0}, v{vACC0+i}")
            A(f"v_fmac_f32 v{S1}, v{vACC0+i}, v{vACC0+i}")
        for i in range(8): A(f"v_cvt_pk_bf16_f32 v{X+i}, v{vACC0+2*i}, v{vACC0+2*i+1}")
        self.frag_dest(sT2, WS_X1)
        A(f"buffer_store_dwordx4 {v(X,4)}, v{vL16}, {srd(SRD_WS)}, s{sT2} offen sc1")
        A(f"buffer_store_dwordx4 {v(X+4,4)}, v{vL16}, {srd(SRD_WS)}, s{sT2} offen offset:1024 sc1")
        self.swap_add(S0, T+42); self.swap_add(S1, T+42)
        A(f"s_lshl_b32 s{sT0}, s{sR32L}, 12"); A(f"s_lshl_b32 s{sT1}, s{sC}, 9"); A(f"s_add_u32 s{sT0}, s{sT0}, s{sT1}")
        A(f"s_lshl_b32 s{sT1}, s{sCG}, 8"); A(f"s_add_u32 s{sT0}, s{sT0}, s{sT1}"); A(f"s_add_u32 s{sT0}, s{sT0}, s{sSLAB}"); A(f"s_add_u32 s{sT0}, s{sT0}, {WS_X1S}")
        A(f"v_lshlrev_b32 v{T+42}, 3, v{vM}")
        A(f"buffer_store_dwordx2 {v(S0,2)}, v{T+42}, {srd(SRD_WS)}, s{sT0} offen sc1")
        self.pos_x1 = A.vm_pos()
        A.auto = 0
        self.flush_side()

    def shadow2(self):
        A = self.A
        T = vT
        def hq0():
            A.wait(vm=self.pos_q); A("s_barrier")
            self.stamp("hq0")
            self.queue(self.job_w3(8, 15, A0))
        kvcode = self.cnt_addr(CNT_KV, sRB64, -1)
        H = T+44
        def halo_load():
            self.stamp("kv chk>")
            self.poll_check()
            self.stamp("kv chk<")
            A(f"v_mov_b32 v{H}, 0"); A(f"v_mov_b32 v{H+1}, 0"); A(f"v_mov_b32 v{H+2}, 0"); A(f"v_mov_b32 v{H+3}, 0")
            l = A.newlabel("nohalo")
            A(f"s_cmp_eq_u32 s{sRB64}, 0"); A(f"s_cbranch_scc1 {l}")
            A(f"s_add_u32 s{sT1}, s{sRB64}, -1"); A(f"s_and_b32 s{sT0}, s{sT1}, 3"); A(f"s_lshl_b32 s{sT0}, s{sT0}, 3"); A(f"s_add_u32 s{sT0}, s{sT0}, s{sC}")
            A(f"s_lshl_b32 s{sT0}, s{sT0}, 12"); A(f"s_lshr_b32 s{sT1}, s{sT1}, 2"); A(f"s_lshl_b32 s{sT1}, s{sT1}, {SLAB_SH}")
            A(f"s_add_u32 s{sT0}, s{sT0}, s{sT1}"); A(f"s_add_u32 s{sT0}, s{sT0}, {WS_KV}")
            A(f"v_lshlrev_b32 v{T+48}, 4, v0")
            A.opt(f"buffer_load_dwordx4 {v(H,4)}, v{T+48}, {srd(SRD_WS)}, s{sT0} offen sc1")
            A.label(l)
            self.pos_hl = A.vm_pos()
        self.qkv_main(lambda s: B0 + s*2048, {0: hq0}, side_rate=2,
                      mid={self.cfg.kvpoll_at: lambda: self.poll_issue(kvcode, 1, 8, "kv halo"), self.cfg.kvchk_at: halo_load})
        self.flush_side()
        self.stamp("q loop")
        A.wait(vm=self.pos_x1)
        A("s_barrier")
        self.stamp("x1 drained")
        self.signal(CNT_X1, sRB128, "x1")
        self.queue(self.job_strip(SRD_WO, 0, 64, B0), "pos_wo")
        self.qkv_tail(vQP)
        self.stamp("q done")
        pos_hl = self.pos_hl
        KV = A0 + 46080
        vKA = T
        A(f"s_lshl_b32 s{sT0}, s{sCG}, 1"); A(f"v_add_u32 v{T+1}, s{sT0}, v{vH}")
        A(f"v_mul_u32_u24 v{T+1}, 2560, v{T+1}")
        A(f"s_lshl_b32 s{sT0}, s{sRBK}, 5"); A(f"s_add_u32 s{sT0}, s{sT0}, 16"); A(f"v_add_u32 v{T+2}, s{sT0}, v{vM}")
        A(f"v_lshl_add_u32 v{vKA}, v{T+2}, 4, v{T+1}"); A(f"v_add_u32 v{vKA}, {KV}, v{vKA}")
        A(f"ds_write_b128 v{vKA}, {v(vKP,4)}"); A(f"ds_write_b128 v{vKA}, {v(vKP+4,4)} offset:1280")
        A(f"ds_write_b128 v{vKA}, {v(vVP,4)} offset:10240"); A(f"ds_write_b128 v{vKA}, {v(vVP+4,4)} offset:11520")
        A.wait(vm=pos_hl)
        A(f"v_lshrrev_b32 v{T+8}, 4, v0"); A(f"v_mul_u32_u24 v{T+8}, 1280, v{T+8}")
        A(f"v_and_b32 v{T+9}, 15, v0"); A(f"v_lshl_add_u32 v{T+8}, v{T+9}, 4, v{T+8}"); A(f"v_add_u32 v{T+8}, {KV}, v{T+8}")
        A(f"ds_write_b128 v{T+8}, {v(H,4)}")
        A.wait_all_lg()
        A("s_barrier")
        A.auto = self.cfg.auto
        self.stamp("kv staged")
        Q = vQP
        KB = vRING
        LG = T+12
        A(f"v_subrev_u32 v{T+10}, {14*16}, v{vKA}")
        for w in range(8):
            off = (14 - 2*w) * 16
            A(f"ds_read_b128 {v(KB+8*w,4)}, v{T+10} offset:{off}")
            A(f"ds_read_b128 {v(KB+8*w+4,4)}, v{T+10} offset:{off+1280}")
        base_lg = A.lg_pos() - 16
        for w in range(8): A(f"v_mov_b32 v{LG+w}, 0")
        for w in range(8):
            A.wait(lg=base_lg + 2*(w+1))
            for i in range(8): A(f"v_dot2c_f32_bf16 v{LG+w}, v{Q+i}, v{KB+8*w+i}")
        A.nop(3)
        for w in range(8):
            off = (14 - 2*w) * 16
            A(f"ds_read_b128 {v(KB+8*w,4)}, v{T+10} offset:{off+10240}")
            A(f"ds_read_b128 {v(KB+8*w+4,4)}, v{T+10} offset:{off+11520}")
        base_lg = A.lg_pos() - 16
        l = A.newlabel("nomask")
        A.auto = 0
        A(f"s_cmp_lg_u32 s{sRB64}, 0"); A(f"s_cbranch_scc1 {l}")
        A(f"s_lshl_b32 s{sT0}, s{sRBK}, 5"); A(f"v_add_u32 v{T+11}, s{sT0}, v{vM}")
        A(f"v_mov_b32 v{T+20}, 0xff800000")
        for w in range(1, 8):
            A(f"v_cmp_le_u32 vcc, {2*w}, v{T+11}")
            A.nop(2)
            A(f"v_cndmask_b32 v{LG+w}, v{T+20}, v{LG+w}, vcc")
        A.label(l)
        A.auto = self.cfg.auto
        MX = T+20
        A(f"v_max3_f32 v{MX}, v{LG}, v{LG+1}, v{LG+2}"); A(f"v_max3_f32 v{MX}, v{MX}, v{LG+3}, v{LG+4}")
        A(f"v_max3_f32 v{MX}, v{MX}, v{LG+5}, v{LG+6}"); A(f"v_max_f32 v{MX}, v{MX}, v{LG+7}")
        cs = 0.25 * 1.4426950408889634
        A(f"s_mov_b32 s{sT0}, {fbits(cs)}")
        A(f"v_mul_f32 v{MX}, {fbits(-cs)}, v{MX}")
        for w in range(8): A(f"v_fma_f32 v{LG+w}, v{LG+w}, s{sT0}, v{MX}")
        for w in range(8): A(f"v_exp_f32 v{LG+w}, v{LG+w}")
        SM = T+21
        A(f"v_add_f32 v{SM}, v{LG}, v{LG+1}")
        for w in range(2, 8): A(f"v_add_f32 v{SM}, v{SM}, v{LG+w}")
        A(f"v_rcp_f32 v{SM}, v{SM}")
        A.nop(1)
        for w in range(8): A(f"v_mul_f32 v{LG+w}, v{SM}, v{LG+w}")
        PP = T+22
        for u in range(4): A(f"v_cvt_pk_bf16_f32 v{PP+u}, v{LG+2*u}, v{LG+2*u+1}")
        O = vACC0
        TP = T+26
        for u in range(4):
            A.wait(lg=base_lg + 4*(u+1))
            va, vb = KB + 16*u, KB + 16*u + 8
            for i in range(8):
                t0, t1 = TP + 2*(i & 1), TP + 2*(i & 1) + 1
                A(f"v_perm_b32 v{t0}, v{vb+i}, v{va+i}, s{sPLO}")
                A(f"v_perm_b32 v{t1}, v{vb+i}, v{va+i}, s{sPHI}")
                if u == 0:
                    A(f"v_dot2_f32_bf16 v{O+2*i}, v{t0}, v{PP+u}, 0"); A(f"v_dot2_f32_bf16 v{O+2*i+1}, v{t1}, v{PP+u}, 0")
                else:
                    A(f"v_dot2c_f32_bf16 v{O+2*i}, v{t0}, v{PP+u}"); A(f"v_dot2c_f32_bf16 v{O+2*i+1}, v{t1}, v{PP+u}")
        A.nop(3)
        OP = T+32
        for i in range(8): A(f"v_cvt_pk_bf16_f32 v{OP+i}, v{O+2*i}, v{O+2*i+1}")
        A.nop(2)
        for i in range(4): A(f"v_permlane32_swap_b32 v{OP+i}, v{OP+4+i}")
        self.frag_dest(sT0, WS_O)
        A(f"buffer_store_dwordx4 {v(OP,4)}, v{vL16}, {srd(SRD_WS)}, s{sT0} offen sc1")
        A(f"buffer_store_dwordx4 {v(OP+4,4)}, v{vL16}, {srd(SRD_WS)}, s{sT0} offen offset:1024 sc1")
        self.pos_o = A.vm_pos()
        A.auto = 0
        self.flush_side()
        self.poll_issue(self.cnt_addr(CNT_X1, sRB128), 1, 16, "x1")
        A("s_barrier")
        self.emit_groups(self.job_w3(23, 7, A0 + 46080))
        self.pos_w3 = A.vm_pos()
        self.stamp("attn done")

    def c3_pass(self):
        A = self.A
        T = vT
        vLo, vHi = T, T+1
        A(f"s_add_u32 s{sT0}, s{sW}, -1"); A(f"s_mul_i32 s{sT0}, s{sT0}, {8*3072}")
        A(f"s_cmp_eq_u32 s{sW}, 0"); A(f"s_cselect_b32 s{sT0}, {C0}, s{sT0}")
        A(f"s_cmp_eq_u32 s{sW}, 3"); A(f"s_cselect_b32 s{sT1}, {C0 + 2*3072}, s{sT0}")
        A(f"v_add_u32 v{vLo}, s{sT0}, v{vTR3}"); A(f"v_add_u32 v{vHi}, s{sT1}, v{vTR3}")
        CS = T+8
        for i in range(6): A(f"v_mov_b32 v{CS+i}, 0")
        A.auto = self.cfg.auto
        def c3_reads(i):
            for blk in range(3):
                b = vRING + 4*(3*(i % 3) + blk)
                r = vLo if i < 6 else vHi
                A(f"ds_read_b64_tr_b16 {v(b,2)}, v{r} offset:{i*3072 + blk*64}")
                A(f"ds_read_b64_tr_b16 {v(b+2,2)}, v{r} offset:{i*3072 + blk*64+1536}")
            return A.lg_pos()
        cpos = {0: c3_reads(0), 1: c3_reads(1)}
        for i in range(8):
            if i + 2 < 8: cpos[i+2] = c3_reads(i+2)
            A.wait(lg=cpos[i])
            for blk in range(3):
                b = vRING + 4*(3*(i % 3) + blk)
                for r in range(4): A(f"v_dot2c_f32_bf16 v{CS+2*blk+(r&1)}, s{sONES}, v{b+r}")
        A.auto = 0
        A.nop(3)
        SC3 = B0
        for blk in range(3):
            A(f"v_add_f32 v{CS+2*blk}, v{CS+2*blk}, v{CS+2*blk+1}")
            self.swap_add(CS+2*blk, T+4)
        A(f"s_mul_i32 s{sT0}, s{sW}, 384"); A(f"v_lshl_add_u32 v{T+4}, v{vM}, 2, s{sT0}"); A(f"v_add_u32 v{T+4}, {SC3}, v{T+4}")
        for blk in range(3): A(f"ds_write_b32 v{T+4}, v{CS+2*blk} offset:{128*blk}")
        A.wait(vm=self.pos_o)
        A.wait_all_lg()
        A("s_barrier")
        self.signal(CNT_O, sRB64, "o")
        A(f"v_lshlrev_b32 v{T+4}, 2, v{vM}"); A(f"v_add_u32 v{T+4}, {SC3}, v{T+4}")
        for w in range(4):
            for blk in range(3): A(f"ds_read_b32 v{T+16+4*blk+w}, v{T+4} offset:{384*w+128*blk}")
        A(f"v_cmp_gt_u32 vcc, 32, v{vL}")
        A.wait_all_lg()
        self.vC3 = [T+46, T+47, T+48]
        for blk in range(3):
            b = T+16+4*blk
            A(f"v_add_f32 v{b}, v{b}, v{b+1}"); A(f"v_add_f32 v{b+2}, v{b+2}, v{b+3}"); A(f"v_add_f32 v{b}, v{b}, v{b+2}")
            A(f"v_cndmask_b32 v{self.vC3[blk]}, 0, v{b}, vcc")
        A("s_barrier")
        self.stamp("c3 done")

    def job_w3_small(self, s0, ns, lds0):
        groups = []
        g = [f"s_lshl_b32 s{sG2}, s{sCB0}, 6", f"s_add_u32 s{sG2}, s{sG2}, {s0*16*2752}",
             f"s_min_u32 s{sD0}, s{sW}, {ns-1}", f"s_mul_i32 s{sD1}, s{sD0}, {16*2752}", f"s_add_u32 s{sG}, s{sG2}, s{sD1}",
             f"s_mul_i32 s{sD0}, s{sD0}, 3072", f"s_add_u32 m0, s{sD0}, {lds0}", "s_nop 0"]
        for i in range(3):
            if i: g = ["s_add_u32 m0, m0, 1024", "s_nop 0"]
            g.append(f"buffer_load_dwordx4 v{vW3[i]}, {srd(SRD_W3)}, s{sG} offen lds")
            groups.append(g)
        return groups

    def w3_addr(self, s):
        if s < 8: return C0 + s*3072
        if s < 30: return A0 + (s-8)*3072
        return C0 + (s-22)*3072

    def p3(self):
        A = self.A
        T = vT
        A(f"s_lshl_b32 s{sP2}, s{sR32P}, 15"); A(f"s_add_u32 s{sP2}, s{sP2}, s{sSLAB}"); A(f"s_add_u32 s{sP2}, s{sP2}, {WS_X1}")
        A(f"s_lshl_b32 s{sP3}, s{sR32P}, 12"); A(f"s_add_u32 s{sP3}, s{sP3}, s{sSLAB}"); A(f"s_add_u32 s{sP3}, s{sP3}, {WS_X1S}")
        A(f"s_mul_i32 s{sP4}, s{sR32P}, {86*1024}"); A(f"s_add_u32 s{sP4}, s{sP4}, s{sSLAB}"); A(f"s_add_u32 s{sP4}, s{sP4}, {WS_G}")
        A(f"s_lshl_b32 s{sT1}, s{sCB0}, 11"); A(f"s_add_u32 s{sP4}, s{sP4}, s{sT1}")
        vA0, vA1 = T+54, T+55
        A(f"s_lshl_b32 s{sT0}, s{sCG}, 15"); A(f"s_add_u32 s{sT0}, s{sT0}, {B0}")
        A(f"v_add_u32 v{vA0}, s{sT0}, v{vTRC0}"); A(f"v_add_u32 v{vA1}, s{sT0}, v{vTRC1}")
        A.wait(vm=self.pos_wo)
        self.poll_check()
        self.stamp("sync2")
        apos = {}
        def act(i):
            if i % 4 == 0 and i > 0: A(f"s_add_u32 s{sP2}, s{sP2}, 4096")
            A(f"buffer_load_dwordx4 {a(4*i,4)}, v{vL16}, {srd(SRD_WS)}, s{sP2} offen offset:{(i%4)*1024} sc1")
            apos[i] = A.vm_pos()
        PDL = self.cfg.pdl3
        assert not self.side
        self.side = [[(lambda i=i: act(i))] for i in range(PDL)]
        self.pump(2)
        A.auto = self.cfg.auto
        for i in range(16):
            for cb in range(2):
                r = 128 + 8*i + 4*cb
                A(f"ds_read_b64_tr_b16 {a(r,2)}, v{(vA0,vA1)[cb]} offset:{i*2048}")
                A(f"ds_read_b64_tr_b16 {a(r+2,2)}, v{(vA0,vA1)[cb]} offset:{i*2048 + 1024}")
        A.auto = 0
        A.wait(vm=self.pos_w3)
        A.wait_all_lg()
        A("s_barrier")
        self.stamp("wo->reg")
        self.c3_pass()
        while len(apos) < PDL: self.pump(1)
        self.queue(self.job_w4(39, 4, B0 + 12*4096), "pos_tails")
        self.queue(self.job_w4(23, 12, B0))
        vB = [T, T+1, T+2]
        A(f"v_mov_b32 v{vB[0]}, v{vTR3}"); A(f"v_add_u32 v{vB[1]}, 65536, v{vTR3}"); A(f"v_add_u32 v{vB[2]}, 131072, v{vTR3}")
        def wread(s, blk, buf):
            ad = self.w3_addr(s) + blk*64
            for (k, d) in ((0, 0), (2, 1536)):
                x = ad + d
                A(f"ds_read_b64_tr_b16 {v(buf+k,2)}, v{vB[x // 65536]} offset:{x % 65536}")
        PD = 2
        lgpos = {}
        stats_issued = False
        for s in range(32 + PD):
            if s < 32:
                for blk in range(2): wread(s, blk, vRING + 4*(2*(s % 4) + blk))
                lgpos[s] = A.lg_pos()
            if s >= PD:
                t = s - PD
                A.wait(vm=apos[t], lg=lgpos[t])
                for blk in range(2):
                    acc = (vACC0, vACC1)[blk]
                    c = "0" if t == 0 else v(acc, 16)
                    A(f"v_mfma_f32_32x32x16_bf16 {v(acc,16)}, {v(vRING + 4*(2*(t % 4) + blk),4)}, {a(4*t,4)}, {c}")
                if t + PDL < 32: act(t + PDL)
                elif not stats_issued:
                    stats_issued = True
                    A(f"v_lshlrev_b32 v{T+3}, 3, v{vM}"); A(f"v_lshl_add_u32 v{T+3}, v{vH}, 11, v{T+3}")
                    for j in range(8):
                        A(f"buffer_load_dwordx2 {v(T+20+2*j,2)}, v{T+3}, {srd(SRD_WS)}, s{sP3} offen offset:{256*j} sc1")
                    spos = A.vm_pos()
                else: self.pump(1)
        self.flush_side()
        A.wait(vm=spos)
        S0, S1 = T+20, T+21
        for j in range(1, 8):
            A(f"v_add_f32 v{S0}, v{S0}, v{T+20+2*j}"); A(f"v_add_f32 v{S1}, v{S1}, v{T+21+2*j}")
        self.swap_add(S0, T+4); self.swap_add(S1, T+4)
        NMU1, R1 = T+5, T+6
        A(f"v_mul_f32 v{S0}, {fbits(1/512)}, v{S0}"); A(f"v_mul_f32 v{S1}, {fbits(1/512)}, v{S1}")
        A(f"v_sub_f32 v{NMU1}, 0, v{S0}"); A(f"v_fma_f32 v{S1}, v{NMU1}, v{S0}, v{S1}"); A(f"v_max_f32 v{S1}, 0, v{S1}")
        A(f"v_add_f32 v{S1}, {fbits(1e-5)}, v{S1}"); A(f"v_rsq_f32 v{R1}, v{S1}")
        self.poll_issue(self.cnt_addr(CNT_O, sRB64), 1, 8, "o")
        lskip = A.newlabel("nob2")
        A(f"s_cmp_lt_u32 s{sNBLK}, 3"); A(f"s_cbranch_scc1 {lskip}")
        lg_save = A.lg
        for s in range(32 + PD):
            if s < 32:
                wread(s, 2, vRING + 4*(s % 4))
                lgpos[s] = A.lg_pos()
            if s >= PD:
                t = s - PD
                A.wait(lg=lgpos[t])
                c = "0" if t == 0 else v(vACC2, 16)
                A(f"v_mfma_f32_32x32x16_bf16 {v(vACC2,16)}, {v(vRING + 4*(t % 4),4)}, {a(4*t,4)}, {c}")
        A.label(lskip)
        A.wait(vm=self.pos_tails)
        self.poll_check()
        self.stamp("p3 main")
        A(f"s_lshl_b32 s{sOA}, s{sR32L}, 15"); A(f"s_lshl_b32 s{sT1}, s{sCG}, 14"); A(f"s_add_u32 s{sOA}, s{sOA}, s{sT1}")
        A(f"s_add_u32 s{sOA}, s{sOA}, s{sSLAB}"); A(f"s_add_u32 s{sOA}, s{sOA}, {WS_O}")
        self.o_acts = {}; self.o_pos = {}
        for i in range(16):
            g = []
            if i % 4 == 0 and i > 0: g.append(f"s_add_u32 s{sOA}, s{sOA}, 4096")
            g.append(f"buffer_load_dwordx4 {a(4*i,4)}, v{vL16}, {srd(SRD_WS)}, s{sOA} offen offset:{(i%4)*1024} sc1")
            def m(i=i):
                self.o_acts[i] = 4*i; self.o_pos[i] = A.vm_pos()
            g.append(m)
            self.side.append(g)
        self.queue(self.job_w4(0, 16, A0) + self.job_w4(16, 7, C0), "pos_w4e")
        vA0, vA1 = T+54, T+55
        A(f"s_lshl_b32 s{sT0}, s{sCG}, 11"); A(f"v_add_u32 v{vA0}, s{sT0}, v{vTRC0}"); A(f"v_add_u32 v{vA1}, s{sT0}, v{vTRC1}")
        A(f"v_add_u32 v{T+52}, {B0 + 12*4096}, v{vA0}"); A(f"v_add_u32 v{T+53}, {B0 + 12*4096}, v{vA1}")
        for i in range(4):
            for cb in range(2):
                r = 96 + 8*i + 4*cb
                A(f"ds_read_b64_tr_b16 {v(r,2)}, v{T+52+cb} offset:{i*4096}")
                A(f"ds_read_b64_tr_b16 {v(r+2,2)}, v{T+52+cb} offset:{i*4096 + 1024}")
        lskip2 = A.newlabel("nom2")
        A(f"s_cmp_lt_u32 s{sNBLK}, 3"); A(f"s_cbranch_scc1 {lskip2}")
        A.nop(10)
        A(f"v_mfma_f32_32x32x2_f32 {v(vACC2,16)}, v{self.vC3[2]}, v{NMU1}, {v(vACC2,16)}")
        A.label(lskip2)
        A.nop(2)
        A(f"v_mfma_f32_32x32x2_f32 {v(vACC0,16)}, v{self.vC3[0]}, v{NMU1}, {v(vACC0,16)}")
        mk0 = A.mark()
        A(f"v_mfma_f32_32x32x2_f32 {v(vACC1,16)}, v{self.vC3[1]}, v{NMU1}, {v(vACC1,16)}")
        GK = self.gelu_consts(R1, T+34)
        self.pump(3)
        A.pad(mk0, 19)
        for blk in range(3):
            acc = (vACC0, vACC1, vACC2)[blk]
            if blk == 2:
                lskip3 = A.newlabel("nog2")
                A(f"s_cmp_lt_u32 s{sNBLK}, 3"); A(f"s_cbranch_scc1 {lskip3}")
            else:
                A.auto = self.cfg.auto_g
            self.gelu_body(acc, GK)
            A.auto = 0
            i1 = f"buffer_store_dwordx4 {v(acc,4)}, v{vL16}, {srd(SRD_WS)}, s{sP4} offen offset:{blk*2048 % 4096} sc1"
            i2 = f"buffer_store_dwordx4 {v(acc+4,4)}, v{vL16}, {srd(SRD_WS)}, s{sP4} offen offset:{blk*2048 % 4096 + 1024} sc1"
            if blk == 2:
                A(f"s_add_u32 s{sP4}, s{sP4}, 4096")
                A.opt(i1); A.opt(i2)
                A.label(lskip3)
            else:
                A(i1); A(i2)
        self.pos_g = A.vm_pos()

    def job_w4(self, i0, ni, lds0):
        groups = []
        for j in range(ni):
            g = []
            if j == 0:
                g += [f"s_mul_i32 s{sG}, s{sCG}, {43*16*1024}", f"s_lshl_b32 s{sD0}, s{sRBK}, 13", f"s_add_u32 s{sG}, s{sG}, s{sD0}",
                      f"s_lshl_b32 s{sD0}, s{sC}, 7", f"s_add_u32 s{sG}, s{sG}, s{sD0}", f"s_add_u32 s{sG}, s{sG}, {i0*16*1024}",
                      f"s_lshl_b32 s{sD0}, s{sW}, 10", f"s_add_u32 m0, s{sD0}, {lds0}", "s_nop 0"]
            else:
                g += [f"s_add_u32 s{sG}, s{sG}, {16*1024}", "s_add_u32 m0, m0, 4096", "s_nop 0"]
            g.append(f"buffer_load_dwordx4 v{vSTR}, {srd(SRD_W4)}, s{sG} offen lds")
            groups.append(g)
        return groups

    def w4_slot(self, i):
        if i < 16: return A0 + i*4096
        if i < 23: return C0 + (i-16)*4096
        if i < 35: return B0 + (i-23)*4096
        return B0 + 12*4096 + (i-35)*4096

    def p4(self):
        A = self.A
        T = vT
        vA0, vA1 = T+54, T+55
        A(f"s_mul_i32 s{sT4}, s{sR32L}, {86*1024}"); A(f"s_mul_i32 s{sT1}, s{sCG}, {43*1024}"); A(f"s_add_u32 s{sT4}, s{sT4}, s{sT1}")
        A(f"s_add_u32 s{sT4}, s{sT4}, s{sSLAB}"); A(f"s_add_u32 s{sT4}, s{sT4}, {WS_G}")
        while len(self.o_pos) < 16: self.pump(1)
        self.ksplit_gemm(16, None, lambda i: None, None, True, 0, 16, side_rate=1, pre=(self.o_acts, self.o_pos),
                         tail=lambda i: (128 + 8*i, 128 + 8*i + 4))
        self.flush_side()
        self.stamp("wo done")
        A.wait(vm=self.pos_g)
        A.wait_all_lg()
        A("s_barrier")
        self.stamp("g drained")
        self.signal(CNT_G, sRB128, "g")
        self.emit_groups(self.job_w4(35, 4, B0 + 12*4096))
        vb = {}
        for win in range(3):
            for cb in range(2):
                r = T + 44 + 2*win + cb
                A(f"v_add_u32 v{r}, {win*65536}, v{(vA0,vA1)[cb]}")
                vb[(win, cb)] = r
        A.wait(vm=self.pos_w4e)
        self.stamp("w4e landed")
        self.poll(self.cnt_addr(CNT_G, sRB128), 1, 16, "g")
        self.stamp("sync3")
        acts = {}; apos = {}
        def act_g(i):
            if i % 4 == 0 and i > 0: A(f"s_add_u32 s{sT4}, s{sT4}, 4096")
            r = 4*(i % 32)
            A(f"buffer_load_dwordx4 {a(r,4)}, v{vL16}, {srd(SRD_WS)}, s{sT4} offen offset:{(i%4)*1024} sc1")
            acts[i] = r; apos[i] = A.vm_pos()
        PDL = self.cfg.pdl4; PD = 2; N = 43
        for i in range(PDL): act_g(i)
        lgpos = {}
        for s in range(N + PD):
            if s < N:
                if s == 30:
                    A("s_barrier")
                if s < 39:
                    ad = self.w4_slot(s)
                    for cb in range(2):
                        b = vRING + 4*(2*(s % 4) + cb)
                        for (k, d) in ((0, 0), (2, 1024)):
                            x = ad + d
                            A(f"ds_read_b64_tr_b16 {v(b+k,2)}, v{vb[(x // 65536, cb)]} offset:{x % 65536}")
                lgpos[s] = A.lg_pos()
            if s >= PD:
                t = s - PD
                A.wait(vm=apos[t], lg=lgpos[t] if t < 39 else None)
                for cb in range(2):
                    acc = (vACC0, vACC1)[cb]
                    wa = v(vRING + 4*(2*(t % 4) + cb), 4) if t < 39 else v(96 + 8*(t-39) + 4*cb, 4)
                    A(f"v_mfma_f32_32x32x16_bf16 {v(acc,16)}, {wa}, {a(acts[t],4)}, {v(acc,16)}")
                if t + PDL < N: act_g(t + PDL)
        A("s_barrier")
        self.stamp("p4 main")
        self.pair_reduce(A0)
        for i in range(16): A(f"v_add_f32 v{vACC0+i}, v{vACC0+i}, v{vRESID+i}")
        P = T+24
        for i in range(8): A(f"v_cvt_pk_bf16_f32 v{P+i}, v{vACC0+2*i}, v{vACC0+2*i+1}")
        A.nop(2)
        for (x, y) in ((0, 2), (1, 3), (4, 6), (5, 7)):
            A(f"v_permlane32_swap_b32 v{P+x}, v{P+y}")
        A(f"s_lshl_b32 s{sT0}, s{sRB64}, 6"); A(f"s_lshl_b32 s{sT1}, s{sRBK}, 5"); A(f"s_add_u32 s{sT0}, s{sT0}, s{sT1}")
        A(f"v_add_u32 v{T}, s{sT0}, v{vM}"); A(f"v_lshlrev_b32 v{T}, 10, v{T}"); A(f"v_lshl_add_u32 v{T}, v{vH}, 4, v{T}")
        A(f"s_lshl_b32 s{sT0}, s{sC}, 7"); A(f"s_lshl_b32 s{sT1}, s{sCG}, 6"); A(f"s_add_u32 s{sT0}, s{sT0}, s{sT1}")
        A(f"buffer_store_dwordx4 {v(P,4)}, v{T}, {srd(SRD_OUT)}, s{sT0} offen")
        A(f"buffer_store_dwordx4 {v(P+4,4)}, v{T}, {srd(SRD_OUT)}, s{sT0} offen offset:32")
        self.stamp("stored")

    def build(self):
        A = self.A
        stop = self.cfg.stop_after
        self.prologue()
        self.t0_dma()
        self.setup2()
        self.stamp("setup2")
        self.t0_dma2()
        self.stamp("start")
        self.p1_h(); self.stamp("h main")
        self.p1_h_finish(); self.stamp("h pub")
        if stop != "h":
            self.shadow1(); self.stamp("kv pub")
            if stop != "kv":
                self.p2(); self.stamp("x1 pub")
                if stop != "x1":
                    self.shadow2()
                    if stop != "o":
                        self.p3(); self.stamp("g pub")
                        if stop != "g":
                            self.p4()
        self.flush_side()
        A("s_waitcnt vmcnt(0)")
        self.stamp("end")
        self.stamp_end()
        A.label("L_end")
        A("s_endpgm")
        return A

HEADER = """; Fused persistent kernel: x + attn(LN x) + mixer(LN x).  256 workgroups (one per CU), 4 waves each.
; @launch grid=(256,1,1) block=(256,1,1) lds=163840
.amdgcn_target "amdgcn-amd-amdhsa--gfx950"
.text
.globl {name}
.p2align 8
.type {name},@function
{name}:
"""
FOOTER = """
.section .rodata,"a"
.p2align 6
.amdhsa_kernel {name}
  .amdhsa_next_free_vgpr 512
  .amdhsa_next_free_sgpr 102
  .amdhsa_accum_offset 256
  .amdhsa_group_segment_fixed_size 0
  .amdhsa_kernarg_size 88
  .amdhsa_user_sgpr_count 2
  .amdhsa_user_sgpr_kernarg_segment_ptr 1
  .amdhsa_system_sgpr_workgroup_id_x 1
.end_amdhsa_kernel
"""

def generate(cfg):
    k = K(cfg)
    A = k.build()
    probs = check_hazards(A.lines)
    generate.names = k.stamp_names
    return HEADER.format(name=NAME) + A.text() + FOOTER.format(name=NAME), probs

if __name__ == "__main__":
    cfg = Cfg()
    out = sys.argv[1] if len(sys.argv) > 1 else "parallel_sum__sliding_local_dilated__mixer_s_mlp__prompt.s"
    for arg in sys.argv[2:]:
        k, val = arg.split("=")
        setattr(cfg, k, {"True": True, "False": False, "None": None}.get(val, int(val) if val.isdigit() else val))
    txt, probs = generate(cfg)
    for p in probs: print("HAZARD:", p)
    open(out, "w").write(txt)
    print("wrote", out, len(txt), "bytes;", txt.count("\n"), "lines;", len(probs), "hazards")
```

```python
import sys, os
from asmlib import Asm, check_hazards

NAME = "parallel_sum__sliding_local_dilated__mixer_s_mlp__prompt_kernel"

class Cfg:
    stamps = False
    stop_after = None
    spin_limit = 400000
    dbgtime = False
    wallonly = False
    fine = None
    pre_chunks = 3
    preA = 1
    touch = 1
    hpoll_at = 26
    auto = 64
    cost_w3 = 96
    pdl2 = 10
    pdl3 = 22
    pdl4 = 14
    kvchk_at = 24
    kvpoll_at = 10
    auto_g = 48
    w4_in_ge = 8
    w4_before_sig = 8
    early_kv = 1
    w2_in_k = 16
    rot = 1
    dstore = 0
    krot = 0
    ftswap = 1
    cxor = 0
    chunkstamps = 0
    touch_mode = "late"
    stouch = 0
    l2touch = ""
    mallt = 1
    stouch_wave = 1
    early_touch = 0

SLAB_SH = 21
WS_H    = 0x000000
WS_O    = 0x040000
WS_X1   = 0x080000
WS_G    = 0x0C0000
WS_X1S  = 0x170000
WS_KV   = 0x180000
WS_CNT  = 0x1A0000
CNT_H, CNT_KV, CNT_X1, CNT_G, CNT_O = 0, 4, 8, 10, 12
CNT_STRIDE = 256
WS_STAMP= 0x1000000
WS_SIZE = 0x1100000

A0 = 0
B0 = 67584
C0 = 133120
SCR1 = 160768
LDS_TOTAL = 163840

sW, sRBK, sCG = 3, 4, 5
sRB64, sC, sRB128, sFT = 6, 7, 8, 9
SRD_X, SRD_WQKV, SRD_WO, SRD_W1, SRD_W2, SRD_W3, SRD_W4, SRD_OUT, SRD_WS, SRD_DBG = 40, 44, 48, 52, 56, 60, 64, 68, 72, 76
sONES, sPLO, sPHI = 80, 81, 82
sG, sG2, sT0, sT1, sT2, sT3 = 83, 84, 85, 86, 87, 88
sCB0, sNBLK = 89, 90
sSPIN = 91
sSTAMP = 22
sEXS = 94
sT4, sT5 = 96, 97
sXG, sW1G, sWL = 10, 11, 38
sD0, sD1 = 39, 92
sP2, sP3, sP4 = 16, 17, 18
sSLAB, sR32L, sR32P = 19, 20, 21
sBW, sRW2, sRWO, sR3, sR3W, sW3L, sBW4, sG4E, sAS, sAE = 27, 28, 29, 30, 31, 32, 33, 34, 35, 36
sKR = 37
sW4K = 12
sXSLOT = 26
sOA = 93
sROT = 14
sROT8 = 15
sRT0, sCY0 = 98, 100
vST = 253

def srd(n): return f"s[{n}:{n+3}]"

vL, vM, vH, vL16 = 1, 2, 3, 4
vSTR, vSTRQ = 5, 6
vW3 = (7, 8, 9)
vTRN, vTRC0, vTRC1, vTR3 = 10, 11, 12, 13
vNMU, vR = 14, 15
vXRES = 16
vRESID = 24
vKP, vVP, vQP = 40, 48, 56
vRING = 64
vSTRJ = (5, 136, 137, 138)
vS4J = (5, 136, 139, 140)
vSTRQJ = (6, 141, 142, 143)
vX2 = 179
vACC0, vACC1, vACC2 = 144, 160, 176
vT = 192

def v(i, n=1): return f"v{i}" if n == 1 else f"v[{i}:{i+n-1}]"
def a(i, n=1): return f"a{i}" if n == 1 else f"a[{i}:{i+n-1}]"

C0G = -2.0 * 0.7978845608028654 * 1.4426950408889634
C1G = C0G * 0.044715
import struct
def fbits(x): return "0x%08x" % struct.unpack("<I", struct.pack("<f", x))[0]

class K:
    def __init__(self, cfg):
        self.cfg = cfg
        self.A = Asm()
        self.side = []
        self.nstamp = 0
        self.stamp_names = []
        self.kA_queued = False
        self.A.pump_cb = self.paced_pump
        self.credit = 0

    def pump(self, n=1):
        for _ in range(n):
            if self.side:
                g = self.side.pop(0)
                for ins in g:
                    if callable(ins): ins()
                    else: self.A(ins)

    def group_cost(self, g):
        for x in g:
            if isinstance(x, str) and x.startswith("buffer_load") and srd(SRD_W3) in x: return self.cfg.cost_w3
        return self.cfg.auto

    def paced_pump(self, cost):
        if self.side and cost >= self.group_cost(self.side[0]):
            self.pump(1)
            return True
        return False

    def tick(self, cycles):
        self.credit += cycles
        while self.side and self.credit >= self.group_cost(self.side[0]):
            self.credit -= self.group_cost(self.side[0])
            self.pump(1)
        if not self.side: self.credit = min(self.credit, self.cfg.auto)

    def queue(self, groups, mark=None):
        groups = [list(g) for g in groups]
        if mark:
            def m(mark=mark): setattr(self, mark, self.A.vm_pos())
            groups[-1].append(m)
        self.side += groups

    def pstore(self, text, opt=False):
        A = self.A
        f = A.opt if opt else A
        f(text)
        if self.cfg.dstore: f(text.replace(" sc1", ""))

    def flush_side(self):
        self.pump(len(self.side))

    def stamp(self, name):
        if not self.cfg.stamps: return
        if self.cfg.wallonly and name != "end": return
        if self.cfg.fine and name in ("kernarg", "touched", "preA", "setup2", "start", "hk0", "hk12>", "hk12<", "hv0", "hq0", "v loop", "kv chk>", "kv chk<", "h drained", "x1 drained", "g drained"): return
        A = self.A
        i = self.nstamp; self.nstamp += 1
        self.stamp_names.append(name)
        cur = sSTAMP + 2*(i & 1); prev = sSTAMP + 2*((i+1) & 1)
        if i > 0: A(f"v_writelane_b32 v{vST}, s{prev}, {i-1}")
        A(f"s_memtime s[{cur}:{cur+1}]")

    def fstamp(self, region, name):
        if self.cfg.fine == region: self.stamp(name)

    def stamp_end(self):
        A = self.A
        if self.cfg.stamps:
            i = self.nstamp
            prev = sSTAMP + 2*((i+1) & 1)
            A("s_waitcnt lgkmcnt(0)")
            A(f"v_writelane_b32 v{vST}, s{prev}, {i-1}")
            A(f"s_memrealtime s[{sSTAMP}:{sSTAMP+1}]")
            A("s_waitcnt lgkmcnt(0)")
            A(f"v_writelane_b32 v{vST}, s{sSTAMP}, 62")
            A(f"v_writelane_b32 v{vST}, s{sRT0}, 61")
            A(f"v_writelane_b32 v{vST}, s{sCY0}, 60")
            A(f"s_lshl_b32 s{sT5}, s2, 2"); A(f"s_add_u32 s{sT5}, s{sT5}, s{sW}"); A(f"s_lshl_b32 s{sT5}, s{sT5}, 8")
            A(f"s_add_u32 s{sT5}, s{sT5}, {WS_STAMP}")
            A(f"v_lshlrev_b32 v254, 2, v{vL}")
            A(f"buffer_store_dword v{vST}, v254, {srd(SRD_WS)}, s{sT5} offen")
        if self.cfg.dbgtime:
            l = A.newlabel("dt")
            A("s_cmp_ge_u32 s2, 7"); A(f"s_cbranch_scc1 {l}")
            A(f"s_cmp_lg_u32 s{sW}, 0"); A(f"s_cbranch_scc1 {l}")
            A(f"s_memrealtime s[{sSTAMP}:{sSTAMP+1}]"); A(f"s_memtime s[{sSTAMP+2}:{sSTAMP+3}]")
            A("s_waitcnt lgkmcnt(0)")
            A(f"s_sub_u32 s{sT0}, s{sSTAMP}, s{sRT0}"); A(f"s_sub_u32 s{sT1}, s{sSTAMP+2}, s{sCY0}")
            A(f"v_mov_b32 v250, s{sT0}"); A(f"v_mov_b32 v251, s{sT1}")
            A(f"s_lshl_b32 s{sT0}, s2, 3"); A(f"s_add_u32 s{sT0}, s{sT0}, 8"); A(f"v_mov_b32 v252, s{sT0}")
            A("s_mov_b64 exec, 1")
            A(f"buffer_store_dwordx2 v[250:251], v252, {srd(SRD_DBG)}, 0 offen")
            A.label(l)

    def dma_units(self, srdn, vregs, gbase_code, gstep, lds0, n, lstep=None):
        m = len(vregs)
        if lstep is None: lstep = 1024 * m
        assert n >= 4
        groups = []
        rounds = (n + 3) // 4
        for j in range(rounds):
            if j == 0:
                g = list(gbase_code)
                g += [f"s_mul_i32 s{sD0}, s{sW}, {lstep}", f"s_add_u32 m0, s{sD0}, {lds0}",
                      f"s_mul_i32 s{sD0}, s{sW}, {gstep}", f"s_add_u32 s{sG}, s{sG2}, s{sD0}"]
            elif 4 * j + 3 < n:
                g = [f"s_add_u32 m0, m0, {4*lstep - (m-1)*1024}", f"s_add_u32 s{sG}, s{sG}, {4*gstep}"]
            else:
                g = [f"s_add_u32 s{sD0}, s{sW}, {4*j}", f"s_min_u32 s{sD0}, s{sD0}, {n-1}",
                     f"s_mul_i32 s{sD1}, s{sD0}, {lstep}", f"s_add_u32 m0, s{sD1}, {lds0}",
                     f"s_mul_i32 s{sD1}, s{sD0}, {gstep}", f"s_add_u32 s{sG}, s{sG2}, s{sD1}"]
            for i, vr in enumerate(vregs):
                if i > 0:
                    groups.append(g)
                    g = ["s_add_u32 m0, m0, 1024", "s_nop 0"]
                g = g + [f"buffer_load_dwordx4 v{vr}, {srd(srdn)}, s{sG} offen lds"]
            groups.append(g)
        return groups

    def poll_issue(self, addr_code, nl, target, what):
        A = self.A
        skip = A.newlabel("piskip")
        A(f"s_cmp_lg_u32 s{sW}, 3"); A(f"s_cbranch_scc1 {skip}")
        for ins in addr_code: A(ins)
        A(f"v_mov_b32 v251, {target}")
        A(f"s_mov_b64 s[{sEXS}:{sEXS+1}], exec"); A(f"s_mov_b64 exec, {(1 << nl) - 1}")
        A.opt(f"buffer_load_dword v252, v250, {srd(SRD_WS)}, 0 offen sc1")
        A(f"s_mov_b64 exec, s[{sEXS}:{sEXS+1}]")
        A.label(skip)
        self.poll_state = (nl, A.vm_pos(), what)

    def poll_check(self, srdn=None):
        A = self.A
        nl, pos, what = self.poll_state
        skip = A.newlabel("pskip"); loop = A.newlabel("ploop"); done = A.newlabel("pdone"); chk = A.newlabel("pchk")
        A(f"s_cmp_lg_u32 s{sW}, 3"); A(f"s_cbranch_scc1 {skip}")
        A(f"s_mov_b64 s[{sEXS}:{sEXS+1}], exec"); A(f"s_mov_b64 exec, {(1 << nl) - 1}")
        A(f"s_mov_b32 s{sSPIN}, {self.cfg.spin_limit}")
        A.wait(vm=pos)
        A(f"s_branch {chk}")
        A.label(loop)
        A.opt(f"buffer_load_dword v252, v250, {srd(SRD_WS)}, 0 offen sc1")
        A("s_waitcnt vmcnt(0)")
        A.label(chk)
        A("v_cmp_ge_u32 vcc, v252, v251")
        A(f"s_sub_u32 s{sSPIN}, s{sSPIN}, 1"); A(f"s_cbranch_scc1 {done}")
        A("s_cmp_eq_u64 vcc, exec"); A(f"s_cbranch_scc0 {loop}")
        A.label(done)
        A(f"s_mov_b64 exec, s[{sEXS}:{sEXS+1}]")
        A.label(skip)
        A("s_barrier")

    def poll(self, addr_code, nl, target, what):
        self.poll_issue(addr_code, nl, target, what)
        self.poll_check()

    def signal(self, cnt, sidx, what, init_check=False):
        A = self.A
        skip = A.newlabel("askip")
        A(f"s_cmp_lg_u32 s{sW}, 3"); A(f"s_cbranch_scc1 {skip}")
        A(f"s_mov_b64 s[{sEXS}:{sEXS+1}], exec"); A("s_mov_b64 exec, 1")
        if init_check:
            loop = A.newlabel("iloop"); done = A.newlabel("idone"); chk = A.newlabel("ichk")
            A(f"s_mov_b32 s{sSPIN}, {self.cfg.spin_limit}")
            A(f"s_branch {chk}")
            A.label(loop)
            A.opt(f"buffer_load_dword v247, v246, {srd(SRD_DBG)}, 0 offen sc1")
            A("s_waitcnt vmcnt(0)")
            A.label(chk)
            A("v_cmp_eq_u32 vcc, 1, v247")
            A(f"s_sub_u32 s{sSPIN}, s{sSPIN}, 1"); A(f"s_cbranch_scc1 {done}")
            A("s_cmp_eq_u64 vcc, exec"); A(f"s_cbranch_scc0 {loop}")
            A.label(done)
        A(f"s_and_b32 s{sT5}, s{sidx}, {3 if sidx == sRB64 else 1}"); A(f"s_lshl_b32 s{sT5}, s{sT5}, 8"); A(f"s_add_u32 s{sT5}, s{sT5}, s{sSLAB}")
        A(f"s_add_u32 s{sT5}, s{sT5}, {WS_CNT + cnt*CNT_STRIDE}")
        A(f"v_mov_b32 v248, s{sT5}"); A("v_mov_b32 v249, 1")
        A.opt(f"buffer_atomic_add v249, v248, {srd(SRD_WS)}, 0 offen")
        A(f"s_mov_b64 exec, s[{sEXS}:{sEXS+1}]")
        A.label(skip)

    def init_poll_issue(self):
        A = self.A
        skip = A.newlabel("iiskip")
        A(f"s_cmp_lg_u32 s{sW}, 3"); A(f"s_cbranch_scc1 {skip}")
        A.opt(f"buffer_load_dword v247, v246, {srd(SRD_DBG)}, 0 offen sc1")
        A.label(skip)

    def cnt_addr(self, cnt, sidx, delta=0):
        if delta == 0:
            return [f"s_and_b32 s{sT5}, s{sidx}, {3 if sidx == sRB64 else 1}", f"s_lshl_b32 s{sT5}, s{sT5}, 8", f"s_add_u32 s{sT5}, s{sT5}, s{sSLAB}",
                    f"s_add_u32 s{sT5}, s{sT5}, {WS_CNT + cnt*CNT_STRIDE}", f"v_mov_b32 v250, s{sT5}"]
        assert sidx == sRB64
        return [f"s_add_u32 s{sT5}, s{sidx}, {delta}", f"s_max_i32 s{sT5}, s{sT5}, 0", f"v_mov_b32 v250, s{sT5}"] + self.cnt64_v(cnt)

    def cnt64_v(self, cnt):
        return ["v_lshrrev_b32 v251, 2, v250", f"v_lshlrev_b32 v251, {SLAB_SH}, v251", "v_and_b32 v250, 3, v250",
                "v_lshl_add_u32 v250, v250, 8, v251", f"v_add_u32 v250, {WS_CNT + cnt*CNT_STRIDE}, v250"]

    def frag_dest(self, sdst, region):
        A = self.A
        A(f"s_lshl_b32 s{sdst}, s{sR32L}, 15"); A(f"s_lshl_b32 s{sT1}, s{sC}, 12"); A(f"s_add_u32 s{sdst}, s{sdst}, s{sT1}")
        A(f"s_lshl_b32 s{sT1}, s{sCG}, 11"); A(f"s_add_u32 s{sdst}, s{sdst}, s{sT1}"); A(f"s_add_u32 s{sdst}, s{sdst}, s{sSLAB}")
        A(f"s_add_u32 s{sdst}, s{sdst}, {region}")

    def swap_add(self, x, tmp):
        A = self.A
        A(f"v_mov_b32 v{tmp}, v{x}")
        A.nop(2)
        A(f"v_permlane32_swap_b32 v{x}, v{tmp}")
        A.nop(1)
        A(f"v_add_f32 v{x}, v{x}, v{tmp}")

    def prologue(self):
        A = self.A
        A("s_cmp_ge_u32 s2, 256"); A("s_cbranch_scc1 L_end")
        if self.cfg.stamps or self.cfg.dbgtime:
            A(f"s_memrealtime s[{sRT0}:{sRT0+1}]"); A(f"s_memtime s[{sCY0}:{sCY0+1}]")
        A("s_load_dwordx16 s[16:31], s[0:1], 0")
        A("s_load_dwordx4 s[32:35], s[0:1], 64")
        A("s_load_dwordx2 s[36:37], s[0:1], 80")
        A(f"v_lshrrev_b32 v5, 6, v0")
        A(f"v_and_b32 v{vL}, 63, v0")
        A(f"v_readfirstlane_b32 s{sW}, v5")
        A(f"v_and_b32 v{vM}, 31, v{vL}")
        A(f"v_lshrrev_b32 v{vH}, 5, v{vL}")
        A(f"v_lshlrev_b32 v{vL16}, 4, v{vL}")
        A("s_and_b32 s10, s2, 7"); A("s_lshr_b32 s11, s2, 3")
        A(f"s_lshr_b32 s{sT0}, s11, 3"); A(f"s_lshl_b32 s{sRB64}, s10, 2"); A(f"s_add_u32 s{sRB64}, s{sRB64}, s{sT0}")
        A(f"s_and_b32 s{sC}, s11, 7")
        if self.cfg.cxor: A(f"s_xor_b32 s{sC}, s{sC}, {self.cfg.cxor}")
        A(f"s_lshr_b32 s{sT0}, s11, 4"); A(f"s_lshl_b32 s{sRB128}, s10, 1"); A(f"s_add_u32 s{sRB128}, s{sRB128}, s{sT0}")
        A(f"s_and_b32 s{sFT}, s11, 15")
        A(f"s_and_b32 s{sRBK}, s{sW}, 1"); A(f"s_lshr_b32 s{sCG}, s{sW}, 1")
        if self.cfg.rot:
            A(f"s_and_b32 s{sROT}, s{sRB64}, 3"); A(f"s_lshl_b32 s{sROT}, s{sROT}, 1"); A(f"s_add_u32 s{sROT}, s{sROT}, s{sC}"); A(f"s_and_b32 s{sROT}, s{sROT}, 7")
        else:
            A(f"s_mov_b32 s{sROT}, 0")
        A(f"s_lshl_b32 s{sROT8}, s{sROT}, 1"); A(f"s_add_u32 s{sROT8}, s{sROT8}, s{sW}"); A(f"s_lshl_b32 s{sROT8}, s{sROT8}, 2")
        A(f"s_lshl_b32 s{sW4K}, s{sW}, 12")
        A(f"s_lshr_b32 s{sT3}, s2, 3")
        A(f"v_lshrrev_b32 v7, 3, v{vL}")
        A(f"v_and_b32 v8, 7, v{vL}")
        A(f"v_bfe_u32 v9, v{vL}, 4, 1"); A("v_lshlrev_b32 v9, 2, v9"); A("v_xor_b32 v9, v8, v9"); A("v_lshlrev_b32 v9, 4, v9")
        A(f"v_lshl_add_u32 v{vSTR}, v7, 10, v9")
        A(f"v_mul_u32_u24 v{vSTRQ}, 3072, v7"); A(f"v_add_u32 v{vSTRQ}, v{vSTRQ}, v9")
        A(f"v_lshrrev_b32 v9, 4, v{vL}"); A("v_xor_b32 v9, v8, v9"); A("v_lshlrev_b32 v9, 4, v9"); A("v_lshl_add_u32 v14, v7, 10, v9")
        A(f"v_xor_b32 v{vX2}, 64, v14"); A(f"v_add_u32 v{vX2}, 7168, v{vX2}")
        A(f"v_add_u32 v{vSTRJ[1]}, 7168, v{vSTR}")
        A("s_waitcnt lgkmcnt(0)")
        self.stamp("kernarg")
        self.build_srds(((SRD_X, 16, 2097152), (SRD_W1, 24, 524288), (SRD_WQKV, 18, 1572864)))

    def scalar_touch(self):
        A = self.A
        if not self.cfg.stouch: return
        l = A.newlabel("st")
        A(f"s_cmp_lg_u32 s{sW}, {self.cfg.stouch_wave}"); A(f"s_cbranch_scc1 {l}")
        for p in (18, 26, 28, 20, 30, 32, 34):
            A(f"s_load_dword s{sT4}, s[{p}:{p+1}], 0")
        A("s_mov_b32 s12, s36"); A("s_mov_b32 s13, s37")
        for i in range(8):
            A(f"s_load_dword s{sT4}, s[12:13], 0")
            if i < 7: A("s_add_u32 s12, s12, 0x200000"); A("s_addc_u32 s13, s13, 0")
        A.label(l)

    def build_srds(self, lst):
        A = self.A
        for (n, p, size) in lst:
            A(f"s_mov_b32 s{n}, s{p}"); A(f"s_and_b32 s{n+1}, s{p+1}, 0xffff")
            A(f"s_mov_b32 s{n+2}, {size}"); A(f"s_mov_b32 s{n+3}, 0x20000")

    def emit_groups(self, gs):
        for g in gs:
            for ins in g:
                if callable(ins): ins()
                else: self.A(ins)

    def t0_dma(self):
        A = self.A
        self.stamp("touched")
        A(f"s_lshl_b32 s{sXG}, s{sRB64}, 16"); A(f"s_lshl_b32 s{sT0}, s{sW}, 14"); A(f"s_add_u32 s{sXG}, s{sXG}, s{sT0}")
        A(f"s_lshl_b32 s{sW1G}, s{sC}, 7"); A(f"s_add_u32 s{sW1G}, s{sW1G}, s{sT0}")
        A(f"s_lshl_b32 s{sWL}, s{sW}, 11")
        self.chunk_pos = {}
        for q in range(self.cfg.preA): self.emit_groups(self.chunk_dma(q))
        self.scalar_touch()
        self.start_touch()
        self.stamp("preA")
        self.build_srds(((SRD_WS, 36, WS_SIZE), (SRD_DBG, 34, 256), (SRD_WO, 20, 524288), (SRD_W2, 26, 524288),
                         (SRD_W3, 28, 1409024), (SRD_W4, 30, 1409024), (SRD_OUT, 32, 2097152)))
        A(f"s_lshr_b32 s{sSLAB}, s{sRB64}, 2"); A(f"s_lshl_b32 s{sSLAB}, s{sSLAB}, {SLAB_SH}")
        A(f"s_and_b32 s{sR32L}, s{sRB64}, 3"); A(f"s_lshl_b32 s{sR32L}, s{sR32L}, 1"); A(f"s_add_u32 s{sR32L}, s{sR32L}, s{sRBK}")
        A(f"s_and_b32 s{sR32P}, s{sRB128}, 1"); A(f"s_lshl_b32 s{sR32P}, s{sR32P}, 2"); A(f"s_add_u32 s{sR32P}, s{sR32P}, s{sW}")
        l = A.newlabel("zi")
        A(f"s_cmp_lg_u32 s2, 0"); A(f"s_cbranch_scc1 {l}")
        A(f"s_cmp_lg_u32 s{sW}, 3"); A(f"s_cbranch_scc1 {l}")
        A(f"v_lshrrev_b32 v250, 4, v{vL}"); A(f"v_lshlrev_b32 v250, {SLAB_SH}, v250"); A(f"v_and_b32 v251, 15, v{vL}")
        A("v_lshl_add_u32 v250, v251, 8, v250"); A(f"v_add_u32 v250, {WS_CNT}, v250"); A("v_mov_b32 v251, 0")
        A.opt(f"buffer_store_dword v251, v250, {srd(SRD_WS)}, 0 offen sc1")
        A(f"v_add_u32 v250, {4 << SLAB_SH}, v250")
        A.opt(f"buffer_store_dword v251, v250, {srd(SRD_WS)}, 0 offen sc1")
        A.label(l)
        A("v_mov_b32 v246, 0"); A("v_mov_b32 v250, 0")
        self.pos_zero = A.vm_pos()
        if self.cfg.touch_mode == "early": self.weight_touch()

    def start_touch(self):
        A = self.A
        if not self.cfg.touch: return
        le = A.newlabel("te")
        A(f"s_cmp_eq_u32 s{sW}, 3"); A(f"s_cbranch_scc0 {le}")
        A(f"s_mov_b64 s[{sEXS}:{sEXS+1}], exec")
        A("s_mov_b64 exec, 0xff")
        A("s_getpc_b64 s[96:97]")
        A.label("L_pc")
        A(f"s_lshl_b32 s{sT0}, s{sT3}, 10"); A(f"v_lshlrev_b32 v250, 7, v{vL}"); A(f"v_add_u32 v250, s{sT0}, v250")
        A("v_min_u32 v250, L_end-L_pc, v250")
        A.opt("global_load_dword v255, v250, s[96:97]")
        A("s_bfm_b64 exec, 48, 0")
        A(f"s_mul_i32 s{sT0}, s2, {48*128}"); A(f"v_lshlrev_b32 v250, 7, v{vL}")
        A.opt(f"buffer_load_dword v255, v250, {srd(SRD_WQKV)}, s{sT0} offen")
        A(f"s_mov_b64 exec, s[{sEXS}:{sEXS+1}]")
        A.label(le)

    def t0_dma2(self):
        for q in range(self.cfg.preA, self.cfg.pre_chunks): self.emit_groups(self.chunk_dma(q))

    def weight_touch(self, tlb_only=False, with_ws=True):
        A = self.A
        if not self.cfg.touch: return
        le = A.newlabel("lte")
        labels = [A.newlabel("lt") for _ in range(4)]
        A(f"s_mov_b64 s[{sEXS}:{sEXS+1}], exec")
        A(f"v_lshlrev_b32 v250, 7, v{vL}")
        plan = (((SRD_W2, 16, 0), (SRD_WO, 16, 0)), ((SRD_W3, 22, 0), (SRD_W3, 21, 22)), ((SRD_W4, 22, 0), (SRD_W4, 21, 22)), None)
        for w, items in enumerate(plan):
            A.label(labels[w])
            f = A if w == 0 else A.opt
            if w < 3:
                A(f"s_cmp_eq_u32 s{sW}, {w}"); A(f"s_cbranch_scc0 {labels[w+1]}")
                for (srdn, n, first) in items:
                    tot = 16 if srdn in (SRD_W2, SRD_WO) else 43
                    A(f"s_bfm_b64 exec, {n}, 0")
                    A(f"s_mul_i32 s{sT5}, s2, {tot*128}")
                    if first: A(f"s_add_u32 s{sT5}, s{sT5}, {first*128}")
                    f(f"buffer_load_dword v255, v250, {srd(srdn)}, s{sT5} offen")
                A(f"s_branch {le}")
            else:
                A("s_mov_b64 exec, 3"); A(f"v_lshlrev_b32 v250, 20, v{vL}")
                f(f"buffer_load_dword v255, v250, {srd(SRD_OUT)}, 0 offen")
                A("s_mov_b64 exec, 1")
                f(f"buffer_load_dword v255, v246, {srd(SRD_DBG)}, 0 offen")
        A.label(le)
        A(f"s_mov_b64 exec, s[{sEXS}:{sEXS+1}]")

    def l2_touch(self, what):
        A = self.A
        if what not in self.cfg.l2touch.split("+"): return
        T = 240
        srdn, nlines = {"w2": (SRD_W2, 4096), "wo": (SRD_WO, 4096), "w4": (SRD_W4, 11008), "w3": (SRD_W3, 11008),
                        "wq": (SRD_WQKV, 4096), "wv": (SRD_WQKV, 4096)}[what]
        per = nlines // 128
        A(f"s_lshr_b32 s{sT5}, s2, 3"); A(f"s_lshl_b32 s{sT5}, s{sT5}, 2"); A(f"s_add_u32 s{sT5}, s{sT5}, s{sW}")
        if what in ("wq", "wv"):
            A(f"s_mul_i32 s{sT5}, s{sT5}, {4*3072}")
            if what == "wv": A(f"s_add_u32 s{sT5}, s{sT5}, 2048")
            A(f"v_lshrrev_b32 v{T}, 3, v{vL}"); A(f"v_mul_u32_u24 v{T}, 3072, v{T}"); A(f"v_and_b32 v{T+1}, 7, v{vL}")
            A(f"v_lshl_add_u32 v{T}, v{T+1}, 7, v{T}")
        else:
            A(f"s_mul_i32 s{sT5}, s{sT5}, {per*128}")
            A(f"v_lshlrev_b32 v{T}, 7, v{vL}")
        A(f"s_mov_b64 s[{sEXS}:{sEXS+1}], exec")
        for r0 in range(0, per, 64):
            n = min(64, per - r0)
            if n < 64: A(f"s_bfm_b64 exec, {n}, 0")
            if r0: A(f"s_add_u32 s{sT5}, s{sT5}, {64*128}")
            A(f"buffer_load_dword v255, v{T}, {srd(srdn)}, s{sT5} offen")
        A(f"s_mov_b64 exec, s[{sEXS}:{sEXS+1}]")

    def chunk_dma(self, q):
        gs = [[f"s_add_u32 s{sD1}, s{sROT}, {q}", f"s_and_b32 s{sD1}, s{sD1}, 7", f"s_lshl_b32 s{sD0}, s{sD1}, 7",
               f"s_add_u32 m0, s{sWL}, {A0 + q*8192}", f"s_add_u32 s{sD0}, s{sD0}, s{sXG}",
               f"buffer_load_dwordx4 v14, {srd(SRD_X)}, s{sD0} offen lds"],
              [f"buffer_load_dwordx4 v{vX2}, {srd(SRD_X)}, s{sD0} offen offset:1024 lds"],
              [f"s_lshl_b32 s{sD0}, s{sD1}, 16",
               f"s_add_u32 m0, s{sWL}, {B0 + q*8192}", f"s_add_u32 s{sD0}, s{sD0}, s{sW1G}",
               f"buffer_load_dwordx4 v{vSTR}, {srd(SRD_W1)}, s{sD0} offen lds"],
              [f"buffer_load_dwordx4 v{vSTRJ[1]}, {srd(SRD_W1)}, s{sD0} offen offset:1024 lds"]]
        def mark(q=q): self.chunk_pos[q] = self.A.vm_pos()
        gs[-1].append(mark)
        return gs

    def quad(self, pre, srdn, vregs):
        return [(pre if j == 0 else []) + [f"buffer_load_dwordx4 v{vregs[j]}, {srd(srdn)}, s{sG} offen" + (f" offset:{1024*j}" if j else "") + " lds"]
                for j in range(4)]

    def job_strip_qkv(self, which, s0, ns, lds0):
        assert ns % 8 == 0
        groups = []
        for J in range(ns // 8):
            pre = [f"s_add_u32 m0, s{sW4K}, {lds0 + 16384*J}", f"s_add_u32 s{sD0}, s{sROT8}, {2*s0 + 16*J}", f"s_and_b32 s{sD0}, s{sD0}, 63",
                   f"s_mul_i32 s{sD0}, s{sD0}, {8*3072}", f"s_lshl_b32 s{sG}, s{sC}, 7", f"s_add_u32 s{sG}, s{sG}, s{sD0}"]
            if which: pre.append(f"s_add_u32 s{sG}, s{sG}, {which*1024}")
            groups += self.quad(pre, SRD_WQKV, vSTRQJ)
        return groups

    def job_strip(self, srdn, u0, nunits, lds_base):
        assert u0 % 16 == 0 and nunits % 16 == 0 and not self.cfg.krot
        groups = []
        for J in range(nunits // 16):
            u = u0 + 16*J
            pre = [f"s_add_u32 m0, s{sW4K}, {lds_base + 1024*u}", f"s_add_u32 s{sG}, s{sBW}, {u*8192}"]
            groups += self.quad(pre, srdn, vSTRJ)
        return groups

    def job_w3(self, s0, ns, lds0):
        groups = []
        full_prev = False
        for j in range((ns + 3)//4):
            full = 4*j + 3 < ns
            if full and full_prev:
                g = [f"s_add_u32 m0, m0, {4*3072}", f"s_add_u32 s{sG}, s{sG}, {4*16*2752}"]
            else:
                if full:
                    g = [f"s_add_u32 m0, s{sW3L}, {lds0 + 4*j*3072}", f"s_add_u32 s{sD0}, s{sW}, {s0 + 4*j}"]
                else:
                    g = [f"s_add_u32 s{sD1}, s{sW}, {4*j}", f"s_min_u32 s{sD1}, s{sD1}, {ns-1}", f"s_mul_i32 s{sD0}, s{sD1}, 3072",
                         f"s_add_u32 m0, s{sD0}, {lds0}", f"s_add_u32 s{sD0}, s{sD1}, {s0}"]
                g += [f"s_mul_i32 s{sD0}, s{sD0}, {16*2752}", f"s_lshl_b32 s{sD1}, s{sCB0}, 6", f"s_add_u32 s{sG}, s{sD0}, s{sD1}"]
            full_prev = full
            for i in range(3):
                ins = f"buffer_load_dwordx4 v{vW3[i]}, {srd(SRD_W3)}, s{sG} offen" + (f" offset:{1024*i}" if i else "") + " lds"
                groups.append((g if i == 0 else []) + [ins])
        return groups

    def setup2(self):
        A = self.A
        A(f"s_mov_b32 s{sONES}, 0x3f803f80"); A(f"s_mov_b32 s{sPLO}, 0x05040100"); A(f"s_mov_b32 s{sPHI}, 0x07060302")
        if self.cfg.ftswap:
            A(f"s_cmp_eq_u32 s{sFT}, 3"); A(f"s_cselect_b32 s{sT0}, 12, s{sFT}")
            A(f"s_cmp_eq_u32 s{sFT}, 12"); A(f"s_cselect_b32 s{sFT}, 3, s{sT0}")
        A(f"s_mul_i32 s{sCB0}, s{sFT}, 3"); A(f"s_mov_b32 s{sNBLK}, 3")
        A(f"s_cmp_lt_u32 s{sFT}, 11"); l = A.newlabel("ft"); A(f"s_cbranch_scc1 {l}")
        A(f"s_lshl_b32 s{sCB0}, s{sFT}, 1"); A(f"s_add_u32 s{sCB0}, s{sCB0}, 11"); A(f"s_mov_b32 s{sNBLK}, 2")
        A.label(l)
        A(f"s_lshl_b32 s{sBW}, s{sC}, 7"); A(f"s_lshl_b32 s{sT0}, s{sW}, 15"); A(f"s_add_u32 s{sBW}, s{sBW}, s{sT0}")
        A(f"s_lshl_b32 s{sBW4}, s{sC}, 7"); A(f"s_lshl_b32 s{sT0}, s{sW}, 14"); A(f"s_add_u32 s{sBW4}, s{sBW4}, s{sT0}")
        A(f"s_mul_i32 s{sW3L}, s{sW}, 3072")
        A(f"s_mov_b32 s{sR3}, 0"); A(f"s_mov_b32 s{sKR}, 0")
        for j in (2, 3): A(f"v_add_u32 v{vSTRJ[j]}, {7168*j}, v{vSTR}")
        A(f"v_add_u32 v{vS4J[2]}, {43*16384 - 2048}, v{vSTR}"); A(f"v_add_u32 v{vS4J[3]}, {43*16384 + 8192 - 3072}, v{vSTR}")
        for j in (1, 2, 3): A(f"v_add_u32 v{vSTRQJ[j]}, {23552*j}, v{vSTRQ}")
        T = vT
        A(f"v_bfe_u32 v{T}, v{vL}, 2, 2")
        A(f"v_and_b32 v{T+1}, 3, v{vL}"); A(f"v_lshlrev_b32 v{T+1}, 3, v{T+1}")
        A(f"v_bfe_u32 v{T+2}, v{vL}, 4, 1"); A(f"v_lshl_add_u32 v{T+1}, v{T+2}, 5, v{T+1}")
        A(f"v_lshrrev_b32 v{T+2}, 1, v{T}")
        A(f"v_xor_b32 v{T+3}, s{sCG}, v{T+2}")
        A(f"v_lshlrev_b32 v{T+3}, 6, v{T+3}")
        A(f"v_lshl_add_u32 v{T+4}, v{T}, 7, v{T+1}")
        A(f"v_add_u32 v{T+4}, v{T+4}, v{T+3}")
        A(f"v_lshl_add_u32 v{vTRN}, v{vH}, 10, v{T+4}")
        A(f"v_lshl_add_u32 v{vTRC0}, v{vH}, 9, v{T+4}")
        A(f"v_xor_b32 v{vTRC1}, 64, v{vTRC0}")
        A(f"v_mul_u32_u24 v{T+5}, 192, v{T}"); A(f"v_add_u32 v{T+5}, v{T+5}, v{T+1}")
        A(f"v_mul_u32_u24 v{T+6}, 768, v{vH}"); A(f"v_add_u32 v{vTR3}, v{T+5}, v{T+6}")
        A(f"s_mov_b32 s{sT0}, 43691"); A(f"s_movk_i32 s{sT1}, 2752")
        for j in range(3):
            A(f"v_add_u32 v{T}, {64*j}, v{vL}")
            A(f"v_mul_u32_u24 v{T+1}, s{sT0}, v{T}"); A(f"v_lshrrev_b32 v{T+1}, 19, v{T+1}")
            A(f"v_mul_u32_u24 v{T+2}, 12, v{T+1}"); A(f"v_sub_u32 v{T+2}, v{T}, v{T+2}")
            A(f"v_mul_u32_u24 v{T+1}, s{sT1}, v{T+1}")
            A(f"v_lshl_add_u32 v{vW3[j]}, v{T+2}, 4, v{T+1}")
            if j: A(f"v_subrev_u32 v{vW3[j]}, {1024*j}, v{vW3[j]}")

    def p1_h(self):
        A = self.A
        T = vT
        vXA = [T, T+1, T+2, T+3]; vXS = [T+4, T+5]
        A(f"s_lshl_b32 s{sT0}, s{sRBK}, 5"); A(f"v_add_u32 v{T+6}, s{sT0}, v{vM}")
        A(f"v_bfe_u32 v{T+7}, v{T+6}, 1, 3"); A(f"v_xor_b32 v{T+7}, v{T+7}, v{vH}"); A(f"v_lshlrev_b32 v{T+7}, 4, v{T+7}")
        A(f"v_lshl_add_u32 v{vXA[0]}, v{T+6}, 7, v{T+7}")
        for s in range(1, 4): A(f"v_xor_b32 v{vXA[s]}, {32*s}, v{vXA[0]}")
        A(f"s_lshl_b32 s{sT0}, s{sCG}, 6"); A(f"v_xor_b32 v{vXS[0]}, s{sT0}, v{vXA[0]}"); A(f"v_xor_b32 v{vXS[1]}, 32, v{vXS[0]}")
        vXR = T+8
        A(f"v_bfe_u32 v{T+7}, v{T+6}, 1, 3"); A(f"s_lshl_b32 s{sT0}, s{sCG}, 2"); A(f"v_xor_b32 v{T+7}, s{sT0}, v{T+7}")
        A(f"v_lshlrev_b32 v{T+7}, 4, v{T+7}"); A(f"v_lshl_add_u32 v{T+7}, v{T+6}, 7, v{T+7}")
        A(f"v_lshl_add_u32 v{T+7}, v{vH}, 3, v{T+7}")
        A(f"s_sub_u32 s{sXSLOT}, s{sC}, s{sROT}"); A(f"s_and_b32 s{sXSLOT}, s{sXSLOT}, 7"); A(f"s_lshl_b32 s{sT0}, s{sXSLOT}, 13"); A(f"v_add_u32 v{vXR}, s{sT0}, v{T+7}")
        vWB = T+9
        A(f"v_add_u32 v{vWB}, {B0}, v{vTRN}")
        vS0, vS1, vQ0, vQ1, vC0, vC1 = T+10, T+11, T+12, T+13, T+14, T+15
        for r in (vS0, vS1, vQ0, vQ1, vC0, vC1): A(f"v_mov_b32 v{r}, 0")
        XT = T+16
        acc = vACC0
        def reads(q):
            L = []
            for s in range(4):
                b = vRING + 4*(4*(q & 1) + s)
                st = 4*q + s
                L.append([f"ds_read_b128 {a(4*st,4)}, v{vXA[s]} offset:{q*8192}",
                          f"ds_read_b64_tr_b16 {v(b,2)}, v{vWB} offset:{st*2048}",
                          f"ds_read_b64_tr_b16 {v(b+2,2)}, v{vWB} offset:{st*2048+512}"])
            L[0].append(f"ds_read_b128 {v(XT+8*(q&1),4)}, v{vXS[0]} offset:{q*8192}")
            L[1].append(f"ds_read_b128 {v(XT+8*(q&1)+4,4)}, v{vXS[1]} offset:{q*8192}")
            return L
        def burst(q):
            x = XT + 8*(q & 1)
            for i in range(8):
                A(f"v_dot2c_f32_bf16 v{vS0 + (i&1)}, s{sONES}, v{x+i}")
                A(f"v_dot2c_f32_bf16 v{vQ0 + (i&1)}, v{x+i}, v{x+i}")
            l1 = A.newlabel("cs"); l2 = A.newlabel("ce")
            b = vRING + 16*(q & 1)
            A(f"s_cmp_lg_u32 s{sRBK}, 0"); A(f"s_cbranch_scc1 {l1}")
            for i in range(8): A(f"v_dot2c_f32_bf16 v{vC0 + (i&1)}, s{sONES}, v{b+i}")
            A(f"s_branch {l2}")
            A.label(l1)
            for i in range(8): A(f"v_dot2c_f32_bf16 v{vC0 + (i&1)}, s{sONES}, v{b+8+i}")
            A.label(l2)
        for q in range(9):
            if q < 8:
                A.wait(vm=self.chunk_pos[q])
                if q == self.cfg.preA:
                    l = A.newlabel("fi")
                    A(f"s_cmp_lg_u32 s2, 0"); A(f"s_cbranch_scc1 {l}")
                    A(f"s_cmp_lg_u32 s{sW}, 3"); A(f"s_cbranch_scc1 {l}")
                    A("v_mov_b32 v250, 0"); A("v_mov_b32 v251, 1")
                    A(f"s_mov_b64 s[{sEXS}:{sEXS+1}], exec"); A("s_mov_b64 exec, 1")
                    A.opt(f"buffer_store_dword v251, v250, {srd(SRD_DBG)}, 0 offen sc1")
                    A(f"s_mov_b64 exec, s[{sEXS}:{sEXS+1}]")
                    A.label(l)
            A.wait_all_lg()
            if q < 8: A("s_barrier")
            rd = reads(q) if q < 8 else [[], [], [], []]
            if q < 8 and (q == 0 or self.cfg.chunkstamps):
                self.stamp(f"chunk{q}")
            if q in (0, 2, 4, 6):
                l = A.newlabel("xr")
                A(f"s_cmp_lg_u32 s{sXSLOT}, {q}"); A(f"s_cbranch_scc1 {l}")
                for g in range(4):
                    A(f"v_xor_b32 v{T+32}, {16*g}, v{vXR}")
                    A.opt(f"ds_read_b64 {v(vXRES+2*g,2)}, v{T+32}")
                A.label(l)
            if q == 0:
                for g in rd:
                    for ins in g: A(ins)
                continue
            p = q - 1
            nxt = q + self.cfg.pre_chunks - 1
            if nxt <= 7: self.side += self.chunk_dma(nxt)
            elif not self.kA_queued:
                assert q >= 6
                self.kA_queued = True
                self.queue(self.job_strip_qkv(1, 0, 8, C0))
                self.queue(self.job_strip_qkv(1, 8, 16, A0))
                self.queue(self.job_strip_qkv(1, 24, 8, A0 + 32768), "pos_kB")
                if self.cfg.early_kv: self.queue(self.job_strip_qkv(2, 0, 16, B0))
            if q == 6: self.init_poll_issue()
            if q == 5 and self.cfg.touch:
                A(f"s_mov_b64 s[{sEXS}:{sEXS+1}], exec"); A("s_mov_b64 exec, 1")
                A(f"buffer_load_dword v255, v246, {srd(SRD_WS)}, s{sSLAB} offen")
                A(f"s_mov_b64 exec, s[{sEXS}:{sEXS+1}]")
            for s in range(4):
                st = 4*p + s
                b = vRING + 4*(4*(p & 1) + s)
                c = "0" if st == 0 else v(acc, 16)
                A(f"v_mfma_f32_32x32x16_bf16 {v(acc,16)}, {v(b,4)}, {a(4*st,4)}, {c}")
                for ins in rd[s]: A(ins)
                self.pump(2 if q >= 6 else 1)
            burst(p)
        self.flush_side()
        self.vS = (vS0, vS1, vQ0, vQ1, vC0, vC1)

    def colsum_finish(self, vC0, vC1, scr_off, tmp, pre=None, post=None):
        A = self.A
        A.nop(3)
        A(f"v_add_f32 v{vC0}, v{vC0}, v{vC1}")
        self.swap_add(vC0, tmp)
        A(f"s_lshl_b32 s{sT0}, s{sW}, 7"); A(f"v_lshl_add_u32 v{tmp}, v{vM}, 2, s{sT0}")
        A(f"v_add_u32 v{tmp}, {scr_off}, v{tmp}")
        A(f"ds_write_b32 v{tmp}, v{vC0}")
        if pre: pre()
        A.wait_all_lg()
        A("s_barrier")
        A(f"v_xor_b32 v{tmp}, 128, v{tmp}")
        A(f"ds_read_b32 v{vC1}, v{tmp}")
        if post: post()
        A(f"v_cmp_gt_u32 vcc, 32, v{vL}")
        A.wait_all_lg()
        A(f"v_add_f32 v{vC0}, v{vC0}, v{vC1}")
        A(f"v_cndmask_b32 v{vC0}, 0, v{vC0}, vcc")

    def p1_h_finish(self):
        A = self.A
        T = vT
        vS0, vS1, vQ0, vQ1, vC0, vC1 = self.vS
        acc = vACC0
        A.nop(3)
        A(f"v_add_f32 v{vS0}, v{vS0}, v{vS1}"); A(f"v_add_f32 v{vQ0}, v{vQ0}, v{vQ1}"); A(f"v_add_f32 v{vC0}, v{vC0}, v{vC1}")
        tmp = T+33
        self.swap_add(vS0, tmp); self.swap_add(vQ0, tmp); self.swap_add(vC0, tmp)
        A(f"s_lshl_b32 s{sT0}, s{sW}, 8"); A(f"v_lshl_add_u32 v{tmp}, v{vM}, 3, s{sT0}"); A(f"v_add_u32 v{tmp}, {SCR1}, v{tmp}")
        A(f"v_mov_b32 v{vS1}, v{vQ0}")
        A(f"ds_write_b64 v{tmp}, {v(vS0,2)}")
        A(f"s_lshl_b32 s{sT0}, s{sW}, 7"); A(f"v_lshl_add_u32 v{tmp+1}, v{vM}, 2, s{sT0}"); A(f"v_add_u32 v{tmp+1}, {SCR1+1024}, v{tmp+1}")
        A(f"ds_write_b32 v{tmp+1}, v{vC0}")
        A.wait_all_lg()
        A("s_barrier")
        A(f"v_xor_b32 v{tmp}, 512, v{tmp}"); A(f"v_xor_b32 v{tmp+1}, 128, v{tmp+1}")
        A(f"ds_read_b64 {v(vQ0,2)}, v{tmp}")
        A(f"ds_read_b32 v{vC1}, v{tmp+1}")
        if self.cfg.early_kv: self.queue(self.job_strip_qkv(2, 16, 16, B0 + 32768), "pos_v")
        else: self.queue(self.job_strip_qkv(2, 0, 32, B0), "pos_v")
        A.auto = self.cfg.auto
        A(f"v_cmp_gt_u32 vcc, 32, v{vL}")
        A.wait_all_lg()
        A(f"v_add_f32 v{vS0}, v{vS0}, v{vQ0}"); A(f"v_add_f32 v{vS1}, v{vS1}, v{vQ1}"); A(f"v_add_f32 v{vC0}, v{vC0}, v{vC1}")
        A(f"v_cndmask_b32 v{vC0}, 0, v{vC0}, vcc")
        self.fstamp("he", "he:exch")
        A(f"v_mul_f32 v{vS0}, {fbits(1/512)}, v{vS0}")
        A(f"v_mul_f32 v{vS1}, {fbits(1/512)}, v{vS1}")
        A(f"v_sub_f32 v{vNMU}, 0, v{vS0}")
        A(f"v_fma_f32 v{vS1}, v{vNMU}, v{vS0}, v{vS1}")
        A(f"v_max_f32 v{vS1}, 0, v{vS1}")
        A(f"v_mfma_f32_32x32x2_f32 {v(acc,16)}, v{vC0}, v{vNMU}, {v(acc,16)}")
        mk = A.mark()
        A(f"v_add_f32 v{vQ0}, {fbits(1e-5)}, v{vS1}")
        A(f"v_rsq_f32 v{vR}, v{vQ0}")
        A.nop(1)
        A(f"v_mul_f32 v{vQ0}, v{vR}, v{vR}"); A(f"v_mul_f32 v{vQ0}, v{vQ0}, v{vS1}")
        A(f"v_add_f32 v{vQ0}, {fbits(1e-5)}, v{vQ0}")
        A(f"v_rsq_f32 v{vQ0}, v{vQ0}")
        A.nop(1)
        A(f"v_mul_f32 v{vQ0}, v{vQ0}, v{vR}")
        self.fstamp("he", "he:stats")
        self.gelu_block(acc, vQ0, T+34, mk)
        self.fstamp("he", "he:gelu")
        self.frag_dest(sT0, WS_H)
        self.pstore(f"buffer_store_dwordx4 {v(acc,4)}, v{vL16}, {srd(SRD_WS)}, s{sT0} offen sc1")
        self.pstore(f"buffer_store_dwordx4 {v(acc+4,4)}, v{vL16}, {srd(SRD_WS)}, s{sT0} offen offset:1024 sc1")
        self.pos_h = A.vm_pos()
        A.auto = 0
        self.flush_side()
        if self.cfg.touch_mode == "late": self.weight_touch()
        self.l2_touch("w2"); self.l2_touch("wq")

    def gelu_consts(self, vS, tmp):
        A = self.A
        K1, K0, RI = tmp, tmp+2, tmp+4
        A(f"v_mul_f32 v{K0}, {fbits(C0G)}, v{vS}")
        A(f"v_mul_f32 v{K1}, v{vS}, v{vS}"); A(f"v_mul_f32 v{K1}, v{K1}, v{vS}"); A(f"v_mul_f32 v{K1}, {fbits(C1G)}, v{K1}")
        A(f"v_rcp_f32 v{RI}, v{vS}")
        A(f"v_mov_b32 v{K0+1}, v{K0}"); A(f"v_mov_b32 v{K1+1}, v{K1}"); A(f"v_mov_b32 v{RI+1}, v{RI}")
        return (K1, K0, RI, tmp + 6)

    def gelu_body(self, acc, GK):
        A = self.A
        K1, K0, RI, t = GK
        for p in range(0, 16, 4):
            x0, x1 = acc + p, acc + p + 2
            u0, u1 = t, t + 2
            A(f"v_pk_mul_f32 {v(u0,2)}, {v(x0,2)}, {v(x0,2)}")
            A(f"v_pk_mul_f32 {v(u1,2)}, {v(x1,2)}, {v(x1,2)}")
            A(f"v_pk_fma_f32 {v(u0,2)}, {v(u0,2)}, {v(K1,2)}, {v(K0,2)}")
            A(f"v_pk_fma_f32 {v(u1,2)}, {v(u1,2)}, {v(K1,2)}, {v(K0,2)}")
            A(f"v_pk_mul_f32 {v(u0,2)}, {v(u0,2)}, {v(x0,2)}")
            A(f"v_pk_mul_f32 {v(u1,2)}, {v(u1,2)}, {v(x1,2)}")
            for r in (u0, u0+1, u1, u1+1): A(f"v_exp_f32 v{r}, v{r}")
            A(f"v_pk_fma_f32 {v(u0,2)}, {v(u0,2)}, {v(RI,2)}, {v(RI,2)}")
            A(f"v_pk_fma_f32 {v(u1,2)}, {v(u1,2)}, {v(RI,2)}, {v(RI,2)}")
            for r in (u0, u0+1, u1, u1+1): A(f"v_rcp_f32 v{r}, v{r}")
            A(f"v_pk_mul_f32 {v(u0,2)}, {v(u0,2)}, {v(x0,2)}")
            A(f"v_pk_mul_f32 {v(u1,2)}, {v(u1,2)}, {v(x1,2)}")
            A(f"v_cvt_pk_bf16_f32 v{acc + p//2}, v{u0}, v{u0+1}")
            A(f"v_cvt_pk_bf16_f32 v{acc + p//2 + 1}, v{u1}, v{u1+1}")

    def gelu_block(self, acc, vS, tmp, mk):
        GK = self.gelu_consts(vS, tmp)
        self.A.pad(mk, 18)
        self.gelu_body(acc, GK)

    def qkv_main(self, addr, hooks, side_rate=2, mid=None):
        A = self.A
        T = vT
        acc = vACC0
        PD = 2
        bases = {}
        for st in range(32):
            for d in (0, 512):
                win = (addr(st) + d) // 65536
                if win not in bases:
                    r = T + 40 + len(bases)
                    if win: A(f"v_add_u32 v{r}, {win*65536}, v{vTRN}")
                    else: A(f"v_mov_b32 v{r}, v{vTRN}")
                    bases[win] = r
        vC0, vC1 = T+14, T+15
        A(f"v_mov_b32 v{vC0}, 0"); A(f"v_mov_b32 v{vC1}, 0")
        lgpos = {}
        def burst(steps):
            for st in steps:
                b = vRING + 4*(st % 18)
                for i in range(4): A(f"v_dot2c_f32_bf16 v{vC0 + (i&1)}, s{sONES}, v{b+i}")
                self.tick(18)
        self.credit = 0
        for s in range(32 + PD):
            if s < 32:
                if s in hooks: hooks[s]()
                ad = addr(s)
                b = vRING + 4*(s % 18)
                for (kk, d) in ((0, 0), (2, 512)):
                    x = ad + d
                    A(f"ds_read_b64_tr_b16 {v(b+kk,2)}, v{bases[x // 65536]} offset:{x % 65536}")
                lgpos[s] = A.lg_pos()
            if s >= PD:
                t = s - PD
                A.wait(lg=lgpos[t])
                b = vRING + 4*(t % 18)
                c = "0" if t == 0 else v(acc, 16)
                A(f"v_mfma_f32_32x32x16_bf16 {v(acc,16)}, {v(b,4)}, {a(4*t,4)}, {c}")
                self.tick(33)
                if mid and t in mid: mid[t]()
                if t == 15:
                    self.fstamp("qkv", "t15>")
                    burst(range(0, 16))
                    self.fstamp("qkv", "t15<")
        self.fstamp("qkv", "loop<")
        burst(range(16, 32))

    def qkv_tail(self, dst, keep_auto=False):
        A = self.A
        T = vT
        acc = vACC0
        vC0, vC1 = T+14, T+15
        A(f"v_cmp_gt_u32 vcc, 32, v{vL}")
        A.nop(2)
        A(f"v_add_f32 v{vC0}, v{vC0}, v{vC1}")
        self.swap_add(vC0, T+33)
        A(f"v_cndmask_b32 v{vC0}, 0, v{vC0}, vcc")
        A.nop(2)
        A(f"v_mfma_f32_32x32x2_f32 {v(acc,16)}, v{vC0}, v{vNMU}, {v(acc,16)}")
        mk = A.mark()
        A.auto = 0
        self.pump(3)
        A.pad(mk, 18)
        A.auto = self.cfg.auto
        for i in range(8):
            A(f"v_mul_f32 v{acc+2*i}, v{vR}, v{acc+2*i}"); A(f"v_mul_f32 v{acc+2*i+1}, v{vR}, v{acc+2*i+1}")
            A(f"v_cvt_pk_bf16_f32 v{dst+i}, v{acc+2*i}, v{acc+2*i+1}")
        A.auto = 0
        A.nop(2)
        for i in range(4): A(f"v_permlane32_swap_b32 v{dst+i}, v{dst+4+i}")

    def shadow1(self):
        A = self.A
        def addr_k(s): return C0 + s*2048 if s < 8 else A0 + (s-8)*2048
        def hk0(): A.wait(vm=self.pos_kB); A("s_barrier"); self.stamp("hk0")
        n1 = self.cfg.w2_in_k
        mids = {8: lambda: self.l2_touch("w3")}
        if n1: mids[16] = lambda: self.queue(self.job_strip(SRD_W2, 64 - n1, n1, A0))
        self.qkv_main(addr_k, {0: hk0}, mid=mids)
        self.flush_side()
        self.stamp("k loop")
        A.wait(vm=self.pos_h)
        A("s_barrier")
        self.stamp("h drained")
        self.signal(CNT_H, sRB64, "h", init_check=True)
        self.queue(self.job_strip(SRD_W2, 0, 64 - n1, A0), "pos_w2")
        self.queue(self.job_w3(0, 8, C0) + self.job_w3_small(30, 2, C0 + 8*3072))
        self.qkv_tail(vKP)
        self.stamp("k done")
        self.p2_setup()
        def hv0(): A.wait(vm=self.pos_v); A("s_barrier"); self.stamp("hv0")
        hcode = [f"s_add_u32 s{sT5}, s{sRB64}, -1", f"v_add_u32 v250, s{sT5}, v{vL}",
                 "v_max_i32 v250, 0, v250", "v_min_i32 v250, 31, v250"] + self.cnt64_v(CNT_H)
        self.qkv_main(lambda s: B0 + s*2048, {0: hv0}, side_rate=1, mid={self.cfg.hpoll_at: lambda: self.poll_issue(hcode, 3, 8, "h"), 20: lambda: self.l2_touch("wo")})
        self.flush_side()
        self.stamp("v loop")

    def halo_publish(self):
        A = self.A
        l = A.newlabel("halo")
        A(f"s_cmp_lg_u32 s{sRBK}, 1"); A(f"s_cbranch_scc1 {l}")
        T = vT
        A(f"s_and_b32 s{sT0}, s{sRB64}, 3"); A(f"s_lshl_b32 s{sT0}, s{sT0}, 3"); A(f"s_add_u32 s{sT0}, s{sT0}, s{sC}"); A(f"s_lshl_b32 s{sT0}, s{sT0}, 12")
        A(f"s_lshl_b32 s{sT1}, s{sCG}, 10"); A(f"s_add_u32 s{sT0}, s{sT0}, s{sT1}"); A(f"s_add_u32 s{sT0}, s{sT0}, s{sSLAB}"); A(f"s_add_u32 s{sT0}, s{sT0}, {WS_KV}")
        A(f"v_subrev_u32 v{T}, 16, v{vM}"); A(f"v_lshlrev_b32 v{T}, 4, v{T}"); A(f"v_lshl_add_u32 v{T}, v{vH}, 9, v{T}")
        A(f"v_cmp_le_u32 vcc, 16, v{vM}")
        A(f"s_and_saveexec_b64 s[{sEXS}:{sEXS+1}], vcc")
        self.pstore(f"buffer_store_dwordx4 {v(vKP,4)}, v{T}, {srd(SRD_WS)}, s{sT0} offen sc1", opt=True)
        self.pstore(f"buffer_store_dwordx4 {v(vKP+4,4)}, v{T}, {srd(SRD_WS)}, s{sT0} offen offset:256 sc1", opt=True)
        self.pstore(f"buffer_store_dwordx4 {v(vVP,4)}, v{T}, {srd(SRD_WS)}, s{sT0} offen offset:2048 sc1", opt=True)
        self.pstore(f"buffer_store_dwordx4 {v(vVP+4,4)}, v{T}, {srd(SRD_WS)}, s{sT0} offen offset:2304 sc1", opt=True)
        A(f"s_mov_b64 exec, s[{sEXS}:{sEXS+1}]")
        A.label(l)
        self.pos_halo = A.vm_pos()

    def ksplit_gemm(self, nsteps, wbase_vregs, waddr, act_load, first, nring_regs, PDL, hooks=None, side_rate=1, tail=None, pre=None, window=None):
        A = self.A
        hooks = hooks or {}
        acts = {}; apos = {}
        def issue(i):
            acts[i] = act_load(i); apos[i] = A.vm_pos()
        if act_load is None:
            acts, apos = pre
        elif window:
            rest = self.side
            self.side = [[(lambda i=i: issue(i))] for i in range(min(PDL, nsteps))]
            self.pump(2)
            assert not rest
            window()
            while len(apos) < min(PDL, nsteps): self.pump(1)
        else:
            for i in range(min(PDL, nsteps)): issue(i)
        PD = 2
        lgpos = {}
        def wreads(s, cb):
            ad = waddr(s)
            if ad is None: return
            b = vRING + 4*(2*(s % 4) + cb)
            A(f"ds_read_b64_tr_b16 {v(b,2)}, v{wbase_vregs[cb]} offset:{ad}")
            A(f"ds_read_b64_tr_b16 {v(b+2,2)}, v{wbase_vregs[cb]} offset:{ad+1024}")
        for s in range(min(PD, nsteps)):
            wreads(s, 0); wreads(s, 1); lgpos[s] = A.lg_pos()
        for t in range(nsteps):
            s = t + PD
            A.wait(vm=apos[t], lg=lgpos[t] if waddr(t) is not None else None)
            for cb in range(2):
                acc = (vACC0, vACC1)[cb]
                c = "0" if (first and t == 0) else v(acc, 16)
                if waddr(t) is not None:
                    wa = v(vRING + 4*(2*(t % 4) + cb), 4)
                else:
                    wa = a(tail(t)[cb], 4)
                A(f"v_mfma_f32_32x32x16_bf16 {v(acc,16)}, {wa}, {a(acts[t],4)}, {c}")
                if s < nsteps: wreads(s, cb)
                if cb == 0 and waddr(t) is None:
                    if t % side_rate == 0: self.pump(1)
            if s < nsteps: lgpos[s] = A.lg_pos()
            if act_load is not None and t + PDL < nsteps: issue(t + PDL)
            elif waddr(t) is not None and t % side_rate == 0: self.pump(1)

    def pair_reduce(self, scr, pre=None, post=None):
        A = self.A
        T = vT
        A(f"s_lshl_b32 s{sT0}, s{sW}, 12"); A(f"s_add_u32 s{sT1}, s{sT0}, {scr}"); A(f"v_add_u32 v{T}, s{sT1}, v{vL16}")
        A(f"s_xor_b32 s{sT0}, s{sT0}, 8192"); A(f"s_add_u32 s{sT0}, s{sT0}, {scr}"); A(f"v_add_u32 v{T+1}, s{sT0}, v{vL16}")
        A.nop(12 - 6)
        for j in range(4): A(f"ds_write_b128 v{T}, {v(vACC1+4*j,4)} offset:{1024*j}")
        self.fstamp("p2e", "red:written")
        if pre: pre()
        A.wait_all_lg()
        self.fstamp("p2e", "red:waited")
        A("s_barrier")
        self.fstamp("p2e", "red:barrier")
        for j in range(4): A(f"ds_read_b128 {v(T+4+4*j,4)}, v{T+1} offset:{1024*j}")
        if post: post()
        for j in range(4):
            A.wait(lg=A.lg_pos() - (3 - j))
            for i in range(4): A(f"v_add_f32 v{vACC0+4*j+i}, v{vACC0+4*j+i}, v{T+4+4*j+i}")

    def p2_setup(self):
        A = self.A
        T = vT
        vA, vB = T+50, T+51
        A(f"s_lshl_b32 s{sT0}, s{sRB64}, 6"); A(f"s_lshl_b32 s{sT1}, s{sRBK}, 5"); A(f"s_add_u32 s{sT0}, s{sT0}, s{sT1}")
        A(f"s_add_u32 s{sT1}, s{sCG}, 1")
        for (dst, sign) in ((vA, -1), (vB, +1)):
            A(f"v_add_u32 v{T}, s{sT0}, v{vM}")
            if sign < 0: A(f"v_subrev_u32 v{T}, s{sT1}, v{T}")
            else: A(f"v_add_u32 v{T}, s{sT1}, v{T}")
            A(f"v_lshrrev_b32 v{T+1}, 8, v{T}"); A(f"v_lshlrev_b32 v{T+1}, {SLAB_SH}, v{T+1}")
            A(f"v_bfe_u32 v{T+2}, v{T}, 5, 3"); A(f"v_lshl_add_u32 v{T+1}, v{T+2}, 15, v{T+1}")
            A(f"v_and_b32 v{T+2}, 31, v{T}"); A(f"v_lshl_add_u32 v{T+1}, v{T+2}, 4, v{T+1}")
            A(f"v_lshl_add_u32 v{T+1}, v{vH}, 9, v{T+1}")
            A(f"v_mov_b32 v{T+2}, 0x80000000")
            A(f"s_movk_i32 s{sT2}, 2048"); A(f"v_cmp_gt_u32 vcc, s{sT2}, v{T}")
            A.nop(2)
            A(f"v_cndmask_b32 v{dst}, v{T+2}, v{T+1}, vcc")
        vW0, vW1 = T+52, T+53
        A(f"s_lshl_b32 s{sT0}, s{sCG}, 15"); A(f"v_add_u32 v{vW0}, s{sT0}, v{vTRC0}"); A(f"v_add_u32 v{vW1}, s{sT0}, v{vTRC1}")

    def p2(self):
        A = self.A
        T = vT
        vA, vB = T+50, T+51
        vW0, vW1 = T+52, T+53
        A(f"s_lshl_b32 s{sAS}, s{sCG}, 14"); A(f"s_add_u32 s{sAS}, s{sAS}, {WS_H}")
        A(f"s_add_u32 s{sAE}, s{sAS}, 8192"); A(f"s_lshl_b32 s{sT3}, s{sKR}, 10"); A(f"s_add_u32 s{sT3}, s{sT3}, s{sAS}")
        A.wait(vm=self.pos_w2)
        self.poll_check()
        self.stamp("sync1")
        def act(i):
            r = 128 + 4*i
            if not self.cfg.krot:
                if i % 4 == 0 and i > 0: A(f"s_add_u32 s{sT3}, s{sT3}, 4096")
                A(f"buffer_load_dwordx4 {a(r,4)}, v{vA if i < 8 else vB}, {srd(SRD_WS)}, s{sT3} offen offset:{(i%4)*1024} sc1")
                return r
            if i == 8:
                A(f"s_add_u32 s{sAS}, s{sAS}, 8192"); A(f"s_add_u32 s{sAE}, s{sAE}, 8192")
                A(f"s_lshl_b32 s{sT3}, s{sKR}, 10"); A(f"s_add_u32 s{sT3}, s{sT3}, s{sAS}")
            elif i > 0:
                A(f"s_add_u32 s{sT3}, s{sT3}, 1024"); A(f"s_cmp_eq_u32 s{sT3}, s{sAE}"); A(f"s_cselect_b32 s{sT3}, s{sAS}, s{sT3}")
            A(f"buffer_load_dwordx4 {a(r,4)}, v{vA if i < 8 else vB}, {srd(SRD_WS)}, s{sT3} offen sc1")
            return r
        def window():
            A.auto = self.cfg.auto
            self.qkv_tail(vVP, keep_auto=True)
            A.auto = 0
            self.halo_publish()
            self.queue(self.job_strip_qkv(0, 0, 32, B0), "pos_q")
            self.stamp("v tail")
        self.ksplit_gemm(16, (vW0, vW1), lambda i: i*2048, act, True, 0, self.cfg.pdl2, side_rate=1, window=window)
        A("s_barrier")
        self.stamp("p2 main")
        self.pair_reduce(A0 + 51200, pre=lambda: A.wait(vm=self.pos_halo), post=lambda: self.signal(CNT_KV, sRB64, "kv halo"))
        self.fstamp("p2e", "red:done")
        A.auto = self.cfg.auto
        X = T+20
        for j in range(8):
            A(f"v_lshlrev_b32 v{X+2*j}, 16, v{vXRES+j}"); A(f"v_and_b32 v{X+2*j+1}, 0xffff0000, v{vXRES+j}")
        S0, S1 = T+40, T+41
        NM, RR, TT, SA, SB = T+36, T+38, T+42, T+44, T+46
        A(f"v_mov_b32 v{NM}, v{vNMU}"); A(f"v_mov_b32 v{NM+1}, v{vNMU}"); A(f"v_mov_b32 v{RR}, v{vR}"); A(f"v_mov_b32 v{RR+1}, v{vR}")
        for i in range(0, 16, 2):
            A(f"v_pk_add_f32 {v(TT,2)}, {v(X+i,2)}, {v(NM,2)}")
            A(f"v_pk_fma_f32 {v(vACC0+i,2)}, {v(TT,2)}, {v(RR,2)}, {v(vACC0+i,2)}")
            A(f"v_pk_add_f32 {v(vRESID+i,2)}, {v(X+i,2)}, {v(vACC0+i,2)}")
            if i == 0:
                A(f"v_mov_b32 v{SA}, v{vACC0}"); A(f"v_mov_b32 v{SA+1}, v{vACC0+1}")
                A(f"v_pk_mul_f32 {v(SB,2)}, {v(vACC0,2)}, {v(vACC0,2)}")
            else:
                A(f"v_pk_add_f32 {v(SA,2)}, {v(SA,2)}, {v(vACC0+i,2)}")
                A(f"v_pk_fma_f32 {v(SB,2)}, {v(vACC0+i,2)}, {v(vACC0+i,2)}, {v(SB,2)}")
        A(f"v_add_f32 v{S0}, v{SA}, v{SA+1}"); A(f"v_add_f32 v{S1}, v{SB}, v{SB+1}")
        for i in range(8): A(f"v_cvt_pk_bf16_f32 v{X+i}, v{vACC0+2*i}, v{vACC0+2*i+1}")
        self.fstamp("p2e", "epi:math")
        self.frag_dest(sT2, WS_X1)
        self.pstore(f"buffer_store_dwordx4 {v(X,4)}, v{vL16}, {srd(SRD_WS)}, s{sT2} offen sc1")
        self.pstore(f"buffer_store_dwordx4 {v(X+4,4)}, v{vL16}, {srd(SRD_WS)}, s{sT2} offen offset:1024 sc1")
        self.swap_add(S0, T+42); self.swap_add(S1, T+42)
        A(f"s_lshl_b32 s{sT0}, s{sR32L}, 12"); A(f"s_lshl_b32 s{sT1}, s{sC}, 9"); A(f"s_add_u32 s{sT0}, s{sT0}, s{sT1}")
        A(f"s_lshl_b32 s{sT1}, s{sCG}, 8"); A(f"s_add_u32 s{sT0}, s{sT0}, s{sT1}"); A(f"s_add_u32 s{sT0}, s{sT0}, s{sSLAB}"); A(f"s_add_u32 s{sT0}, s{sT0}, {WS_X1S}")
        A(f"v_lshlrev_b32 v{T+42}, 3, v{vM}")
        self.pstore(f"buffer_store_dwordx2 {v(S0,2)}, v{T+42}, {srd(SRD_WS)}, s{sT0} offen sc1")
        self.pos_x1 = A.vm_pos()
        A.auto = 0
        self.fstamp("p2e", "epi:stored")
        self.flush_side()

    def shadow2(self):
        A = self.A
        T = vT
        def hq0():
            A.wait(vm=self.pos_q); A("s_barrier")
            self.stamp("hq0")
            self.l2_touch("w4")
            self.queue(self.job_w3(8, 15, A0))
        kvcode = self.cnt_addr(CNT_KV, sRB64, -1)
        H = T+44
        def halo_load():
            self.stamp("kv chk>")
            self.poll_check()
            self.stamp("kv chk<")
            A(f"v_mov_b32 v{H}, 0"); A(f"v_mov_b32 v{H+1}, 0"); A(f"v_mov_b32 v{H+2}, 0"); A(f"v_mov_b32 v{H+3}, 0")
            l = A.newlabel("nohalo")
            A(f"s_cmp_eq_u32 s{sRB64}, 0"); A(f"s_cbranch_scc1 {l}")
            A(f"s_add_u32 s{sT1}, s{sRB64}, -1"); A(f"s_and_b32 s{sT0}, s{sT1}, 3"); A(f"s_lshl_b32 s{sT0}, s{sT0}, 3"); A(f"s_add_u32 s{sT0}, s{sT0}, s{sC}")
            A(f"s_lshl_b32 s{sT0}, s{sT0}, 12"); A(f"s_lshr_b32 s{sT1}, s{sT1}, 2"); A(f"s_lshl_b32 s{sT1}, s{sT1}, {SLAB_SH}")
            A(f"s_add_u32 s{sT0}, s{sT0}, s{sT1}"); A(f"s_add_u32 s{sT0}, s{sT0}, {WS_KV}")
            A(f"v_lshlrev_b32 v{T+48}, 4, v0")
            A.opt(f"buffer_load_dwordx4 {v(H,4)}, v{T+48}, {srd(SRD_WS)}, s{sT0} offen sc1")
            A.label(l)
            self.pos_hl = A.vm_pos()
        self.qkv_main(lambda s: B0 + s*2048, {0: hq0}, side_rate=2,
                      mid={self.cfg.kvpoll_at: lambda: self.poll_issue(kvcode, 1, 8, "kv halo"), self.cfg.kvchk_at: halo_load})
        self.flush_side()
        self.stamp("q loop")
        A.wait(vm=self.pos_x1)
        A("s_barrier")
        self.stamp("x1 drained")
        self.signal(CNT_X1, sRB128, "x1")
        self.queue(self.job_strip(SRD_WO, 0, 64, B0), "pos_wo")
        self.qkv_tail(vQP)
        self.stamp("q done")
        pos_hl = self.pos_hl
        KV = A0 + 46080
        vKA = T
        A(f"s_lshl_b32 s{sT0}, s{sCG}, 1"); A(f"v_add_u32 v{T+1}, s{sT0}, v{vH}")
        A(f"v_mul_u32_u24 v{T+1}, 2560, v{T+1}")
        A(f"s_lshl_b32 s{sT0}, s{sRBK}, 5"); A(f"s_add_u32 s{sT0}, s{sT0}, 16"); A(f"v_add_u32 v{T+2}, s{sT0}, v{vM}")
        A(f"v_lshl_add_u32 v{vKA}, v{T+2}, 4, v{T+1}"); A(f"v_add_u32 v{vKA}, {KV}, v{vKA}")
        A(f"ds_write_b128 v{vKA}, {v(vKP,4)}"); A(f"ds_write_b128 v{vKA}, {v(vKP+4,4)} offset:1280")
        A(f"ds_write_b128 v{vKA}, {v(vVP,4)} offset:10240"); A(f"ds_write_b128 v{vKA}, {v(vVP+4,4)} offset:11520")
        A.wait(vm=pos_hl)
        A(f"v_lshrrev_b32 v{T+8}, 4, v0"); A(f"v_mul_u32_u24 v{T+8}, 1280, v{T+8}")
        A(f"v_and_b32 v{T+9}, 15, v0"); A(f"v_lshl_add_u32 v{T+8}, v{T+9}, 4, v{T+8}"); A(f"v_add_u32 v{T+8}, {KV}, v{T+8}")
        A(f"ds_write_b128 v{T+8}, {v(H,4)}")
        A.wait_all_lg()
        A("s_barrier")
        A.auto = self.cfg.auto
        self.stamp("kv staged")
        Q = vQP
        KB = vRING
        LG = T+12
        A(f"v_subrev_u32 v{T+10}, {14*16}, v{vKA}")
        for w in range(8):
            off = (14 - 2*w) * 16
            A(f"ds_read_b128 {v(KB+8*w,4)}, v{T+10} offset:{off}")
            A(f"ds_read_b128 {v(KB+8*w+4,4)}, v{T+10} offset:{off+1280}")
        base_lg = A.lg_pos() - 16
        for w in range(8): A(f"v_mov_b32 v{LG+w}, 0")
        for w in range(8):
            A.wait(lg=base_lg + 2*(w+1))
            for i in range(8): A(f"v_dot2c_f32_bf16 v{LG+w}, v{Q+i}, v{KB+8*w+i}")
        self.fstamp("at", "at:qk")
        au = A.auto; A.auto = 0
        self.poll_issue(self.cnt_addr(CNT_X1, sRB128), 1, 16, "x1")
        A.auto = au
        A.nop(3)
        for w in range(8):
            off = (14 - 2*w) * 16
            A(f"ds_read_b128 {v(KB+8*w,4)}, v{T+10} offset:{off+10240}")
            A(f"ds_read_b128 {v(KB+8*w+4,4)}, v{T+10} offset:{off+11520}")
        base_lg = A.lg_pos() - 16
        l = A.newlabel("nomask")
        A.auto = 0
        A(f"s_cmp_lg_u32 s{sRB64}, 0"); A(f"s_cbranch_scc1 {l}")
        A(f"s_lshl_b32 s{sT0}, s{sRBK}, 5"); A(f"v_add_u32 v{T+11}, s{sT0}, v{vM}")
        A(f"v_mov_b32 v{T+20}, 0xff800000")
        for w in range(1, 8):
            A(f"v_cmp_le_u32 vcc, {2*w}, v{T+11}")
            A.nop(2)
            A(f"v_cndmask_b32 v{LG+w}, v{T+20}, v{LG+w}, vcc")
        A.label(l)
        A.auto = self.cfg.auto
        MX = T+20
        A(f"v_max3_f32 v{MX}, v{LG}, v{LG+1}, v{LG+2}"); A(f"v_max3_f32 v{MX}, v{MX}, v{LG+3}, v{LG+4}")
        A(f"v_max3_f32 v{MX}, v{MX}, v{LG+5}, v{LG+6}"); A(f"v_max_f32 v{MX}, v{MX}, v{LG+7}")
        cs = 0.25 * 1.4426950408889634
        A(f"s_mov_b32 s{sT0}, {fbits(cs)}")
        A(f"v_mul_f32 v{MX}, {fbits(-cs)}, v{MX}")
        for w in range(8): A(f"v_fma_f32 v{LG+w}, v{LG+w}, s{sT0}, v{MX}")
        for w in range(8): A(f"v_exp_f32 v{LG+w}, v{LG+w}")
        SM = T+21
        A(f"v_add_f32 v{SM}, v{LG}, v{LG+1}")
        for w in range(2, 8): A(f"v_add_f32 v{SM}, v{SM}, v{LG+w}")
        A(f"v_rcp_f32 v{SM}, v{SM}")
        A.nop(1)
        for w in range(8): A(f"v_mul_f32 v{LG+w}, v{SM}, v{LG+w}")
        PP = T+22
        for u in range(4): A(f"v_cvt_pk_bf16_f32 v{PP+u}, v{LG+2*u}, v{LG+2*u+1}")
        self.fstamp("at", "at:sm")
        A.auto = 0
        self.flush_side()
        self.p3_bases()
        self.poll_check()
        self.stamp("sync2")
        self.queue_x1_acts()
        A.auto = self.cfg.auto
        O = vACC0
        TP = T+26
        for u in range(4):
            A.wait(lg=base_lg + 4*(u+1))
            va, vb = KB + 16*u, KB + 16*u + 8
            for i in range(8):
                t0, t1 = TP + 2*(i & 1), TP + 2*(i & 1) + 1
                A(f"v_perm_b32 v{t0}, v{vb+i}, v{va+i}, s{sPLO}")
                A(f"v_perm_b32 v{t1}, v{vb+i}, v{va+i}, s{sPHI}")
                if u == 0:
                    A(f"v_dot2_f32_bf16 v{O+2*i}, v{t0}, v{PP+u}, 0"); A(f"v_dot2_f32_bf16 v{O+2*i+1}, v{t1}, v{PP+u}, 0")
                else:
                    A(f"v_dot2c_f32_bf16 v{O+2*i}, v{t0}, v{PP+u}"); A(f"v_dot2c_f32_bf16 v{O+2*i+1}, v{t1}, v{PP+u}")
        A.nop(3)
        self.fstamp("at", "at:pv")
        OP = T+32
        for i in range(8): A(f"v_cvt_pk_bf16_f32 v{OP+i}, v{O+2*i}, v{O+2*i+1}")
        A.nop(2)
        for i in range(4): A(f"v_permlane32_swap_b32 v{OP+i}, v{OP+4+i}")
        self.frag_dest(sT0, WS_O)
        self.pstore(f"buffer_store_dwordx4 {v(OP,4)}, v{vL16}, {srd(SRD_WS)}, s{sT0} offen sc1")
        self.pstore(f"buffer_store_dwordx4 {v(OP+4,4)}, v{vL16}, {srd(SRD_WS)}, s{sT0} offen offset:1024 sc1")
        self.pos_o = A.vm_pos()
        A.auto = 0
        self.fstamp("at", "at:flushed")
        A.wait(vm=self.pos_wo)
        A("s_barrier")
        self.fstamp("at", "at:bar")
        self.emit_groups(self.job_w3(23, 7, A0 + 46080))
        self.pos_w3 = A.vm_pos()
        self.stamp("attn done")

    def c3_pass(self):
        A = self.A
        T = vT
        vLo, vHi = T, T+1
        A(f"s_add_u32 s{sT0}, s{sW}, -1"); A(f"s_mul_i32 s{sT0}, s{sT0}, {8*3072}")
        A(f"s_cmp_eq_u32 s{sW}, 0"); A(f"s_cselect_b32 s{sT0}, {C0}, s{sT0}")
        A(f"s_cmp_eq_u32 s{sW}, 3"); A(f"s_cselect_b32 s{sT1}, {C0 + 2*3072}, s{sT0}")
        A(f"v_add_u32 v{vLo}, s{sT0}, v{vTR3}"); A(f"v_add_u32 v{vHi}, s{sT1}, v{vTR3}")
        CS = T+8
        for i in range(6): A(f"v_mov_b32 v{CS+i}, 0")
        A.auto = self.cfg.auto
        def c3_reads(i):
            for blk in range(3):
                b = vRING + 4*(3*(i % 3) + blk)
                r = vLo if i < 6 else vHi
                A(f"ds_read_b64_tr_b16 {v(b,2)}, v{r} offset:{i*3072 + blk*64}")
                A(f"ds_read_b64_tr_b16 {v(b+2,2)}, v{r} offset:{i*3072 + blk*64+1536}")
            return A.lg_pos()
        cpos = {0: c3_reads(0), 1: c3_reads(1)}
        for i in range(8):
            if i + 2 < 8: cpos[i+2] = c3_reads(i+2)
            A.wait(lg=cpos[i])
            for blk in range(3):
                b = vRING + 4*(3*(i % 3) + blk)
                for r in range(4): A(f"v_dot2c_f32_bf16 v{CS+2*blk+(r&1)}, s{sONES}, v{b+r}")
        A.auto = 0
        A.nop(3)
        SC3 = B0
        for blk in range(3):
            A(f"v_add_f32 v{CS+2*blk}, v{CS+2*blk}, v{CS+2*blk+1}")
            self.swap_add(CS+2*blk, T+4)
        A(f"s_mul_i32 s{sT0}, s{sW}, 384"); A(f"v_lshl_add_u32 v{T+4}, v{vM}, 2, s{sT0}"); A(f"v_add_u32 v{T+4}, {SC3}, v{T+4}")
        for blk in range(3): A(f"ds_write_b32 v{T+4}, v{CS+2*blk} offset:{128*blk}")
        A.wait(vm=self.pos_o)
        A.wait_all_lg()
        A("s_barrier")
        self.signal(CNT_O, sRB64, "o")
        A(f"v_lshlrev_b32 v{T+4}, 2, v{vM}"); A(f"v_add_u32 v{T+4}, {SC3}, v{T+4}")
        for w in range(4):
            for blk in range(3): A(f"ds_read_b32 v{T+16+4*blk+w}, v{T+4} offset:{384*w+128*blk}")
        A(f"v_cmp_gt_u32 vcc, 32, v{vL}")
        A.wait_all_lg()
        self.vC3 = [T+46, T+47, T+48]
        for blk in range(3):
            b = T+16+4*blk
            A(f"v_add_f32 v{b}, v{b}, v{b+1}"); A(f"v_add_f32 v{b+2}, v{b+2}, v{b+3}"); A(f"v_add_f32 v{b}, v{b}, v{b+2}")
            A(f"v_cndmask_b32 v{self.vC3[blk]}, 0, v{b}, vcc")
        A("s_barrier")
        self.stamp("c3 done")

    def job_w3_small(self, s0, ns, lds0):
        return self.job_w3(s0, ns, lds0)

    def w3_addr(self, s):
        if s < 8: return C0 + s*3072
        if s < 30: return A0 + (s-8)*3072
        return C0 + (s-22)*3072

    def p3_bases(self):
        A = self.A
        A(f"s_lshl_b32 s{sP2}, s{sR32P}, 15"); A(f"s_add_u32 s{sP2}, s{sP2}, s{sSLAB}"); A(f"s_add_u32 s{sP2}, s{sP2}, {WS_X1}")
        A(f"s_lshl_b32 s{sP3}, s{sR32P}, 12"); A(f"s_add_u32 s{sP3}, s{sP3}, s{sSLAB}"); A(f"s_add_u32 s{sP3}, s{sP3}, {WS_X1S}")
        A(f"s_mul_i32 s{sP4}, s{sR32P}, {86*1024}"); A(f"s_add_u32 s{sP4}, s{sP4}, s{sSLAB}"); A(f"s_add_u32 s{sP4}, s{sP4}, {WS_G}")
        A(f"s_lshl_b32 s{sT1}, s{sCB0}, 11"); A(f"s_add_u32 s{sP4}, s{sP4}, s{sT1}")

    def queue_x1_acts(self):
        A = self.A
        self.x1_pos = {}
        for i in range(32):
            g = []
            if i % 4 == 0:
                g += [f"s_add_u32 s{sAS}, s{sR3}, {i//4}", f"s_and_b32 s{sAS}, s{sAS}, 7", f"s_lshl_b32 s{sAS}, s{sAS}, 12", f"s_add_u32 s{sAS}, s{sAS}, s{sP2}"]
            g.append(f"buffer_load_dwordx4 {a(4*i,4)}, v{vL16}, {srd(SRD_WS)}, s{sAS} offen offset:{(i%4)*1024} sc1")
            def m(i=i): self.x1_pos[i] = A.vm_pos()
            g.append(m)
            self.side.append(g)

    def p3(self):
        A = self.A
        T = vT
        vA0, vA1 = T+54, T+55
        A(f"s_lshl_b32 s{sT0}, s{sCG}, 15"); A(f"s_add_u32 s{sT0}, s{sT0}, {B0}")
        A(f"v_add_u32 v{vA0}, s{sT0}, v{vTRC0}"); A(f"v_add_u32 v{vA1}, s{sT0}, v{vTRC1}")
        A.auto = self.cfg.auto
        for i in range(16):
            for cb in range(2):
                r = 128 + 8*i + 4*cb
                A(f"ds_read_b64_tr_b16 {a(r,2)}, v{(vA0,vA1)[cb]} offset:{i*2048}")
                A(f"ds_read_b64_tr_b16 {a(r+2,2)}, v{(vA0,vA1)[cb]} offset:{i*2048 + 1024}")
        A.auto = 0
        A.wait(vm=self.pos_w3)
        A.wait_all_lg()
        A("s_barrier")
        self.stamp("wo->reg")
        self.c3_pass()
        while len(self.x1_pos) < 32: self.pump(1)
        apos = self.x1_pos
        PDL = 32
        A(f"v_lshlrev_b32 v{T+3}, 3, v{vM}"); A(f"v_lshl_add_u32 v{T+3}, v{vH}, 11, v{T+3}")
        for j in range(8):
            A(f"buffer_load_dwordx2 {v(T+20+2*j,2)}, v{T+3}, {srd(SRD_WS)}, s{sP3} offen offset:{256*j} sc1")
        spos = A.vm_pos()
        self.queue(self.job_w4(39, 4, B0 + 12*4096), "pos_tails")
        self.queue(self.job_w4(23, 12, B0))
        vB = [T, T+1, T+2]
        A(f"v_mov_b32 v{vB[0]}, v{vTR3}"); A(f"v_add_u32 v{vB[1]}, 65536, v{vTR3}"); A(f"v_add_u32 v{vB[2]}, 131072, v{vTR3}")
        def wread(s, blk, buf):
            ad = self.w3_addr(s) + blk*64
            for (k, d) in ((0, 0), (2, 1536)):
                x = ad + d
                A(f"ds_read_b64_tr_b16 {v(buf+k,2)}, v{vB[x // 65536]} offset:{x % 65536}")
        PD = 2
        lgpos = {}
        for s in range(PD):
            for blk in range(2): wread(s, blk, vRING + 4*(2*(s % 4) + blk))
            lgpos[s] = A.lg_pos()
        for t in range(32):
            s = t + PD
            A.wait(vm=apos[t], lg=lgpos[t])
            if t in (0, 8, 16, 24): self.fstamp("p4", f"p3:t{t}")
            for blk in range(2):
                acc = (vACC0, vACC1)[blk]
                c = "0" if t == 0 else v(acc, 16)
                A(f"v_mfma_f32_32x32x16_bf16 {v(acc,16)}, {v(vRING + 4*(2*(t % 4) + blk),4)}, {a(4*t,4)}, {c}")
                if s < 32: wread(s, blk, vRING + 4*(2*(s % 4) + blk))
            if s < 32: lgpos[s] = A.lg_pos()
            self.pump(1)
        self.fstamp("p3", "pass1<")
        self.flush_side()
        self.fstamp("p3", "flushed")
        A.wait(vm=spos)
        S0, S1 = T+20, T+21
        for j in range(1, 8):
            A(f"v_add_f32 v{S0}, v{S0}, v{T+20+2*j}"); A(f"v_add_f32 v{S1}, v{S1}, v{T+21+2*j}")
        self.swap_add(S0, T+4); self.swap_add(S1, T+4)
        NMU1, R1 = T+5, T+6
        A(f"v_mul_f32 v{S0}, {fbits(1/512)}, v{S0}"); A(f"v_mul_f32 v{S1}, {fbits(1/512)}, v{S1}")
        A(f"v_sub_f32 v{NMU1}, 0, v{S0}"); A(f"v_fma_f32 v{S1}, v{NMU1}, v{S0}, v{S1}"); A(f"v_max_f32 v{S1}, 0, v{S1}")
        A(f"v_add_f32 v{S1}, {fbits(1e-5)}, v{S1}"); A(f"v_rsq_f32 v{R1}, v{S1}")
        self.poll_issue(self.cnt_addr(CNT_O, sRB64), 1, 8, "o")
        self.fstamp("p3", "stats")
        lskip = A.newlabel("nob2")
        A(f"s_cmp_lt_u32 s{sNBLK}, 3"); A(f"s_cbranch_scc1 {lskip}")
        lg_save = A.lg
        for s in range(32 + PD):
            if s < 32:
                wread(s, 2, vRING + 4*(s % 4))
                lgpos[s] = A.lg_pos()
            if s >= PD:
                t = s - PD
                A.wait(lg=lgpos[t])
                c = "0" if t == 0 else v(vACC2, 16)
                A(f"v_mfma_f32_32x32x16_bf16 {v(vACC2,16)}, {v(vRING + 4*(t % 4),4)}, {a(4*t,4)}, {c}")
        A.label(lskip)
        self.fstamp("p3", "pass2<")
        A.wait(vm=self.pos_tails)
        self.poll_check()
        self.stamp("p3 main")
        A(f"s_lshl_b32 s{sOA}, s{sR32L}, 15"); A(f"s_lshl_b32 s{sT1}, s{sCG}, 14"); A(f"s_add_u32 s{sOA}, s{sOA}, s{sT1}")
        A(f"s_add_u32 s{sOA}, s{sOA}, s{sSLAB}"); A(f"s_add_u32 s{sOA}, s{sOA}, {WS_O}")
        self.o_acts = {}; self.o_pos = {}
        A(f"s_mov_b32 s{sAS}, s{sOA}"); A(f"s_add_u32 s{sAE}, s{sOA}, 16384")
        A(f"s_lshl_b32 s{sT1}, s{sKR}, 11"); A(f"s_and_b32 s{sT1}, s{sT1}, 16383"); A(f"s_add_u32 s{sOA}, s{sOA}, s{sT1}")
        for i in range(16):
            g = []
            if not self.cfg.krot:
                if i % 4 == 0 and i > 0: g.append(f"s_add_u32 s{sOA}, s{sOA}, 4096")
                g.append(f"buffer_load_dwordx4 {a(4*i,4)}, v{vL16}, {srd(SRD_WS)}, s{sOA} offen offset:{(i%4)*1024} sc1")
            else:
                if i > 0: g += [f"s_add_u32 s{sOA}, s{sOA}, 1024", f"s_cmp_eq_u32 s{sOA}, s{sAE}", f"s_cselect_b32 s{sOA}, s{sAS}, s{sOA}"]
                g.append(f"buffer_load_dwordx4 {a(4*i,4)}, v{vL16}, {srd(SRD_WS)}, s{sOA} offen sc1")
            def m(i=i):
                self.o_acts[i] = 4*i; self.o_pos[i] = A.vm_pos()
            g.append(m)
            self.side.append(g)
        ne = self.cfg.w4_in_ge
        if ne: self.queue(self.job_w4(0, ne, A0))
        lskip2 = A.newlabel("nom2")
        A(f"s_cmp_lt_u32 s{sNBLK}, 3"); A(f"s_cbranch_scc1 {lskip2}")
        A.nop(10)
        A(f"v_mfma_f32_32x32x2_f32 {v(vACC2,16)}, v{self.vC3[2]}, v{NMU1}, {v(vACC2,16)}")
        A.label(lskip2)
        A.nop(2)
        A(f"v_mfma_f32_32x32x2_f32 {v(vACC0,16)}, v{self.vC3[0]}, v{NMU1}, {v(vACC0,16)}")
        mk0 = A.mark()
        A(f"v_mfma_f32_32x32x2_f32 {v(vACC1,16)}, v{self.vC3[1]}, v{NMU1}, {v(vACC1,16)}")
        GK = self.gelu_consts(R1, T+34)
        self.pump(3)
        A.pad(mk0, 19)
        self.fstamp("ge", "g:start")
        for blk in range(3):
            acc = (vACC0, vACC1, vACC2)[blk]
            if blk == 2:
                lskip3 = A.newlabel("nog2")
                A(f"s_cmp_lt_u32 s{sNBLK}, 3"); A(f"s_cbranch_scc1 {lskip3}")
            else:
                A.auto = self.cfg.auto_g
            self.gelu_body(acc, GK)
            A.auto = 0
            if blk < 2: self.fstamp("ge", f"g:blk{blk}")
            i1 = f"buffer_store_dwordx4 {v(acc,4)}, v{vL16}, {srd(SRD_WS)}, s{sP4} offen offset:{blk*2048 % 4096} sc1"
            i2 = f"buffer_store_dwordx4 {v(acc+4,4)}, v{vL16}, {srd(SRD_WS)}, s{sP4} offen offset:{blk*2048 % 4096 + 1024} sc1"
            if blk == 2:
                A(f"s_add_u32 s{sP4}, s{sP4}, 4096")
                self.pstore(i1, opt=True); self.pstore(i2, opt=True)
                A.label(lskip3)
            else:
                self.pstore(i1); self.pstore(i2)
        self.pos_g = A.vm_pos()
        vA0, vA1 = T+54, T+55
        A(f"s_lshl_b32 s{sT0}, s{sCG}, 11"); A(f"v_add_u32 v{vA0}, s{sT0}, v{vTRC0}"); A(f"v_add_u32 v{vA1}, s{sT0}, v{vTRC1}")
        A(f"v_add_u32 v{T+52}, {B0 + 12*4096}, v{vA0}"); A(f"v_add_u32 v{T+53}, {B0 + 12*4096}, v{vA1}")
        for i in range(4):
            for cb in range(2):
                r = 96 + 8*i + 4*cb
                A(f"ds_read_b64_tr_b16 {v(r,2)}, v{T+52+cb} offset:{i*4096}")
                A(f"ds_read_b64_tr_b16 {v(r+2,2)}, v{T+52+cb} offset:{i*4096 + 1024}")
        self.queue(self.job_w4(ne, 16 - ne, A0 + ne*4096) + self.job_w4(16, 7, C0), "pos_w4e")

    def job_w4(self, i0, ni, lds0):
        groups = []
        for J in range((ni + 3)//4):
            if 4*J + 3 < ni:
                pre = [f"s_add_u32 m0, s{sW4K}, {lds0 + 16384*J}", f"s_add_u32 s{sG}, s{sBW4}, {(i0 + 4*J)*16384}"]
            else:
                pre = [f"s_add_u32 s{sD1}, s{sW}, {4*J}", f"s_min_u32 s{sD1}, s{sD1}, {ni-1}", f"s_lshl_b32 s{sD0}, s{sD1}, 12", f"s_add_u32 m0, s{sD0}, {lds0}",
                       f"s_lshl_b32 s{sD0}, s{sD1}, 14", f"s_lshl_b32 s{sG}, s{sC}, 7", f"s_add_u32 s{sG}, s{sG}, s{sD0}", f"s_add_u32 s{sG}, s{sG}, {i0*16384}"]
            groups += self.quad(pre, SRD_W4, vS4J)
        return groups

    def w4_slot(self, i):
        if i < 16: return A0 + i*4096
        if i < 23: return C0 + (i-16)*4096
        if i < 35: return B0 + (i-23)*4096
        return B0 + 12*4096 + (i-35)*4096

    def p4(self):
        A = self.A
        T = vT
        vA0, vA1 = T+54, T+55
        A(f"s_mul_i32 s{sT4}, s{sR32L}, {86*1024}"); A(f"s_mul_i32 s{sT1}, s{sCG}, {43*1024}"); A(f"s_add_u32 s{sT4}, s{sT4}, s{sT1}")
        A(f"s_add_u32 s{sT4}, s{sT4}, s{sSLAB}"); A(f"s_add_u32 s{sT4}, s{sT4}, {WS_G}")
        while len(self.o_pos) < 16: self.pump(1)
        self.pump(self.cfg.w4_before_sig)
        A.wait(vm=self.pos_g)
        A.wait_all_lg()
        A("s_barrier")
        self.stamp("g drained")
        self.signal(CNT_G, sRB128, "g")
        self.queue(self.job_w4(35, 4, B0 + 12*4096), "pos_w4l")
        self.ksplit_gemm(16, None, lambda i: None, None, True, 0, 16, side_rate=1, pre=(self.o_acts, self.o_pos),
                         tail=lambda i: (128 + 8*i, 128 + 8*i + 4))
        self.flush_side()
        self.stamp("wo done")
        vb = {}
        for win in range(3):
            for cb in range(2):
                r = T + 44 + 2*win + cb
                A(f"v_add_u32 v{r}, {win*65536}, v{(vA0,vA1)[cb]}")
                vb[(win, cb)] = r
        self.poll_issue(self.cnt_addr(CNT_G, sRB128), 1, 16, "g")
        A.wait(vm=self.pos_w4e)
        self.stamp("w4e landed")
        self.poll_check()
        self.stamp("sync3")
        acts = {}; apos = {}
        A(f"s_mov_b32 s{sAS}, s{sT4}"); A(f"s_add_u32 s{sAE}, s{sT4}, {40*1024}")
        A(f"s_lshl_b32 s{sT1}, s{sKR}, 12"); A(f"s_add_u32 s{sT4}, s{sT4}, s{sT1}")
        def act_g(i):
            if i == 40: A(f"s_mov_b32 s{sT4}, s{sAE}")
            elif i % 4 == 0 and i > 0:
                A(f"s_add_u32 s{sT4}, s{sT4}, 4096")
                if self.cfg.krot: A(f"s_cmp_eq_u32 s{sT4}, s{sAE}"); A(f"s_cselect_b32 s{sT4}, s{sAS}, s{sT4}")
            r = 4*(i % 32)
            A(f"buffer_load_dwordx4 {a(r,4)}, v{vL16}, {srd(SRD_WS)}, s{sT4} offen offset:{(i%4)*1024} sc1")
            acts[i] = r; apos[i] = A.vm_pos()
        PDL = self.cfg.pdl4; PD = 2; N = 43
        for i in range(PDL): act_g(i)
        lgpos = {}
        def w4reads(s, cb):
            if s >= 39: return
            ad = self.w4_slot(s)
            b = vRING + 4*(2*(s % 4) + cb)
            for (k, d) in ((0, 0), (2, 1024)):
                x = ad + d
                A(f"ds_read_b64_tr_b16 {v(b+k,2)}, v{vb[(x // 65536, cb)]} offset:{x % 65536}")
        for s in range(PD):
            w4reads(s, 0); w4reads(s, 1); lgpos[s] = A.lg_pos()
        for t in range(N):
            s = t + PD
            if s == 30:
                A("s_barrier")
            A.wait(vm=apos[t], lg=lgpos[t] if t < 39 else None)
            if t in (0, 8, 16, 24, 32, 40): self.fstamp("p4", f"p4:t{t}")
            for cb in range(2):
                acc = (vACC0, vACC1)[cb]
                wa = v(vRING + 4*(2*(t % 4) + cb), 4) if t < 39 else v(96 + 8*(t-39) + 4*cb, 4)
                A(f"v_mfma_f32_32x32x16_bf16 {v(acc,16)}, {wa}, {a(acts[t],4)}, {v(acc,16)}")
                if s < N: w4reads(s, cb)
            if s < N: lgpos[s] = A.lg_pos()
            if t + PDL < N: act_g(t + PDL)
        A("s_barrier")
        self.stamp("p4 main")
        self.pair_reduce(A0)
        for i in range(16): A(f"v_add_f32 v{vACC0+i}, v{vACC0+i}, v{vRESID+i}")
        P = T+24
        for i in range(8): A(f"v_cvt_pk_bf16_f32 v{P+i}, v{vACC0+2*i}, v{vACC0+2*i+1}")
        A.nop(2)
        for (x, y) in ((0, 2), (1, 3), (4, 6), (5, 7)):
            A(f"v_permlane32_swap_b32 v{P+x}, v{P+y}")
        A(f"s_lshl_b32 s{sT0}, s{sRB64}, 6"); A(f"s_lshl_b32 s{sT1}, s{sRBK}, 5"); A(f"s_add_u32 s{sT0}, s{sT0}, s{sT1}")
        A(f"v_add_u32 v{T}, s{sT0}, v{vM}"); A(f"v_lshlrev_b32 v{T}, 10, v{T}"); A(f"v_lshl_add_u32 v{T}, v{vH}, 4, v{T}")
        A(f"s_lshl_b32 s{sT0}, s{sC}, 7"); A(f"s_lshl_b32 s{sT1}, s{sCG}, 6"); A(f"s_add_u32 s{sT0}, s{sT0}, s{sT1}")
        A(f"buffer_store_dwordx4 {v(P,4)}, v{T}, {srd(SRD_OUT)}, s{sT0} offen")
        A(f"buffer_store_dwordx4 {v(P+4,4)}, v{T}, {srd(SRD_OUT)}, s{sT0} offen offset:32")
        self.stamp("stored")

    def build(self):
        A = self.A
        stop = self.cfg.stop_after
        self.prologue()
        self.t0_dma()
        self.setup2()
        self.stamp("setup2")
        self.t0_dma2()
        self.stamp("start")
        self.p1_h(); self.stamp("h main")
        self.p1_h_finish(); self.stamp("h pub")
        if stop != "h":
            self.shadow1(); self.stamp("kv pub")
            if stop != "kv":
                self.p2(); self.stamp("x1 pub")
                if stop != "x1":
                    self.shadow2()
                    if stop != "o":
                        self.p3(); self.stamp("g pub")
                        if stop != "g":
                            self.p4()
        self.flush_side()
        A("s_waitcnt vmcnt(0)")
        self.stamp("end")
        self.stamp_end()
        A.label("L_end")
        A("s_endpgm")
        return A

HEADER = """; Fused persistent kernel: x + attn(LN x) + mixer(LN x).  256 workgroups (one per CU), 4 waves each.
; @launch grid=(256,1,1) block=(256,1,1) lds=163840
.amdgcn_target "amdgcn-amd-amdhsa--gfx950"
.text
.globl {name}
.p2align 8
.type {name},@function
{name}:
"""
FOOTER = """
.section .rodata,"a"
.p2align 6
.amdhsa_kernel {name}
  .amdhsa_next_free_vgpr 512
  .amdhsa_next_free_sgpr 102
  .amdhsa_accum_offset 256
  .amdhsa_group_segment_fixed_size 0
  .amdhsa_kernarg_size 88
  .amdhsa_user_sgpr_count 2
  .amdhsa_user_sgpr_kernarg_segment_ptr 1
  .amdhsa_system_sgpr_workgroup_id_x 1
.end_amdhsa_kernel
"""

def generate(cfg):
    k = K(cfg)
    A = k.build()
    probs = check_hazards(A.lines)
    generate.names = k.stamp_names
    return HEADER.format(name=NAME) + A.text() + FOOTER.format(name=NAME), probs

if __name__ == "__main__":
    cfg = Cfg()
    out = sys.argv[1] if len(sys.argv) > 1 else "parallel_sum__sliding_local_dilated__mixer_s_mlp__prompt.s"
    for arg in sys.argv[2:]:
        k, val = arg.split("=")
        setattr(cfg, k, {"True": True, "False": False, "None": None}.get(val, int(val) if val.isdigit() else val))
    txt, probs = generate(cfg)
    for p in probs: print("HAZARD:", p)
    open(out, "w").write(txt)
    print("wrote", out, len(txt), "bytes;", txt.count("\n"), "lines;", len(probs), "hazards")
```

```python
import sys, os
from asmlib import Asm, check_hazards

NAME = "parallel_sum__sliding_local_dilated__mixer_s_mlp__prompt_kernel"

class Cfg:
    stamps = False
    stop_after = None
    spin_limit = 400000
    dbgtime = False
    wallonly = False
    fine = None
    pre_chunks = 3
    preA = 1
    touch = 1
    hpoll_at = 26
    auto = 64
    cost_w3 = 96
    pdl2 = 10
    pdl3 = 22
    pdl4 = 14
    kvchk_at = 24
    kvpoll_at = 10
    auto_g = 48
    w4_in_ge = 8
    w4_before_sig = 8
    early_kv = 1
    w2_in_k = 16
    rot = 1
    out_mode = 0
    final_wait = 1
    dstore = 0
    krot = 0
    ftswap = 1
    cxor = 0
    chunkstamps = 0
    touch_mode = "late"
    stouch = 0
    l2touch = ""
    mallt = 1
    stouch_wave = 1
    early_touch = 0

SLAB_SH = 21
WS_H    = 0x000000
WS_O    = 0x040000
WS_X1   = 0x080000
WS_G    = 0x0C0000
WS_X1S  = 0x170000
WS_KV   = 0x180000
WS_CNT  = 0x1A0000
CNT_H, CNT_KV, CNT_X1, CNT_G, CNT_O = 0, 4, 8, 10, 12
CNT_STRIDE = 256
WS_STAMP= 0x1000000
WS_SIZE = 0x1100000

A0 = 0
B0 = 67584
C0 = 133120
SCR1 = 160768
LDS_TOTAL = 163840

sW, sRBK, sCG = 3, 4, 5
sRB64, sC, sRB128, sFT = 6, 7, 8, 9
SRD_X, SRD_WQKV, SRD_WO, SRD_W1, SRD_W2, SRD_W3, SRD_W4, SRD_OUT, SRD_WS, SRD_DBG = 40, 44, 48, 52, 56, 60, 64, 68, 72, 76
sONES, sPLO, sPHI = 80, 81, 82
sG, sG2, sT0, sT1, sT2, sT3 = 83, 84, 85, 86, 87, 88
sCB0, sNBLK = 89, 90
sSPIN = 91
sSTAMP = 22
sEXS = 94
sT4, sT5 = 96, 97
sXG, sW1G, sWL = 10, 11, 38
sD0, sD1 = 39, 92
sP2, sP3, sP4 = 16, 17, 18
sSLAB, sR32L, sR32P = 19, 20, 21
sBW, sRW2, sRWO, sR3, sR3W, sW3L, sBW4, sG4E, sAS, sAE = 27, 28, 29, 30, 31, 32, 33, 34, 35, 36
sKR = 37
sW4K = 12
sXSLOT = 26
sOA = 93
sROT = 14
sROT8 = 15
sRT0, sCY0 = 98, 100
vST = 253

def srd(n): return f"s[{n}:{n+3}]"

vL, vM, vH, vL16 = 1, 2, 3, 4
vSTR, vSTRQ = 5, 6
vW3 = (7, 8, 9)
vTRN, vTRC0, vTRC1, vTR3 = 10, 11, 12, 13
vNMU, vR = 14, 15
vXRES = 16
vRESID = 24
vKP, vVP, vQP = 40, 48, 56
vRING = 64
vSTRJ = (5, 136, 137, 138)
vS4J = (5, 136, 139, 140)
vSTRQJ = (6, 141, 142, 143)
vX2 = 179
vACC0, vACC1, vACC2 = 144, 160, 176
vT = 192

def v(i, n=1): return f"v{i}" if n == 1 else f"v[{i}:{i+n-1}]"
def a(i, n=1): return f"a{i}" if n == 1 else f"a[{i}:{i+n-1}]"

C0G = -2.0 * 0.7978845608028654 * 1.4426950408889634
C1G = C0G * 0.044715
import struct
def fbits(x): return "0x%08x" % struct.unpack("<I", struct.pack("<f", x))[0]

class K:
    def __init__(self, cfg):
        self.cfg = cfg
        self.A = Asm()
        self.side = []
        self.nstamp = 0
        self.stamp_names = []
        self.kA_queued = False
        self.A.pump_cb = self.paced_pump
        self.credit = 0

    def pump(self, n=1):
        for _ in range(n):
            if self.side:
                g = self.side.pop(0)
                for ins in g:
                    if callable(ins): ins()
                    else: self.A(ins)

    def group_cost(self, g):
        for x in g:
            if isinstance(x, str) and x.startswith("buffer_load") and srd(SRD_W3) in x: return self.cfg.cost_w3
        return self.cfg.auto

    def paced_pump(self, cost):
        if self.side and cost >= self.group_cost(self.side[0]):
            self.pump(1)
            return True
        return False

    def tick(self, cycles):
        self.credit += cycles
        while self.side and self.credit >= self.group_cost(self.side[0]):
            self.credit -= self.group_cost(self.side[0])
            self.pump(1)
        if not self.side: self.credit = min(self.credit, self.cfg.auto)

    def queue(self, groups, mark=None):
        groups = [list(g) for g in groups]
        if mark:
            def m(mark=mark): setattr(self, mark, self.A.vm_pos())
            groups[-1].append(m)
        self.side += groups

    def pstore(self, text, opt=False):
        A = self.A
        f = A.opt if opt else A
        f(text)
        if self.cfg.dstore: f(text.replace(" sc1", ""))

    def flush_side(self):
        self.pump(len(self.side))

    def stamp(self, name):
        if not self.cfg.stamps: return
        if self.cfg.wallonly and name != "end": return
        if self.cfg.fine and name in ("kernarg", "touched", "preA", "setup2", "start", "hk0", "hk12>", "hk12<", "hv0", "hq0", "v loop", "kv chk>", "kv chk<", "h drained", "x1 drained", "g drained"): return
        A = self.A
        i = self.nstamp; self.nstamp += 1
        self.stamp_names.append(name)
        cur = sSTAMP + 2*(i & 1); prev = sSTAMP + 2*((i+1) & 1)
        if i > 0: A(f"v_writelane_b32 v{vST}, s{prev}, {i-1}")
        A(f"s_memtime s[{cur}:{cur+1}]")

    def fstamp(self, region, name):
        if self.cfg.fine == region: self.stamp(name)

    def stamp_end(self):
        A = self.A
        if self.cfg.stamps:
            i = self.nstamp
            prev = sSTAMP + 2*((i+1) & 1)
            A("s_waitcnt lgkmcnt(0)")
            A(f"v_writelane_b32 v{vST}, s{prev}, {i-1}")
            A(f"s_memrealtime s[{sSTAMP}:{sSTAMP+1}]")
            A("s_waitcnt lgkmcnt(0)")
            A(f"v_writelane_b32 v{vST}, s{sSTAMP}, 62")
            A(f"v_writelane_b32 v{vST}, s{sRT0}, 61")
            A(f"v_writelane_b32 v{vST}, s{sCY0}, 60")
            A(f"s_lshl_b32 s{sT5}, s2, 2"); A(f"s_add_u32 s{sT5}, s{sT5}, s{sW}"); A(f"s_lshl_b32 s{sT5}, s{sT5}, 8")
            A(f"s_add_u32 s{sT5}, s{sT5}, {WS_STAMP}")
            A(f"v_lshlrev_b32 v254, 2, v{vL}")
            A(f"buffer_store_dword v{vST}, v254, {srd(SRD_WS)}, s{sT5} offen")
        if self.cfg.dbgtime:
            l = A.newlabel("dt")
            A("s_cmp_ge_u32 s2, 7"); A(f"s_cbranch_scc1 {l}")
            A(f"s_cmp_lg_u32 s{sW}, 0"); A(f"s_cbranch_scc1 {l}")
            A(f"s_memrealtime s[{sSTAMP}:{sSTAMP+1}]"); A(f"s_memtime s[{sSTAMP+2}:{sSTAMP+3}]")
            A("s_waitcnt lgkmcnt(0)")
            A(f"s_sub_u32 s{sT0}, s{sSTAMP}, s{sRT0}"); A(f"s_sub_u32 s{sT1}, s{sSTAMP+2}, s{sCY0}")
            A(f"v_mov_b32 v250, s{sT0}"); A(f"v_mov_b32 v251, s{sT1}")
            A(f"s_lshl_b32 s{sT0}, s2, 3"); A(f"s_add_u32 s{sT0}, s{sT0}, 8"); A(f"v_mov_b32 v252, s{sT0}")
            A("s_mov_b64 exec, 1")
            A(f"buffer_store_dwordx2 v[250:251], v252, {srd(SRD_DBG)}, 0 offen")
            A.label(l)

    def dma_units(self, srdn, vregs, gbase_code, gstep, lds0, n, lstep=None):
        m = len(vregs)
        if lstep is None: lstep = 1024 * m
        assert n >= 4
        groups = []
        rounds = (n + 3) // 4
        for j in range(rounds):
            if j == 0:
                g = list(gbase_code)
                g += [f"s_mul_i32 s{sD0}, s{sW}, {lstep}", f"s_add_u32 m0, s{sD0}, {lds0}",
                      f"s_mul_i32 s{sD0}, s{sW}, {gstep}", f"s_add_u32 s{sG}, s{sG2}, s{sD0}"]
            elif 4 * j + 3 < n:
                g = [f"s_add_u32 m0, m0, {4*lstep - (m-1)*1024}", f"s_add_u32 s{sG}, s{sG}, {4*gstep}"]
            else:
                g = [f"s_add_u32 s{sD0}, s{sW}, {4*j}", f"s_min_u32 s{sD0}, s{sD0}, {n-1}",
                     f"s_mul_i32 s{sD1}, s{sD0}, {lstep}", f"s_add_u32 m0, s{sD1}, {lds0}",
                     f"s_mul_i32 s{sD1}, s{sD0}, {gstep}", f"s_add_u32 s{sG}, s{sG2}, s{sD1}"]
            for i, vr in enumerate(vregs):
                if i > 0:
                    groups.append(g)
                    g = ["s_add_u32 m0, m0, 1024", "s_nop 0"]
                g = g + [f"buffer_load_dwordx4 v{vr}, {srd(srdn)}, s{sG} offen lds"]
            groups.append(g)
        return groups

    def poll_issue(self, addr_code, nl, target, what):
        A = self.A
        skip = A.newlabel("piskip")
        A(f"s_cmp_lg_u32 s{sW}, 3"); A(f"s_cbranch_scc1 {skip}")
        for ins in addr_code: A(ins)
        A(f"v_mov_b32 v251, {target}")
        A(f"s_mov_b64 s[{sEXS}:{sEXS+1}], exec"); A(f"s_mov_b64 exec, {(1 << nl) - 1}")
        A.opt(f"buffer_load_dword v252, v250, {srd(SRD_WS)}, 0 offen sc1")
        A(f"s_mov_b64 exec, s[{sEXS}:{sEXS+1}]")
        A.label(skip)
        self.poll_state = (nl, A.vm_pos(), what)

    def poll_check(self, srdn=None):
        A = self.A
        nl, pos, what = self.poll_state
        skip = A.newlabel("pskip"); loop = A.newlabel("ploop"); done = A.newlabel("pdone"); chk = A.newlabel("pchk")
        A(f"s_cmp_lg_u32 s{sW}, 3"); A(f"s_cbranch_scc1 {skip}")
        A(f"s_mov_b64 s[{sEXS}:{sEXS+1}], exec"); A(f"s_mov_b64 exec, {(1 << nl) - 1}")
        A(f"s_mov_b32 s{sSPIN}, {self.cfg.spin_limit}")
        A.wait(vm=pos)
        A(f"s_branch {chk}")
        A.label(loop)
        A.opt(f"buffer_load_dword v252, v250, {srd(SRD_WS)}, 0 offen sc1")
        A("s_waitcnt vmcnt(0)")
        A.label(chk)
        A("v_cmp_ge_u32 vcc, v252, v251")
        A(f"s_sub_u32 s{sSPIN}, s{sSPIN}, 1"); A(f"s_cbranch_scc1 {done}")
        A("s_cmp_eq_u64 vcc, exec"); A(f"s_cbranch_scc0 {loop}")
        A.label(done)
        A(f"s_mov_b64 exec, s[{sEXS}:{sEXS+1}]")
        A.label(skip)
        A("s_barrier")

    def poll(self, addr_code, nl, target, what):
        self.poll_issue(addr_code, nl, target, what)
        self.poll_check()

    def signal(self, cnt, sidx, what, init_check=False):
        A = self.A
        skip = A.newlabel("askip")
        A(f"s_cmp_lg_u32 s{sW}, 3"); A(f"s_cbranch_scc1 {skip}")
        A(f"s_mov_b64 s[{sEXS}:{sEXS+1}], exec"); A("s_mov_b64 exec, 1")
        if init_check:
            loop = A.newlabel("iloop"); done = A.newlabel("idone"); chk = A.newlabel("ichk")
            A(f"s_mov_b32 s{sSPIN}, {self.cfg.spin_limit}")
            A(f"s_branch {chk}")
            A.label(loop)
            A.opt(f"buffer_load_dword v247, v246, {srd(SRD_DBG)}, 0 offen sc1")
            A("s_waitcnt vmcnt(0)")
            A.label(chk)
            A("v_cmp_eq_u32 vcc, 1, v247")
            A(f"s_sub_u32 s{sSPIN}, s{sSPIN}, 1"); A(f"s_cbranch_scc1 {done}")
            A("s_cmp_eq_u64 vcc, exec"); A(f"s_cbranch_scc0 {loop}")
            A.label(done)
        A(f"s_and_b32 s{sT5}, s{sidx}, {3 if sidx == sRB64 else 1}"); A(f"s_lshl_b32 s{sT5}, s{sT5}, 8"); A(f"s_add_u32 s{sT5}, s{sT5}, s{sSLAB}")
        A(f"s_add_u32 s{sT5}, s{sT5}, {WS_CNT + cnt*CNT_STRIDE}")
        A(f"v_mov_b32 v248, s{sT5}"); A("v_mov_b32 v249, 1")
        A.opt(f"buffer_atomic_add v249, v248, {srd(SRD_WS)}, 0 offen")
        A(f"s_mov_b64 exec, s[{sEXS}:{sEXS+1}]")
        A.label(skip)

    def init_poll_issue(self):
        A = self.A
        skip = A.newlabel("iiskip")
        A(f"s_cmp_lg_u32 s{sW}, 3"); A(f"s_cbranch_scc1 {skip}")
        A.opt(f"buffer_load_dword v247, v246, {srd(SRD_DBG)}, 0 offen sc1")
        A.label(skip)

    def cnt_addr(self, cnt, sidx, delta=0):
        if delta == 0:
            return [f"s_and_b32 s{sT5}, s{sidx}, {3 if sidx == sRB64 else 1}", f"s_lshl_b32 s{sT5}, s{sT5}, 8", f"s_add_u32 s{sT5}, s{sT5}, s{sSLAB}",
                    f"s_add_u32 s{sT5}, s{sT5}, {WS_CNT + cnt*CNT_STRIDE}", f"v_mov_b32 v250, s{sT5}"]
        assert sidx == sRB64
        return [f"s_add_u32 s{sT5}, s{sidx}, {delta}", f"s_max_i32 s{sT5}, s{sT5}, 0", f"v_mov_b32 v250, s{sT5}"] + self.cnt64_v(cnt)

    def cnt64_v(self, cnt):
        return ["v_lshrrev_b32 v251, 2, v250", f"v_lshlrev_b32 v251, {SLAB_SH}, v251", "v_and_b32 v250, 3, v250",
                "v_lshl_add_u32 v250, v250, 8, v251", f"v_add_u32 v250, {WS_CNT + cnt*CNT_STRIDE}, v250"]

    def frag_dest(self, sdst, region):
        A = self.A
        A(f"s_lshl_b32 s{sdst}, s{sR32L}, 15"); A(f"s_lshl_b32 s{sT1}, s{sC}, 12"); A(f"s_add_u32 s{sdst}, s{sdst}, s{sT1}")
        A(f"s_lshl_b32 s{sT1}, s{sCG}, 11"); A(f"s_add_u32 s{sdst}, s{sdst}, s{sT1}"); A(f"s_add_u32 s{sdst}, s{sdst}, s{sSLAB}")
        A(f"s_add_u32 s{sdst}, s{sdst}, {region}")

    def swap_add(self, x, tmp):
        A = self.A
        A(f"v_mov_b32 v{tmp}, v{x}")
        A.nop(2)
        A(f"v_permlane32_swap_b32 v{x}, v{tmp}")
        A.nop(1)
        A(f"v_add_f32 v{x}, v{x}, v{tmp}")

    def prologue(self):
        A = self.A
        A("s_cmp_ge_u32 s2, 256"); A("s_cbranch_scc1 L_end")
        if self.cfg.stamps or self.cfg.dbgtime:
            A(f"s_memrealtime s[{sRT0}:{sRT0+1}]"); A(f"s_memtime s[{sCY0}:{sCY0+1}]")
        A("s_load_dwordx16 s[16:31], s[0:1], 0")
        A("s_load_dwordx4 s[32:35], s[0:1], 64")
        A("s_load_dwordx2 s[36:37], s[0:1], 80")
        A(f"v_lshrrev_b32 v5, 6, v0")
        A(f"v_and_b32 v{vL}, 63, v0")
        A(f"v_readfirstlane_b32 s{sW}, v5")
        A(f"v_and_b32 v{vM}, 31, v{vL}")
        A(f"v_lshrrev_b32 v{vH}, 5, v{vL}")
        A(f"v_lshlrev_b32 v{vL16}, 4, v{vL}")
        A("s_and_b32 s10, s2, 7"); A("s_lshr_b32 s11, s2, 3")
        A(f"s_lshr_b32 s{sT0}, s11, 3"); A(f"s_lshl_b32 s{sRB64}, s10, 2"); A(f"s_add_u32 s{sRB64}, s{sRB64}, s{sT0}")
        A(f"s_and_b32 s{sC}, s11, 7")
        if self.cfg.cxor: A(f"s_xor_b32 s{sC}, s{sC}, {self.cfg.cxor}")
        A(f"s_lshr_b32 s{sT0}, s11, 4"); A(f"s_lshl_b32 s{sRB128}, s10, 1"); A(f"s_add_u32 s{sRB128}, s{sRB128}, s{sT0}")
        A(f"s_and_b32 s{sFT}, s11, 15")
        A(f"s_and_b32 s{sRBK}, s{sW}, 1"); A(f"s_lshr_b32 s{sCG}, s{sW}, 1")
        if self.cfg.rot:
            A(f"s_and_b32 s{sROT}, s{sRB64}, 3"); A(f"s_lshl_b32 s{sROT}, s{sROT}, 1"); A(f"s_add_u32 s{sROT}, s{sROT}, s{sC}"); A(f"s_and_b32 s{sROT}, s{sROT}, 7")
        else:
            A(f"s_mov_b32 s{sROT}, 0")
        A(f"s_lshl_b32 s{sROT8}, s{sROT}, 1"); A(f"s_add_u32 s{sROT8}, s{sROT8}, s{sW}"); A(f"s_lshl_b32 s{sROT8}, s{sROT8}, 2")
        A(f"s_lshl_b32 s{sW4K}, s{sW}, 12")
        A(f"s_lshr_b32 s{sT3}, s2, 3")
        A(f"v_lshrrev_b32 v7, 3, v{vL}")
        A(f"v_and_b32 v8, 7, v{vL}")
        A(f"v_bfe_u32 v9, v{vL}, 4, 1"); A("v_lshlrev_b32 v9, 2, v9"); A("v_xor_b32 v9, v8, v9"); A("v_lshlrev_b32 v9, 4, v9")
        A(f"v_lshl_add_u32 v{vSTR}, v7, 10, v9")
        A(f"v_mul_u32_u24 v{vSTRQ}, 3072, v7"); A(f"v_add_u32 v{vSTRQ}, v{vSTRQ}, v9")
        A(f"v_lshrrev_b32 v9, 4, v{vL}"); A("v_xor_b32 v9, v8, v9"); A("v_lshlrev_b32 v9, 4, v9"); A("v_lshl_add_u32 v14, v7, 10, v9")
        A(f"v_xor_b32 v{vX2}, 64, v14"); A(f"v_add_u32 v{vX2}, 7168, v{vX2}")
        A(f"v_add_u32 v{vSTRJ[1]}, 7168, v{vSTR}")
        A("s_waitcnt lgkmcnt(0)")
        self.stamp("kernarg")
        self.build_srds(((SRD_X, 16, 2097152), (SRD_W1, 24, 524288), (SRD_WQKV, 18, 1572864)))

    def scalar_touch(self):
        A = self.A
        if not self.cfg.stouch: return
        l = A.newlabel("st")
        A(f"s_cmp_lg_u32 s{sW}, {self.cfg.stouch_wave}"); A(f"s_cbranch_scc1 {l}")
        for p in (18, 26, 28, 20, 30, 32, 34):
            A(f"s_load_dword s{sT4}, s[{p}:{p+1}], 0")
        A("s_mov_b32 s12, s36"); A("s_mov_b32 s13, s37")
        for i in range(8):
            A(f"s_load_dword s{sT4}, s[12:13], 0")
            if i < 7: A("s_add_u32 s12, s12, 0x200000"); A("s_addc_u32 s13, s13, 0")
        A.label(l)

    def build_srds(self, lst):
        A = self.A
        for (n, p, size) in lst:
            A(f"s_mov_b32 s{n}, s{p}"); A(f"s_and_b32 s{n+1}, s{p+1}, 0xffff")
            A(f"s_mov_b32 s{n+2}, {size}"); A(f"s_mov_b32 s{n+3}, 0x20000")

    def emit_groups(self, gs):
        for g in gs:
            for ins in g:
                if callable(ins): ins()
                else: self.A(ins)

    def t0_dma(self):
        A = self.A
        self.stamp("touched")
        A(f"s_lshl_b32 s{sXG}, s{sRB64}, 16"); A(f"s_lshl_b32 s{sT0}, s{sW}, 14"); A(f"s_add_u32 s{sXG}, s{sXG}, s{sT0}")
        A(f"s_lshl_b32 s{sW1G}, s{sC}, 7"); A(f"s_add_u32 s{sW1G}, s{sW1G}, s{sT0}")
        A(f"s_lshl_b32 s{sWL}, s{sW}, 11")
        self.chunk_pos = {}
        for q in range(self.cfg.preA): self.emit_groups(self.chunk_dma(q))
        self.scalar_touch()
        self.start_touch()
        self.stamp("preA")
        self.build_srds(((SRD_WS, 36, WS_SIZE), (SRD_DBG, 34, 256), (SRD_WO, 20, 524288), (SRD_W2, 26, 524288),
                         (SRD_W3, 28, 1409024), (SRD_W4, 30, 1409024), (SRD_OUT, 32, 2097152)))
        A(f"s_lshr_b32 s{sSLAB}, s{sRB64}, 2"); A(f"s_lshl_b32 s{sSLAB}, s{sSLAB}, {SLAB_SH}")
        A(f"s_and_b32 s{sR32L}, s{sRB64}, 3"); A(f"s_lshl_b32 s{sR32L}, s{sR32L}, 1"); A(f"s_add_u32 s{sR32L}, s{sR32L}, s{sRBK}")
        A(f"s_and_b32 s{sR32P}, s{sRB128}, 1"); A(f"s_lshl_b32 s{sR32P}, s{sR32P}, 2"); A(f"s_add_u32 s{sR32P}, s{sR32P}, s{sW}")
        l = A.newlabel("zi")
        A(f"s_cmp_lg_u32 s2, 0"); A(f"s_cbranch_scc1 {l}")
        A(f"s_cmp_lg_u32 s{sW}, 3"); A(f"s_cbranch_scc1 {l}")
        A(f"v_lshrrev_b32 v250, 4, v{vL}"); A(f"v_lshlrev_b32 v250, {SLAB_SH}, v250"); A(f"v_and_b32 v251, 15, v{vL}")
        A("v_lshl_add_u32 v250, v251, 8, v250"); A(f"v_add_u32 v250, {WS_CNT}, v250"); A("v_mov_b32 v251, 0")
        A.opt(f"buffer_store_dword v251, v250, {srd(SRD_WS)}, 0 offen sc1")
        A(f"v_add_u32 v250, {4 << SLAB_SH}, v250")
        A.opt(f"buffer_store_dword v251, v250, {srd(SRD_WS)}, 0 offen sc1")
        A.label(l)
        A("v_mov_b32 v246, 0"); A("v_mov_b32 v250, 0")
        self.pos_zero = A.vm_pos()
        if self.cfg.touch_mode == "early": self.weight_touch()

    def start_touch(self):
        A = self.A
        if not self.cfg.touch: return
        le = A.newlabel("te")
        A(f"s_cmp_eq_u32 s{sW}, 3"); A(f"s_cbranch_scc0 {le}")
        A(f"s_mov_b64 s[{sEXS}:{sEXS+1}], exec")
        A("s_mov_b64 exec, 0xff")
        A("s_getpc_b64 s[96:97]")
        A.label("L_pc")
        A(f"s_lshl_b32 s{sT0}, s{sT3}, 10"); A(f"v_lshlrev_b32 v250, 7, v{vL}"); A(f"v_add_u32 v250, s{sT0}, v250")
        A("v_min_u32 v250, L_end-L_pc, v250")
        A.opt("global_load_dword v255, v250, s[96:97]")
        A("s_bfm_b64 exec, 48, 0")
        A(f"s_mul_i32 s{sT0}, s2, {48*128}"); A(f"v_lshlrev_b32 v250, 7, v{vL}")
        A.opt(f"buffer_load_dword v255, v250, {srd(SRD_WQKV)}, s{sT0} offen")
        A(f"s_mov_b64 exec, s[{sEXS}:{sEXS+1}]")
        A.label(le)

    def t0_dma2(self):
        for q in range(self.cfg.preA, self.cfg.pre_chunks): self.emit_groups(self.chunk_dma(q))

    def weight_touch(self, tlb_only=False, with_ws=True):
        A = self.A
        if not self.cfg.touch: return
        le = A.newlabel("lte")
        labels = [A.newlabel("lt") for _ in range(4)]
        A(f"s_mov_b64 s[{sEXS}:{sEXS+1}], exec")
        A(f"v_lshlrev_b32 v250, 7, v{vL}")
        plan = (((SRD_W2, 16, 0), (SRD_WO, 16, 0)), ((SRD_W3, 22, 0), (SRD_W3, 21, 22)), ((SRD_W4, 22, 0), (SRD_W4, 21, 22)), None)
        for w, items in enumerate(plan):
            A.label(labels[w])
            f = A if w == 0 else A.opt
            if w < 3:
                A(f"s_cmp_eq_u32 s{sW}, {w}"); A(f"s_cbranch_scc0 {labels[w+1]}")
                for (srdn, n, first) in items:
                    tot = 16 if srdn in (SRD_W2, SRD_WO) else 43
                    A(f"s_bfm_b64 exec, {n}, 0")
                    A(f"s_mul_i32 s{sT5}, s2, {tot*128}")
                    if first: A(f"s_add_u32 s{sT5}, s{sT5}, {first*128}")
                    f(f"buffer_load_dword v255, v250, {srd(srdn)}, s{sT5} offen")
                A(f"s_branch {le}")
            else:
                A("s_mov_b64 exec, 3"); A(f"v_lshlrev_b32 v250, 20, v{vL}")
                f(f"buffer_load_dword v255, v250, {srd(SRD_OUT)}, 0 offen")
                A("s_mov_b64 exec, 1")
                f(f"buffer_load_dword v255, v246, {srd(SRD_DBG)}, 0 offen")
        A.label(le)
        A(f"s_mov_b64 exec, s[{sEXS}:{sEXS+1}]")

    def l2_touch(self, what):
        A = self.A
        if what not in self.cfg.l2touch.split("+"): return
        T = 240
        srdn, nlines = {"w2": (SRD_W2, 4096), "wo": (SRD_WO, 4096), "w4": (SRD_W4, 11008), "w3": (SRD_W3, 11008),
                        "wq": (SRD_WQKV, 4096), "wv": (SRD_WQKV, 4096)}[what]
        per = nlines // 128
        A(f"s_lshr_b32 s{sT5}, s2, 3"); A(f"s_lshl_b32 s{sT5}, s{sT5}, 2"); A(f"s_add_u32 s{sT5}, s{sT5}, s{sW}")
        if what in ("wq", "wv"):
            A(f"s_mul_i32 s{sT5}, s{sT5}, {4*3072}")
            if what == "wv": A(f"s_add_u32 s{sT5}, s{sT5}, 2048")
            A(f"v_lshrrev_b32 v{T}, 3, v{vL}"); A(f"v_mul_u32_u24 v{T}, 3072, v{T}"); A(f"v_and_b32 v{T+1}, 7, v{vL}")
            A(f"v_lshl_add_u32 v{T}, v{T+1}, 7, v{T}")
        else:
            A(f"s_mul_i32 s{sT5}, s{sT5}, {per*128}")
            A(f"v_lshlrev_b32 v{T}, 7, v{vL}")
        A(f"s_mov_b64 s[{sEXS}:{sEXS+1}], exec")
        for r0 in range(0, per, 64):
            n = min(64, per - r0)
            if n < 64: A(f"s_bfm_b64 exec, {n}, 0")
            if r0: A(f"s_add_u32 s{sT5}, s{sT5}, {64*128}")
            A(f"buffer_load_dword v255, v{T}, {srd(srdn)}, s{sT5} offen")
        A(f"s_mov_b64 exec, s[{sEXS}:{sEXS+1}]")

    def chunk_dma(self, q):
        gs = [[f"s_add_u32 s{sD1}, s{sROT}, {q}", f"s_and_b32 s{sD1}, s{sD1}, 7", f"s_lshl_b32 s{sD0}, s{sD1}, 7",
               f"s_add_u32 m0, s{sWL}, {A0 + q*8192}", f"s_add_u32 s{sD0}, s{sD0}, s{sXG}",
               f"buffer_load_dwordx4 v14, {srd(SRD_X)}, s{sD0} offen lds"],
              [f"buffer_load_dwordx4 v{vX2}, {srd(SRD_X)}, s{sD0} offen offset:1024 lds"],
              [f"s_lshl_b32 s{sD0}, s{sD1}, 16",
               f"s_add_u32 m0, s{sWL}, {B0 + q*8192}", f"s_add_u32 s{sD0}, s{sD0}, s{sW1G}",
               f"buffer_load_dwordx4 v{vSTR}, {srd(SRD_W1)}, s{sD0} offen lds"],
              [f"buffer_load_dwordx4 v{vSTRJ[1]}, {srd(SRD_W1)}, s{sD0} offen offset:1024 lds"]]
        def mark(q=q): self.chunk_pos[q] = self.A.vm_pos()
        gs[-1].append(mark)
        return gs

    def quad(self, pre, srdn, vregs):
        return [(pre if j == 0 else []) + [f"buffer_load_dwordx4 v{vregs[j]}, {srd(srdn)}, s{sG} offen" + (f" offset:{1024*j}" if j else "") + " lds"]
                for j in range(4)]

    def job_strip_qkv(self, which, s0, ns, lds0):
        assert ns % 8 == 0
        groups = []
        for J in range(ns // 8):
            pre = [f"s_add_u32 m0, s{sW4K}, {lds0 + 16384*J}", f"s_add_u32 s{sD0}, s{sROT8}, {2*s0 + 16*J}", f"s_and_b32 s{sD0}, s{sD0}, 63",
                   f"s_mul_i32 s{sD0}, s{sD0}, {8*3072}", f"s_lshl_b32 s{sG}, s{sC}, 7", f"s_add_u32 s{sG}, s{sG}, s{sD0}"]
            if which: pre.append(f"s_add_u32 s{sG}, s{sG}, {which*1024}")
            groups += self.quad(pre, SRD_WQKV, vSTRQJ)
        return groups

    def job_strip(self, srdn, u0, nunits, lds_base):
        assert u0 % 16 == 0 and nunits % 16 == 0 and not self.cfg.krot
        groups = []
        for J in range(nunits // 16):
            u = u0 + 16*J
            pre = [f"s_add_u32 m0, s{sW4K}, {lds_base + 1024*u}", f"s_add_u32 s{sG}, s{sBW}, {u*8192}"]
            groups += self.quad(pre, srdn, vSTRJ)
        return groups

    def job_w3(self, s0, ns, lds0):
        groups = []
        full_prev = False
        for j in range((ns + 3)//4):
            full = 4*j + 3 < ns
            if full and full_prev:
                g = [f"s_add_u32 m0, m0, {4*3072}", f"s_add_u32 s{sG}, s{sG}, {4*16*2752}"]
            else:
                if full:
                    g = [f"s_add_u32 m0, s{sW3L}, {lds0 + 4*j*3072}", f"s_add_u32 s{sD0}, s{sW}, {s0 + 4*j}"]
                else:
                    g = [f"s_add_u32 s{sD1}, s{sW}, {4*j}", f"s_min_u32 s{sD1}, s{sD1}, {ns-1}", f"s_mul_i32 s{sD0}, s{sD1}, 3072",
                         f"s_add_u32 m0, s{sD0}, {lds0}", f"s_add_u32 s{sD0}, s{sD1}, {s0}"]
                g += [f"s_mul_i32 s{sD0}, s{sD0}, {16*2752}", f"s_lshl_b32 s{sD1}, s{sCB0}, 6", f"s_add_u32 s{sG}, s{sD0}, s{sD1}"]
            full_prev = full
            for i in range(3):
                ins = f"buffer_load_dwordx4 v{vW3[i]}, {srd(SRD_W3)}, s{sG} offen" + (f" offset:{1024*i}" if i else "") + " lds"
                groups.append((g if i == 0 else []) + [ins])
        return groups

    def setup2(self):
        A = self.A
        A(f"s_mov_b32 s{sONES}, 0x3f803f80"); A(f"s_mov_b32 s{sPLO}, 0x05040100"); A(f"s_mov_b32 s{sPHI}, 0x07060302")
        if self.cfg.ftswap:
            A(f"s_cmp_eq_u32 s{sFT}, 3"); A(f"s_cselect_b32 s{sT0}, 12, s{sFT}")
            A(f"s_cmp_eq_u32 s{sFT}, 12"); A(f"s_cselect_b32 s{sFT}, 3, s{sT0}")
        A(f"s_mul_i32 s{sCB0}, s{sFT}, 3"); A(f"s_mov_b32 s{sNBLK}, 3")
        A(f"s_cmp_lt_u32 s{sFT}, 11"); l = A.newlabel("ft"); A(f"s_cbranch_scc1 {l}")
        A(f"s_lshl_b32 s{sCB0}, s{sFT}, 1"); A(f"s_add_u32 s{sCB0}, s{sCB0}, 11"); A(f"s_mov_b32 s{sNBLK}, 2")
        A.label(l)
        A(f"s_lshl_b32 s{sBW}, s{sC}, 7"); A(f"s_lshl_b32 s{sT0}, s{sW}, 15"); A(f"s_add_u32 s{sBW}, s{sBW}, s{sT0}")
        A(f"s_lshl_b32 s{sBW4}, s{sC}, 7"); A(f"s_lshl_b32 s{sT0}, s{sW}, 14"); A(f"s_add_u32 s{sBW4}, s{sBW4}, s{sT0}")
        A(f"s_mul_i32 s{sW3L}, s{sW}, 3072")
        A(f"s_mov_b32 s{sR3}, 0"); A(f"s_mov_b32 s{sKR}, 0")
        for j in (2, 3): A(f"v_add_u32 v{vSTRJ[j]}, {7168*j}, v{vSTR}")
        A(f"v_add_u32 v{vS4J[2]}, {43*16384 - 2048}, v{vSTR}"); A(f"v_add_u32 v{vS4J[3]}, {43*16384 + 8192 - 3072}, v{vSTR}")
        for j in (1, 2, 3): A(f"v_add_u32 v{vSTRQJ[j]}, {23552*j}, v{vSTRQ}")
        T = vT
        A(f"v_bfe_u32 v{T}, v{vL}, 2, 2")
        A(f"v_and_b32 v{T+1}, 3, v{vL}"); A(f"v_lshlrev_b32 v{T+1}, 3, v{T+1}")
        A(f"v_bfe_u32 v{T+2}, v{vL}, 4, 1"); A(f"v_lshl_add_u32 v{T+1}, v{T+2}, 5, v{T+1}")
        A(f"v_lshrrev_b32 v{T+2}, 1, v{T}")
        A(f"v_xor_b32 v{T+3}, s{sCG}, v{T+2}")
        A(f"v_lshlrev_b32 v{T+3}, 6, v{T+3}")
        A(f"v_lshl_add_u32 v{T+4}, v{T}, 7, v{T+1}")
        A(f"v_add_u32 v{T+4}, v{T+4}, v{T+3}")
        A(f"v_lshl_add_u32 v{vTRN}, v{vH}, 10, v{T+4}")
        A(f"v_lshl_add_u32 v{vTRC0}, v{vH}, 9, v{T+4}")
        A(f"v_xor_b32 v{vTRC1}, 64, v{vTRC0}")
        A(f"v_mul_u32_u24 v{T+5}, 192, v{T}"); A(f"v_add_u32 v{T+5}, v{T+5}, v{T+1}")
        A(f"v_mul_u32_u24 v{T+6}, 768, v{vH}"); A(f"v_add_u32 v{vTR3}, v{T+5}, v{T+6}")
        A(f"s_mov_b32 s{sT0}, 43691"); A(f"s_movk_i32 s{sT1}, 2752")
        for j in range(3):
            A(f"v_add_u32 v{T}, {64*j}, v{vL}")
            A(f"v_mul_u32_u24 v{T+1}, s{sT0}, v{T}"); A(f"v_lshrrev_b32 v{T+1}, 19, v{T+1}")
            A(f"v_mul_u32_u24 v{T+2}, 12, v{T+1}"); A(f"v_sub_u32 v{T+2}, v{T}, v{T+2}")
            A(f"v_mul_u32_u24 v{T+1}, s{sT1}, v{T+1}")
            A(f"v_lshl_add_u32 v{vW3[j]}, v{T+2}, 4, v{T+1}")
            if j: A(f"v_subrev_u32 v{vW3[j]}, {1024*j}, v{vW3[j]}")

    def p1_h(self):
        A = self.A
        T = vT
        vXA = [T, T+1, T+2, T+3]; vXS = [T+4, T+5]
        A(f"s_lshl_b32 s{sT0}, s{sRBK}, 5"); A(f"v_add_u32 v{T+6}, s{sT0}, v{vM}")
        A(f"v_bfe_u32 v{T+7}, v{T+6}, 1, 3"); A(f"v_xor_b32 v{T+7}, v{T+7}, v{vH}"); A(f"v_lshlrev_b32 v{T+7}, 4, v{T+7}")
        A(f"v_lshl_add_u32 v{vXA[0]}, v{T+6}, 7, v{T+7}")
        for s in range(1, 4): A(f"v_xor_b32 v{vXA[s]}, {32*s}, v{vXA[0]}")
        A(f"s_lshl_b32 s{sT0}, s{sCG}, 6"); A(f"v_xor_b32 v{vXS[0]}, s{sT0}, v{vXA[0]}"); A(f"v_xor_b32 v{vXS[1]}, 32, v{vXS[0]}")
        vXR = T+8
        A(f"v_bfe_u32 v{T+7}, v{T+6}, 1, 3"); A(f"s_lshl_b32 s{sT0}, s{sCG}, 2"); A(f"v_xor_b32 v{T+7}, s{sT0}, v{T+7}")
        A(f"v_lshlrev_b32 v{T+7}, 4, v{T+7}"); A(f"v_lshl_add_u32 v{T+7}, v{T+6}, 7, v{T+7}")
        A(f"v_lshl_add_u32 v{T+7}, v{vH}, 3, v{T+7}")
        A(f"s_sub_u32 s{sXSLOT}, s{sC}, s{sROT}"); A(f"s_and_b32 s{sXSLOT}, s{sXSLOT}, 7"); A(f"s_lshl_b32 s{sT0}, s{sXSLOT}, 13"); A(f"v_add_u32 v{vXR}, s{sT0}, v{T+7}")
        vWB = T+9
        A(f"v_add_u32 v{vWB}, {B0}, v{vTRN}")
        vS0, vS1, vQ0, vQ1, vC0, vC1 = T+10, T+11, T+12, T+13, T+14, T+15
        for r in (vS0, vS1, vQ0, vQ1, vC0, vC1): A(f"v_mov_b32 v{r}, 0")
        XT = T+16
        acc = vACC0
        def reads(q):
            L = []
            for s in range(4):
                b = vRING + 4*(4*(q & 1) + s)
                st = 4*q + s
                L.append([f"ds_read_b128 {a(4*st,4)}, v{vXA[s]} offset:{q*8192}",
                          f"ds_read_b64_tr_b16 {v(b,2)}, v{vWB} offset:{st*2048}",
                          f"ds_read_b64_tr_b16 {v(b+2,2)}, v{vWB} offset:{st*2048+512}"])
            L[0].append(f"ds_read_b128 {v(XT+8*(q&1),4)}, v{vXS[0]} offset:{q*8192}")
            L[1].append(f"ds_read_b128 {v(XT+8*(q&1)+4,4)}, v{vXS[1]} offset:{q*8192}")
            return L
        def burst(q):
            x = XT + 8*(q & 1)
            for i in range(8):
                A(f"v_dot2c_f32_bf16 v{vS0 + (i&1)}, s{sONES}, v{x+i}")
                A(f"v_dot2c_f32_bf16 v{vQ0 + (i&1)}, v{x+i}, v{x+i}")
            l1 = A.newlabel("cs"); l2 = A.newlabel("ce")
            b = vRING + 16*(q & 1)
            A(f"s_cmp_lg_u32 s{sRBK}, 0"); A(f"s_cbranch_scc1 {l1}")
            for i in range(8): A(f"v_dot2c_f32_bf16 v{vC0 + (i&1)}, s{sONES}, v{b+i}")
            A(f"s_branch {l2}")
            A.label(l1)
            for i in range(8): A(f"v_dot2c_f32_bf16 v{vC0 + (i&1)}, s{sONES}, v{b+8+i}")
            A.label(l2)
        for q in range(9):
            if q < 8:
                A.wait(vm=self.chunk_pos[q])
                if q == self.cfg.preA:
                    l = A.newlabel("fi")
                    A(f"s_cmp_lg_u32 s2, 0"); A(f"s_cbranch_scc1 {l}")
                    A(f"s_cmp_lg_u32 s{sW}, 3"); A(f"s_cbranch_scc1 {l}")
                    A("v_mov_b32 v250, 0"); A("v_mov_b32 v251, 1")
                    A(f"s_mov_b64 s[{sEXS}:{sEXS+1}], exec"); A("s_mov_b64 exec, 1")
                    A.opt(f"buffer_store_dword v251, v250, {srd(SRD_DBG)}, 0 offen sc1")
                    A(f"s_mov_b64 exec, s[{sEXS}:{sEXS+1}]")
                    A.label(l)
            A.wait_all_lg()
            if q < 8: A("s_barrier")
            rd = reads(q) if q < 8 else [[], [], [], []]
            if q < 8 and (q == 0 or self.cfg.chunkstamps):
                self.stamp(f"chunk{q}")
            if q in (0, 2, 4, 6):
                l = A.newlabel("xr")
                A(f"s_cmp_lg_u32 s{sXSLOT}, {q}"); A(f"s_cbranch_scc1 {l}")
                for g in range(4):
                    A(f"v_xor_b32 v{T+32}, {16*g}, v{vXR}")
                    A.opt(f"ds_read_b64 {v(vXRES+2*g,2)}, v{T+32}")
                A.label(l)
            if q == 0:
                for g in rd:
                    for ins in g: A(ins)
                continue
            p = q - 1
            nxt = q + self.cfg.pre_chunks - 1
            if nxt <= 7: self.side += self.chunk_dma(nxt)
            elif not self.kA_queued:
                assert q >= 6
                self.kA_queued = True
                self.queue(self.job_strip_qkv(1, 0, 8, C0))
                self.queue(self.job_strip_qkv(1, 8, 16, A0))
                self.queue(self.job_strip_qkv(1, 24, 8, A0 + 32768), "pos_kB")
                if self.cfg.early_kv: self.queue(self.job_strip_qkv(2, 0, 16, B0))
            if q == 6: self.init_poll_issue()
            if q == 5 and self.cfg.touch:
                A(f"s_mov_b64 s[{sEXS}:{sEXS+1}], exec"); A("s_mov_b64 exec, 1")
                A(f"buffer_load_dword v255, v246, {srd(SRD_WS)}, s{sSLAB} offen")
                A(f"s_mov_b64 exec, s[{sEXS}:{sEXS+1}]")
            for s in range(4):
                st = 4*p + s
                b = vRING + 4*(4*(p & 1) + s)
                c = "0" if st == 0 else v(acc, 16)
                A(f"v_mfma_f32_32x32x16_bf16 {v(acc,16)}, {v(b,4)}, {a(4*st,4)}, {c}")
                for ins in rd[s]: A(ins)
                self.pump(2 if q >= 6 else 1)
            burst(p)
        self.flush_side()
        self.vS = (vS0, vS1, vQ0, vQ1, vC0, vC1)

    def colsum_finish(self, vC0, vC1, scr_off, tmp, pre=None, post=None):
        A = self.A
        A.nop(3)
        A(f"v_add_f32 v{vC0}, v{vC0}, v{vC1}")
        self.swap_add(vC0, tmp)
        A(f"s_lshl_b32 s{sT0}, s{sW}, 7"); A(f"v_lshl_add_u32 v{tmp}, v{vM}, 2, s{sT0}")
        A(f"v_add_u32 v{tmp}, {scr_off}, v{tmp}")
        A(f"ds_write_b32 v{tmp}, v{vC0}")
        if pre: pre()
        A.wait_all_lg()
        A("s_barrier")
        A(f"v_xor_b32 v{tmp}, 128, v{tmp}")
        A(f"ds_read_b32 v{vC1}, v{tmp}")
        if post: post()
        A(f"v_cmp_gt_u32 vcc, 32, v{vL}")
        A.wait_all_lg()
        A(f"v_add_f32 v{vC0}, v{vC0}, v{vC1}")
        A(f"v_cndmask_b32 v{vC0}, 0, v{vC0}, vcc")

    def p1_h_finish(self):
        A = self.A
        T = vT
        vS0, vS1, vQ0, vQ1, vC0, vC1 = self.vS
        acc = vACC0
        A.nop(3)
        A(f"v_add_f32 v{vS0}, v{vS0}, v{vS1}"); A(f"v_add_f32 v{vQ0}, v{vQ0}, v{vQ1}"); A(f"v_add_f32 v{vC0}, v{vC0}, v{vC1}")
        tmp = T+33
        self.swap_add(vS0, tmp); self.swap_add(vQ0, tmp); self.swap_add(vC0, tmp)
        A(f"s_lshl_b32 s{sT0}, s{sW}, 8"); A(f"v_lshl_add_u32 v{tmp}, v{vM}, 3, s{sT0}"); A(f"v_add_u32 v{tmp}, {SCR1}, v{tmp}")
        A(f"v_mov_b32 v{vS1}, v{vQ0}")
        A(f"ds_write_b64 v{tmp}, {v(vS0,2)}")
        A(f"s_lshl_b32 s{sT0}, s{sW}, 7"); A(f"v_lshl_add_u32 v{tmp+1}, v{vM}, 2, s{sT0}"); A(f"v_add_u32 v{tmp+1}, {SCR1+1024}, v{tmp+1}")
        A(f"ds_write_b32 v{tmp+1}, v{vC0}")
        A.wait_all_lg()
        A("s_barrier")
        A(f"v_xor_b32 v{tmp}, 512, v{tmp}"); A(f"v_xor_b32 v{tmp+1}, 128, v{tmp+1}")
        A(f"ds_read_b64 {v(vQ0,2)}, v{tmp}")
        A(f"ds_read_b32 v{vC1}, v{tmp+1}")
        if self.cfg.early_kv: self.queue(self.job_strip_qkv(2, 16, 16, B0 + 32768), "pos_v")
        else: self.queue(self.job_strip_qkv(2, 0, 32, B0), "pos_v")
        A.auto = self.cfg.auto
        A(f"v_cmp_gt_u32 vcc, 32, v{vL}")
        A.wait_all_lg()
        A(f"v_add_f32 v{vS0}, v{vS0}, v{vQ0}"); A(f"v_add_f32 v{vS1}, v{vS1}, v{vQ1}"); A(f"v_add_f32 v{vC0}, v{vC0}, v{vC1}")
        A(f"v_cndmask_b32 v{vC0}, 0, v{vC0}, vcc")
        self.fstamp("he", "he:exch")
        A(f"v_mul_f32 v{vS0}, {fbits(1/512)}, v{vS0}")
        A(f"v_mul_f32 v{vS1}, {fbits(1/512)}, v{vS1}")
        A(f"v_sub_f32 v{vNMU}, 0, v{vS0}")
        A(f"v_fma_f32 v{vS1}, v{vNMU}, v{vS0}, v{vS1}")
        A(f"v_max_f32 v{vS1}, 0, v{vS1}")
        A(f"v_mfma_f32_32x32x2_f32 {v(acc,16)}, v{vC0}, v{vNMU}, {v(acc,16)}")
        mk = A.mark()
        A(f"v_add_f32 v{vQ0}, {fbits(1e-5)}, v{vS1}")
        A(f"v_rsq_f32 v{vR}, v{vQ0}")
        A.nop(1)
        A(f"v_mul_f32 v{vQ0}, v{vR}, v{vR}"); A(f"v_mul_f32 v{vQ0}, v{vQ0}, v{vS1}")
        A(f"v_add_f32 v{vQ0}, {fbits(1e-5)}, v{vQ0}")
        A(f"v_rsq_f32 v{vQ0}, v{vQ0}")
        A.nop(1)
        A(f"v_mul_f32 v{vQ0}, v{vQ0}, v{vR}")
        self.fstamp("he", "he:stats")
        self.gelu_block(acc, vQ0, T+34, mk)
        self.fstamp("he", "he:gelu")
        self.frag_dest(sT0, WS_H)
        self.pstore(f"buffer_store_dwordx4 {v(acc,4)}, v{vL16}, {srd(SRD_WS)}, s{sT0} offen sc1")
        self.pstore(f"buffer_store_dwordx4 {v(acc+4,4)}, v{vL16}, {srd(SRD_WS)}, s{sT0} offen offset:1024 sc1")
        self.pos_h = A.vm_pos()
        A.auto = 0
        self.flush_side()
        if self.cfg.touch_mode == "late": self.weight_touch()
        self.l2_touch("w2"); self.l2_touch("wq")

    def gelu_consts(self, vS, tmp):
        A = self.A
        K1, K0, RI = tmp, tmp+2, tmp+4
        A(f"v_mul_f32 v{K0}, {fbits(C0G)}, v{vS}")
        A(f"v_mul_f32 v{K1}, v{vS}, v{vS}"); A(f"v_mul_f32 v{K1}, v{K1}, v{vS}"); A(f"v_mul_f32 v{K1}, {fbits(C1G)}, v{K1}")
        A(f"v_rcp_f32 v{RI}, v{vS}")
        A(f"v_mov_b32 v{K0+1}, v{K0}"); A(f"v_mov_b32 v{K1+1}, v{K1}"); A(f"v_mov_b32 v{RI+1}, v{RI}")
        return (K1, K0, RI, tmp + 6)

    def gelu_body(self, acc, GK):
        A = self.A
        K1, K0, RI, t = GK
        for p in range(0, 16, 4):
            x0, x1 = acc + p, acc + p + 2
            u0, u1 = t, t + 2
            A(f"v_pk_mul_f32 {v(u0,2)}, {v(x0,2)}, {v(x0,2)}")
            A(f"v_pk_mul_f32 {v(u1,2)}, {v(x1,2)}, {v(x1,2)}")
            A(f"v_pk_fma_f32 {v(u0,2)}, {v(u0,2)}, {v(K1,2)}, {v(K0,2)}")
            A(f"v_pk_fma_f32 {v(u1,2)}, {v(u1,2)}, {v(K1,2)}, {v(K0,2)}")
            A(f"v_pk_mul_f32 {v(u0,2)}, {v(u0,2)}, {v(x0,2)}")
            A(f"v_pk_mul_f32 {v(u1,2)}, {v(u1,2)}, {v(x1,2)}")
            for r in (u0, u0+1, u1, u1+1): A(f"v_exp_f32 v{r}, v{r}")
            A(f"v_pk_fma_f32 {v(u0,2)}, {v(u0,2)}, {v(RI,2)}, {v(RI,2)}")
            A(f"v_pk_fma_f32 {v(u1,2)}, {v(u1,2)}, {v(RI,2)}, {v(RI,2)}")
            for r in (u0, u0+1, u1, u1+1): A(f"v_rcp_f32 v{r}, v{r}")
            A(f"v_pk_mul_f32 {v(u0,2)}, {v(u0,2)}, {v(x0,2)}")
            A(f"v_pk_mul_f32 {v(u1,2)}, {v(u1,2)}, {v(x1,2)}")
            A(f"v_cvt_pk_bf16_f32 v{acc + p//2}, v{u0}, v{u0+1}")
            A(f"v_cvt_pk_bf16_f32 v{acc + p//2 + 1}, v{u1}, v{u1+1}")

    def gelu_block(self, acc, vS, tmp, mk):
        GK = self.gelu_consts(vS, tmp)
        self.A.pad(mk, 18)
        self.gelu_body(acc, GK)

    def qkv_main(self, addr, hooks, side_rate=2, mid=None):
        A = self.A
        T = vT
        acc = vACC0
        PD = 2
        bases = {}
        for st in range(32):
            for d in (0, 512):
                win = (addr(st) + d) // 65536
                if win not in bases:
                    r = T + 40 + len(bases)
                    if win: A(f"v_add_u32 v{r}, {win*65536}, v{vTRN}")
                    else: A(f"v_mov_b32 v{r}, v{vTRN}")
                    bases[win] = r
        vC0, vC1 = T+14, T+15
        A(f"v_mov_b32 v{vC0}, 0"); A(f"v_mov_b32 v{vC1}, 0")
        lgpos = {}
        def burst(steps):
            for st in steps:
                b = vRING + 4*(st % 18)
                for i in range(4): A(f"v_dot2c_f32_bf16 v{vC0 + (i&1)}, s{sONES}, v{b+i}")
                self.tick(18)
        self.credit = 0
        for s in range(32 + PD):
            if s < 32:
                if s in hooks: hooks[s]()
                ad = addr(s)
                b = vRING + 4*(s % 18)
                for (kk, d) in ((0, 0), (2, 512)):
                    x = ad + d
                    A(f"ds_read_b64_tr_b16 {v(b+kk,2)}, v{bases[x // 65536]} offset:{x % 65536}")
                lgpos[s] = A.lg_pos()
            if s >= PD:
                t = s - PD
                A.wait(lg=lgpos[t])
                b = vRING + 4*(t % 18)
                c = "0" if t == 0 else v(acc, 16)
                A(f"v_mfma_f32_32x32x16_bf16 {v(acc,16)}, {v(b,4)}, {a(4*t,4)}, {c}")
                self.tick(33)
                if mid and t in mid: mid[t]()
                if t == 15:
                    self.fstamp("qkv", "t15>")
                    burst(range(0, 16))
                    self.fstamp("qkv", "t15<")
        self.fstamp("qkv", "loop<")
        burst(range(16, 32))

    def qkv_tail(self, dst, keep_auto=False):
        A = self.A
        T = vT
        acc = vACC0
        vC0, vC1 = T+14, T+15
        A(f"v_cmp_gt_u32 vcc, 32, v{vL}")
        A.nop(2)
        A(f"v_add_f32 v{vC0}, v{vC0}, v{vC1}")
        self.swap_add(vC0, T+33)
        A(f"v_cndmask_b32 v{vC0}, 0, v{vC0}, vcc")
        A.nop(2)
        A(f"v_mfma_f32_32x32x2_f32 {v(acc,16)}, v{vC0}, v{vNMU}, {v(acc,16)}")
        mk = A.mark()
        A.auto = 0
        self.pump(3)
        A.pad(mk, 18)
        A.auto = self.cfg.auto
        for i in range(8):
            A(f"v_mul_f32 v{acc+2*i}, v{vR}, v{acc+2*i}"); A(f"v_mul_f32 v{acc+2*i+1}, v{vR}, v{acc+2*i+1}")
            A(f"v_cvt_pk_bf16_f32 v{dst+i}, v{acc+2*i}, v{acc+2*i+1}")
        A.auto = 0
        A.nop(2)
        for i in range(4): A(f"v_permlane32_swap_b32 v{dst+i}, v{dst+4+i}")

    def shadow1(self):
        A = self.A
        def addr_k(s): return C0 + s*2048 if s < 8 else A0 + (s-8)*2048
        def hk0(): A.wait(vm=self.pos_kB); A("s_barrier"); self.stamp("hk0")
        n1 = self.cfg.w2_in_k
        mids = {8: lambda: self.l2_touch("w3")}
        if n1: mids[16] = lambda: self.queue(self.job_strip(SRD_W2, 64 - n1, n1, A0))
        self.qkv_main(addr_k, {0: hk0}, mid=mids)
        self.flush_side()
        self.stamp("k loop")
        A.wait(vm=self.pos_h)
        A("s_barrier")
        self.stamp("h drained")
        self.signal(CNT_H, sRB64, "h", init_check=True)
        self.queue(self.job_strip(SRD_W2, 0, 64 - n1, A0), "pos_w2")
        self.queue(self.job_w3(0, 8, C0) + self.job_w3_small(30, 2, C0 + 8*3072))
        self.qkv_tail(vKP)
        self.stamp("k done")
        self.p2_setup()
        def hv0(): A.wait(vm=self.pos_v); A("s_barrier"); self.stamp("hv0")
        hcode = [f"s_add_u32 s{sT5}, s{sRB64}, -1", f"v_add_u32 v250, s{sT5}, v{vL}",
                 "v_max_i32 v250, 0, v250", "v_min_i32 v250, 31, v250"] + self.cnt64_v(CNT_H)
        self.qkv_main(lambda s: B0 + s*2048, {0: hv0}, side_rate=1, mid={self.cfg.hpoll_at: lambda: self.poll_issue(hcode, 3, 8, "h"), 20: lambda: self.l2_touch("wo")})
        self.flush_side()
        self.stamp("v loop")

    def halo_publish(self):
        A = self.A
        l = A.newlabel("halo")
        A(f"s_cmp_lg_u32 s{sRBK}, 1"); A(f"s_cbranch_scc1 {l}")
        T = vT
        A(f"s_and_b32 s{sT0}, s{sRB64}, 3"); A(f"s_lshl_b32 s{sT0}, s{sT0}, 3"); A(f"s_add_u32 s{sT0}, s{sT0}, s{sC}"); A(f"s_lshl_b32 s{sT0}, s{sT0}, 12")
        A(f"s_lshl_b32 s{sT1}, s{sCG}, 10"); A(f"s_add_u32 s{sT0}, s{sT0}, s{sT1}"); A(f"s_add_u32 s{sT0}, s{sT0}, s{sSLAB}"); A(f"s_add_u32 s{sT0}, s{sT0}, {WS_KV}")
        A(f"v_subrev_u32 v{T}, 16, v{vM}"); A(f"v_lshlrev_b32 v{T}, 4, v{T}"); A(f"v_lshl_add_u32 v{T}, v{vH}, 9, v{T}")
        A(f"v_cmp_le_u32 vcc, 16, v{vM}")
        A(f"s_and_saveexec_b64 s[{sEXS}:{sEXS+1}], vcc")
        self.pstore(f"buffer_store_dwordx4 {v(vKP,4)}, v{T}, {srd(SRD_WS)}, s{sT0} offen sc1", opt=True)
        self.pstore(f"buffer_store_dwordx4 {v(vKP+4,4)}, v{T}, {srd(SRD_WS)}, s{sT0} offen offset:256 sc1", opt=True)
        self.pstore(f"buffer_store_dwordx4 {v(vVP,4)}, v{T}, {srd(SRD_WS)}, s{sT0} offen offset:2048 sc1", opt=True)
        self.pstore(f"buffer_store_dwordx4 {v(vVP+4,4)}, v{T}, {srd(SRD_WS)}, s{sT0} offen offset:2304 sc1", opt=True)
        A(f"s_mov_b64 exec, s[{sEXS}:{sEXS+1}]")
        A.label(l)
        self.pos_halo = A.vm_pos()

    def ksplit_gemm(self, nsteps, wbase_vregs, waddr, act_load, first, nring_regs, PDL, hooks=None, side_rate=1, tail=None, pre=None, window=None):
        A = self.A
        hooks = hooks or {}
        acts = {}; apos = {}
        def issue(i):
            acts[i] = act_load(i); apos[i] = A.vm_pos()
        if act_load is None:
            acts, apos = pre
        elif window:
            rest = self.side
            self.side = [[(lambda i=i: issue(i))] for i in range(min(PDL, nsteps))]
            self.pump(2)
            assert not rest
            window()
            while len(apos) < min(PDL, nsteps): self.pump(1)
        else:
            for i in range(min(PDL, nsteps)): issue(i)
        PD = 2
        lgpos = {}
        def wreads(s, cb):
            ad = waddr(s)
            if ad is None: return
            b = vRING + 4*(2*(s % 4) + cb)
            A(f"ds_read_b64_tr_b16 {v(b,2)}, v{wbase_vregs[cb]} offset:{ad}")
            A(f"ds_read_b64_tr_b16 {v(b+2,2)}, v{wbase_vregs[cb]} offset:{ad+1024}")
        for s in range(min(PD, nsteps)):
            wreads(s, 0); wreads(s, 1); lgpos[s] = A.lg_pos()
        for t in range(nsteps):
            s = t + PD
            A.wait(vm=apos[t], lg=lgpos[t] if waddr(t) is not None else None)
            for cb in range(2):
                acc = (vACC0, vACC1)[cb]
                c = "0" if (first and t == 0) else v(acc, 16)
                if waddr(t) is not None:
                    wa = v(vRING + 4*(2*(t % 4) + cb), 4)
                else:
                    wa = a(tail(t)[cb], 4)
                A(f"v_mfma_f32_32x32x16_bf16 {v(acc,16)}, {wa}, {a(acts[t],4)}, {c}")
                if s < nsteps: wreads(s, cb)
                if cb == 0 and waddr(t) is None:
                    if t % side_rate == 0: self.pump(1)
            if s < nsteps: lgpos[s] = A.lg_pos()
            if act_load is not None and t + PDL < nsteps: issue(t + PDL)
            elif waddr(t) is not None and t % side_rate == 0: self.pump(1)

    def pair_reduce(self, scr, pre=None, post=None):
        A = self.A
        T = vT
        A(f"s_lshl_b32 s{sT0}, s{sW}, 12"); A(f"s_add_u32 s{sT1}, s{sT0}, {scr}"); A(f"v_add_u32 v{T}, s{sT1}, v{vL16}")
        A(f"s_xor_b32 s{sT0}, s{sT0}, 8192"); A(f"s_add_u32 s{sT0}, s{sT0}, {scr}"); A(f"v_add_u32 v{T+1}, s{sT0}, v{vL16}")
        A.nop(12 - 6)
        for j in range(4): A(f"ds_write_b128 v{T}, {v(vACC1+4*j,4)} offset:{1024*j}")
        self.fstamp("p2e", "red:written")
        if pre: pre()
        A.wait_all_lg()
        self.fstamp("p2e", "red:waited")
        A("s_barrier")
        self.fstamp("p2e", "red:barrier")
        for j in range(4): A(f"ds_read_b128 {v(T+4+4*j,4)}, v{T+1} offset:{1024*j}")
        if post: post()
        for j in range(4):
            A.wait(lg=A.lg_pos() - (3 - j))
            for i in range(4): A(f"v_add_f32 v{vACC0+4*j+i}, v{vACC0+4*j+i}, v{T+4+4*j+i}")

    def p2_setup(self):
        A = self.A
        T = vT
        vA, vB = T+50, T+51
        A(f"s_lshl_b32 s{sT0}, s{sRB64}, 6"); A(f"s_lshl_b32 s{sT1}, s{sRBK}, 5"); A(f"s_add_u32 s{sT0}, s{sT0}, s{sT1}")
        A(f"s_add_u32 s{sT1}, s{sCG}, 1")
        for (dst, sign) in ((vA, -1), (vB, +1)):
            A(f"v_add_u32 v{T}, s{sT0}, v{vM}")
            if sign < 0: A(f"v_subrev_u32 v{T}, s{sT1}, v{T}")
            else: A(f"v_add_u32 v{T}, s{sT1}, v{T}")
            A(f"v_lshrrev_b32 v{T+1}, 8, v{T}"); A(f"v_lshlrev_b32 v{T+1}, {SLAB_SH}, v{T+1}")
            A(f"v_bfe_u32 v{T+2}, v{T}, 5, 3"); A(f"v_lshl_add_u32 v{T+1}, v{T+2}, 15, v{T+1}")
            A(f"v_and_b32 v{T+2}, 31, v{T}"); A(f"v_lshl_add_u32 v{T+1}, v{T+2}, 4, v{T+1}")
            A(f"v_lshl_add_u32 v{T+1}, v{vH}, 9, v{T+1}")
            A(f"v_mov_b32 v{T+2}, 0x80000000")
            A(f"s_movk_i32 s{sT2}, 2048"); A(f"v_cmp_gt_u32 vcc, s{sT2}, v{T}")
            A.nop(2)
            A(f"v_cndmask_b32 v{dst}, v{T+2}, v{T+1}, vcc")
        vW0, vW1 = T+52, T+53
        A(f"s_lshl_b32 s{sT0}, s{sCG}, 15"); A(f"v_add_u32 v{vW0}, s{sT0}, v{vTRC0}"); A(f"v_add_u32 v{vW1}, s{sT0}, v{vTRC1}")

    def p2(self):
        A = self.A
        T = vT
        vA, vB = T+50, T+51
        vW0, vW1 = T+52, T+53
        A(f"s_lshl_b32 s{sAS}, s{sCG}, 14"); A(f"s_add_u32 s{sAS}, s{sAS}, {WS_H}")
        A(f"s_add_u32 s{sAE}, s{sAS}, 8192"); A(f"s_lshl_b32 s{sT3}, s{sKR}, 10"); A(f"s_add_u32 s{sT3}, s{sT3}, s{sAS}")
        A.wait(vm=self.pos_w2)
        self.poll_check()
        self.stamp("sync1")
        def act(i):
            r = 128 + 4*i
            if not self.cfg.krot:
                if i % 4 == 0 and i > 0: A(f"s_add_u32 s{sT3}, s{sT3}, 4096")
                A(f"buffer_load_dwordx4 {a(r,4)}, v{vA if i < 8 else vB}, {srd(SRD_WS)}, s{sT3} offen offset:{(i%4)*1024} sc1")
                return r
            if i == 8:
                A(f"s_add_u32 s{sAS}, s{sAS}, 8192"); A(f"s_add_u32 s{sAE}, s{sAE}, 8192")
                A(f"s_lshl_b32 s{sT3}, s{sKR}, 10"); A(f"s_add_u32 s{sT3}, s{sT3}, s{sAS}")
            elif i > 0:
                A(f"s_add_u32 s{sT3}, s{sT3}, 1024"); A(f"s_cmp_eq_u32 s{sT3}, s{sAE}"); A(f"s_cselect_b32 s{sT3}, s{sAS}, s{sT3}")
            A(f"buffer_load_dwordx4 {a(r,4)}, v{vA if i < 8 else vB}, {srd(SRD_WS)}, s{sT3} offen sc1")
            return r
        def window():
            A.auto = self.cfg.auto
            self.qkv_tail(vVP, keep_auto=True)
            A.auto = 0
            self.halo_publish()
            self.queue(self.job_strip_qkv(0, 0, 32, B0), "pos_q")
            self.stamp("v tail")
        self.ksplit_gemm(16, (vW0, vW1), lambda i: i*2048, act, True, 0, self.cfg.pdl2, side_rate=1, window=window)
        A("s_barrier")
        self.stamp("p2 main")
        self.pair_reduce(A0 + 51200, pre=lambda: A.wait(vm=self.pos_halo), post=lambda: self.signal(CNT_KV, sRB64, "kv halo"))
        self.fstamp("p2e", "red:done")
        A.auto = self.cfg.auto
        X = T+20
        for j in range(8):
            A(f"v_lshlrev_b32 v{X+2*j}, 16, v{vXRES+j}"); A(f"v_and_b32 v{X+2*j+1}, 0xffff0000, v{vXRES+j}")
        S0, S1 = T+40, T+41
        NM, RR, TT, SA, SB = T+36, T+38, T+42, T+44, T+46
        A(f"v_mov_b32 v{NM}, v{vNMU}"); A(f"v_mov_b32 v{NM+1}, v{vNMU}"); A(f"v_mov_b32 v{RR}, v{vR}"); A(f"v_mov_b32 v{RR+1}, v{vR}")
        for i in range(0, 16, 2):
            A(f"v_pk_add_f32 {v(TT,2)}, {v(X+i,2)}, {v(NM,2)}")
            A(f"v_pk_fma_f32 {v(vACC0+i,2)}, {v(TT,2)}, {v(RR,2)}, {v(vACC0+i,2)}")
            A(f"v_pk_add_f32 {v(vRESID+i,2)}, {v(X+i,2)}, {v(vACC0+i,2)}")
            if i == 0:
                A(f"v_mov_b32 v{SA}, v{vACC0}"); A(f"v_mov_b32 v{SA+1}, v{vACC0+1}")
                A(f"v_pk_mul_f32 {v(SB,2)}, {v(vACC0,2)}, {v(vACC0,2)}")
            else:
                A(f"v_pk_add_f32 {v(SA,2)}, {v(SA,2)}, {v(vACC0+i,2)}")
                A(f"v_pk_fma_f32 {v(SB,2)}, {v(vACC0+i,2)}, {v(vACC0+i,2)}, {v(SB,2)}")
        A(f"v_add_f32 v{S0}, v{SA}, v{SA+1}"); A(f"v_add_f32 v{S1}, v{SB}, v{SB+1}")
        for i in range(8): A(f"v_cvt_pk_bf16_f32 v{X+i}, v{vACC0+2*i}, v{vACC0+2*i+1}")
        self.fstamp("p2e", "epi:math")
        self.frag_dest(sT2, WS_X1)
        self.pstore(f"buffer_store_dwordx4 {v(X,4)}, v{vL16}, {srd(SRD_WS)}, s{sT2} offen sc1")
        self.pstore(f"buffer_store_dwordx4 {v(X+4,4)}, v{vL16}, {srd(SRD_WS)}, s{sT2} offen offset:1024 sc1")
        self.swap_add(S0, T+42); self.swap_add(S1, T+42)
        A(f"s_lshl_b32 s{sT0}, s{sR32L}, 12"); A(f"s_lshl_b32 s{sT1}, s{sC}, 9"); A(f"s_add_u32 s{sT0}, s{sT0}, s{sT1}")
        A(f"s_lshl_b32 s{sT1}, s{sCG}, 8"); A(f"s_add_u32 s{sT0}, s{sT0}, s{sT1}"); A(f"s_add_u32 s{sT0}, s{sT0}, s{sSLAB}"); A(f"s_add_u32 s{sT0}, s{sT0}, {WS_X1S}")
        A(f"v_lshlrev_b32 v{T+42}, 3, v{vM}")
        self.pstore(f"buffer_store_dwordx2 {v(S0,2)}, v{T+42}, {srd(SRD_WS)}, s{sT0} offen sc1")
        self.pos_x1 = A.vm_pos()
        A.auto = 0
        self.fstamp("p2e", "epi:stored")
        self.flush_side()

    def shadow2(self):
        A = self.A
        T = vT
        def hq0():
            A.wait(vm=self.pos_q); A("s_barrier")
            self.stamp("hq0")
            self.l2_touch("w4")
            self.queue(self.job_w3(8, 15, A0))
        kvcode = self.cnt_addr(CNT_KV, sRB64, -1)
        H = T+44
        def halo_load():
            self.stamp("kv chk>")
            self.poll_check()
            self.stamp("kv chk<")
            A(f"v_mov_b32 v{H}, 0"); A(f"v_mov_b32 v{H+1}, 0"); A(f"v_mov_b32 v{H+2}, 0"); A(f"v_mov_b32 v{H+3}, 0")
            l = A.newlabel("nohalo")
            A(f"s_cmp_eq_u32 s{sRB64}, 0"); A(f"s_cbranch_scc1 {l}")
            A(f"s_add_u32 s{sT1}, s{sRB64}, -1"); A(f"s_and_b32 s{sT0}, s{sT1}, 3"); A(f"s_lshl_b32 s{sT0}, s{sT0}, 3"); A(f"s_add_u32 s{sT0}, s{sT0}, s{sC}")
            A(f"s_lshl_b32 s{sT0}, s{sT0}, 12"); A(f"s_lshr_b32 s{sT1}, s{sT1}, 2"); A(f"s_lshl_b32 s{sT1}, s{sT1}, {SLAB_SH}")
            A(f"s_add_u32 s{sT0}, s{sT0}, s{sT1}"); A(f"s_add_u32 s{sT0}, s{sT0}, {WS_KV}")
            A(f"v_lshlrev_b32 v{T+48}, 4, v0")
            A.opt(f"buffer_load_dwordx4 {v(H,4)}, v{T+48}, {srd(SRD_WS)}, s{sT0} offen sc1")
            A.label(l)
            self.pos_hl = A.vm_pos()
        self.qkv_main(lambda s: B0 + s*2048, {0: hq0}, side_rate=2,
                      mid={self.cfg.kvpoll_at: lambda: self.poll_issue(kvcode, 1, 8, "kv halo"), self.cfg.kvchk_at: halo_load})
        self.flush_side()
        self.stamp("q loop")
        A.wait(vm=self.pos_x1)
        A("s_barrier")
        self.stamp("x1 drained")
        self.signal(CNT_X1, sRB128, "x1")
        self.queue(self.job_strip(SRD_WO, 0, 64, B0), "pos_wo")
        self.qkv_tail(vQP)
        self.stamp("q done")
        pos_hl = self.pos_hl
        KV = A0 + 46080
        vKA = T
        A(f"s_lshl_b32 s{sT0}, s{sCG}, 1"); A(f"v_add_u32 v{T+1}, s{sT0}, v{vH}")
        A(f"v_mul_u32_u24 v{T+1}, 2560, v{T+1}")
        A(f"s_lshl_b32 s{sT0}, s{sRBK}, 5"); A(f"s_add_u32 s{sT0}, s{sT0}, 16"); A(f"v_add_u32 v{T+2}, s{sT0}, v{vM}")
        A(f"v_lshl_add_u32 v{vKA}, v{T+2}, 4, v{T+1}"); A(f"v_add_u32 v{vKA}, {KV}, v{vKA}")
        A(f"ds_write_b128 v{vKA}, {v(vKP,4)}"); A(f"ds_write_b128 v{vKA}, {v(vKP+4,4)} offset:1280")
        A(f"ds_write_b128 v{vKA}, {v(vVP,4)} offset:10240"); A(f"ds_write_b128 v{vKA}, {v(vVP+4,4)} offset:11520")
        A.wait(vm=pos_hl)
        A(f"v_lshrrev_b32 v{T+8}, 4, v0"); A(f"v_mul_u32_u24 v{T+8}, 1280, v{T+8}")
        A(f"v_and_b32 v{T+9}, 15, v0"); A(f"v_lshl_add_u32 v{T+8}, v{T+9}, 4, v{T+8}"); A(f"v_add_u32 v{T+8}, {KV}, v{T+8}")
        A(f"ds_write_b128 v{T+8}, {v(H,4)}")
        A.wait_all_lg()
        A("s_barrier")
        A.auto = self.cfg.auto
        self.stamp("kv staged")
        Q = vQP
        KB = vRING
        LG = T+12
        A(f"v_subrev_u32 v{T+10}, {14*16}, v{vKA}")
        for w in range(8):
            off = (14 - 2*w) * 16
            A(f"ds_read_b128 {v(KB+8*w,4)}, v{T+10} offset:{off}")
            A(f"ds_read_b128 {v(KB+8*w+4,4)}, v{T+10} offset:{off+1280}")
        base_lg = A.lg_pos() - 16
        for w in range(8): A(f"v_mov_b32 v{LG+w}, 0")
        for w in range(8):
            A.wait(lg=base_lg + 2*(w+1))
            for i in range(8): A(f"v_dot2c_f32_bf16 v{LG+w}, v{Q+i}, v{KB+8*w+i}")
        self.fstamp("at", "at:qk")
        au = A.auto; A.auto = 0
        self.poll_issue(self.cnt_addr(CNT_X1, sRB128), 1, 16, "x1")
        A.auto = au
        A.nop(3)
        for w in range(8):
            off = (14 - 2*w) * 16
            A(f"ds_read_b128 {v(KB+8*w,4)}, v{T+10} offset:{off+10240}")
            A(f"ds_read_b128 {v(KB+8*w+4,4)}, v{T+10} offset:{off+11520}")
        base_lg = A.lg_pos() - 16
        l = A.newlabel("nomask")
        A.auto = 0
        A(f"s_cmp_lg_u32 s{sRB64}, 0"); A(f"s_cbranch_scc1 {l}")
        A(f"s_lshl_b32 s{sT0}, s{sRBK}, 5"); A(f"v_add_u32 v{T+11}, s{sT0}, v{vM}")
        A(f"v_mov_b32 v{T+20}, 0xff800000")
        for w in range(1, 8):
            A(f"v_cmp_le_u32 vcc, {2*w}, v{T+11}")
            A.nop(2)
            A(f"v_cndmask_b32 v{LG+w}, v{T+20}, v{LG+w}, vcc")
        A.label(l)
        A.auto = self.cfg.auto
        MX = T+20
        A(f"v_max3_f32 v{MX}, v{LG}, v{LG+1}, v{LG+2}"); A(f"v_max3_f32 v{MX}, v{MX}, v{LG+3}, v{LG+4}")
        A(f"v_max3_f32 v{MX}, v{MX}, v{LG+5}, v{LG+6}"); A(f"v_max_f32 v{MX}, v{MX}, v{LG+7}")
        cs = 0.25 * 1.4426950408889634
        A(f"s_mov_b32 s{sT0}, {fbits(cs)}")
        A(f"v_mul_f32 v{MX}, {fbits(-cs)}, v{MX}")
        for w in range(8): A(f"v_fma_f32 v{LG+w}, v{LG+w}, s{sT0}, v{MX}")
        for w in range(8): A(f"v_exp_f32 v{LG+w}, v{LG+w}")
        SM = T+21
        A(f"v_add_f32 v{SM}, v{LG}, v{LG+1}")
        for w in range(2, 8): A(f"v_add_f32 v{SM}, v{SM}, v{LG+w}")
        A(f"v_rcp_f32 v{SM}, v{SM}")
        A.nop(1)
        for w in range(8): A(f"v_mul_f32 v{LG+w}, v{SM}, v{LG+w}")
        PP = T+22
        for u in range(4): A(f"v_cvt_pk_bf16_f32 v{PP+u}, v{LG+2*u}, v{LG+2*u+1}")
        self.fstamp("at", "at:sm")
        A.auto = 0
        self.flush_side()
        self.p3_bases()
        self.poll_check()
        self.stamp("sync2")
        self.queue_x1_acts()
        A.auto = self.cfg.auto
        O = vACC0
        TP = T+26
        for u in range(4):
            A.wait(lg=base_lg + 4*(u+1))
            va, vb = KB + 16*u, KB + 16*u + 8
            for i in range(8):
                t0, t1 = TP + 2*(i & 1), TP + 2*(i & 1) + 1
                A(f"v_perm_b32 v{t0}, v{vb+i}, v{va+i}, s{sPLO}")
                A(f"v_perm_b32 v{t1}, v{vb+i}, v{va+i}, s{sPHI}")
                if u == 0:
                    A(f"v_dot2_f32_bf16 v{O+2*i}, v{t0}, v{PP+u}, 0"); A(f"v_dot2_f32_bf16 v{O+2*i+1}, v{t1}, v{PP+u}, 0")
                else:
                    A(f"v_dot2c_f32_bf16 v{O+2*i}, v{t0}, v{PP+u}"); A(f"v_dot2c_f32_bf16 v{O+2*i+1}, v{t1}, v{PP+u}")
        A.nop(3)
        self.fstamp("at", "at:pv")
        OP = T+32
        for i in range(8): A(f"v_cvt_pk_bf16_f32 v{OP+i}, v{O+2*i}, v{O+2*i+1}")
        A.nop(2)
        for i in range(4): A(f"v_permlane32_swap_b32 v{OP+i}, v{OP+4+i}")
        self.frag_dest(sT0, WS_O)
        self.pstore(f"buffer_store_dwordx4 {v(OP,4)}, v{vL16}, {srd(SRD_WS)}, s{sT0} offen sc1")
        self.pstore(f"buffer_store_dwordx4 {v(OP+4,4)}, v{vL16}, {srd(SRD_WS)}, s{sT0} offen offset:1024 sc1")
        self.pos_o = A.vm_pos()
        A.auto = 0
        self.fstamp("at", "at:flushed")
        A.wait(vm=self.pos_wo)
        A("s_barrier")
        self.fstamp("at", "at:bar")
        self.emit_groups(self.job_w3(23, 7, A0 + 46080))
        self.pos_w3 = A.vm_pos()
        self.stamp("attn done")

    def c3_pass(self):
        A = self.A
        T = vT
        vLo, vHi = T, T+1
        A(f"s_add_u32 s{sT0}, s{sW}, -1"); A(f"s_mul_i32 s{sT0}, s{sT0}, {8*3072}")
        A(f"s_cmp_eq_u32 s{sW}, 0"); A(f"s_cselect_b32 s{sT0}, {C0}, s{sT0}")
        A(f"s_cmp_eq_u32 s{sW}, 3"); A(f"s_cselect_b32 s{sT1}, {C0 + 2*3072}, s{sT0}")
        A(f"v_add_u32 v{vLo}, s{sT0}, v{vTR3}"); A(f"v_add_u32 v{vHi}, s{sT1}, v{vTR3}")
        CS = T+8
        for i in range(6): A(f"v_mov_b32 v{CS+i}, 0")
        A.auto = self.cfg.auto
        def c3_reads(i):
            for blk in range(3):
                b = vRING + 4*(3*(i % 3) + blk)
                r = vLo if i < 6 else vHi
                A(f"ds_read_b64_tr_b16 {v(b,2)}, v{r} offset:{i*3072 + blk*64}")
                A(f"ds_read_b64_tr_b16 {v(b+2,2)}, v{r} offset:{i*3072 + blk*64+1536}")
            return A.lg_pos()
        cpos = {0: c3_reads(0), 1: c3_reads(1)}
        for i in range(8):
            if i + 2 < 8: cpos[i+2] = c3_reads(i+2)
            A.wait(lg=cpos[i])
            for blk in range(3):
                b = vRING + 4*(3*(i % 3) + blk)
                for r in range(4): A(f"v_dot2c_f32_bf16 v{CS+2*blk+(r&1)}, s{sONES}, v{b+r}")
        A.auto = 0
        A.nop(3)
        SC3 = B0
        for blk in range(3):
            A(f"v_add_f32 v{CS+2*blk}, v{CS+2*blk}, v{CS+2*blk+1}")
            self.swap_add(CS+2*blk, T+4)
        A(f"s_mul_i32 s{sT0}, s{sW}, 384"); A(f"v_lshl_add_u32 v{T+4}, v{vM}, 2, s{sT0}"); A(f"v_add_u32 v{T+4}, {SC3}, v{T+4}")
        for blk in range(3): A(f"ds_write_b32 v{T+4}, v{CS+2*blk} offset:{128*blk}")
        A.wait(vm=self.pos_o)
        A.wait_all_lg()
        A("s_barrier")
        self.signal(CNT_O, sRB64, "o")
        A(f"v_lshlrev_b32 v{T+4}, 2, v{vM}"); A(f"v_add_u32 v{T+4}, {SC3}, v{T+4}")
        for w in range(4):
            for blk in range(3): A(f"ds_read_b32 v{T+16+4*blk+w}, v{T+4} offset:{384*w+128*blk}")
        A(f"v_cmp_gt_u32 vcc, 32, v{vL}")
        A.wait_all_lg()
        self.vC3 = [T+46, T+47, T+48]
        for blk in range(3):
            b = T+16+4*blk
            A(f"v_add_f32 v{b}, v{b}, v{b+1}"); A(f"v_add_f32 v{b+2}, v{b+2}, v{b+3}"); A(f"v_add_f32 v{b}, v{b}, v{b+2}")
            A(f"v_cndmask_b32 v{self.vC3[blk]}, 0, v{b}, vcc")
        A("s_barrier")
        self.stamp("c3 done")

    def job_w3_small(self, s0, ns, lds0):
        return self.job_w3(s0, ns, lds0)

    def w3_addr(self, s):
        if s < 8: return C0 + s*3072
        if s < 30: return A0 + (s-8)*3072
        return C0 + (s-22)*3072

    def p3_bases(self):
        A = self.A
        A(f"s_lshl_b32 s{sP2}, s{sR32P}, 15"); A(f"s_add_u32 s{sP2}, s{sP2}, s{sSLAB}"); A(f"s_add_u32 s{sP2}, s{sP2}, {WS_X1}")
        A(f"s_lshl_b32 s{sP3}, s{sR32P}, 12"); A(f"s_add_u32 s{sP3}, s{sP3}, s{sSLAB}"); A(f"s_add_u32 s{sP3}, s{sP3}, {WS_X1S}")
        A(f"s_mul_i32 s{sP4}, s{sR32P}, {86*1024}"); A(f"s_add_u32 s{sP4}, s{sP4}, s{sSLAB}"); A(f"s_add_u32 s{sP4}, s{sP4}, {WS_G}")
        A(f"s_lshl_b32 s{sT1}, s{sCB0}, 11"); A(f"s_add_u32 s{sP4}, s{sP4}, s{sT1}")

    def queue_x1_acts(self):
        A = self.A
        self.x1_pos = {}
        for i in range(32):
            g = []
            if i % 4 == 0:
                g += [f"s_add_u32 s{sAS}, s{sR3}, {i//4}", f"s_and_b32 s{sAS}, s{sAS}, 7", f"s_lshl_b32 s{sAS}, s{sAS}, 12", f"s_add_u32 s{sAS}, s{sAS}, s{sP2}"]
            g.append(f"buffer_load_dwordx4 {a(4*i,4)}, v{vL16}, {srd(SRD_WS)}, s{sAS} offen offset:{(i%4)*1024} sc1")
            def m(i=i): self.x1_pos[i] = A.vm_pos()
            g.append(m)
            self.side.append(g)

    def p3(self):
        A = self.A
        T = vT
        vA0, vA1 = T+54, T+55
        A(f"s_lshl_b32 s{sT0}, s{sCG}, 15"); A(f"s_add_u32 s{sT0}, s{sT0}, {B0}")
        A(f"v_add_u32 v{vA0}, s{sT0}, v{vTRC0}"); A(f"v_add_u32 v{vA1}, s{sT0}, v{vTRC1}")
        A.auto = self.cfg.auto
        for i in range(16):
            for cb in range(2):
                r = 128 + 8*i + 4*cb
                A(f"ds_read_b64_tr_b16 {a(r,2)}, v{(vA0,vA1)[cb]} offset:{i*2048}")
                A(f"ds_read_b64_tr_b16 {a(r+2,2)}, v{(vA0,vA1)[cb]} offset:{i*2048 + 1024}")
        A.auto = 0
        A.wait(vm=self.pos_w3)
        A.wait_all_lg()
        A("s_barrier")
        self.stamp("wo->reg")
        self.c3_pass()
        while len(self.x1_pos) < 32: self.pump(1)
        apos = self.x1_pos
        PDL = 32
        A(f"v_lshlrev_b32 v{T+3}, 3, v{vM}"); A(f"v_lshl_add_u32 v{T+3}, v{vH}, 11, v{T+3}")
        for j in range(8):
            A(f"buffer_load_dwordx2 {v(T+20+2*j,2)}, v{T+3}, {srd(SRD_WS)}, s{sP3} offen offset:{256*j} sc1")
        spos = A.vm_pos()
        self.queue(self.job_w4(39, 4, B0 + 12*4096), "pos_tails")
        self.queue(self.job_w4(23, 12, B0))
        vB = [T, T+1, T+2]
        A(f"v_mov_b32 v{vB[0]}, v{vTR3}"); A(f"v_add_u32 v{vB[1]}, 65536, v{vTR3}"); A(f"v_add_u32 v{vB[2]}, 131072, v{vTR3}")
        def wread(s, blk, buf):
            ad = self.w3_addr(s) + blk*64
            for (k, d) in ((0, 0), (2, 1536)):
                x = ad + d
                A(f"ds_read_b64_tr_b16 {v(buf+k,2)}, v{vB[x // 65536]} offset:{x % 65536}")
        PD = 2
        lgpos = {}
        for s in range(PD):
            for blk in range(2): wread(s, blk, vRING + 4*(2*(s % 4) + blk))
            lgpos[s] = A.lg_pos()
        for t in range(32):
            s = t + PD
            A.wait(vm=apos[t], lg=lgpos[t])
            if t in (0, 8, 16, 24): self.fstamp("p4", f"p3:t{t}")
            for blk in range(2):
                acc = (vACC0, vACC1)[blk]
                c = "0" if t == 0 else v(acc, 16)
                A(f"v_mfma_f32_32x32x16_bf16 {v(acc,16)}, {v(vRING + 4*(2*(t % 4) + blk),4)}, {a(4*t,4)}, {c}")
                if s < 32: wread(s, blk, vRING + 4*(2*(s % 4) + blk))
            if s < 32: lgpos[s] = A.lg_pos()
            self.pump(1)
        self.fstamp("p3", "pass1<")
        self.flush_side()
        self.fstamp("p3", "flushed")
        A.wait(vm=spos)
        S0, S1 = T+20, T+21
        for j in range(1, 8):
            A(f"v_add_f32 v{S0}, v{S0}, v{T+20+2*j}"); A(f"v_add_f32 v{S1}, v{S1}, v{T+21+2*j}")
        self.swap_add(S0, T+4); self.swap_add(S1, T+4)
        NMU1, R1 = T+5, T+6
        A(f"v_mul_f32 v{S0}, {fbits(1/512)}, v{S0}"); A(f"v_mul_f32 v{S1}, {fbits(1/512)}, v{S1}")
        A(f"v_sub_f32 v{NMU1}, 0, v{S0}"); A(f"v_fma_f32 v{S1}, v{NMU1}, v{S0}, v{S1}"); A(f"v_max_f32 v{S1}, 0, v{S1}")
        A(f"v_add_f32 v{S1}, {fbits(1e-5)}, v{S1}"); A(f"v_rsq_f32 v{R1}, v{S1}")
        self.poll_issue(self.cnt_addr(CNT_O, sRB64), 1, 8, "o")
        self.fstamp("p3", "stats")
        lskip = A.newlabel("nob2")
        A(f"s_cmp_lt_u32 s{sNBLK}, 3"); A(f"s_cbranch_scc1 {lskip}")
        lg_save = A.lg
        for s in range(32 + PD):
            if s < 32:
                wread(s, 2, vRING + 4*(s % 4))
                lgpos[s] = A.lg_pos()
            if s >= PD:
                t = s - PD
                A.wait(lg=lgpos[t])
                c = "0" if t == 0 else v(vACC2, 16)
                A(f"v_mfma_f32_32x32x16_bf16 {v(vACC2,16)}, {v(vRING + 4*(t % 4),4)}, {a(4*t,4)}, {c}")
        A.label(lskip)
        self.fstamp("p3", "pass2<")
        A.wait(vm=self.pos_tails)
        self.poll_check()
        self.stamp("p3 main")
        A(f"s_lshl_b32 s{sOA}, s{sR32L}, 15"); A(f"s_lshl_b32 s{sT1}, s{sCG}, 14"); A(f"s_add_u32 s{sOA}, s{sOA}, s{sT1}")
        A(f"s_add_u32 s{sOA}, s{sOA}, s{sSLAB}"); A(f"s_add_u32 s{sOA}, s{sOA}, {WS_O}")
        self.o_acts = {}; self.o_pos = {}
        A(f"s_mov_b32 s{sAS}, s{sOA}"); A(f"s_add_u32 s{sAE}, s{sOA}, 16384")
        A(f"s_lshl_b32 s{sT1}, s{sKR}, 11"); A(f"s_and_b32 s{sT1}, s{sT1}, 16383"); A(f"s_add_u32 s{sOA}, s{sOA}, s{sT1}")
        for i in range(16):
            g = []
            if not self.cfg.krot:
                if i % 4 == 0 and i > 0: g.append(f"s_add_u32 s{sOA}, s{sOA}, 4096")
                g.append(f"buffer_load_dwordx4 {a(4*i,4)}, v{vL16}, {srd(SRD_WS)}, s{sOA} offen offset:{(i%4)*1024} sc1")
            else:
                if i > 0: g += [f"s_add_u32 s{sOA}, s{sOA}, 1024", f"s_cmp_eq_u32 s{sOA}, s{sAE}", f"s_cselect_b32 s{sOA}, s{sAS}, s{sOA}"]
                g.append(f"buffer_load_dwordx4 {a(4*i,4)}, v{vL16}, {srd(SRD_WS)}, s{sOA} offen sc1")
            def m(i=i):
                self.o_acts[i] = 4*i; self.o_pos[i] = A.vm_pos()
            g.append(m)
            self.side.append(g)
        ne = self.cfg.w4_in_ge
        if ne: self.queue(self.job_w4(0, ne, A0))
        lskip2 = A.newlabel("nom2")
        A(f"s_cmp_lt_u32 s{sNBLK}, 3"); A(f"s_cbranch_scc1 {lskip2}")
        A.nop(10)
        A(f"v_mfma_f32_32x32x2_f32 {v(vACC2,16)}, v{self.vC3[2]}, v{NMU1}, {v(vACC2,16)}")
        A.label(lskip2)
        A.nop(2)
        A(f"v_mfma_f32_32x32x2_f32 {v(vACC0,16)}, v{self.vC3[0]}, v{NMU1}, {v(vACC0,16)}")
        mk0 = A.mark()
        A(f"v_mfma_f32_32x32x2_f32 {v(vACC1,16)}, v{self.vC3[1]}, v{NMU1}, {v(vACC1,16)}")
        GK = self.gelu_consts(R1, T+34)
        self.pump(3)
        A.pad(mk0, 19)
        self.fstamp("ge", "g:start")
        for blk in range(3):
            acc = (vACC0, vACC1, vACC2)[blk]
            if blk == 2:
                lskip3 = A.newlabel("nog2")
                A(f"s_cmp_lt_u32 s{sNBLK}, 3"); A(f"s_cbranch_scc1 {lskip3}")
            else:
                A.auto = self.cfg.auto_g
            self.gelu_body(acc, GK)
            A.auto = 0
            if blk < 2: self.fstamp("ge", f"g:blk{blk}")
            i1 = f"buffer_store_dwordx4 {v(acc,4)}, v{vL16}, {srd(SRD_WS)}, s{sP4} offen offset:{blk*2048 % 4096} sc1"
            i2 = f"buffer_store_dwordx4 {v(acc+4,4)}, v{vL16}, {srd(SRD_WS)}, s{sP4} offen offset:{blk*2048 % 4096 + 1024} sc1"
            if blk == 2:
                A(f"s_add_u32 s{sP4}, s{sP4}, 4096")
                self.pstore(i1, opt=True); self.pstore(i2, opt=True)
                A.label(lskip3)
            else:
                self.pstore(i1); self.pstore(i2)
        self.pos_g = A.vm_pos()
        vA0, vA1 = T+54, T+55
        A(f"s_lshl_b32 s{sT0}, s{sCG}, 11"); A(f"v_add_u32 v{vA0}, s{sT0}, v{vTRC0}"); A(f"v_add_u32 v{vA1}, s{sT0}, v{vTRC1}")
        A(f"v_add_u32 v{T+52}, {B0 + 12*4096}, v{vA0}"); A(f"v_add_u32 v{T+53}, {B0 + 12*4096}, v{vA1}")
        for i in range(4):
            for cb in range(2):
                r = 96 + 8*i + 4*cb
                A(f"ds_read_b64_tr_b16 {v(r,2)}, v{T+52+cb} offset:{i*4096}")
                A(f"ds_read_b64_tr_b16 {v(r+2,2)}, v{T+52+cb} offset:{i*4096 + 1024}")
        self.queue(self.job_w4(ne, 16 - ne, A0 + ne*4096) + self.job_w4(16, 7, C0), "pos_w4e")

    def job_w4(self, i0, ni, lds0):
        groups = []
        for J in range((ni + 3)//4):
            if 4*J + 3 < ni:
                pre = [f"s_add_u32 m0, s{sW4K}, {lds0 + 16384*J}", f"s_add_u32 s{sG}, s{sBW4}, {(i0 + 4*J)*16384}"]
            else:
                pre = [f"s_add_u32 s{sD1}, s{sW}, {4*J}", f"s_min_u32 s{sD1}, s{sD1}, {ni-1}", f"s_lshl_b32 s{sD0}, s{sD1}, 12", f"s_add_u32 m0, s{sD0}, {lds0}",
                       f"s_lshl_b32 s{sD0}, s{sD1}, 14", f"s_lshl_b32 s{sG}, s{sC}, 7", f"s_add_u32 s{sG}, s{sG}, s{sD0}", f"s_add_u32 s{sG}, s{sG}, {i0*16384}"]
            groups += self.quad(pre, SRD_W4, vS4J)
        return groups

    def w4_slot(self, i):
        if i < 16: return A0 + i*4096
        if i < 23: return C0 + (i-16)*4096
        if i < 35: return B0 + (i-23)*4096
        return B0 + 12*4096 + (i-35)*4096

    def p4(self):
        A = self.A
        T = vT
        vA0, vA1 = T+54, T+55
        A(f"s_mul_i32 s{sT4}, s{sR32L}, {86*1024}"); A(f"s_mul_i32 s{sT1}, s{sCG}, {43*1024}"); A(f"s_add_u32 s{sT4}, s{sT4}, s{sT1}")
        A(f"s_add_u32 s{sT4}, s{sT4}, s{sSLAB}"); A(f"s_add_u32 s{sT4}, s{sT4}, {WS_G}")
        while len(self.o_pos) < 16: self.pump(1)
        self.pump(self.cfg.w4_before_sig)
        A.wait(vm=self.pos_g)
        A.wait_all_lg()
        A("s_barrier")
        self.stamp("g drained")
        self.signal(CNT_G, sRB128, "g")
        self.queue(self.job_w4(35, 4, B0 + 12*4096), "pos_w4l")
        self.ksplit_gemm(16, None, lambda i: None, None, True, 0, 16, side_rate=1, pre=(self.o_acts, self.o_pos),
                         tail=lambda i: (128 + 8*i, 128 + 8*i + 4))
        self.flush_side()
        self.stamp("wo done")
        vb = {}
        for win in range(3):
            for cb in range(2):
                r = T + 44 + 2*win + cb
                A(f"v_add_u32 v{r}, {win*65536}, v{(vA0,vA1)[cb]}")
                vb[(win, cb)] = r
        self.poll_issue(self.cnt_addr(CNT_G, sRB128), 1, 16, "g")
        A.wait(vm=self.pos_w4e)
        self.stamp("w4e landed")
        self.poll_check()
        self.stamp("sync3")
        acts = {}; apos = {}
        A(f"s_mov_b32 s{sAS}, s{sT4}"); A(f"s_add_u32 s{sAE}, s{sT4}, {40*1024}")
        A(f"s_lshl_b32 s{sT1}, s{sKR}, 12"); A(f"s_add_u32 s{sT4}, s{sT4}, s{sT1}")
        def act_g(i):
            if i == 40: A(f"s_mov_b32 s{sT4}, s{sAE}")
            elif i % 4 == 0 and i > 0:
                A(f"s_add_u32 s{sT4}, s{sT4}, 4096")
                if self.cfg.krot: A(f"s_cmp_eq_u32 s{sT4}, s{sAE}"); A(f"s_cselect_b32 s{sT4}, s{sAS}, s{sT4}")
            r = 4*(i % 32)
            A(f"buffer_load_dwordx4 {a(r,4)}, v{vL16}, {srd(SRD_WS)}, s{sT4} offen offset:{(i%4)*1024} sc1")
            acts[i] = r; apos[i] = A.vm_pos()
        PDL = self.cfg.pdl4; PD = 2; N = 43
        for i in range(PDL): act_g(i)
        lgpos = {}
        def w4reads(s, cb):
            if s >= 39: return
            ad = self.w4_slot(s)
            b = vRING + 4*(2*(s % 4) + cb)
            for (k, d) in ((0, 0), (2, 1024)):
                x = ad + d
                A(f"ds_read_b64_tr_b16 {v(b+k,2)}, v{vb[(x // 65536, cb)]} offset:{x % 65536}")
        for s in range(PD):
            w4reads(s, 0); w4reads(s, 1); lgpos[s] = A.lg_pos()
        for t in range(N):
            s = t + PD
            if s == 30:
                A("s_barrier")
            A.wait(vm=apos[t], lg=lgpos[t] if t < 39 else None)
            if t in (0, 8, 16, 24, 32, 40): self.fstamp("p4", f"p4:t{t}")
            for cb in range(2):
                acc = (vACC0, vACC1)[cb]
                wa = v(vRING + 4*(2*(t % 4) + cb), 4) if t < 39 else v(96 + 8*(t-39) + 4*cb, 4)
                A(f"v_mfma_f32_32x32x16_bf16 {v(acc,16)}, {wa}, {a(acts[t],4)}, {v(acc,16)}")
                if s < N: w4reads(s, cb)
            if s < N: lgpos[s] = A.lg_pos()
            if t + PDL < N: act_g(t + PDL)
        A("s_barrier")
        self.stamp("p4 main")
        self.pair_reduce(A0)
        for i in range(16): A(f"v_add_f32 v{vACC0+i}, v{vACC0+i}, v{vRESID+i}")
        P = T+24
        for i in range(8): A(f"v_cvt_pk_bf16_f32 v{P+i}, v{vACC0+2*i}, v{vACC0+2*i+1}")
        A.nop(2)
        for (x, y) in ((0, 2), (1, 3), (4, 6), (5, 7)):
            A(f"v_permlane32_swap_b32 v{P+x}, v{P+y}")
        A(f"s_lshl_b32 s{sT0}, s{sRB64}, 6"); A(f"s_lshl_b32 s{sT1}, s{sRBK}, 5"); A(f"s_add_u32 s{sT0}, s{sT0}, s{sT1}")
        A(f"v_add_u32 v{T}, s{sT0}, v{vM}"); A(f"v_lshlrev_b32 v{T}, 10, v{T}"); A(f"v_lshl_add_u32 v{T}, v{vH}, 4, v{T}")
        A(f"s_lshl_b32 s{sT0}, s{sC}, 7"); A(f"s_lshl_b32 s{sT1}, s{sCG}, 6"); A(f"s_add_u32 s{sT0}, s{sT0}, s{sT1}")
        fl = {0: "", 1: " sc1", 2: " sc0 sc1", 3: " nt"}[self.cfg.out_mode]
        A(f"buffer_store_dwordx4 {v(P,4)}, v{T}, {srd(SRD_OUT)}, s{sT0} offen{fl}")
        A(f"buffer_store_dwordx4 {v(P+4,4)}, v{T}, {srd(SRD_OUT)}, s{sT0} offen offset:32{fl}")
        self.stamp("stored")

    def build(self):
        A = self.A
        stop = self.cfg.stop_after
        self.prologue()
        self.t0_dma()
        self.setup2()
        self.stamp("setup2")
        self.t0_dma2()
        self.stamp("start")
        self.p1_h(); self.stamp("h main")
        self.p1_h_finish(); self.stamp("h pub")
        if stop != "h":
            self.shadow1(); self.stamp("kv pub")
            if stop != "kv":
                self.p2(); self.stamp("x1 pub")
                if stop != "x1":
                    self.shadow2()
                    if stop != "o":
                        self.p3(); self.stamp("g pub")
                        if stop != "g":
                            self.p4()
        self.flush_side()
        if self.cfg.final_wait or self.cfg.stamps: A("s_waitcnt vmcnt(0)")
        self.stamp("end")
        self.stamp_end()
        A.label("L_end")
        A("s_endpgm")
        return A

HEADER = """; Fused persistent kernel: x + attn(LN x) + mixer(LN x).  256 workgroups (one per CU), 4 waves each.
; @launch grid=(256,1,1) block=(256,1,1) lds=163840
.amdgcn_target "amdgcn-amd-amdhsa--gfx950"
.text
.globl {name}
.p2align 8
.type {name},@function
{name}:
"""
FOOTER = """
.section .rodata,"a"
.p2align 6
.amdhsa_kernel {name}
  .amdhsa_next_free_vgpr 512
  .amdhsa_next_free_sgpr 102
  .amdhsa_accum_offset 256
  .amdhsa_group_segment_fixed_size 0
  .amdhsa_kernarg_size 88
  .amdhsa_user_sgpr_count 2
  .amdhsa_user_sgpr_kernarg_segment_ptr 1
  .amdhsa_system_sgpr_workgroup_id_x 1
.end_amdhsa_kernel
"""

def generate(cfg):
    k = K(cfg)
    A = k.build()
    probs = check_hazards(A.lines)
    generate.names = k.stamp_names
    return HEADER.format(name=NAME) + A.text() + FOOTER.format(name=NAME), probs

if __name__ == "__main__":
    cfg = Cfg()
    out = sys.argv[1] if len(sys.argv) > 1 else "parallel_sum__sliding_local_dilated__mixer_s_mlp__prompt.s"
    for arg in sys.argv[2:]:
        k, val = arg.split("=")
        setattr(cfg, k, {"True": True, "False": False, "None": None}.get(val, int(val) if val.isdigit() else val))
    txt, probs = generate(cfg)
    for p in probs: print("HAZARD:", p)
    open(out, "w").write(txt)
    print("wrote", out, len(txt), "bytes;", txt.count("\n"), "lines;", len(probs), "hazards")
```

```python
import sys, os
from asmlib import Asm, check_hazards

NAME = "parallel_sum__sliding_local_dilated__mixer_s_mlp__prompt_kernel"

class Cfg:
    stamps = False
    stop_after = None
    spin_limit = 400000
    dbgtime = False
    wallonly = False
    fine = None
    pre_chunks = 3
    preA = 1
    touch = 1
    hpoll_at = 26
    auto = 64
    cost_w3 = 96
    pdl2 = 8
    pdl3 = 22
    pdl4 = 14
    kvchk_at = 24
    kvpoll_at = 10
    auto_g = 48
    w4_in_ge = 8
    w4_before_sig = 8
    early_kv = 1
    w2_in_k = 0
    rot = 1
    map2d = 1
    wo_in_drain = 0
    tlb1 = 0
    tlb1_wave = 0
    nodma = 0
    dma_flag = ""
    out_mode = 3
    final_wait = 0
    dstore = 0
    krot = 0
    ftswap = 1
    cxor = 0
    chunkstamps = 0
    touch_mode = "late"
    stouch = 0
    l2touch = ""
    mallt = 1
    stouch_wave = 1
    early_touch = 0

SLAB_SH = 21
WS_H    = 0x000000
WS_O    = 0x040000
WS_X1   = 0x080000
WS_G    = 0x0C0000
WS_X1S  = 0x170000
WS_KV   = 0x180000
WS_CNT  = 0x1A0000
CNT_H, CNT_KV, CNT_X1, CNT_G, CNT_O = 0, 4, 8, 10, 12
CNT_STRIDE = 256
WS_STAMP= 0x1000000
WS_SIZE = 0x1100000

A0 = 0
B0 = 67584
C0 = 133120
SCR1 = 160768
LDS_TOTAL = 163840

sW, sRBK, sCG = 3, 4, 5
sRB64, sC, sRB128, sFT = 6, 7, 8, 9
SRD_X, SRD_WQKV, SRD_WO, SRD_W1, SRD_W2, SRD_W3, SRD_W4, SRD_OUT, SRD_WS, SRD_DBG = 40, 44, 48, 52, 56, 60, 64, 68, 72, 76
sONES, sPLO, sPHI = 80, 81, 82
sG, sG2, sT0, sT1, sT2, sT3 = 83, 84, 85, 86, 87, 88
sCB0, sNBLK = 89, 90
sSPIN = 91
sSTAMP = 22
sEXS = 94
sT4, sT5 = 96, 97
sXG, sW1G, sWL = 10, 11, 38
sD0, sD1 = 39, 92
sP2, sP3, sP4 = 16, 17, 18
sSLAB, sR32L, sR32P = 19, 20, 21
sBW, sRW2, sRWO, sR3, sR3W, sW3L, sBW4, sG4E, sAS, sAE = 27, 28, 29, 30, 31, 32, 33, 34, 35, 36
sKR = 37
sW4K = 12
sXSLOT = 26
sOA = 93
sROT = 14
sROT8 = 15
sRT0, sCY0 = 98, 100
vST = 253

def srd(n): return f"s[{n}:{n+3}]"

vL, vM, vH, vL16 = 1, 2, 3, 4
vSTR, vSTRQ = 5, 6
vW3 = (7, 8, 9)
vTRN, vTRC0, vTRC1, vTR3 = 10, 11, 12, 13
vNMU, vR = 14, 15
vXRES = 16
vRESID = 24
vKP, vVP, vQP = 40, 48, 56
vRING = 64
vSTRJ = (5, 136, 137, 138)
vS4J = (5, 136, 139, 140)
vSTRQJ = (6, 141, 142, 143)
vX2 = 179
vACC0, vACC1, vACC2 = 144, 160, 176
vT = 192

def v(i, n=1): return f"v{i}" if n == 1 else f"v[{i}:{i+n-1}]"
def a(i, n=1): return f"a{i}" if n == 1 else f"a[{i}:{i+n-1}]"

C0G = -2.0 * 0.7978845608028654 * 1.4426950408889634
C1G = C0G * 0.044715
import struct
def fbits(x): return "0x%08x" % struct.unpack("<I", struct.pack("<f", x))[0]

class K:
    def __init__(self, cfg):
        self.cfg = cfg
        self.A = Asm()
        self.side = []
        self.nstamp = 0
        self.stamp_names = []
        self.kA_queued = False
        self.A.pump_cb = self.paced_pump
        self.credit = 0

    def pump(self, n=1):
        for _ in range(n):
            if self.side:
                g = self.side.pop(0)
                for ins in g:
                    if callable(ins): ins()
                    else: self.A(ins)

    def group_cost(self, g):
        for x in g:
            if isinstance(x, str) and x.startswith("buffer_load") and srd(SRD_W3) in x: return self.cfg.cost_w3
        return self.cfg.auto

    def paced_pump(self, cost):
        if self.side and cost >= self.group_cost(self.side[0]):
            self.pump(1)
            return True
        return False

    def tick(self, cycles):
        self.credit += cycles
        while self.side and self.credit >= self.group_cost(self.side[0]):
            self.credit -= self.group_cost(self.side[0])
            self.pump(1)
        if not self.side: self.credit = min(self.credit, self.cfg.auto)

    def queue(self, groups, mark=None):
        groups = [list(g) for g in groups]
        if mark:
            def m(mark=mark): setattr(self, mark, self.A.vm_pos())
            groups[-1].append(m)
        self.side += groups

    def pstore(self, text, opt=False):
        A = self.A
        f = A.opt if opt else A
        f(text)
        if self.cfg.dstore: f(text.replace(" sc1", ""))

    def flush_side(self):
        self.pump(len(self.side))

    def stamp(self, name):
        if not self.cfg.stamps: return
        if self.cfg.wallonly and name != "end": return
        if self.cfg.fine and name in ("kernarg", "touched", "preA", "setup2", "start", "hk0", "hk12>", "hk12<", "hv0", "hq0", "v loop", "kv chk>", "kv chk<", "h drained", "x1 drained", "g drained"): return
        A = self.A
        i = self.nstamp; self.nstamp += 1
        self.stamp_names.append(name)
        cur = sSTAMP + 2*(i & 1); prev = sSTAMP + 2*((i+1) & 1)
        if i > 0: A(f"v_writelane_b32 v{vST}, s{prev}, {i-1}")
        A(f"s_memtime s[{cur}:{cur+1}]")

    def fstamp(self, region, name):
        if self.cfg.fine == region: self.stamp(name)

    def stamp_end(self):
        A = self.A
        if self.cfg.stamps:
            i = self.nstamp
            prev = sSTAMP + 2*((i+1) & 1)
            A("s_waitcnt lgkmcnt(0)")
            A(f"v_writelane_b32 v{vST}, s{prev}, {i-1}")
            A(f"s_memrealtime s[{sSTAMP}:{sSTAMP+1}]")
            A("s_waitcnt lgkmcnt(0)")
            A(f"v_writelane_b32 v{vST}, s{sSTAMP}, 62")
            A(f"v_writelane_b32 v{vST}, s{sRT0}, 61")
            A(f"v_writelane_b32 v{vST}, s{sCY0}, 60")
            A(f"s_lshl_b32 s{sT5}, s2, 2"); A(f"s_add_u32 s{sT5}, s{sT5}, s{sW}"); A(f"s_lshl_b32 s{sT5}, s{sT5}, 8")
            A(f"s_add_u32 s{sT5}, s{sT5}, {WS_STAMP}")
            A(f"v_lshlrev_b32 v254, 2, v{vL}")
            A(f"buffer_store_dword v{vST}, v254, {srd(SRD_WS)}, s{sT5} offen")
        if self.cfg.dbgtime:
            l = A.newlabel("dt")
            A("s_cmp_ge_u32 s2, 7"); A(f"s_cbranch_scc1 {l}")
            A(f"s_cmp_lg_u32 s{sW}, 0"); A(f"s_cbranch_scc1 {l}")
            A(f"s_memrealtime s[{sSTAMP}:{sSTAMP+1}]"); A(f"s_memtime s[{sSTAMP+2}:{sSTAMP+3}]")
            A("s_waitcnt lgkmcnt(0)")
            A(f"s_sub_u32 s{sT0}, s{sSTAMP}, s{sRT0}"); A(f"s_sub_u32 s{sT1}, s{sSTAMP+2}, s{sCY0}")
            A(f"v_mov_b32 v250, s{sT0}"); A(f"v_mov_b32 v251, s{sT1}")
            A(f"s_lshl_b32 s{sT0}, s2, 3"); A(f"s_add_u32 s{sT0}, s{sT0}, 8"); A(f"v_mov_b32 v252, s{sT0}")
            A("s_mov_b64 exec, 1")
            A(f"buffer_store_dwordx2 v[250:251], v252, {srd(SRD_DBG)}, 0 offen")
            A.label(l)

    def dma_units(self, srdn, vregs, gbase_code, gstep, lds0, n, lstep=None):
        m = len(vregs)
        if lstep is None: lstep = 1024 * m
        assert n >= 4
        groups = []
        rounds = (n + 3) // 4
        for j in range(rounds):
            if j == 0:
                g = list(gbase_code)
                g += [f"s_mul_i32 s{sD0}, s{sW}, {lstep}", f"s_add_u32 m0, s{sD0}, {lds0}",
                      f"s_mul_i32 s{sD0}, s{sW}, {gstep}", f"s_add_u32 s{sG}, s{sG2}, s{sD0}"]
            elif 4 * j + 3 < n:
                g = [f"s_add_u32 m0, m0, {4*lstep - (m-1)*1024}", f"s_add_u32 s{sG}, s{sG}, {4*gstep}"]
            else:
                g = [f"s_add_u32 s{sD0}, s{sW}, {4*j}", f"s_min_u32 s{sD0}, s{sD0}, {n-1}",
                     f"s_mul_i32 s{sD1}, s{sD0}, {lstep}", f"s_add_u32 m0, s{sD1}, {lds0}",
                     f"s_mul_i32 s{sD1}, s{sD0}, {gstep}", f"s_add_u32 s{sG}, s{sG2}, s{sD1}"]
            for i, vr in enumerate(vregs):
                if i > 0:
                    groups.append(g)
                    g = ["s_add_u32 m0, m0, 1024", "s_nop 0"]
                g = g + [f"buffer_load_dwordx4 v{vr}, {srd(srdn)}, s{sG} offen lds"]
            groups.append(g)
        return groups

    def poll_issue(self, addr_code, nl, target, what):
        A = self.A
        skip = A.newlabel("piskip")
        A(f"s_cmp_lg_u32 s{sW}, 3"); A(f"s_cbranch_scc1 {skip}")
        for ins in addr_code: A(ins)
        A(f"v_mov_b32 v251, {target}")
        A(f"s_mov_b64 s[{sEXS}:{sEXS+1}], exec"); A(f"s_mov_b64 exec, {(1 << nl) - 1}")
        A.opt(f"buffer_load_dword v252, v250, {srd(SRD_WS)}, 0 offen sc1")
        A(f"s_mov_b64 exec, s[{sEXS}:{sEXS+1}]")
        A.label(skip)
        self.poll_state = (nl, A.vm_pos(), what)

    def poll_check(self, srdn=None):
        A = self.A
        nl, pos, what = self.poll_state
        skip = A.newlabel("pskip"); loop = A.newlabel("ploop"); done = A.newlabel("pdone"); chk = A.newlabel("pchk")
        A(f"s_cmp_lg_u32 s{sW}, 3"); A(f"s_cbranch_scc1 {skip}")
        A(f"s_mov_b64 s[{sEXS}:{sEXS+1}], exec"); A(f"s_mov_b64 exec, {(1 << nl) - 1}")
        A(f"s_mov_b32 s{sSPIN}, {self.cfg.spin_limit}")
        A.wait(vm=pos)
        A(f"s_branch {chk}")
        A.label(loop)
        A.opt(f"buffer_load_dword v252, v250, {srd(SRD_WS)}, 0 offen sc1")
        A("s_waitcnt vmcnt(0)")
        A.label(chk)
        A("v_cmp_ge_u32 vcc, v252, v251")
        A(f"s_sub_u32 s{sSPIN}, s{sSPIN}, 1"); A(f"s_cbranch_scc1 {done}")
        A("s_cmp_eq_u64 vcc, exec"); A(f"s_cbranch_scc0 {loop}")
        A.label(done)
        A(f"s_mov_b64 exec, s[{sEXS}:{sEXS+1}]")
        A.label(skip)
        A("s_barrier")

    def poll(self, addr_code, nl, target, what):
        self.poll_issue(addr_code, nl, target, what)
        self.poll_check()

    def signal(self, cnt, sidx, what, init_check=False):
        A = self.A
        skip = A.newlabel("askip")
        A(f"s_cmp_lg_u32 s{sW}, 3"); A(f"s_cbranch_scc1 {skip}")
        A(f"s_mov_b64 s[{sEXS}:{sEXS+1}], exec"); A("s_mov_b64 exec, 1")
        if init_check:
            loop = A.newlabel("iloop"); done = A.newlabel("idone"); chk = A.newlabel("ichk")
            A(f"s_mov_b32 s{sSPIN}, {self.cfg.spin_limit}")
            A(f"s_branch {chk}")
            A.label(loop)
            A.opt(f"buffer_load_dword v247, v246, {srd(SRD_DBG)}, 0 offen sc1")
            A("s_waitcnt vmcnt(0)")
            A.label(chk)
            A("v_cmp_eq_u32 vcc, 1, v247")
            A(f"s_sub_u32 s{sSPIN}, s{sSPIN}, 1"); A(f"s_cbranch_scc1 {done}")
            A("s_cmp_eq_u64 vcc, exec"); A(f"s_cbranch_scc0 {loop}")
            A.label(done)
        A(f"s_and_b32 s{sT5}, s{sidx}, {3 if sidx == sRB64 else 1}"); A(f"s_lshl_b32 s{sT5}, s{sT5}, 8"); A(f"s_add_u32 s{sT5}, s{sT5}, s{sSLAB}")
        A(f"s_add_u32 s{sT5}, s{sT5}, {WS_CNT + cnt*CNT_STRIDE}")
        A(f"v_mov_b32 v248, s{sT5}"); A("v_mov_b32 v249, 1")
        A.opt(f"buffer_atomic_add v249, v248, {srd(SRD_WS)}, 0 offen")
        A(f"s_mov_b64 exec, s[{sEXS}:{sEXS+1}]")
        A.label(skip)

    def init_poll_issue(self):
        A = self.A
        skip = A.newlabel("iiskip")
        A(f"s_cmp_lg_u32 s{sW}, 3"); A(f"s_cbranch_scc1 {skip}")
        A.opt(f"buffer_load_dword v247, v246, {srd(SRD_DBG)}, 0 offen sc1")
        A.label(skip)

    def cnt_addr(self, cnt, sidx, delta=0):
        if delta == 0:
            return [f"s_and_b32 s{sT5}, s{sidx}, {3 if sidx == sRB64 else 1}", f"s_lshl_b32 s{sT5}, s{sT5}, 8", f"s_add_u32 s{sT5}, s{sT5}, s{sSLAB}",
                    f"s_add_u32 s{sT5}, s{sT5}, {WS_CNT + cnt*CNT_STRIDE}", f"v_mov_b32 v250, s{sT5}"]
        assert sidx == sRB64
        return [f"s_add_u32 s{sT5}, s{sidx}, {delta}", f"s_max_i32 s{sT5}, s{sT5}, 0", f"v_mov_b32 v250, s{sT5}"] + self.cnt64_v(cnt)

    def cnt64_v(self, cnt):
        return ["v_lshrrev_b32 v251, 2, v250", f"v_lshlrev_b32 v251, {SLAB_SH}, v251", "v_and_b32 v250, 3, v250",
                "v_lshl_add_u32 v250, v250, 8, v251", f"v_add_u32 v250, {WS_CNT + cnt*CNT_STRIDE}, v250"]

    def frag_dest(self, sdst, region):
        A = self.A
        A(f"s_lshl_b32 s{sdst}, s{sR32L}, 15"); A(f"s_lshl_b32 s{sT1}, s{sC}, 12"); A(f"s_add_u32 s{sdst}, s{sdst}, s{sT1}")
        A(f"s_lshl_b32 s{sT1}, s{sCG}, 11"); A(f"s_add_u32 s{sdst}, s{sdst}, s{sT1}"); A(f"s_add_u32 s{sdst}, s{sdst}, s{sSLAB}")
        A(f"s_add_u32 s{sdst}, s{sdst}, {region}")

    def swap_add(self, x, tmp):
        A = self.A
        A(f"v_mov_b32 v{tmp}, v{x}")
        A.nop(2)
        A(f"v_permlane32_swap_b32 v{x}, v{tmp}")
        A.nop(1)
        A(f"v_add_f32 v{x}, v{x}, v{tmp}")

    def prologue(self):
        A = self.A
        A("s_cmp_ge_u32 s2, 256"); A("s_cbranch_scc1 L_end")
        if self.cfg.stamps or self.cfg.dbgtime:
            A(f"s_memrealtime s[{sRT0}:{sRT0+1}]"); A(f"s_memtime s[{sCY0}:{sCY0+1}]")
        A("s_load_dwordx16 s[16:31], s[0:1], 0")
        A("s_load_dwordx4 s[32:35], s[0:1], 64")
        A("s_load_dwordx2 s[36:37], s[0:1], 80")
        A(f"v_lshrrev_b32 v5, 6, v0")
        A(f"v_and_b32 v{vL}, 63, v0")
        A(f"v_readfirstlane_b32 s{sW}, v5")
        A(f"v_and_b32 v{vM}, 31, v{vL}")
        A(f"v_lshrrev_b32 v{vH}, 5, v{vL}")
        A(f"v_lshlrev_b32 v{vL16}, 4, v{vL}")
        A("s_and_b32 s10, s2, 7"); A("s_lshr_b32 s11, s2, 3")
        if self.cfg.map2d:
            A(f"s_lshr_b32 s{sT1}, s10, 1"); A(f"s_and_b32 s{sT2}, s10, 1")
            A(f"s_lshr_b32 s{sT0}, s11, 2"); A(f"s_lshl_b32 s{sRB64}, s{sT1}, 3"); A(f"s_add_u32 s{sRB64}, s{sRB64}, s{sT0}")
            A(f"s_and_b32 s{sC}, s11, 3"); A(f"s_lshl_b32 s{sT0}, s{sT2}, 2"); A(f"s_add_u32 s{sC}, s{sC}, s{sT0}")
            A(f"s_lshr_b32 s{sT0}, s11, 3"); A(f"s_lshl_b32 s{sRB128}, s{sT1}, 2"); A(f"s_add_u32 s{sRB128}, s{sRB128}, s{sT0}")
            A(f"s_and_b32 s{sFT}, s11, 7"); A(f"s_lshl_b32 s{sT0}, s{sT2}, 3"); A(f"s_add_u32 s{sFT}, s{sFT}, s{sT0}")
        else:
            A(f"s_lshr_b32 s{sT0}, s11, 3"); A(f"s_lshl_b32 s{sRB64}, s10, 2"); A(f"s_add_u32 s{sRB64}, s{sRB64}, s{sT0}")
            A(f"s_and_b32 s{sC}, s11, 7")
            if self.cfg.cxor: A(f"s_xor_b32 s{sC}, s{sC}, {self.cfg.cxor}")
            A(f"s_lshr_b32 s{sT0}, s11, 4"); A(f"s_lshl_b32 s{sRB128}, s10, 1"); A(f"s_add_u32 s{sRB128}, s{sRB128}, s{sT0}")
            A(f"s_and_b32 s{sFT}, s11, 15")
        A(f"s_and_b32 s{sRBK}, s{sW}, 1"); A(f"s_lshr_b32 s{sCG}, s{sW}, 1")
        if self.cfg.rot:
            A(f"s_and_b32 s{sROT}, s{sRB64}, 3"); A(f"s_lshl_b32 s{sROT}, s{sROT}, 1"); A(f"s_add_u32 s{sROT}, s{sROT}, s{sC}"); A(f"s_and_b32 s{sROT}, s{sROT}, 7")
        else:
            A(f"s_mov_b32 s{sROT}, 0")
        A(f"s_lshl_b32 s{sROT8}, s{sROT}, 1"); A(f"s_add_u32 s{sROT8}, s{sROT8}, s{sW}"); A(f"s_lshl_b32 s{sROT8}, s{sROT8}, 2")
        A(f"s_lshl_b32 s{sW4K}, s{sW}, 12")
        A(f"s_lshr_b32 s{sT3}, s2, 3")
        A(f"v_lshrrev_b32 v7, 3, v{vL}")
        A(f"v_and_b32 v8, 7, v{vL}")
        A(f"v_bfe_u32 v9, v{vL}, 4, 1"); A("v_lshlrev_b32 v9, 2, v9"); A("v_xor_b32 v9, v8, v9"); A("v_lshlrev_b32 v9, 4, v9")
        A(f"v_lshl_add_u32 v{vSTR}, v7, 10, v9")
        A(f"v_mul_u32_u24 v{vSTRQ}, 3072, v7"); A(f"v_add_u32 v{vSTRQ}, v{vSTRQ}, v9")
        A(f"v_lshrrev_b32 v9, 4, v{vL}"); A("v_xor_b32 v9, v8, v9"); A("v_lshlrev_b32 v9, 4, v9"); A("v_lshl_add_u32 v14, v7, 10, v9")
        A(f"v_xor_b32 v{vX2}, 64, v14"); A(f"v_add_u32 v{vX2}, 7168, v{vX2}")
        A(f"v_add_u32 v{vSTRJ[1]}, 7168, v{vSTR}")
        A("s_waitcnt lgkmcnt(0)")
        self.stamp("kernarg")
        if self.cfg.tlb1:
            wsel = self.cfg.tlb1_wave
            l = A.newlabel("tl")
            if wsel >= 0: A(f"s_cmp_lg_u32 s{sW}, {wsel}"); A(f"s_cbranch_scc1 {l}")
            ptrs = [16, 24, 18, 36, 26, 28, 20, 30, 32, 34][:self.cfg.tlb1]
            A("v_mov_b32 v250, s16"); A("v_mov_b32 v251, s17")
            A(f"s_lshr_b32 s{sT0}, s{sRB64}, 2"); A(f"s_lshl_b32 s{sT0}, s{sT0}, {SLAB_SH}"); A(f"s_add_u32 s{sT0}, s{sT0}, s36"); A(f"s_addc_u32 s{sT1}, s37, 0")
            for i, p in enumerate(ptrs):
                if i == 0: continue
                lo, hi = (sT0, sT1) if p == 36 else (p, p + 1)
                A(f"v_writelane_b32 v250, s{lo}, {i}"); A(f"v_writelane_b32 v251, s{hi}, {i}")
            A(f"s_mov_b64 s[{sEXS}:{sEXS+1}], exec"); A(f"s_bfm_b64 exec, {len(ptrs)}, 0")
            (A if wsel < 0 else A.opt)("global_load_dword v255, v[250:251], off")
            A(f"s_mov_b64 exec, s[{sEXS}:{sEXS+1}]")
            A.label(l)
        self.build_srds(((SRD_X, 16, 2097152), (SRD_W1, 24, 524288), (SRD_WQKV, 18, 1572864)))

    def scalar_touch(self):
        A = self.A
        if not self.cfg.stouch: return
        l = A.newlabel("st")
        A(f"s_cmp_lg_u32 s{sW}, {self.cfg.stouch_wave}"); A(f"s_cbranch_scc1 {l}")
        for p in (18, 26, 28, 20, 30, 32, 34):
            A(f"s_load_dword s{sT4}, s[{p}:{p+1}], 0")
        A("s_mov_b32 s12, s36"); A("s_mov_b32 s13, s37")
        for i in range(8):
            A(f"s_load_dword s{sT4}, s[12:13], 0")
            if i < 7: A("s_add_u32 s12, s12, 0x200000"); A("s_addc_u32 s13, s13, 0")
        A.label(l)

    def build_srds(self, lst):
        A = self.A
        for (n, p, size) in lst:
            A(f"s_mov_b32 s{n}, s{p}"); A(f"s_and_b32 s{n+1}, s{p+1}, 0xffff")
            A(f"s_mov_b32 s{n+2}, {size}"); A(f"s_mov_b32 s{n+3}, 0x20000")

    def emit_groups(self, gs):
        for g in gs:
            for ins in g:
                if callable(ins): ins()
                else: self.A(ins)

    def t0_dma(self):
        A = self.A
        self.stamp("touched")
        A(f"s_lshl_b32 s{sXG}, s{sRB64}, 16"); A(f"s_lshl_b32 s{sT0}, s{sW}, 14"); A(f"s_add_u32 s{sXG}, s{sXG}, s{sT0}")
        A(f"s_lshl_b32 s{sW1G}, s{sC}, 7"); A(f"s_add_u32 s{sW1G}, s{sW1G}, s{sT0}")
        A(f"s_lshl_b32 s{sWL}, s{sW}, 11")
        self.chunk_pos = {}
        for q in range(self.cfg.preA): self.emit_groups(self.chunk_dma(q))
        self.scalar_touch()
        self.start_touch()
        self.stamp("preA")
        self.build_srds(((SRD_WS, 36, WS_SIZE), (SRD_DBG, 34, 256), (SRD_WO, 20, 524288), (SRD_W2, 26, 524288),
                         (SRD_W3, 28, 1409024), (SRD_W4, 30, 1409024), (SRD_OUT, 32, 2097152)))
        A(f"s_lshr_b32 s{sSLAB}, s{sRB64}, 2"); A(f"s_lshl_b32 s{sSLAB}, s{sSLAB}, {SLAB_SH}")
        A(f"s_and_b32 s{sR32L}, s{sRB64}, 3"); A(f"s_lshl_b32 s{sR32L}, s{sR32L}, 1"); A(f"s_add_u32 s{sR32L}, s{sR32L}, s{sRBK}")
        A(f"s_and_b32 s{sR32P}, s{sRB128}, 1"); A(f"s_lshl_b32 s{sR32P}, s{sR32P}, 2"); A(f"s_add_u32 s{sR32P}, s{sR32P}, s{sW}")
        l = A.newlabel("zi")
        A(f"s_cmp_lg_u32 s2, 0"); A(f"s_cbranch_scc1 {l}")
        A(f"s_cmp_lg_u32 s{sW}, 3"); A(f"s_cbranch_scc1 {l}")
        A(f"v_lshrrev_b32 v250, 4, v{vL}"); A(f"v_lshlrev_b32 v250, {SLAB_SH}, v250"); A(f"v_and_b32 v251, 15, v{vL}")
        A("v_lshl_add_u32 v250, v251, 8, v250"); A(f"v_add_u32 v250, {WS_CNT}, v250"); A("v_mov_b32 v251, 0")
        A.opt(f"buffer_store_dword v251, v250, {srd(SRD_WS)}, 0 offen sc1")
        A(f"v_add_u32 v250, {4 << SLAB_SH}, v250")
        A.opt(f"buffer_store_dword v251, v250, {srd(SRD_WS)}, 0 offen sc1")
        A.label(l)
        A("v_mov_b32 v246, 0"); A("v_mov_b32 v250, 0")
        self.pos_zero = A.vm_pos()
        if self.cfg.touch_mode == "early": self.weight_touch()

    def start_touch(self):
        A = self.A
        if not self.cfg.touch: return
        le = A.newlabel("te")
        A(f"s_cmp_eq_u32 s{sW}, 3"); A(f"s_cbranch_scc0 {le}")
        A(f"s_mov_b64 s[{sEXS}:{sEXS+1}], exec")
        A("s_mov_b64 exec, 0xff")
        A("s_getpc_b64 s[96:97]")
        A.label("L_pc")
        A(f"s_lshl_b32 s{sT0}, s{sT3}, 10"); A(f"v_lshlrev_b32 v250, 7, v{vL}"); A(f"v_add_u32 v250, s{sT0}, v250")
        A("v_min_u32 v250, L_end-L_pc, v250")
        A.opt("global_load_dword v255, v250, s[96:97]")
        A("s_bfm_b64 exec, 48, 0")
        A(f"s_mul_i32 s{sT0}, s2, {48*128}"); A(f"v_lshlrev_b32 v250, 7, v{vL}")
        A.opt(f"buffer_load_dword v255, v250, {srd(SRD_WQKV)}, s{sT0} offen")
        A(f"s_mov_b64 exec, s[{sEXS}:{sEXS+1}]")
        A.label(le)

    def t0_dma2(self):
        for q in range(self.cfg.preA, self.cfg.pre_chunks): self.emit_groups(self.chunk_dma(q))

    def weight_touch(self, tlb_only=False, with_ws=True):
        A = self.A
        if not self.cfg.touch: return
        le = A.newlabel("lte")
        labels = [A.newlabel("lt") for _ in range(4)]
        A(f"s_mov_b64 s[{sEXS}:{sEXS+1}], exec")
        A(f"v_lshlrev_b32 v250, 7, v{vL}")
        plan = (((SRD_W2, 16, 0), (SRD_WO, 16, 0)), ((SRD_W3, 22, 0), (SRD_W3, 21, 22)), ((SRD_W4, 22, 0), (SRD_W4, 21, 22)), None)
        for w, items in enumerate(plan):
            A.label(labels[w])
            f = A if w == 0 else A.opt
            if w < 3:
                A(f"s_cmp_eq_u32 s{sW}, {w}"); A(f"s_cbranch_scc0 {labels[w+1]}")
                for (srdn, n, first) in items:
                    tot = 16 if srdn in (SRD_W2, SRD_WO) else 43
                    A(f"s_bfm_b64 exec, {n}, 0")
                    A(f"s_mul_i32 s{sT5}, s2, {tot*128}")
                    if first: A(f"s_add_u32 s{sT5}, s{sT5}, {first*128}")
                    f(f"buffer_load_dword v255, v250, {srd(srdn)}, s{sT5} offen")
                A(f"s_branch {le}")
            else:
                A("s_mov_b64 exec, 3"); A(f"v_lshlrev_b32 v250, 20, v{vL}")
                f(f"buffer_load_dword v255, v250, {srd(SRD_OUT)}, 0 offen")
                A("s_mov_b64 exec, 1")
                f(f"buffer_load_dword v255, v246, {srd(SRD_DBG)}, 0 offen")
        A.label(le)
        A(f"s_mov_b64 exec, s[{sEXS}:{sEXS+1}]")

    def l2_touch(self, what):
        A = self.A
        if what not in self.cfg.l2touch.split("+"): return
        T = 240
        srdn, nlines = {"w2": (SRD_W2, 4096), "wo": (SRD_WO, 4096), "w4": (SRD_W4, 11008), "w3": (SRD_W3, 11008),
                        "wq": (SRD_WQKV, 4096), "wv": (SRD_WQKV, 4096)}[what]
        per = nlines // 128
        A(f"s_lshr_b32 s{sT5}, s2, 3"); A(f"s_lshl_b32 s{sT5}, s{sT5}, 2"); A(f"s_add_u32 s{sT5}, s{sT5}, s{sW}")
        if what in ("wq", "wv"):
            A(f"s_mul_i32 s{sT5}, s{sT5}, {4*3072}")
            if what == "wv": A(f"s_add_u32 s{sT5}, s{sT5}, 2048")
            A(f"v_lshrrev_b32 v{T}, 3, v{vL}"); A(f"v_mul_u32_u24 v{T}, 3072, v{T}"); A(f"v_and_b32 v{T+1}, 7, v{vL}")
            A(f"v_lshl_add_u32 v{T}, v{T+1}, 7, v{T}")
        else:
            A(f"s_mul_i32 s{sT5}, s{sT5}, {per*128}")
            A(f"v_lshlrev_b32 v{T}, 7, v{vL}")
        A(f"s_mov_b64 s[{sEXS}:{sEXS+1}], exec")
        for r0 in range(0, per, 64):
            n = min(64, per - r0)
            if n < 64: A(f"s_bfm_b64 exec, {n}, 0")
            if r0: A(f"s_add_u32 s{sT5}, s{sT5}, {64*128}")
            A(f"buffer_load_dword v255, v{T}, {srd(srdn)}, s{sT5} offen")
        A(f"s_mov_b64 exec, s[{sEXS}:{sEXS+1}]")

    def l2_touch_rows(self, srdn, ranges, tmp):
        A = self.A
        A(f"s_lshr_b32 s{sT5}, s2, 3"); A(f"s_lshl_b32 s{sT5}, s{sT5}, 2"); A(f"s_add_u32 s{sT5}, s{sT5}, s{sW}")
        A(f"v_lshlrev_b32 v{tmp}, 7, v{vL}")
        A(f"s_mov_b64 s[{sEXS}:{sEXS+1}], exec")
        for (r0, nr) in ranges:
            per = (nr * 8 + 127) // 128
            assert per <= 64
            A(f"s_mul_i32 s{sT0}, s{sT5}, {per*128}"); A(f"s_add_u32 s{sT0}, s{sT0}, {r0*1024}")
            A(f"s_bfm_b64 exec, {per}, 0") if per < 64 else A("s_mov_b64 exec, -1")
            A(f"buffer_load_dword v255, v{tmp}, {srd(srdn)}, s{sT0} offen")
        A(f"s_mov_b64 exec, s[{sEXS}:{sEXS+1}]")

    def chunk_dma(self, q):
        gs = [[f"s_add_u32 s{sD1}, s{sROT}, {q}", f"s_and_b32 s{sD1}, s{sD1}, 7", f"s_lshl_b32 s{sD0}, s{sD1}, 7",
               f"s_add_u32 m0, s{sWL}, {A0 + q*8192}", f"s_add_u32 s{sD0}, s{sD0}, s{sXG}",
               f"buffer_load_dwordx4 v14, {srd(SRD_X)}, s{sD0} offen lds"],
              [f"buffer_load_dwordx4 v{vX2}, {srd(SRD_X)}, s{sD0} offen offset:1024 lds"],
              [f"s_lshl_b32 s{sD0}, s{sD1}, 16",
               f"s_add_u32 m0, s{sWL}, {B0 + q*8192}", f"s_add_u32 s{sD0}, s{sD0}, s{sW1G}",
               f"buffer_load_dwordx4 v{vSTR}, {srd(SRD_W1)}, s{sD0} offen lds"],
              [f"buffer_load_dwordx4 v{vSTRJ[1]}, {srd(SRD_W1)}, s{sD0} offen offset:1024 lds"]]
        def mark(q=q): self.chunk_pos[q] = self.A.vm_pos()
        gs[-1].append(mark)
        return gs

    def quad(self, pre, srdn, vregs):
        return [(pre if j == 0 else []) + [f"buffer_load_dwordx4 v{vregs[j]}, {srd(srdn)}, s{sG} offen" + (f" offset:{1024*j}" if j else "") + " lds"]
                for j in range(4)]

    def job_strip_qkv(self, which, s0, ns, lds0):
        assert ns % 8 == 0
        groups = []
        for J in range(ns // 8):
            pre = [f"s_add_u32 m0, s{sW4K}, {lds0 + 16384*J}", f"s_add_u32 s{sD0}, s{sROT8}, {2*s0 + 16*J}", f"s_and_b32 s{sD0}, s{sD0}, 63",
                   f"s_mul_i32 s{sD0}, s{sD0}, {8*3072}", f"s_lshl_b32 s{sG}, s{sC}, 7", f"s_add_u32 s{sG}, s{sG}, s{sD0}"]
            if which: pre.append(f"s_add_u32 s{sG}, s{sG}, {which*1024}")
            groups += self.quad(pre, SRD_WQKV, vSTRQJ)
        return groups

    def job_strip(self, srdn, u0, nunits, lds_base):
        assert u0 % 16 == 0 and nunits % 16 == 0 and not self.cfg.krot
        groups = []
        for J in range(nunits // 16):
            u = u0 + 16*J
            pre = [f"s_add_u32 m0, s{sW4K}, {lds_base + 1024*u}", f"s_add_u32 s{sG}, s{sBW}, {u*8192}"]
            groups += self.quad(pre, srdn, vSTRJ)
        return groups

    def job_w3(self, s0, ns, lds0):
        groups = []
        full_prev = False
        for j in range((ns + 3)//4):
            full = 4*j + 3 < ns
            if full and full_prev:
                g = [f"s_add_u32 m0, m0, {4*3072}", f"s_add_u32 s{sG}, s{sG}, {4*16*2752}"]
            else:
                if full:
                    g = [f"s_add_u32 m0, s{sW3L}, {lds0 + 4*j*3072}", f"s_add_u32 s{sD0}, s{sW}, {s0 + 4*j}"]
                else:
                    g = [f"s_add_u32 s{sD1}, s{sW}, {4*j}", f"s_min_u32 s{sD1}, s{sD1}, {ns-1}", f"s_mul_i32 s{sD0}, s{sD1}, 3072",
                         f"s_add_u32 m0, s{sD0}, {lds0}", f"s_add_u32 s{sD0}, s{sD1}, {s0}"]
                g += [f"s_mul_i32 s{sD0}, s{sD0}, {16*2752}", f"s_lshl_b32 s{sD1}, s{sCB0}, 6", f"s_add_u32 s{sG}, s{sD0}, s{sD1}"]
            full_prev = full
            for i in range(3):
                ins = f"buffer_load_dwordx4 v{vW3[i]}, {srd(SRD_W3)}, s{sG} offen" + (f" offset:{1024*i}" if i else "") + " lds"
                groups.append((g if i == 0 else []) + [ins])
        return groups

    def setup2(self):
        A = self.A
        A(f"s_mov_b32 s{sONES}, 0x3f803f80"); A(f"s_mov_b32 s{sPLO}, 0x05040100"); A(f"s_mov_b32 s{sPHI}, 0x07060302")
        if self.cfg.ftswap:
            A(f"s_cmp_eq_u32 s{sFT}, 3"); A(f"s_cselect_b32 s{sT0}, 12, s{sFT}")
            A(f"s_cmp_eq_u32 s{sFT}, 12"); A(f"s_cselect_b32 s{sFT}, 3, s{sT0}")
        A(f"s_mul_i32 s{sCB0}, s{sFT}, 3"); A(f"s_mov_b32 s{sNBLK}, 3")
        A(f"s_cmp_lt_u32 s{sFT}, 11"); l = A.newlabel("ft"); A(f"s_cbranch_scc1 {l}")
        A(f"s_lshl_b32 s{sCB0}, s{sFT}, 1"); A(f"s_add_u32 s{sCB0}, s{sCB0}, 11"); A(f"s_mov_b32 s{sNBLK}, 2")
        A.label(l)
        A(f"s_lshl_b32 s{sBW}, s{sC}, 7"); A(f"s_lshl_b32 s{sT0}, s{sW}, 15"); A(f"s_add_u32 s{sBW}, s{sBW}, s{sT0}")
        A(f"s_lshl_b32 s{sBW4}, s{sC}, 7"); A(f"s_lshl_b32 s{sT0}, s{sW}, 14"); A(f"s_add_u32 s{sBW4}, s{sBW4}, s{sT0}")
        A(f"s_mul_i32 s{sW3L}, s{sW}, 3072")
        A(f"s_mov_b32 s{sR3}, 0"); A(f"s_mov_b32 s{sKR}, 0")
        for j in (2, 3): A(f"v_add_u32 v{vSTRJ[j]}, {7168*j}, v{vSTR}")
        A(f"v_add_u32 v{vS4J[2]}, {43*16384 - 2048}, v{vSTR}"); A(f"v_add_u32 v{vS4J[3]}, {43*16384 + 8192 - 3072}, v{vSTR}")
        for j in (1, 2, 3): A(f"v_add_u32 v{vSTRQJ[j]}, {23552*j}, v{vSTRQ}")
        T = vT
        A(f"v_bfe_u32 v{T}, v{vL}, 2, 2")
        A(f"v_and_b32 v{T+1}, 3, v{vL}"); A(f"v_lshlrev_b32 v{T+1}, 3, v{T+1}")
        A(f"v_bfe_u32 v{T+2}, v{vL}, 4, 1"); A(f"v_lshl_add_u32 v{T+1}, v{T+2}, 5, v{T+1}")
        A(f"v_lshrrev_b32 v{T+2}, 1, v{T}")
        A(f"v_xor_b32 v{T+3}, s{sCG}, v{T+2}")
        A(f"v_lshlrev_b32 v{T+3}, 6, v{T+3}")
        A(f"v_lshl_add_u32 v{T+4}, v{T}, 7, v{T+1}")
        A(f"v_add_u32 v{T+4}, v{T+4}, v{T+3}")
        A(f"v_lshl_add_u32 v{vTRN}, v{vH}, 10, v{T+4}")
        A(f"v_lshl_add_u32 v{vTRC0}, v{vH}, 9, v{T+4}")
        A(f"v_xor_b32 v{vTRC1}, 64, v{vTRC0}")
        A(f"v_mul_u32_u24 v{T+5}, 192, v{T}"); A(f"v_add_u32 v{T+5}, v{T+5}, v{T+1}")
        A(f"v_mul_u32_u24 v{T+6}, 768, v{vH}"); A(f"v_add_u32 v{vTR3}, v{T+5}, v{T+6}")
        A(f"s_mov_b32 s{sT0}, 43691"); A(f"s_movk_i32 s{sT1}, 2752")
        for j in range(3):
            A(f"v_add_u32 v{T}, {64*j}, v{vL}")
            A(f"v_mul_u32_u24 v{T+1}, s{sT0}, v{T}"); A(f"v_lshrrev_b32 v{T+1}, 19, v{T+1}")
            A(f"v_mul_u32_u24 v{T+2}, 12, v{T+1}"); A(f"v_sub_u32 v{T+2}, v{T}, v{T+2}")
            A(f"v_mul_u32_u24 v{T+1}, s{sT1}, v{T+1}")
            A(f"v_lshl_add_u32 v{vW3[j]}, v{T+2}, 4, v{T+1}")
            if j: A(f"v_subrev_u32 v{vW3[j]}, {1024*j}, v{vW3[j]}")

    def p1_h(self):
        A = self.A
        T = vT
        vXA = [T, T+1, T+2, T+3]; vXS = [T+4, T+5]
        A(f"s_lshl_b32 s{sT0}, s{sRBK}, 5"); A(f"v_add_u32 v{T+6}, s{sT0}, v{vM}")
        A(f"v_bfe_u32 v{T+7}, v{T+6}, 1, 3"); A(f"v_xor_b32 v{T+7}, v{T+7}, v{vH}"); A(f"v_lshlrev_b32 v{T+7}, 4, v{T+7}")
        A(f"v_lshl_add_u32 v{vXA[0]}, v{T+6}, 7, v{T+7}")
        for s in range(1, 4): A(f"v_xor_b32 v{vXA[s]}, {32*s}, v{vXA[0]}")
        A(f"s_lshl_b32 s{sT0}, s{sCG}, 6"); A(f"v_xor_b32 v{vXS[0]}, s{sT0}, v{vXA[0]}"); A(f"v_xor_b32 v{vXS[1]}, 32, v{vXS[0]}")
        vXR = T+8
        A(f"v_bfe_u32 v{T+7}, v{T+6}, 1, 3"); A(f"s_lshl_b32 s{sT0}, s{sCG}, 2"); A(f"v_xor_b32 v{T+7}, s{sT0}, v{T+7}")
        A(f"v_lshlrev_b32 v{T+7}, 4, v{T+7}"); A(f"v_lshl_add_u32 v{T+7}, v{T+6}, 7, v{T+7}")
        A(f"v_lshl_add_u32 v{T+7}, v{vH}, 3, v{T+7}")
        A(f"s_sub_u32 s{sXSLOT}, s{sC}, s{sROT}"); A(f"s_and_b32 s{sXSLOT}, s{sXSLOT}, 7"); A(f"s_lshl_b32 s{sT0}, s{sXSLOT}, 13"); A(f"v_add_u32 v{vXR}, s{sT0}, v{T+7}")
        vWB = T+9
        A(f"v_add_u32 v{vWB}, {B0}, v{vTRN}")
        vS0, vS1, vQ0, vQ1, vC0, vC1 = T+10, T+11, T+12, T+13, T+14, T+15
        for r in (vS0, vS1, vQ0, vQ1, vC0, vC1): A(f"v_mov_b32 v{r}, 0")
        XT = T+16
        acc = vACC0
        def reads(q):
            L = []
            for s in range(4):
                b = vRING + 4*(4*(q & 1) + s)
                st = 4*q + s
                L.append([f"ds_read_b128 {a(4*st,4)}, v{vXA[s]} offset:{q*8192}",
                          f"ds_read_b64_tr_b16 {v(b,2)}, v{vWB} offset:{st*2048}",
                          f"ds_read_b64_tr_b16 {v(b+2,2)}, v{vWB} offset:{st*2048+512}"])
            L[0].append(f"ds_read_b128 {v(XT+8*(q&1),4)}, v{vXS[0]} offset:{q*8192}")
            L[1].append(f"ds_read_b128 {v(XT+8*(q&1)+4,4)}, v{vXS[1]} offset:{q*8192}")
            return L
        def burst(q):
            x = XT + 8*(q & 1)
            for i in range(8):
                A(f"v_dot2c_f32_bf16 v{vS0 + (i&1)}, s{sONES}, v{x+i}")
                A(f"v_dot2c_f32_bf16 v{vQ0 + (i&1)}, v{x+i}, v{x+i}")
            l1 = A.newlabel("cs"); l2 = A.newlabel("ce")
            b = vRING + 16*(q & 1)
            A(f"s_cmp_lg_u32 s{sRBK}, 0"); A(f"s_cbranch_scc1 {l1}")
            for i in range(8): A(f"v_dot2c_f32_bf16 v{vC0 + (i&1)}, s{sONES}, v{b+i}")
            A(f"s_branch {l2}")
            A.label(l1)
            for i in range(8): A(f"v_dot2c_f32_bf16 v{vC0 + (i&1)}, s{sONES}, v{b+8+i}")
            A.label(l2)
        for q in range(9):
            if q < 8:
                A.wait(vm=self.chunk_pos[q])
                if q == self.cfg.preA:
                    l = A.newlabel("fi")
                    A(f"s_cmp_lg_u32 s2, 0"); A(f"s_cbranch_scc1 {l}")
                    A(f"s_cmp_lg_u32 s{sW}, 3"); A(f"s_cbranch_scc1 {l}")
                    A("v_mov_b32 v250, 0"); A("v_mov_b32 v251, 1")
                    A(f"s_mov_b64 s[{sEXS}:{sEXS+1}], exec"); A("s_mov_b64 exec, 1")
                    A.opt(f"buffer_store_dword v251, v250, {srd(SRD_DBG)}, 0 offen sc1")
                    A(f"s_mov_b64 exec, s[{sEXS}:{sEXS+1}]")
                    A.label(l)
            A.wait_all_lg()
            if q < 8: A("s_barrier")
            rd = reads(q) if q < 8 else [[], [], [], []]
            if q < 8 and (q == 0 or self.cfg.chunkstamps):
                self.stamp(f"chunk{q}")
            if q in (0, 2, 4, 6):
                l = A.newlabel("xr")
                A(f"s_cmp_lg_u32 s{sXSLOT}, {q}"); A(f"s_cbranch_scc1 {l}")
                for g in range(4):
                    A(f"v_xor_b32 v{T+32}, {16*g}, v{vXR}")
                    A.opt(f"ds_read_b64 {v(vXRES+2*g,2)}, v{T+32}")
                A.label(l)
            if q == 0:
                for g in rd:
                    for ins in g: A(ins)
                continue
            p = q - 1
            nxt = q + self.cfg.pre_chunks - 1
            if nxt <= 7: self.side += self.chunk_dma(nxt)
            elif not self.kA_queued:
                assert q >= 6
                self.kA_queued = True
                self.queue(self.job_strip_qkv(1, 0, 8, C0))
                self.queue(self.job_strip_qkv(1, 8, 16, A0))
                self.queue(self.job_strip_qkv(1, 24, 8, A0 + 32768), "pos_kB")
                if self.cfg.early_kv: self.queue(self.job_strip_qkv(2, 0, 16, B0))
            if q == 6: self.init_poll_issue()
            if q == 5 and self.cfg.touch:
                A(f"s_mov_b64 s[{sEXS}:{sEXS+1}], exec"); A("s_mov_b64 exec, 1")
                A(f"buffer_load_dword v255, v246, {srd(SRD_WS)}, s{sSLAB} offen")
                A(f"s_mov_b64 exec, s[{sEXS}:{sEXS+1}]")
            for s in range(4):
                st = 4*p + s
                b = vRING + 4*(4*(p & 1) + s)
                c = "0" if st == 0 else v(acc, 16)
                A(f"v_mfma_f32_32x32x16_bf16 {v(acc,16)}, {v(b,4)}, {a(4*st,4)}, {c}")
                for ins in rd[s]: A(ins)
                self.pump(2 if q >= 6 else 1)
            burst(p)
        self.flush_side()
        self.vS = (vS0, vS1, vQ0, vQ1, vC0, vC1)

    def colsum_finish(self, vC0, vC1, scr_off, tmp, pre=None, post=None):
        A = self.A
        A.nop(3)
        A(f"v_add_f32 v{vC0}, v{vC0}, v{vC1}")
        self.swap_add(vC0, tmp)
        A(f"s_lshl_b32 s{sT0}, s{sW}, 7"); A(f"v_lshl_add_u32 v{tmp}, v{vM}, 2, s{sT0}")
        A(f"v_add_u32 v{tmp}, {scr_off}, v{tmp}")
        A(f"ds_write_b32 v{tmp}, v{vC0}")
        if pre: pre()
        A.wait_all_lg()
        A("s_barrier")
        A(f"v_xor_b32 v{tmp}, 128, v{tmp}")
        A(f"ds_read_b32 v{vC1}, v{tmp}")
        if post: post()
        A(f"v_cmp_gt_u32 vcc, 32, v{vL}")
        A.wait_all_lg()
        A(f"v_add_f32 v{vC0}, v{vC0}, v{vC1}")
        A(f"v_cndmask_b32 v{vC0}, 0, v{vC0}, vcc")

    def p1_h_finish(self):
        A = self.A
        T = vT
        vS0, vS1, vQ0, vQ1, vC0, vC1 = self.vS
        acc = vACC0
        A.nop(3)
        A(f"v_add_f32 v{vS0}, v{vS0}, v{vS1}"); A(f"v_add_f32 v{vQ0}, v{vQ0}, v{vQ1}"); A(f"v_add_f32 v{vC0}, v{vC0}, v{vC1}")
        tmp = T+33
        self.swap_add(vS0, tmp); self.swap_add(vQ0, tmp); self.swap_add(vC0, tmp)
        A(f"s_lshl_b32 s{sT0}, s{sW}, 8"); A(f"v_lshl_add_u32 v{tmp}, v{vM}, 3, s{sT0}"); A(f"v_add_u32 v{tmp}, {SCR1}, v{tmp}")
        A(f"v_mov_b32 v{vS1}, v{vQ0}")
        A(f"ds_write_b64 v{tmp}, {v(vS0,2)}")
        A(f"s_lshl_b32 s{sT0}, s{sW}, 7"); A(f"v_lshl_add_u32 v{tmp+1}, v{vM}, 2, s{sT0}"); A(f"v_add_u32 v{tmp+1}, {SCR1+1024}, v{tmp+1}")
        A(f"ds_write_b32 v{tmp+1}, v{vC0}")
        A.wait_all_lg()
        A("s_barrier")
        A(f"v_xor_b32 v{tmp}, 512, v{tmp}"); A(f"v_xor_b32 v{tmp+1}, 128, v{tmp+1}")
        A(f"ds_read_b64 {v(vQ0,2)}, v{tmp}")
        A(f"ds_read_b32 v{vC1}, v{tmp+1}")
        if self.cfg.early_kv: self.queue(self.job_strip_qkv(2, 16, 16, B0 + 32768), "pos_v")
        else: self.queue(self.job_strip_qkv(2, 0, 32, B0), "pos_v")
        A.auto = self.cfg.auto
        A(f"v_cmp_gt_u32 vcc, 32, v{vL}")
        A.wait_all_lg()
        A(f"v_add_f32 v{vS0}, v{vS0}, v{vQ0}"); A(f"v_add_f32 v{vS1}, v{vS1}, v{vQ1}"); A(f"v_add_f32 v{vC0}, v{vC0}, v{vC1}")
        A(f"v_cndmask_b32 v{vC0}, 0, v{vC0}, vcc")
        self.fstamp("he", "he:exch")
        A(f"v_mul_f32 v{vS0}, {fbits(1/512)}, v{vS0}")
        A(f"v_mul_f32 v{vS1}, {fbits(1/512)}, v{vS1}")
        A(f"v_sub_f32 v{vNMU}, 0, v{vS0}")
        A(f"v_fma_f32 v{vS1}, v{vNMU}, v{vS0}, v{vS1}")
        A(f"v_max_f32 v{vS1}, 0, v{vS1}")
        A(f"v_mfma_f32_32x32x2_f32 {v(acc,16)}, v{vC0}, v{vNMU}, {v(acc,16)}")
        mk = A.mark()
        A(f"v_add_f32 v{vQ0}, {fbits(1e-5)}, v{vS1}")
        A(f"v_rsq_f32 v{vR}, v{vQ0}")
        A.nop(1)
        A(f"v_mul_f32 v{vQ0}, v{vR}, v{vR}"); A(f"v_mul_f32 v{vQ0}, v{vQ0}, v{vS1}")
        A(f"v_add_f32 v{vQ0}, {fbits(1e-5)}, v{vQ0}")
        A(f"v_rsq_f32 v{vQ0}, v{vQ0}")
        A.nop(1)
        A(f"v_mul_f32 v{vQ0}, v{vQ0}, v{vR}")
        self.fstamp("he", "he:stats")
        self.gelu_block(acc, vQ0, T+34, mk)
        self.fstamp("he", "he:gelu")
        self.frag_dest(sT0, WS_H)
        self.pstore(f"buffer_store_dwordx4 {v(acc,4)}, v{vL16}, {srd(SRD_WS)}, s{sT0} offen sc1")
        self.pstore(f"buffer_store_dwordx4 {v(acc+4,4)}, v{vL16}, {srd(SRD_WS)}, s{sT0} offen offset:1024 sc1")
        self.pos_h = A.vm_pos()
        A.auto = 0
        self.flush_side()
        if self.cfg.touch_mode == "late": self.weight_touch()
        self.l2_touch("w2"); self.l2_touch("wq")

    def gelu_consts(self, vS, tmp):
        A = self.A
        K1, K0, RI = tmp, tmp+2, tmp+4
        A(f"v_mul_f32 v{K0}, {fbits(C0G)}, v{vS}")
        A(f"v_mul_f32 v{K1}, v{vS}, v{vS}"); A(f"v_mul_f32 v{K1}, v{K1}, v{vS}"); A(f"v_mul_f32 v{K1}, {fbits(C1G)}, v{K1}")
        A(f"v_rcp_f32 v{RI}, v{vS}")
        A(f"v_mov_b32 v{K0+1}, v{K0}"); A(f"v_mov_b32 v{K1+1}, v{K1}"); A(f"v_mov_b32 v{RI+1}, v{RI}")
        return (K1, K0, RI, tmp + 6)

    def gelu_body(self, acc, GK):
        A = self.A
        K1, K0, RI, t = GK
        for p in range(0, 16, 4):
            x0, x1 = acc + p, acc + p + 2
            u0, u1 = t, t + 2
            A(f"v_pk_mul_f32 {v(u0,2)}, {v(x0,2)}, {v(x0,2)}")
            A(f"v_pk_mul_f32 {v(u1,2)}, {v(x1,2)}, {v(x1,2)}")
            A(f"v_pk_fma_f32 {v(u0,2)}, {v(u0,2)}, {v(K1,2)}, {v(K0,2)}")
            A(f"v_pk_fma_f32 {v(u1,2)}, {v(u1,2)}, {v(K1,2)}, {v(K0,2)}")
            A(f"v_pk_mul_f32 {v(u0,2)}, {v(u0,2)}, {v(x0,2)}")
            A(f"v_pk_mul_f32 {v(u1,2)}, {v(u1,2)}, {v(x1,2)}")
            for r in (u0, u0+1, u1, u1+1): A(f"v_exp_f32 v{r}, v{r}")
            A(f"v_pk_fma_f32 {v(u0,2)}, {v(u0,2)}, {v(RI,2)}, {v(RI,2)}")
            A(f"v_pk_fma_f32 {v(u1,2)}, {v(u1,2)}, {v(RI,2)}, {v(RI,2)}")
            for r in (u0, u0+1, u1, u1+1): A(f"v_rcp_f32 v{r}, v{r}")
            A(f"v_pk_mul_f32 {v(u0,2)}, {v(u0,2)}, {v(x0,2)}")
            A(f"v_pk_mul_f32 {v(u1,2)}, {v(u1,2)}, {v(x1,2)}")
            A(f"v_cvt_pk_bf16_f32 v{acc + p//2}, v{u0}, v{u0+1}")
            A(f"v_cvt_pk_bf16_f32 v{acc + p//2 + 1}, v{u1}, v{u1+1}")

    def gelu_block(self, acc, vS, tmp, mk):
        GK = self.gelu_consts(vS, tmp)
        self.A.pad(mk, 18)
        self.gelu_body(acc, GK)

    def qkv_main(self, addr, hooks, side_rate=2, mid=None):
        A = self.A
        T = vT
        acc = vACC0
        PD = 2
        bases = {}
        for st in range(32):
            for d in (0, 512):
                win = (addr(st) + d) // 65536
                if win not in bases:
                    r = T + 40 + len(bases)
                    if win: A(f"v_add_u32 v{r}, {win*65536}, v{vTRN}")
                    else: A(f"v_mov_b32 v{r}, v{vTRN}")
                    bases[win] = r
        vC0, vC1 = T+14, T+15
        A(f"v_mov_b32 v{vC0}, 0"); A(f"v_mov_b32 v{vC1}, 0")
        lgpos = {}
        def burst(steps):
            for st in steps:
                b = vRING + 4*(st % 18)
                for i in range(4): A(f"v_dot2c_f32_bf16 v{vC0 + (i&1)}, s{sONES}, v{b+i}")
                self.tick(18)
        self.credit = 0
        for s in range(32 + PD):
            if s < 32:
                if s in hooks: hooks[s]()
                ad = addr(s)
                b = vRING + 4*(s % 18)
                for (kk, d) in ((0, 0), (2, 512)):
                    x = ad + d
                    A(f"ds_read_b64_tr_b16 {v(b+kk,2)}, v{bases[x // 65536]} offset:{x % 65536}")
                lgpos[s] = A.lg_pos()
            if s >= PD:
                t = s - PD
                A.wait(lg=lgpos[t])
                b = vRING + 4*(t % 18)
                c = "0" if t == 0 else v(acc, 16)
                A(f"v_mfma_f32_32x32x16_bf16 {v(acc,16)}, {v(b,4)}, {a(4*t,4)}, {c}")
                self.tick(33)
                if mid and t in mid: mid[t]()
                if t == 15:
                    self.fstamp("qkv", "t15>")
                    burst(range(0, 16))
                    self.fstamp("qkv", "t15<")
        self.fstamp("qkv", "loop<")
        burst(range(16, 32))

    def qkv_tail(self, dst, keep_auto=False):
        A = self.A
        T = vT
        acc = vACC0
        vC0, vC1 = T+14, T+15
        A(f"v_cmp_gt_u32 vcc, 32, v{vL}")
        A.nop(2)
        A(f"v_add_f32 v{vC0}, v{vC0}, v{vC1}")
        self.swap_add(vC0, T+33)
        A(f"v_cndmask_b32 v{vC0}, 0, v{vC0}, vcc")
        A.nop(2)
        A(f"v_mfma_f32_32x32x2_f32 {v(acc,16)}, v{vC0}, v{vNMU}, {v(acc,16)}")
        mk = A.mark()
        A.auto = 0
        self.pump(3)
        A.pad(mk, 18)
        A.auto = self.cfg.auto
        for i in range(8):
            A(f"v_mul_f32 v{acc+2*i}, v{vR}, v{acc+2*i}"); A(f"v_mul_f32 v{acc+2*i+1}, v{vR}, v{acc+2*i+1}")
            A(f"v_cvt_pk_bf16_f32 v{dst+i}, v{acc+2*i}, v{acc+2*i+1}")
        A.auto = 0
        A.nop(2)
        for i in range(4): A(f"v_permlane32_swap_b32 v{dst+i}, v{dst+4+i}")

    def shadow1(self):
        A = self.A
        def addr_k(s): return C0 + s*2048 if s < 8 else A0 + (s-8)*2048
        def hk0(): A.wait(vm=self.pos_kB); A("s_barrier"); self.stamp("hk0")
        n1 = self.cfg.w2_in_k
        mids = {8: lambda: self.l2_touch("w3")}
        if n1: mids[16] = lambda: self.queue(self.job_strip(SRD_W2, 64 - n1, n1, A0))
        self.qkv_main(addr_k, {0: hk0}, mid=mids)
        self.flush_side()
        self.stamp("k loop")
        A.wait(vm=self.pos_h)
        A("s_barrier")
        self.stamp("h drained")
        self.signal(CNT_H, sRB64, "h", init_check=True)
        self.queue(self.job_strip(SRD_W2, 0, 64 - n1, A0), "pos_w2")
        self.queue(self.job_w3(0, 8, C0) + self.job_w3_small(30, 2, C0 + 8*3072))
        self.qkv_tail(vKP)
        self.stamp("k done")
        self.p2_setup()
        def hv0(): A.wait(vm=self.pos_v); A("s_barrier"); self.stamp("hv0")
        hcode = [f"s_add_u32 s{sT5}, s{sRB64}, -1", f"v_add_u32 v250, s{sT5}, v{vL}",
                 "v_max_i32 v250, 0, v250", "v_min_i32 v250, 31, v250"] + self.cnt64_v(CNT_H)
        self.qkv_main(lambda s: B0 + s*2048, {0: hv0}, side_rate=1, mid={self.cfg.hpoll_at: lambda: self.poll_issue(hcode, 3, 8, "h"), 20: lambda: self.l2_touch("wo")})
        self.flush_side()
        self.stamp("v loop")

    def halo_publish(self):
        A = self.A
        l = A.newlabel("halo")
        A(f"s_cmp_lg_u32 s{sRBK}, 1"); A(f"s_cbranch_scc1 {l}")
        T = vT
        A(f"s_and_b32 s{sT0}, s{sRB64}, 3"); A(f"s_lshl_b32 s{sT0}, s{sT0}, 3"); A(f"s_add_u32 s{sT0}, s{sT0}, s{sC}"); A(f"s_lshl_b32 s{sT0}, s{sT0}, 12")
        A(f"s_lshl_b32 s{sT1}, s{sCG}, 10"); A(f"s_add_u32 s{sT0}, s{sT0}, s{sT1}"); A(f"s_add_u32 s{sT0}, s{sT0}, s{sSLAB}"); A(f"s_add_u32 s{sT0}, s{sT0}, {WS_KV}")
        A(f"v_subrev_u32 v{T}, 16, v{vM}"); A(f"v_lshlrev_b32 v{T}, 4, v{T}"); A(f"v_lshl_add_u32 v{T}, v{vH}, 9, v{T}")
        A(f"v_cmp_le_u32 vcc, 16, v{vM}")
        A(f"s_and_saveexec_b64 s[{sEXS}:{sEXS+1}], vcc")
        self.pstore(f"buffer_store_dwordx4 {v(vKP,4)}, v{T}, {srd(SRD_WS)}, s{sT0} offen sc1", opt=True)
        self.pstore(f"buffer_store_dwordx4 {v(vKP+4,4)}, v{T}, {srd(SRD_WS)}, s{sT0} offen offset:256 sc1", opt=True)
        self.pstore(f"buffer_store_dwordx4 {v(vVP,4)}, v{T}, {srd(SRD_WS)}, s{sT0} offen offset:2048 sc1", opt=True)
        self.pstore(f"buffer_store_dwordx4 {v(vVP+4,4)}, v{T}, {srd(SRD_WS)}, s{sT0} offen offset:2304 sc1", opt=True)
        A(f"s_mov_b64 exec, s[{sEXS}:{sEXS+1}]")
        A.label(l)
        self.pos_halo = A.vm_pos()

    def ksplit_gemm(self, nsteps, wbase_vregs, waddr, act_load, first, nring_regs, PDL, hooks=None, side_rate=1, tail=None, pre=None, window=None):
        A = self.A
        hooks = hooks or {}
        acts = {}; apos = {}
        def issue(i):
            acts[i] = act_load(i); apos[i] = A.vm_pos()
        if act_load is None:
            acts, apos = pre
        elif window:
            rest = self.side
            self.side = [[(lambda i=i: issue(i))] for i in range(min(PDL, nsteps))]
            self.pump(2)
            assert not rest
            window()
            while len(apos) < min(PDL, nsteps): self.pump(1)
        else:
            for i in range(min(PDL, nsteps)): issue(i)
        PD = 2
        lgpos = {}
        def wreads(s, cb):
            ad = waddr(s)
            if ad is None: return
            b = vRING + 4*(2*(s % 4) + cb)
            A(f"ds_read_b64_tr_b16 {v(b,2)}, v{wbase_vregs[cb]} offset:{ad}")
            A(f"ds_read_b64_tr_b16 {v(b+2,2)}, v{wbase_vregs[cb]} offset:{ad+1024}")
        for s in range(min(PD, nsteps)):
            wreads(s, 0); wreads(s, 1); lgpos[s] = A.lg_pos()
        for t in range(nsteps):
            s = t + PD
            A.wait(vm=apos[t], lg=lgpos[t] if waddr(t) is not None else None)
            for cb in range(2):
                acc = (vACC0, vACC1)[cb]
                c = "0" if (first and t == 0) else v(acc, 16)
                if waddr(t) is not None:
                    wa = v(vRING + 4*(2*(t % 4) + cb), 4)
                else:
                    wa = a(tail(t)[cb], 4)
                A(f"v_mfma_f32_32x32x16_bf16 {v(acc,16)}, {wa}, {a(acts[t],4)}, {c}")
                if s < nsteps: wreads(s, cb)
                if cb == 0 and waddr(t) is None:
                    if t % side_rate == 0: self.pump(1)
            if s < nsteps: lgpos[s] = A.lg_pos()
            if act_load is not None and t + PDL < nsteps: issue(t + PDL)
            elif waddr(t) is not None and t % side_rate == 0: self.pump(1)

    def pair_reduce(self, scr, pre=None, post=None):
        A = self.A
        T = vT
        A(f"s_lshl_b32 s{sT0}, s{sW}, 12"); A(f"s_add_u32 s{sT1}, s{sT0}, {scr}"); A(f"v_add_u32 v{T}, s{sT1}, v{vL16}")
        A(f"s_xor_b32 s{sT0}, s{sT0}, 8192"); A(f"s_add_u32 s{sT0}, s{sT0}, {scr}"); A(f"v_add_u32 v{T+1}, s{sT0}, v{vL16}")
        A.nop(12 - 6)
        for j in range(4): A(f"ds_write_b128 v{T}, {v(vACC1+4*j,4)} offset:{1024*j}")
        self.fstamp("p2e", "red:written")
        if pre: pre()
        A.wait_all_lg()
        self.fstamp("p2e", "red:waited")
        A("s_barrier")
        self.fstamp("p2e", "red:barrier")
        for j in range(4): A(f"ds_read_b128 {v(T+4+4*j,4)}, v{T+1} offset:{1024*j}")
        if post: post()
        for j in range(4):
            A.wait(lg=A.lg_pos() - (3 - j))
            for i in range(4): A(f"v_add_f32 v{vACC0+4*j+i}, v{vACC0+4*j+i}, v{T+4+4*j+i}")

    def p2_setup(self):
        A = self.A
        T = vT
        vA, vB = T+50, T+51
        A(f"s_lshl_b32 s{sT0}, s{sRB64}, 6"); A(f"s_lshl_b32 s{sT1}, s{sRBK}, 5"); A(f"s_add_u32 s{sT0}, s{sT0}, s{sT1}")
        A(f"s_add_u32 s{sT1}, s{sCG}, 1")
        for (dst, sign) in ((vA, -1), (vB, +1)):
            A(f"v_add_u32 v{T}, s{sT0}, v{vM}")
            if sign < 0: A(f"v_subrev_u32 v{T}, s{sT1}, v{T}")
            else: A(f"v_add_u32 v{T}, s{sT1}, v{T}")
            A(f"v_lshrrev_b32 v{T+1}, 8, v{T}"); A(f"v_lshlrev_b32 v{T+1}, {SLAB_SH}, v{T+1}")
            A(f"v_bfe_u32 v{T+2}, v{T}, 5, 3"); A(f"v_lshl_add_u32 v{T+1}, v{T+2}, 15, v{T+1}")
            A(f"v_and_b32 v{T+2}, 31, v{T}"); A(f"v_lshl_add_u32 v{T+1}, v{T+2}, 4, v{T+1}")
            A(f"v_lshl_add_u32 v{T+1}, v{vH}, 9, v{T+1}")
            A(f"v_mov_b32 v{T+2}, 0x80000000")
            A(f"s_movk_i32 s{sT2}, 2048"); A(f"v_cmp_gt_u32 vcc, s{sT2}, v{T}")
            A.nop(2)
            A(f"v_cndmask_b32 v{dst}, v{T+2}, v{T+1}, vcc")
        vW0, vW1 = T+52, T+53
        A(f"s_lshl_b32 s{sT0}, s{sCG}, 15"); A(f"v_add_u32 v{vW0}, s{sT0}, v{vTRC0}"); A(f"v_add_u32 v{vW1}, s{sT0}, v{vTRC1}")

    def p2(self):
        A = self.A
        T = vT
        vA, vB = T+50, T+51
        vW0, vW1 = T+52, T+53
        A(f"s_lshl_b32 s{sAS}, s{sCG}, 14"); A(f"s_add_u32 s{sAS}, s{sAS}, {WS_H}")
        A(f"s_add_u32 s{sAE}, s{sAS}, 8192"); A(f"s_lshl_b32 s{sT3}, s{sKR}, 10"); A(f"s_add_u32 s{sT3}, s{sT3}, s{sAS}")
        A.wait(vm=self.pos_w2)
        self.poll_check()
        self.stamp("sync1")
        def act(i):
            r = 128 + 4*i
            if not self.cfg.krot:
                if i % 4 == 0 and i > 0: A(f"s_add_u32 s{sT3}, s{sT3}, 4096")
                A(f"buffer_load_dwordx4 {a(r,4)}, v{vA if i < 8 else vB}, {srd(SRD_WS)}, s{sT3} offen offset:{(i%4)*1024} sc1")
                return r
            if i == 8:
                A(f"s_add_u32 s{sAS}, s{sAS}, 8192"); A(f"s_add_u32 s{sAE}, s{sAE}, 8192")
                A(f"s_lshl_b32 s{sT3}, s{sKR}, 10"); A(f"s_add_u32 s{sT3}, s{sT3}, s{sAS}")
            elif i > 0:
                A(f"s_add_u32 s{sT3}, s{sT3}, 1024"); A(f"s_cmp_eq_u32 s{sT3}, s{sAE}"); A(f"s_cselect_b32 s{sT3}, s{sAS}, s{sT3}")
            A(f"buffer_load_dwordx4 {a(r,4)}, v{vA if i < 8 else vB}, {srd(SRD_WS)}, s{sT3} offen sc1")
            return r
        def window():
            A.auto = self.cfg.auto
            self.qkv_tail(vVP, keep_auto=True)
            A.auto = 0
            self.halo_publish()
            qj = self.job_strip_qkv(0, 0, 32, B0)
            for J in range(4): self.queue(qj[4*J:4*J+4], f"pos_q{J}")
            self.stamp("v tail")
        self.ksplit_gemm(16, (vW0, vW1), lambda i: i*2048, act, True, 0, self.cfg.pdl2, side_rate=1, window=window)
        A("s_barrier")
        self.stamp("p2 main")
        self.pair_reduce(A0 + 51200, pre=lambda: A.wait(vm=self.pos_halo), post=lambda: self.signal(CNT_KV, sRB64, "kv halo"))
        self.fstamp("p2e", "red:done")
        A.auto = self.cfg.auto
        X = T+20
        for j in range(8):
            A(f"v_lshlrev_b32 v{X+2*j}, 16, v{vXRES+j}"); A(f"v_and_b32 v{X+2*j+1}, 0xffff0000, v{vXRES+j}")
        S0, S1 = T+40, T+41
        NM, RR, TT, SA, SB = T+36, T+38, T+42, T+44, T+46
        A(f"v_mov_b32 v{NM}, v{vNMU}"); A(f"v_mov_b32 v{NM+1}, v{vNMU}"); A(f"v_mov_b32 v{RR}, v{vR}"); A(f"v_mov_b32 v{RR+1}, v{vR}")
        for i in range(0, 16, 2):
            A(f"v_pk_add_f32 {v(TT,2)}, {v(X+i,2)}, {v(NM,2)}")
            A(f"v_pk_fma_f32 {v(vACC0+i,2)}, {v(TT,2)}, {v(RR,2)}, {v(vACC0+i,2)}")
            A(f"v_pk_add_f32 {v(vRESID+i,2)}, {v(X+i,2)}, {v(vACC0+i,2)}")
            if i == 0:
                A(f"v_mov_b32 v{SA}, v{vACC0}"); A(f"v_mov_b32 v{SA+1}, v{vACC0+1}")
                A(f"v_pk_mul_f32 {v(SB,2)}, {v(vACC0,2)}, {v(vACC0,2)}")
            else:
                A(f"v_pk_add_f32 {v(SA,2)}, {v(SA,2)}, {v(vACC0+i,2)}")
                A(f"v_pk_fma_f32 {v(SB,2)}, {v(vACC0+i,2)}, {v(vACC0+i,2)}, {v(SB,2)}")
        A(f"v_add_f32 v{S0}, v{SA}, v{SA+1}"); A(f"v_add_f32 v{S1}, v{SB}, v{SB+1}")
        for i in range(8): A(f"v_cvt_pk_bf16_f32 v{X+i}, v{vACC0+2*i}, v{vACC0+2*i+1}")
        self.fstamp("p2e", "epi:math")
        self.frag_dest(sT2, WS_X1)
        self.pstore(f"buffer_store_dwordx4 {v(X,4)}, v{vL16}, {srd(SRD_WS)}, s{sT2} offen sc1")
        self.pstore(f"buffer_store_dwordx4 {v(X+4,4)}, v{vL16}, {srd(SRD_WS)}, s{sT2} offen offset:1024 sc1")
        self.swap_add(S0, T+42); self.swap_add(S1, T+42)
        A(f"s_lshl_b32 s{sT0}, s{sR32L}, 12"); A(f"s_lshl_b32 s{sT1}, s{sC}, 9"); A(f"s_add_u32 s{sT0}, s{sT0}, s{sT1}")
        A(f"s_lshl_b32 s{sT1}, s{sCG}, 8"); A(f"s_add_u32 s{sT0}, s{sT0}, s{sT1}"); A(f"s_add_u32 s{sT0}, s{sT0}, s{sSLAB}"); A(f"s_add_u32 s{sT0}, s{sT0}, {WS_X1S}")
        A(f"v_lshlrev_b32 v{T+42}, 3, v{vM}")
        self.pstore(f"buffer_store_dwordx2 {v(S0,2)}, v{T+42}, {srd(SRD_WS)}, s{sT0} offen sc1")
        self.pos_x1 = A.vm_pos()
        A.auto = 0
        self.fstamp("p2e", "epi:stored")
        self.flush_side()

    def shadow2(self):
        A = self.A
        T = vT
        def hqJ(J):
            A.wait(vm=getattr(self, f"pos_q{J}")); A("s_barrier")
        def hq0():
            hqJ(0)
            self.stamp("hq0")
            self.l2_touch("w4")
            self.queue(self.job_w3(8, 15, A0), "pos_w3a")
        kvcode = self.cnt_addr(CNT_KV, sRB64, -1)
        H = T+44
        def halo_load():
            self.stamp("kv chk>")
            self.poll_check()
            self.stamp("kv chk<")
            A(f"v_mov_b32 v{H}, 0"); A(f"v_mov_b32 v{H+1}, 0"); A(f"v_mov_b32 v{H+2}, 0"); A(f"v_mov_b32 v{H+3}, 0")
            l = A.newlabel("nohalo")
            A(f"s_cmp_eq_u32 s{sRB64}, 0"); A(f"s_cbranch_scc1 {l}")
            A(f"s_add_u32 s{sT1}, s{sRB64}, -1"); A(f"s_and_b32 s{sT0}, s{sT1}, 3"); A(f"s_lshl_b32 s{sT0}, s{sT0}, 3"); A(f"s_add_u32 s{sT0}, s{sT0}, s{sC}")
            A(f"s_lshl_b32 s{sT0}, s{sT0}, 12"); A(f"s_lshr_b32 s{sT1}, s{sT1}, 2"); A(f"s_lshl_b32 s{sT1}, s{sT1}, {SLAB_SH}")
            A(f"s_add_u32 s{sT0}, s{sT0}, s{sT1}"); A(f"s_add_u32 s{sT0}, s{sT0}, {WS_KV}")
            A(f"v_lshlrev_b32 v{T+48}, 4, v0")
            A.opt(f"buffer_load_dwordx4 {v(H,4)}, v{T+48}, {srd(SRD_WS)}, s{sT0} offen sc1")
            A.label(l)
            self.pos_hl = A.vm_pos()
        self.qkv_main(lambda s: B0 + s*2048, {0: hq0, 8: lambda: hqJ(1), 16: lambda: hqJ(2), 24: lambda: hqJ(3)}, side_rate=2,
                      mid={self.cfg.kvpoll_at: lambda: self.poll_issue(kvcode, 1, 8, "kv halo"), self.cfg.kvchk_at: halo_load})
        self.flush_side()
        self.stamp("q loop")
        A.wait(vm=self.pos_x1)
        A("s_barrier")
        self.stamp("x1 drained")
        self.signal(CNT_X1, sRB128, "x1")
        self.queue(self.job_strip(SRD_WO, 0, 64, B0), "pos_wo")
        self.qkv_tail(vQP)
        self.stamp("q done")
        pos_hl = self.pos_hl
        KV = A0 + 46080
        vKA = T
        A(f"s_lshl_b32 s{sT0}, s{sCG}, 1"); A(f"v_add_u32 v{T+1}, s{sT0}, v{vH}")
        A(f"v_mul_u32_u24 v{T+1}, 2560, v{T+1}")
        A(f"s_lshl_b32 s{sT0}, s{sRBK}, 5"); A(f"s_add_u32 s{sT0}, s{sT0}, 16"); A(f"v_add_u32 v{T+2}, s{sT0}, v{vM}")
        A(f"v_lshl_add_u32 v{vKA}, v{T+2}, 4, v{T+1}"); A(f"v_add_u32 v{vKA}, {KV}, v{vKA}")
        A(f"ds_write_b128 v{vKA}, {v(vKP,4)}"); A(f"ds_write_b128 v{vKA}, {v(vKP+4,4)} offset:1280")
        A(f"ds_write_b128 v{vKA}, {v(vVP,4)} offset:10240"); A(f"ds_write_b128 v{vKA}, {v(vVP+4,4)} offset:11520")
        A.wait(vm=pos_hl)
        A(f"v_lshrrev_b32 v{T+8}, 4, v0"); A(f"v_mul_u32_u24 v{T+8}, 1280, v{T+8}")
        A(f"v_and_b32 v{T+9}, 15, v0"); A(f"v_lshl_add_u32 v{T+8}, v{T+9}, 4, v{T+8}"); A(f"v_add_u32 v{T+8}, {KV}, v{T+8}")
        A(f"ds_write_b128 v{T+8}, {v(H,4)}")
        A.wait_all_lg()
        A("s_barrier")
        A.auto = self.cfg.auto
        self.stamp("kv staged")
        Q = vQP
        KB = vRING
        LG = T+12
        A(f"v_subrev_u32 v{T+10}, {14*16}, v{vKA}")
        for w in range(8):
            off = (14 - 2*w) * 16
            A(f"ds_read_b128 {v(KB+8*w,4)}, v{T+10} offset:{off}")
            A(f"ds_read_b128 {v(KB+8*w+4,4)}, v{T+10} offset:{off+1280}")
        base_lg = A.lg_pos() - 16
        for w in range(8): A(f"v_mov_b32 v{LG+w}, 0")
        for w in range(8):
            A.wait(lg=base_lg + 2*(w+1))
            for i in range(8): A(f"v_dot2c_f32_bf16 v{LG+w}, v{Q+i}, v{KB+8*w+i}")
        self.fstamp("at", "at:qk")
        au = A.auto; A.auto = 0
        self.poll_issue(self.cnt_addr(CNT_X1, sRB128), 1, 16, "x1")
        A.auto = au
        A.nop(3)
        for w in range(8):
            off = (14 - 2*w) * 16
            A(f"ds_read_b128 {v(KB+8*w,4)}, v{T+10} offset:{off+10240}")
            A(f"ds_read_b128 {v(KB+8*w+4,4)}, v{T+10} offset:{off+11520}")
        base_lg = A.lg_pos() - 16
        l = A.newlabel("nomask")
        A.auto = 0
        A(f"s_cmp_lg_u32 s{sRB64}, 0"); A(f"s_cbranch_scc1 {l}")
        A(f"s_lshl_b32 s{sT0}, s{sRBK}, 5"); A(f"v_add_u32 v{T+11}, s{sT0}, v{vM}")
        A(f"v_mov_b32 v{T+20}, 0xff800000")
        for w in range(1, 8):
            A(f"v_cmp_le_u32 vcc, {2*w}, v{T+11}")
            A.nop(2)
            A(f"v_cndmask_b32 v{LG+w}, v{T+20}, v{LG+w}, vcc")
        A.label(l)
        A.auto = self.cfg.auto
        MX = T+20
        A(f"v_max3_f32 v{MX}, v{LG}, v{LG+1}, v{LG+2}"); A(f"v_max3_f32 v{MX}, v{MX}, v{LG+3}, v{LG+4}")
        A(f"v_max3_f32 v{MX}, v{MX}, v{LG+5}, v{LG+6}"); A(f"v_max_f32 v{MX}, v{MX}, v{LG+7}")
        cs = 0.25 * 1.4426950408889634
        A(f"s_mov_b32 s{sT0}, {fbits(cs)}")
        A(f"v_mul_f32 v{MX}, {fbits(-cs)}, v{MX}")
        for w in range(8): A(f"v_fma_f32 v{LG+w}, v{LG+w}, s{sT0}, v{MX}")
        for w in range(8): A(f"v_exp_f32 v{LG+w}, v{LG+w}")
        SM = T+21
        A(f"v_add_f32 v{SM}, v{LG}, v{LG+1}")
        for w in range(2, 8): A(f"v_add_f32 v{SM}, v{SM}, v{LG+w}")
        A(f"v_rcp_f32 v{SM}, v{SM}")
        A.nop(1)
        for w in range(8): A(f"v_mul_f32 v{LG+w}, v{SM}, v{LG+w}")
        PP = T+22
        for u in range(4): A(f"v_cvt_pk_bf16_f32 v{PP+u}, v{LG+2*u}, v{LG+2*u+1}")
        self.fstamp("at", "at:sm")
        A.auto = 0
        self.flush_side()
        self.p3_bases()
        self.poll_check()
        self.stamp("sync2")
        self.queue_x1_acts()
        A.auto = self.cfg.auto
        O = vACC0
        TP = T+26
        for u in range(4):
            A.wait(lg=base_lg + 4*(u+1))
            va, vb = KB + 16*u, KB + 16*u + 8
            for i in range(8):
                t0, t1 = TP + 2*(i & 1), TP + 2*(i & 1) + 1
                A(f"v_perm_b32 v{t0}, v{vb+i}, v{va+i}, s{sPLO}")
                A(f"v_perm_b32 v{t1}, v{vb+i}, v{va+i}, s{sPHI}")
                if u == 0:
                    A(f"v_dot2_f32_bf16 v{O+2*i}, v{t0}, v{PP+u}, 0"); A(f"v_dot2_f32_bf16 v{O+2*i+1}, v{t1}, v{PP+u}, 0")
                else:
                    A(f"v_dot2c_f32_bf16 v{O+2*i}, v{t0}, v{PP+u}"); A(f"v_dot2c_f32_bf16 v{O+2*i+1}, v{t1}, v{PP+u}")
        A.nop(3)
        self.fstamp("at", "at:pv")
        OP = T+32
        for i in range(8): A(f"v_cvt_pk_bf16_f32 v{OP+i}, v{O+2*i}, v{O+2*i+1}")
        A.nop(2)
        for i in range(4): A(f"v_permlane32_swap_b32 v{OP+i}, v{OP+4+i}")
        self.frag_dest(sT0, WS_O)
        self.pstore(f"buffer_store_dwordx4 {v(OP,4)}, v{vL16}, {srd(SRD_WS)}, s{sT0} offen sc1")
        self.pstore(f"buffer_store_dwordx4 {v(OP+4,4)}, v{vL16}, {srd(SRD_WS)}, s{sT0} offen offset:1024 sc1")
        self.pos_o = A.vm_pos()
        A.auto = 0
        self.fstamp("at", "at:flushed")
        A.wait(vm=self.pos_wo)
        A("s_barrier")
        self.fstamp("at", "at:bar")
        self.emit_groups(self.job_w3(23, 7, A0 + 46080))
        self.pos_w3 = A.vm_pos()
        self.stamp("attn done")

    def c3_pass(self):
        A = self.A
        T = vT
        vLo, vHi = T, T+1
        A(f"s_add_u32 s{sT0}, s{sW}, -1"); A(f"s_mul_i32 s{sT0}, s{sT0}, {8*3072}")
        A(f"s_cmp_eq_u32 s{sW}, 0"); A(f"s_cselect_b32 s{sT0}, {C0}, s{sT0}")
        A(f"s_cmp_eq_u32 s{sW}, 3"); A(f"s_cselect_b32 s{sT1}, {C0 + 2*3072}, s{sT0}")
        A(f"v_add_u32 v{vLo}, s{sT0}, v{vTR3}"); A(f"v_add_u32 v{vHi}, s{sT1}, v{vTR3}")
        CS = T+8
        for i in range(6): A(f"v_mov_b32 v{CS+i}, 0")
        A.auto = self.cfg.auto
        def c3_reads(i):
            for blk in range(3):
                b = vRING + 4*(3*(i % 3) + blk)
                r = vLo if i < 6 else vHi
                A(f"ds_read_b64_tr_b16 {v(b,2)}, v{r} offset:{i*3072 + blk*64}")
                A(f"ds_read_b64_tr_b16 {v(b+2,2)}, v{r} offset:{i*3072 + blk*64+1536}")
            return A.lg_pos()
        cpos = {0: c3_reads(0), 1: c3_reads(1)}
        for i in range(8):
            if i + 2 < 8: cpos[i+2] = c3_reads(i+2)
            A.wait(lg=cpos[i])
            for blk in range(3):
                b = vRING + 4*(3*(i % 3) + blk)
                for r in range(4): A(f"v_dot2c_f32_bf16 v{CS+2*blk+(r&1)}, s{sONES}, v{b+r}")
        A.auto = 0
        A.nop(3)
        SC3 = B0
        for blk in range(3):
            A(f"v_add_f32 v{CS+2*blk}, v{CS+2*blk}, v{CS+2*blk+1}")
            self.swap_add(CS+2*blk, T+4)
        A(f"s_mul_i32 s{sT0}, s{sW}, 384"); A(f"v_lshl_add_u32 v{T+4}, v{vM}, 2, s{sT0}"); A(f"v_add_u32 v{T+4}, {SC3}, v{T+4}")
        for blk in range(3): A(f"ds_write_b32 v{T+4}, v{CS+2*blk} offset:{128*blk}")
        A.wait(vm=self.pos_o)
        A.wait_all_lg()
        A("s_barrier")
        self.signal(CNT_O, sRB64, "o")
        A(f"v_lshlrev_b32 v{T+4}, 2, v{vM}"); A(f"v_add_u32 v{T+4}, {SC3}, v{T+4}")
        for w in range(4):
            for blk in range(3): A(f"ds_read_b32 v{T+16+4*blk+w}, v{T+4} offset:{384*w+128*blk}")
        A(f"v_cmp_gt_u32 vcc, 32, v{vL}")
        A.wait_all_lg()
        self.vC3 = [T+46, T+47, T+48]
        for blk in range(3):
            b = T+16+4*blk
            A(f"v_add_f32 v{b}, v{b}, v{b+1}"); A(f"v_add_f32 v{b+2}, v{b+2}, v{b+3}"); A(f"v_add_f32 v{b}, v{b}, v{b+2}")
            A(f"v_cndmask_b32 v{self.vC3[blk]}, 0, v{b}, vcc")
        A("s_barrier")
        self.stamp("c3 done")

    def job_w3_small(self, s0, ns, lds0):
        return self.job_w3(s0, ns, lds0)

    def w3_addr(self, s):
        if s < 8: return C0 + s*3072
        if s < 30: return A0 + (s-8)*3072
        return C0 + (s-22)*3072

    def p3_bases(self):
        A = self.A
        A(f"s_lshl_b32 s{sP2}, s{sR32P}, 15"); A(f"s_add_u32 s{sP2}, s{sP2}, s{sSLAB}"); A(f"s_add_u32 s{sP2}, s{sP2}, {WS_X1}")
        A(f"s_lshl_b32 s{sP3}, s{sR32P}, 12"); A(f"s_add_u32 s{sP3}, s{sP3}, s{sSLAB}"); A(f"s_add_u32 s{sP3}, s{sP3}, {WS_X1S}")
        A(f"s_mul_i32 s{sP4}, s{sR32P}, {86*1024}"); A(f"s_add_u32 s{sP4}, s{sP4}, s{sSLAB}"); A(f"s_add_u32 s{sP4}, s{sP4}, {WS_G}")
        A(f"s_lshl_b32 s{sT1}, s{sCB0}, 11"); A(f"s_add_u32 s{sP4}, s{sP4}, s{sT1}")

    def queue_x1_acts(self):
        A = self.A
        self.x1_pos = {}
        for i in range(32):
            g = []
            if i % 4 == 0:
                g += [f"s_add_u32 s{sAS}, s{sR3}, {i//4}", f"s_and_b32 s{sAS}, s{sAS}, 7", f"s_lshl_b32 s{sAS}, s{sAS}, 12", f"s_add_u32 s{sAS}, s{sAS}, s{sP2}"]
            g.append(f"buffer_load_dwordx4 {a(4*i,4)}, v{vL16}, {srd(SRD_WS)}, s{sAS} offen offset:{(i%4)*1024} sc1")
            def m(i=i): self.x1_pos[i] = A.vm_pos()
            g.append(m)
            self.side.append(g)

    def p3(self):
        A = self.A
        T = vT
        vA0, vA1 = T+54, T+55
        A(f"s_lshl_b32 s{sT0}, s{sCG}, 15"); A(f"s_add_u32 s{sT0}, s{sT0}, {B0}")
        A(f"v_add_u32 v{vA0}, s{sT0}, v{vTRC0}"); A(f"v_add_u32 v{vA1}, s{sT0}, v{vTRC1}")
        A.auto = self.cfg.auto
        for i in range(16):
            for cb in range(2):
                r = 128 + 8*i + 4*cb
                A(f"ds_read_b64_tr_b16 {a(r,2)}, v{(vA0,vA1)[cb]} offset:{i*2048}")
                A(f"ds_read_b64_tr_b16 {a(r+2,2)}, v{(vA0,vA1)[cb]} offset:{i*2048 + 1024}")
        A.auto = 0
        A.wait(vm=self.pos_w3a)
        A.wait_all_lg()
        A("s_barrier")
        self.stamp("wo->reg")
        apos = self.x1_pos
        A(f"v_lshlrev_b32 v{T+3}, 3, v{vM}"); A(f"v_lshl_add_u32 v{T+3}, v{vH}, 11, v{T+3}")
        for j in range(8):
            A(f"buffer_load_dwordx2 {v(T+20+2*j,2)}, v{T+3}, {srd(SRD_WS)}, s{sP3} offen offset:{256*j} sc1")
        spos = A.vm_pos()
        self.queue(self.job_w4(39, 4, B0 + 12*4096), "pos_tails")
        self.queue(self.job_w4(23, 11, B0))
        vB = [T, T+1, T+2]
        A(f"v_mov_b32 v{vB[0]}, v{vTR3}"); A(f"v_add_u32 v{vB[1]}, 65536, v{vTR3}"); A(f"v_add_u32 v{vB[2]}, 131072, v{vTR3}")
        CS = T+8
        for i in range(6): A(f"v_mov_b32 v{CS+i}, 0")
        def buf(s, blk): return vRING + 4*(3*(s % 6) + blk)
        def wread(s, blk):
            ad = self.w3_addr(s) + blk*64
            for (k, d) in ((0, 0), (2, 1536)):
                x = ad + d
                A(f"ds_read_b64_tr_b16 {v(buf(s, blk)+k,2)}, v{vB[x // 65536]} offset:{x % 65536}")
        PD = 2
        lgpos = {}
        for s in range(PD):
            for blk in range(3): wread(s, blk)
            lgpos[s] = A.lg_pos()
        for t in range(32):
            s = t + PD
            while t not in apos: self.pump(1)
            if t == 8:
                A.wait(vm=self.pos_o)
                A("s_barrier")
                self.signal(CNT_O, sRB64, "o")
            if t == 19:
                A.wait(vm=self.pos_w3)
                A("s_barrier")
            if t == 22: self.poll_issue(self.cnt_addr(CNT_O, sRB64), 1, 8, "o")
            A.wait(vm=apos[t], lg=lgpos[t])
            if t in (0, 8, 16, 24): self.fstamp("p4", f"p3:t{t}")
            for blk in range(3):
                acc = (vACC0, vACC1, vACC2)[blk]
                c = "0" if t == 0 else v(acc, 16)
                A(f"v_mfma_f32_32x32x16_bf16 {v(acc,16)}, {v(buf(t, blk),4)}, {a(4*t,4)}, {c}")
                if s < 32: wread(s, blk)
            if s < 32: lgpos[s] = A.lg_pos()
            self.pump(1)
            if t % 4 == 3:
                l = A.newlabel("cb")
                A(f"s_cmp_lg_u32 s{sW}, {t >> 3}"); A(f"s_cbranch_scc1 {l}")
                for tt in range(t - 3, t + 1):
                    for blk in range(3):
                        for r in range(4): A(f"v_dot2c_f32_bf16 v{CS+2*blk+(r&1)}, s{sONES}, v{buf(tt, blk)+r}")
                A.label(l)
        self.fstamp("p3", "pass1<")
        self.flush_side()
        SC3 = B0 + 11*4096
        A.nop(3)
        for blk in range(3):
            A(f"v_add_f32 v{CS+2*blk}, v{CS+2*blk}, v{CS+2*blk+1}")
            self.swap_add(CS+2*blk, T+4)
        A(f"s_mul_i32 s{sT0}, s{sW}, 384"); A(f"v_lshl_add_u32 v{T+4}, v{vM}, 2, s{sT0}"); A(f"v_add_u32 v{T+4}, {SC3}, v{T+4}")
        for blk in range(3): A(f"ds_write_b32 v{T+4}, v{CS+2*blk} offset:{128*blk}")
        A.wait(vm=spos)
        S0, S1 = T+20, T+21
        for j in range(1, 8):
            A(f"v_add_f32 v{S0}, v{S0}, v{T+20+2*j}"); A(f"v_add_f32 v{S1}, v{S1}, v{T+21+2*j}")
        self.swap_add(S0, T+7); self.swap_add(S1, T+7)
        NMU1, R1 = T+5, T+6
        A(f"v_mul_f32 v{S0}, {fbits(1/512)}, v{S0}"); A(f"v_mul_f32 v{S1}, {fbits(1/512)}, v{S1}")
        A(f"v_sub_f32 v{NMU1}, 0, v{S0}"); A(f"v_fma_f32 v{S1}, v{NMU1}, v{S0}, v{S1}"); A(f"v_max_f32 v{S1}, 0, v{S1}")
        A(f"v_add_f32 v{S1}, {fbits(1e-5)}, v{S1}"); A(f"v_rsq_f32 v{R1}, v{S1}")
        A.wait(vm=self.pos_tails)
        A.wait_all_lg()
        self.poll_check()
        self.stamp("p3 main")
        A(f"v_lshlrev_b32 v{T+4}, 2, v{vM}"); A(f"v_add_u32 v{T+4}, {SC3}, v{T+4}")
        for w in range(4):
            for blk in range(3): A(f"ds_read_b32 v{T+16+4*blk+w}, v{T+4} offset:{384*w+128*blk}")
        A(f"v_cmp_gt_u32 vcc, 32, v{vL}")
        A(f"s_lshl_b32 s{sOA}, s{sR32L}, 15"); A(f"s_lshl_b32 s{sT1}, s{sCG}, 14"); A(f"s_add_u32 s{sOA}, s{sOA}, s{sT1}")
        A(f"s_add_u32 s{sOA}, s{sOA}, s{sSLAB}"); A(f"s_add_u32 s{sOA}, s{sOA}, {WS_O}")
        self.o_acts = {}; self.o_pos = {}
        A(f"s_mov_b32 s{sAS}, s{sOA}"); A(f"s_add_u32 s{sAE}, s{sOA}, 16384")
        A(f"s_lshl_b32 s{sT1}, s{sKR}, 11"); A(f"s_and_b32 s{sT1}, s{sT1}, 16383"); A(f"s_add_u32 s{sOA}, s{sOA}, s{sT1}")
        for i in range(16):
            g = []
            if not self.cfg.krot:
                if i % 4 == 0 and i > 0: g.append(f"s_add_u32 s{sOA}, s{sOA}, 4096")
                g.append(f"buffer_load_dwordx4 {a(4*i,4)}, v{vL16}, {srd(SRD_WS)}, s{sOA} offen offset:{(i%4)*1024} sc1")
            else:
                if i > 0: g += [f"s_add_u32 s{sOA}, s{sOA}, 1024", f"s_cmp_eq_u32 s{sOA}, s{sAE}", f"s_cselect_b32 s{sOA}, s{sAS}, s{sOA}"]
                g.append(f"buffer_load_dwordx4 {a(4*i,4)}, v{vL16}, {srd(SRD_WS)}, s{sOA} offen sc1")
            def m(i=i):
                self.o_acts[i] = 4*i; self.o_pos[i] = A.vm_pos()
            g.append(m)
            self.side.append(g)
        ne = self.cfg.w4_in_ge
        if ne: self.queue(self.job_w4(0, ne, A0))
        A.wait_all_lg()
        self.vC3 = [T+46, T+47, T+48]
        for blk in range(3):
            b = T+16+4*blk
            A(f"v_add_f32 v{b}, v{b}, v{b+1}"); A(f"v_add_f32 v{b+2}, v{b+2}, v{b+3}"); A(f"v_add_f32 v{b}, v{b}, v{b+2}")
            A(f"v_cndmask_b32 v{self.vC3[blk]}, 0, v{b}, vcc")
        A.nop(2)
        A(f"v_mfma_f32_32x32x2_f32 {v(vACC0,16)}, v{self.vC3[0]}, v{NMU1}, {v(vACC0,16)}")
        mk0 = A.mark()
        A(f"v_mfma_f32_32x32x2_f32 {v(vACC1,16)}, v{self.vC3[1]}, v{NMU1}, {v(vACC1,16)}")
        A(f"v_mfma_f32_32x32x2_f32 {v(vACC2,16)}, v{self.vC3[2]}, v{NMU1}, {v(vACC2,16)}")
        GK = self.gelu_consts(R1, T+34)
        self.pump(3)
        A.pad(mk0, 19)
        self.fstamp("ge", "g:start")
        for blk in range(3):
            acc = (vACC0, vACC1, vACC2)[blk]
            if blk == 2:
                lskip3 = A.newlabel("nog2")
                A(f"s_cmp_lt_u32 s{sNBLK}, 3"); A(f"s_cbranch_scc1 {lskip3}")
            else:
                A.auto = self.cfg.auto_g
            self.gelu_body(acc, GK)
            A.auto = 0
            if blk < 2: self.fstamp("ge", f"g:blk{blk}")
            i1 = f"buffer_store_dwordx4 {v(acc,4)}, v{vL16}, {srd(SRD_WS)}, s{sP4} offen offset:{blk*2048 % 4096} sc1"
            i2 = f"buffer_store_dwordx4 {v(acc+4,4)}, v{vL16}, {srd(SRD_WS)}, s{sP4} offen offset:{blk*2048 % 4096 + 1024} sc1"
            if blk == 2:
                A(f"s_add_u32 s{sP4}, s{sP4}, 4096")
                self.pstore(i1, opt=True); self.pstore(i2, opt=True)
                A.label(lskip3)
            else:
                self.pstore(i1); self.pstore(i2)
        self.pos_g = A.vm_pos()
        vA0, vA1 = T+54, T+55
        A(f"s_lshl_b32 s{sT0}, s{sCG}, 11"); A(f"v_add_u32 v{vA0}, s{sT0}, v{vTRC0}"); A(f"v_add_u32 v{vA1}, s{sT0}, v{vTRC1}")
        A(f"v_add_u32 v{T+52}, {B0 + 12*4096}, v{vA0}"); A(f"v_add_u32 v{T+53}, {B0 + 12*4096}, v{vA1}")
        for i in range(4):
            for cb in range(2):
                r = 96 + 8*i + 4*cb
                A(f"ds_read_b64_tr_b16 {v(r,2)}, v{T+52+cb} offset:{i*4096}")
                A(f"ds_read_b64_tr_b16 {v(r+2,2)}, v{T+52+cb} offset:{i*4096 + 1024}")
        self.queue(self.job_w4(ne, 16 - ne, A0 + ne*4096) + self.job_w4(16, 7, C0), "pos_w4e")

    def job_w4(self, i0, ni, lds0):
        groups = []
        for J in range((ni + 3)//4):
            if 4*J + 3 < ni:
                pre = [f"s_add_u32 m0, s{sW4K}, {lds0 + 16384*J}", f"s_add_u32 s{sG}, s{sBW4}, {(i0 + 4*J)*16384}"]
            else:
                pre = [f"s_add_u32 s{sD1}, s{sW}, {4*J}", f"s_min_u32 s{sD1}, s{sD1}, {ni-1}", f"s_lshl_b32 s{sD0}, s{sD1}, 12", f"s_add_u32 m0, s{sD0}, {lds0}",
                       f"s_lshl_b32 s{sD0}, s{sD1}, 14", f"s_lshl_b32 s{sG}, s{sC}, 7", f"s_add_u32 s{sG}, s{sG}, s{sD0}", f"s_add_u32 s{sG}, s{sG}, {i0*16384}"]
            groups += self.quad(pre, SRD_W4, vS4J)
        return groups

    def w4_slot(self, i):
        if i < 16: return A0 + i*4096
        if i < 23: return C0 + (i-16)*4096
        if i < 35: return B0 + (i-23)*4096
        return B0 + 12*4096 + (i-35)*4096

    def p4(self):
        A = self.A
        T = vT
        vA0, vA1 = T+54, T+55
        A(f"s_mul_i32 s{sT4}, s{sR32L}, {86*1024}"); A(f"s_mul_i32 s{sT1}, s{sCG}, {43*1024}"); A(f"s_add_u32 s{sT4}, s{sT4}, s{sT1}")
        A(f"s_add_u32 s{sT4}, s{sT4}, s{sSLAB}"); A(f"s_add_u32 s{sT4}, s{sT4}, {WS_G}")
        while len(self.o_pos) < 16: self.pump(1)
        def wo_gemm():
            self.ksplit_gemm(16, None, lambda i: None, None, True, 0, 16, side_rate=1, pre=(self.o_acts, self.o_pos),
                             tail=lambda i: (128 + 8*i, 128 + 8*i + 4))
        if self.cfg.wo_in_drain:
            self.pump(self.cfg.w4_before_sig)
            held = self.side; self.side = []
            wo_gemm()
            self.side = held
            self.stamp("wo done")
        else:
            self.pump(self.cfg.w4_before_sig)
        A.wait(vm=self.pos_g)
        A.wait_all_lg()
        A("s_barrier")
        self.stamp("g drained")
        self.signal(CNT_G, sRB128, "g")
        self.queue(self.job_w4(34, 5, B0 + 11*4096), "pos_w4l")
        if self.cfg.wo_in_drain:
            self.flush_side()
        else:
            wo_gemm()
            self.flush_side()
            self.stamp("wo done")
        vb = {}
        for win in range(3):
            for cb in range(2):
                r = T + 44 + 2*win + cb
                A(f"v_add_u32 v{r}, {win*65536}, v{(vA0,vA1)[cb]}")
                vb[(win, cb)] = r
        self.poll_issue(self.cnt_addr(CNT_G, sRB128), 1, 16, "g")
        A.wait(vm=self.pos_w4e)
        self.stamp("w4e landed")
        self.poll_check()
        self.stamp("sync3")
        acts = {}; apos = {}
        A(f"s_mov_b32 s{sAS}, s{sT4}"); A(f"s_add_u32 s{sAE}, s{sT4}, {40*1024}")
        A(f"s_lshl_b32 s{sT1}, s{sKR}, 12"); A(f"s_add_u32 s{sT4}, s{sT4}, s{sT1}")
        def act_g(i):
            if i == 40: A(f"s_mov_b32 s{sT4}, s{sAE}")
            elif i % 4 == 0 and i > 0:
                A(f"s_add_u32 s{sT4}, s{sT4}, 4096")
                if self.cfg.krot: A(f"s_cmp_eq_u32 s{sT4}, s{sAE}"); A(f"s_cselect_b32 s{sT4}, s{sAS}, s{sT4}")
            r = 4*(i % 32)
            A(f"buffer_load_dwordx4 {a(r,4)}, v{vL16}, {srd(SRD_WS)}, s{sT4} offen offset:{(i%4)*1024} sc1")
            acts[i] = r; apos[i] = A.vm_pos()
        PDL = self.cfg.pdl4; PD = 2; N = 43
        for i in range(PDL): act_g(i)
        lgpos = {}
        def w4reads(s, cb):
            if s >= 39: return
            ad = self.w4_slot(s)
            b = vRING + 4*(2*(s % 4) + cb)
            for (k, d) in ((0, 0), (2, 1024)):
                x = ad + d
                A(f"ds_read_b64_tr_b16 {v(b+k,2)}, v{vb[(x // 65536, cb)]} offset:{x % 65536}")
        for s in range(PD):
            w4reads(s, 0); w4reads(s, 1); lgpos[s] = A.lg_pos()
        for t in range(N):
            s = t + PD
            if s == 30:
                A("s_barrier")
            A.wait(vm=apos[t], lg=lgpos[t] if t < 39 else None)
            if t in (0, 8, 16, 24, 32, 40): self.fstamp("p4", f"p4:t{t}")
            for cb in range(2):
                acc = (vACC0, vACC1)[cb]
                wa = v(vRING + 4*(2*(t % 4) + cb), 4) if t < 39 else v(96 + 8*(t-39) + 4*cb, 4)
                A(f"v_mfma_f32_32x32x16_bf16 {v(acc,16)}, {wa}, {a(acts[t],4)}, {v(acc,16)}")
                if s < N: w4reads(s, cb)
            if s < N: lgpos[s] = A.lg_pos()
            if t + PDL < N: act_g(t + PDL)
        A("s_barrier")
        self.stamp("p4 main")
        self.pair_reduce(A0)
        for i in range(16): A(f"v_add_f32 v{vACC0+i}, v{vACC0+i}, v{vRESID+i}")
        P = T+24
        for i in range(8): A(f"v_cvt_pk_bf16_f32 v{P+i}, v{vACC0+2*i}, v{vACC0+2*i+1}")
        A.nop(2)
        for (x, y) in ((0, 2), (1, 3), (4, 6), (5, 7)):
            A(f"v_permlane32_swap_b32 v{P+x}, v{P+y}")
        A(f"s_lshl_b32 s{sT0}, s{sRB64}, 6"); A(f"s_lshl_b32 s{sT1}, s{sRBK}, 5"); A(f"s_add_u32 s{sT0}, s{sT0}, s{sT1}")
        A(f"v_add_u32 v{T}, s{sT0}, v{vM}"); A(f"v_lshlrev_b32 v{T}, 10, v{T}"); A(f"v_lshl_add_u32 v{T}, v{vH}, 4, v{T}")
        A(f"s_lshl_b32 s{sT0}, s{sC}, 7"); A(f"s_lshl_b32 s{sT1}, s{sCG}, 6"); A(f"s_add_u32 s{sT0}, s{sT0}, s{sT1}")
        fl = {0: "", 1: " sc1", 2: " sc0 sc1", 3: " nt"}[self.cfg.out_mode]
        A(f"buffer_store_dwordx4 {v(P,4)}, v{T}, {srd(SRD_OUT)}, s{sT0} offen{fl}")
        A(f"buffer_store_dwordx4 {v(P+4,4)}, v{T}, {srd(SRD_OUT)}, s{sT0} offen offset:32{fl}")
        self.stamp("stored")

    def build(self):
        A = self.A
        stop = self.cfg.stop_after
        self.prologue()
        self.t0_dma()
        self.setup2()
        self.stamp("setup2")
        self.t0_dma2()
        self.stamp("start")
        self.p1_h(); self.stamp("h main")
        self.p1_h_finish(); self.stamp("h pub")
        if stop != "h":
            self.shadow1(); self.stamp("kv pub")
            if stop != "kv":
                self.p2(); self.stamp("x1 pub")
                if stop != "x1":
                    self.shadow2()
                    if stop != "o":
                        self.p3(); self.stamp("g pub")
                        if stop != "g":
                            self.p4()
        self.flush_side()
        if self.cfg.final_wait or self.cfg.stamps: A("s_waitcnt vmcnt(0)")
        self.stamp("end")
        self.stamp_end()
        A.label("L_end")
        A("s_endpgm")
        return A

HEADER = """; Fused persistent kernel: x + attn(LN x) + mixer(LN x).  256 workgroups (one per CU), 4 waves each.
; @launch grid=(256,1,1) block=(256,1,1) lds=163840
.amdgcn_target "amdgcn-amd-amdhsa--gfx950"
.text
.globl {name}
.p2align 8
.type {name},@function
{name}:
"""
FOOTER = """
.section .rodata,"a"
.p2align 6
.amdhsa_kernel {name}
  .amdhsa_next_free_vgpr 512
  .amdhsa_next_free_sgpr 102
  .amdhsa_accum_offset 256
  .amdhsa_group_segment_fixed_size 0
  .amdhsa_kernarg_size 88
  .amdhsa_user_sgpr_count 2
  .amdhsa_user_sgpr_kernarg_segment_ptr 1
  .amdhsa_system_sgpr_workgroup_id_x 1
.end_amdhsa_kernel
"""

def generate(cfg):
    k = K(cfg)
    A = k.build()
    if cfg.nodma:
        keep = (srd(SRD_X), srd(SRD_W1))
        A.lines = [l for l in A.lines if not (l.endswith(" lds") and "buffer_load" in l and not any(k_ in l for k_ in keep))]
    if cfg.dma_flag:
        fl = cfg.dma_flag.replace("+", " ")
        A.lines = [l[:-4] + f" {fl} lds" if (l.endswith(" lds") and "buffer_load" in l and srd(SRD_X) not in l) else l for l in A.lines]
    probs = check_hazards(A.lines)
    generate.names = k.stamp_names
    return HEADER.format(name=NAME) + A.text() + FOOTER.format(name=NAME), probs

if __name__ == "__main__":
    cfg = Cfg()
    out = sys.argv[1] if len(sys.argv) > 1 else "parallel_sum__sliding_local_dilated__mixer_s_mlp__prompt.s"
    for arg in sys.argv[2:]:
        k, val = arg.split("=")
        setattr(cfg, k, {"True": True, "False": False, "None": None}.get(val, int(val) if val.isdigit() else val))
    txt, probs = generate(cfg)
    for p in probs: print("HAZARD:", p)
    open(out, "w").write(txt)
    print("wrote", out, len(txt), "bytes;", txt.count("\n"), "lines;", len(probs), "hazards")
```

```python
import sys, os
from asmlib import Asm, check_hazards

NAME = "parallel_sum__sliding_local_dilated__mixer_s_mlp__prompt_kernel"

class Cfg:
    stamps = False
    stop_after = None
    spin_limit = 400000
    dbgtime = False
    wallonly = False
    fine = None
    pre_chunks = 3
    preA = 2
    touch = 1
    hpoll_at = 26
    auto = 64
    cost_w3 = 96
    pdl2 = 8
    pdl3 = 22
    pdl4 = 10
    kvchk_at = 24
    kvpoll_at = 10
    auto_g = 48
    w4_in_ge = 8
    w4_before_sig = 8
    early_kv = 1
    w2_in_k = 0
    rot = 1
    g1sig_at = 12
    code0 = 48
    map2d = 1
    wo_in_drain = 0
    tlb1 = 0
    tlb1_wave = 0
    nodma = 0
    dma_flag = ""
    out_mode = 3
    final_wait = 0
    dstore = 0
    krot = 0
    ftswap = 1
    cxor = 0
    chunkstamps = 0
    touch_mode = "late"
    stouch = 0
    l2touch = ""
    mallt = 1
    stouch_wave = 1
    early_touch = 0

SLAB_SH = 21
WS_H    = 0x000000
WS_O    = 0x040000
WS_X1   = 0x080000
WS_G    = 0x0C0000
WS_X1S  = 0x170000
WS_KV   = 0x180000
WS_CNT  = 0x1A0000
CNT_H, CNT_KV, CNT_X1, CNT_O, CNT_G = 0, 4, 8, 12, 16
CNT_STRIDE = 256
WS_STAMP= 0x1000000
WS_SIZE = 0x1100000

A0 = 0
B0 = 67584
C0 = 133120
SCR1 = 160768
LDS_TOTAL = 163840

sW, sRBK, sCG = 3, 4, 5
sRB64, sC, sRB128, sFT = 6, 7, 8, 9
SRD_X, SRD_WQKV, SRD_WO, SRD_W1, SRD_W2, SRD_W3, SRD_W4, SRD_OUT, SRD_WS, SRD_DBG = 40, 44, 48, 52, 56, 60, 64, 68, 72, 76
sONES, sPLO, sPHI = 80, 81, 82
sG, sG2, sT0, sT1, sT2, sT3 = 83, 84, 85, 86, 87, 88
sCB0, sNBLK = 89, 90
sSPIN = 91
sSTAMP = 22
sEXS = 94
sT4, sT5 = 96, 97
sXG, sW1G, sWL = 10, 11, 38
sD0, sD1 = 39, 92
sP2, sP3, sP4 = 16, 17, 18
sSLAB, sR32L, sR32P = 19, 20, 21
sBW, sRW2, sRWO, sR3, sR3W, sW3L, sBW4, sG4E, sAS, sAE = 27, 28, 29, 30, 31, 32, 33, 34, 35, 36
sKR = 37
sW4K = 12
sW4S = {3: 33, 2: 34}
sXSLOT = 26
sOA = 93
sROT = 14
sROT8 = 15
sRT0, sCY0 = 98, 100
vST = 253

def srd(n): return f"s[{n}:{n+3}]"

vL, vM, vH, vL16 = 1, 2, 3, 4
vSTR, vSTRQ = 5, 6
vW3 = (7, 8, 9)
vTRN, vTRC0, vTRC1, vTR3 = 10, 11, 12, 13
vNMU, vR = 14, 15
vXRES = 16
vRESID = 24
vKP, vVP, vQP = 40, 48, 56
vRING = 64
vSTRJ = (5, 136, 137, 138)
vS4J = (5, 136, 139, 140)
vSTRQJ = (6, 141, 142, 143)
vX2 = 179
vACC0, vACC1, vACC2 = 144, 160, 176
vT = 192

def v(i, n=1): return f"v{i}" if n == 1 else f"v[{i}:{i+n-1}]"
def a(i, n=1): return f"a{i}" if n == 1 else f"a[{i}:{i+n-1}]"

C0G = -2.0 * 0.7978845608028654 * 1.4426950408889634
C1G = C0G * 0.044715
import struct
def fbits(x): return "0x%08x" % struct.unpack("<I", struct.pack("<f", x))[0]

CB4 = [3*i if i <= 11 else 33 + 2*(i - 11) for i in range(16)] + [3*j + 1 if j <= 11 else 34 + 2*(j - 11) for j in range(16)] + [3*j + 2 for j in range(11)]
assert sorted(CB4) == list(range(43))

class K:
    def __init__(self, cfg):
        self.cfg = cfg
        self.A = Asm()
        self.side = []
        self.nstamp = 0
        self.stamp_names = []
        self.kA_queued = False
        self.A.pump_cb = self.paced_pump
        self.credit = 0

    def pump(self, n=1):
        for _ in range(n):
            if self.side:
                g = self.side.pop(0)
                for ins in g:
                    if callable(ins): ins()
                    else: self.A(ins)

    def group_cost(self, g):
        for x in g:
            if isinstance(x, str) and x.startswith("buffer_load") and srd(SRD_W3) in x: return self.cfg.cost_w3
        return self.cfg.auto

    def paced_pump(self, cost):
        if self.side and cost >= self.group_cost(self.side[0]):
            self.pump(1)
            return True
        return False

    def tick(self, cycles):
        self.credit += cycles
        while self.side and self.credit >= self.group_cost(self.side[0]):
            self.credit -= self.group_cost(self.side[0])
            self.pump(1)
        if not self.side: self.credit = min(self.credit, self.cfg.auto)

    def queue(self, groups, mark=None):
        groups = [list(g) for g in groups]
        if mark:
            def m(mark=mark): setattr(self, mark, self.A.vm_pos())
            groups[-1].append(m)
        self.side += groups

    def pstore(self, text, opt=False):
        A = self.A
        f = A.opt if opt else A
        f(text)
        if self.cfg.dstore: f(text.replace(" sc1", ""))

    def flush_side(self):
        self.pump(len(self.side))

    def stamp(self, name):
        if not self.cfg.stamps: return
        if self.cfg.wallonly and name != "end": return
        if self.cfg.fine and name in ("kernarg", "touched", "preA", "setup2", "start", "hk0", "hk12>", "hk12<", "hv0", "hq0", "v loop", "kv chk>", "kv chk<", "h drained", "x1 drained", "g drained"): return
        A = self.A
        i = self.nstamp; self.nstamp += 1
        self.stamp_names.append(name)
        cur = sSTAMP + 2*(i & 1); prev = sSTAMP + 2*((i+1) & 1)
        if i > 0: A(f"v_writelane_b32 v{vST}, s{prev}, {i-1}")
        A(f"s_memtime s[{cur}:{cur+1}]")

    def fstamp(self, region, name):
        if self.cfg.fine == region: self.stamp(name)

    def stamp_end(self):
        A = self.A
        if self.cfg.stamps:
            i = self.nstamp
            prev = sSTAMP + 2*((i+1) & 1)
            A("s_waitcnt lgkmcnt(0)")
            A(f"v_writelane_b32 v{vST}, s{prev}, {i-1}")
            A(f"s_memrealtime s[{sSTAMP}:{sSTAMP+1}]")
            A("s_waitcnt lgkmcnt(0)")
            A(f"v_writelane_b32 v{vST}, s{sSTAMP}, 62")
            A(f"v_writelane_b32 v{vST}, s{sRT0}, 61")
            A(f"v_writelane_b32 v{vST}, s{sCY0}, 60")
            A(f"s_lshl_b32 s{sT5}, s2, 2"); A(f"s_add_u32 s{sT5}, s{sT5}, s{sW}"); A(f"s_lshl_b32 s{sT5}, s{sT5}, 8")
            A(f"s_add_u32 s{sT5}, s{sT5}, {WS_STAMP}")
            A(f"v_lshlrev_b32 v254, 2, v{vL}")
            A(f"buffer_store_dword v{vST}, v254, {srd(SRD_WS)}, s{sT5} offen")
        if self.cfg.dbgtime:
            l = A.newlabel("dt")
            A("s_cmp_ge_u32 s2, 7"); A(f"s_cbranch_scc1 {l}")
            A(f"s_cmp_lg_u32 s{sW}, 0"); A(f"s_cbranch_scc1 {l}")
            A(f"s_memrealtime s[{sSTAMP}:{sSTAMP+1}]"); A(f"s_memtime s[{sSTAMP+2}:{sSTAMP+3}]")
            A("s_waitcnt lgkmcnt(0)")
            A(f"s_sub_u32 s{sT0}, s{sSTAMP}, s{sRT0}"); A(f"s_sub_u32 s{sT1}, s{sSTAMP+2}, s{sCY0}")
            A(f"v_mov_b32 v250, s{sT0}"); A(f"v_mov_b32 v251, s{sT1}")
            A(f"s_lshl_b32 s{sT0}, s2, 3"); A(f"s_add_u32 s{sT0}, s{sT0}, 8"); A(f"v_mov_b32 v252, s{sT0}")
            A("s_mov_b64 exec, 1")
            A(f"buffer_store_dwordx2 v[250:251], v252, {srd(SRD_DBG)}, 0 offen")
            A.label(l)

    def dma_units(self, srdn, vregs, gbase_code, gstep, lds0, n, lstep=None):
        m = len(vregs)
        if lstep is None: lstep = 1024 * m
        assert n >= 4
        groups = []
        rounds = (n + 3) // 4
        for j in range(rounds):
            if j == 0:
                g = list(gbase_code)
                g += [f"s_mul_i32 s{sD0}, s{sW}, {lstep}", f"s_add_u32 m0, s{sD0}, {lds0}",
                      f"s_mul_i32 s{sD0}, s{sW}, {gstep}", f"s_add_u32 s{sG}, s{sG2}, s{sD0}"]
            elif 4 * j + 3 < n:
                g = [f"s_add_u32 m0, m0, {4*lstep - (m-1)*1024}", f"s_add_u32 s{sG}, s{sG}, {4*gstep}"]
            else:
                g = [f"s_add_u32 s{sD0}, s{sW}, {4*j}", f"s_min_u32 s{sD0}, s{sD0}, {n-1}",
                     f"s_mul_i32 s{sD1}, s{sD0}, {lstep}", f"s_add_u32 m0, s{sD1}, {lds0}",
                     f"s_mul_i32 s{sD1}, s{sD0}, {gstep}", f"s_add_u32 s{sG}, s{sG2}, s{sD1}"]
            for i, vr in enumerate(vregs):
                if i > 0:
                    groups.append(g)
                    g = ["s_add_u32 m0, m0, 1024", "s_nop 0"]
                g = g + [f"buffer_load_dwordx4 v{vr}, {srd(srdn)}, s{sG} offen lds"]
            groups.append(g)
        return groups

    def poll_issue(self, addr_code, nl, target, what):
        A = self.A
        skip = A.newlabel("piskip")
        A(f"s_cmp_lg_u32 s{sW}, 3"); A(f"s_cbranch_scc1 {skip}")
        for ins in addr_code: A(ins)
        A(f"v_mov_b32 v251, {target}")
        A(f"s_mov_b64 s[{sEXS}:{sEXS+1}], exec"); A(f"s_mov_b64 exec, {(1 << nl) - 1}")
        A.opt(f"buffer_load_dword v252, v250, {srd(SRD_WS)}, 0 offen sc1")
        A(f"s_mov_b64 exec, s[{sEXS}:{sEXS+1}]")
        A.label(skip)
        self.poll_state = (nl, A.vm_pos(), what)

    def poll_check(self, srdn=None):
        A = self.A
        nl, pos, what = self.poll_state
        skip = A.newlabel("pskip"); loop = A.newlabel("ploop"); done = A.newlabel("pdone"); chk = A.newlabel("pchk")
        A(f"s_cmp_lg_u32 s{sW}, 3"); A(f"s_cbranch_scc1 {skip}")
        A(f"s_mov_b64 s[{sEXS}:{sEXS+1}], exec"); A(f"s_mov_b64 exec, {(1 << nl) - 1}")
        A(f"s_mov_b32 s{sSPIN}, {self.cfg.spin_limit}")
        A.wait(vm=pos)
        A(f"s_branch {chk}")
        A.label(loop)
        A.opt(f"buffer_load_dword v252, v250, {srd(SRD_WS)}, 0 offen sc1")
        A("s_waitcnt vmcnt(0)")
        A.label(chk)
        A("v_cmp_ge_u32 vcc, v252, v251")
        A(f"s_sub_u32 s{sSPIN}, s{sSPIN}, 1"); A(f"s_cbranch_scc1 {done}")
        A("s_cmp_eq_u64 vcc, exec"); A(f"s_cbranch_scc0 {loop}")
        A.label(done)
        A(f"s_mov_b64 exec, s[{sEXS}:{sEXS+1}]")
        A.label(skip)
        A("s_barrier")

    def poll(self, addr_code, nl, target, what):
        self.poll_issue(addr_code, nl, target, what)
        self.poll_check()

    def signal(self, cnt, sidx, what, init_check=False):
        A = self.A
        skip = A.newlabel("askip")
        A(f"s_cmp_lg_u32 s{sW}, 3"); A(f"s_cbranch_scc1 {skip}")
        A(f"s_mov_b64 s[{sEXS}:{sEXS+1}], exec"); A("s_mov_b64 exec, 1")
        if init_check:
            loop = A.newlabel("iloop"); done = A.newlabel("idone"); chk = A.newlabel("ichk")
            A(f"s_mov_b32 s{sSPIN}, {self.cfg.spin_limit}")
            A(f"s_branch {chk}")
            A.label(loop)
            A.opt(f"buffer_load_dword v247, v246, {srd(SRD_DBG)}, 0 offen sc1")
            A("s_waitcnt vmcnt(0)")
            A.label(chk)
            A("v_cmp_eq_u32 vcc, 1, v247")
            A(f"s_sub_u32 s{sSPIN}, s{sSPIN}, 1"); A(f"s_cbranch_scc1 {done}")
            A("s_cmp_eq_u64 vcc, exec"); A(f"s_cbranch_scc0 {loop}")
            A.label(done)
        A(f"s_and_b32 s{sT5}, s{sidx}, {3 if sidx == sRB64 else 1}"); A(f"s_lshl_b32 s{sT5}, s{sT5}, 8"); A(f"s_add_u32 s{sT5}, s{sT5}, s{sSLAB}")
        A(f"s_add_u32 s{sT5}, s{sT5}, {WS_CNT + cnt*CNT_STRIDE}")
        A(f"v_mov_b32 v248, s{sT5}"); A("v_mov_b32 v249, 1")
        A.opt(f"buffer_atomic_add v249, v248, {srd(SRD_WS)}, 0 offen")
        A(f"s_mov_b64 exec, s[{sEXS}:{sEXS+1}]")
        A.label(skip)

    def init_poll_issue(self):
        A = self.A
        skip = A.newlabel("iiskip")
        A(f"s_cmp_lg_u32 s{sW}, 3"); A(f"s_cbranch_scc1 {skip}")
        A.opt(f"buffer_load_dword v247, v246, {srd(SRD_DBG)}, 0 offen sc1")
        A.label(skip)

    def cnt_addr(self, cnt, sidx, delta=0):
        if delta == 0:
            return [f"s_and_b32 s{sT5}, s{sidx}, {3 if sidx == sRB64 else 1}", f"s_lshl_b32 s{sT5}, s{sT5}, 8", f"s_add_u32 s{sT5}, s{sT5}, s{sSLAB}",
                    f"s_add_u32 s{sT5}, s{sT5}, {WS_CNT + cnt*CNT_STRIDE}", f"v_mov_b32 v250, s{sT5}"]
        assert sidx == sRB64
        return [f"s_add_u32 s{sT5}, s{sidx}, {delta}", f"s_max_i32 s{sT5}, s{sT5}, 0", f"v_mov_b32 v250, s{sT5}"] + self.cnt64_v(cnt)

    def cnt64_v(self, cnt):
        return ["v_lshrrev_b32 v251, 2, v250", f"v_lshlrev_b32 v251, {SLAB_SH}, v251", "v_and_b32 v250, 3, v250",
                "v_lshl_add_u32 v250, v250, 8, v251", f"v_add_u32 v250, {WS_CNT + cnt*CNT_STRIDE}, v250"]

    def frag_dest(self, sdst, region):
        A = self.A
        A(f"s_lshl_b32 s{sdst}, s{sR32L}, 15"); A(f"s_lshl_b32 s{sT1}, s{sC}, 12"); A(f"s_add_u32 s{sdst}, s{sdst}, s{sT1}")
        A(f"s_lshl_b32 s{sT1}, s{sCG}, 11"); A(f"s_add_u32 s{sdst}, s{sdst}, s{sT1}"); A(f"s_add_u32 s{sdst}, s{sdst}, s{sSLAB}")
        A(f"s_add_u32 s{sdst}, s{sdst}, {region}")

    def swap_add(self, x, tmp):
        A = self.A
        A(f"v_mov_b32 v{tmp}, v{x}")
        A.nop(2)
        A(f"v_permlane32_swap_b32 v{x}, v{tmp}")
        A.nop(1)
        A(f"v_add_f32 v{x}, v{x}, v{tmp}")

    def prologue(self):
        A = self.A
        A("s_cmp_ge_u32 s2, 256"); A("s_cbranch_scc1 L_end")
        if self.cfg.stamps or self.cfg.dbgtime:
            A(f"s_memrealtime s[{sRT0}:{sRT0+1}]"); A(f"s_memtime s[{sCY0}:{sCY0+1}]")
        A("s_load_dwordx16 s[16:31], s[0:1], 0")
        A("s_load_dwordx4 s[32:35], s[0:1], 64")
        A("s_load_dwordx2 s[36:37], s[0:1], 80")
        if self.cfg.code0:
            A("s_getpc_b64 s[96:97]")
            A("v_lshlrev_b32 v6, 7, v0")
            A(f"v_cmp_gt_u32 vcc, {self.cfg.code0}, v0")
            A(f"s_and_saveexec_b64 s[{sEXS}:{sEXS+1}], vcc")
            l0 = A.newlabel("c0")
            A(f"s_cbranch_execz {l0}")
            A.opt("global_load_dword v255, v6, s[96:97]")
            A.label(l0)
            A(f"s_mov_b64 exec, s[{sEXS}:{sEXS+1}]")
        A(f"v_lshrrev_b32 v5, 6, v0")
        A(f"v_and_b32 v{vL}, 63, v0")
        A(f"v_readfirstlane_b32 s{sW}, v5")
        A(f"v_and_b32 v{vM}, 31, v{vL}")
        A(f"v_lshrrev_b32 v{vH}, 5, v{vL}")
        A(f"v_lshlrev_b32 v{vL16}, 4, v{vL}")
        A("s_and_b32 s10, s2, 7"); A("s_lshr_b32 s11, s2, 3")
        if self.cfg.map2d:
            A(f"s_lshr_b32 s{sT1}, s10, 1"); A(f"s_and_b32 s{sT2}, s10, 1")
            A(f"s_lshr_b32 s{sT0}, s11, 2"); A(f"s_lshl_b32 s{sRB64}, s{sT1}, 3"); A(f"s_add_u32 s{sRB64}, s{sRB64}, s{sT0}")
            A(f"s_and_b32 s{sC}, s11, 3"); A(f"s_lshl_b32 s{sT0}, s{sT2}, 2"); A(f"s_add_u32 s{sC}, s{sC}, s{sT0}")
            A(f"s_lshr_b32 s{sT0}, s11, 3"); A(f"s_lshl_b32 s{sRB128}, s{sT1}, 2"); A(f"s_add_u32 s{sRB128}, s{sRB128}, s{sT0}")
            A(f"s_and_b32 s{sFT}, s11, 7"); A(f"s_lshl_b32 s{sT0}, s{sT2}, 3"); A(f"s_add_u32 s{sFT}, s{sFT}, s{sT0}")
        else:
            A(f"s_lshr_b32 s{sT0}, s11, 3"); A(f"s_lshl_b32 s{sRB64}, s10, 2"); A(f"s_add_u32 s{sRB64}, s{sRB64}, s{sT0}")
            A(f"s_and_b32 s{sC}, s11, 7")
            if self.cfg.cxor: A(f"s_xor_b32 s{sC}, s{sC}, {self.cfg.cxor}")
            A(f"s_lshr_b32 s{sT0}, s11, 4"); A(f"s_lshl_b32 s{sRB128}, s10, 1"); A(f"s_add_u32 s{sRB128}, s{sRB128}, s{sT0}")
            A(f"s_and_b32 s{sFT}, s11, 15")
        A(f"s_and_b32 s{sRBK}, s{sW}, 1"); A(f"s_lshr_b32 s{sCG}, s{sW}, 1")
        if self.cfg.rot:
            A(f"s_and_b32 s{sROT}, s{sRB64}, 3"); A(f"s_lshl_b32 s{sROT}, s{sROT}, 1"); A(f"s_add_u32 s{sROT}, s{sROT}, s{sC}"); A(f"s_and_b32 s{sROT}, s{sROT}, 7")
        else:
            A(f"s_mov_b32 s{sROT}, 0")
        A(f"s_lshl_b32 s{sROT8}, s{sROT}, 1"); A(f"s_add_u32 s{sROT8}, s{sROT8}, s{sW}"); A(f"s_lshl_b32 s{sROT8}, s{sROT8}, 2")
        A(f"s_lshl_b32 s{sW4K}, s{sW}, 12")
        A(f"s_lshr_b32 s{sT3}, s2, 3")
        A(f"v_lshrrev_b32 v7, 3, v{vL}")
        A(f"v_and_b32 v8, 7, v{vL}")
        A(f"v_bfe_u32 v9, v{vL}, 4, 1"); A("v_lshlrev_b32 v9, 2, v9"); A("v_xor_b32 v9, v8, v9"); A("v_lshlrev_b32 v9, 4, v9")
        A(f"v_lshl_add_u32 v{vSTR}, v7, 10, v9")
        A(f"v_mul_u32_u24 v{vSTRQ}, 3072, v7"); A(f"v_add_u32 v{vSTRQ}, v{vSTRQ}, v9")
        A(f"v_lshrrev_b32 v9, 4, v{vL}"); A("v_xor_b32 v9, v8, v9"); A("v_lshlrev_b32 v9, 4, v9"); A("v_lshl_add_u32 v14, v7, 10, v9")
        A(f"v_xor_b32 v{vX2}, 64, v14"); A(f"v_add_u32 v{vX2}, 7168, v{vX2}")
        A(f"v_add_u32 v{vSTRJ[1]}, 7168, v{vSTR}")
        A("s_waitcnt lgkmcnt(0)")
        self.stamp("kernarg")
        if self.cfg.tlb1:
            wsel = self.cfg.tlb1_wave
            l = A.newlabel("tl")
            if wsel >= 0: A(f"s_cmp_lg_u32 s{sW}, {wsel}"); A(f"s_cbranch_scc1 {l}")
            ptrs = [16, 24, 18, 36, 26, 28, 20, 30, 32, 34][:self.cfg.tlb1]
            A("v_mov_b32 v250, s16"); A("v_mov_b32 v251, s17")
            A(f"s_lshr_b32 s{sT0}, s{sRB64}, 2"); A(f"s_lshl_b32 s{sT0}, s{sT0}, {SLAB_SH}"); A(f"s_add_u32 s{sT0}, s{sT0}, s36"); A(f"s_addc_u32 s{sT1}, s37, 0")
            for i, p in enumerate(ptrs):
                if i == 0: continue
                lo, hi = (sT0, sT1) if p == 36 else (p, p + 1)
                A(f"v_writelane_b32 v250, s{lo}, {i}"); A(f"v_writelane_b32 v251, s{hi}, {i}")
            A(f"s_mov_b64 s[{sEXS}:{sEXS+1}], exec"); A(f"s_bfm_b64 exec, {len(ptrs)}, 0")
            (A if wsel < 0 else A.opt)("global_load_dword v255, v[250:251], off")
            A(f"s_mov_b64 exec, s[{sEXS}:{sEXS+1}]")
            A.label(l)
        self.build_srds(((SRD_X, 16, 2097152), (SRD_W1, 24, 524288), (SRD_WQKV, 18, 1572864)))

    def scalar_touch(self):
        A = self.A
        if not self.cfg.stouch: return
        l = A.newlabel("st")
        A(f"s_cmp_lg_u32 s{sW}, {self.cfg.stouch_wave}"); A(f"s_cbranch_scc1 {l}")
        for p in (18, 26, 28, 20, 30, 32, 34):
            A(f"s_load_dword s{sT4}, s[{p}:{p+1}], 0")
        A("s_mov_b32 s12, s36"); A("s_mov_b32 s13, s37")
        for i in range(8):
            A(f"s_load_dword s{sT4}, s[12:13], 0")
            if i < 7: A("s_add_u32 s12, s12, 0x200000"); A("s_addc_u32 s13, s13, 0")
        A.label(l)

    def build_srds(self, lst):
        A = self.A
        for (n, p, size) in lst:
            A(f"s_mov_b32 s{n}, s{p}"); A(f"s_and_b32 s{n+1}, s{p+1}, 0xffff")
            A(f"s_mov_b32 s{n+2}, {size}"); A(f"s_mov_b32 s{n+3}, 0x20000")

    def emit_groups(self, gs):
        for g in gs:
            for ins in g:
                if callable(ins): ins()
                else: self.A(ins)

    def t0_dma(self):
        A = self.A
        self.stamp("touched")
        A(f"s_lshl_b32 s{sXG}, s{sRB64}, 16"); A(f"s_lshl_b32 s{sT0}, s{sW}, 14"); A(f"s_add_u32 s{sXG}, s{sXG}, s{sT0}")
        A(f"s_lshl_b32 s{sW1G}, s{sC}, 7"); A(f"s_add_u32 s{sW1G}, s{sW1G}, s{sT0}")
        A(f"s_lshl_b32 s{sWL}, s{sW}, 11")
        self.chunk_pos = {}
        for q in range(self.cfg.preA): self.emit_groups(self.chunk_dma(q))
        self.scalar_touch()
        self.start_touch()
        self.stamp("preA")
        self.build_srds(((SRD_WS, 36, WS_SIZE), (SRD_DBG, 34, 256), (SRD_WO, 20, 524288), (SRD_W2, 26, 524288),
                         (SRD_W3, 28, 1409024), (SRD_W4, 30, 1409024), (SRD_OUT, 32, 2097152)))
        A(f"s_lshr_b32 s{sSLAB}, s{sRB64}, 2"); A(f"s_lshl_b32 s{sSLAB}, s{sSLAB}, {SLAB_SH}")
        A(f"s_and_b32 s{sR32L}, s{sRB64}, 3"); A(f"s_lshl_b32 s{sR32L}, s{sR32L}, 1"); A(f"s_add_u32 s{sR32L}, s{sR32L}, s{sRBK}")
        A(f"s_and_b32 s{sR32P}, s{sRB128}, 1"); A(f"s_lshl_b32 s{sR32P}, s{sR32P}, 2"); A(f"s_add_u32 s{sR32P}, s{sR32P}, s{sW}")
        l = A.newlabel("zi")
        A(f"s_cmp_lg_u32 s2, 0"); A(f"s_cbranch_scc1 {l}")
        A(f"s_cmp_lg_u32 s{sW}, 3"); A(f"s_cbranch_scc1 {l}")
        A(f"v_lshrrev_b32 v250, 5, v{vL}"); A(f"v_lshlrev_b32 v250, {SLAB_SH}, v250"); A(f"v_and_b32 v251, 31, v{vL}")
        A("v_lshl_add_u32 v250, v251, 8, v250"); A(f"v_add_u32 v250, {WS_CNT}, v250"); A("v_mov_b32 v251, 0")
        for i in range(4):
            A.opt(f"buffer_store_dword v251, v250, {srd(SRD_WS)}, 0 offen sc1")
            if i < 3: A(f"v_add_u32 v250, {2 << SLAB_SH}, v250")
        A.label(l)
        A("v_mov_b32 v246, 0"); A("v_mov_b32 v250, 0")
        self.pos_zero = A.vm_pos()
        if self.cfg.touch_mode == "early": self.weight_touch()

    def start_touch(self):
        A = self.A
        if not self.cfg.touch: return
        le = A.newlabel("te")
        A(f"s_cmp_eq_u32 s{sW}, 3"); A(f"s_cbranch_scc0 {le}")
        A(f"s_mov_b64 s[{sEXS}:{sEXS+1}], exec")
        A("s_mov_b64 exec, 0xff")
        A("s_getpc_b64 s[96:97]")
        A.label("L_pc")
        A(f"s_lshl_b32 s{sT0}, s{sT3}, 10"); A(f"v_lshlrev_b32 v250, 7, v{vL}"); A(f"v_add_u32 v250, s{sT0}, v250")
        A("v_min_u32 v250, L_end-L_pc, v250")
        A.opt("global_load_dword v255, v250, s[96:97]")
        A("s_bfm_b64 exec, 48, 0")
        A(f"s_mul_i32 s{sT0}, s2, {48*128}"); A(f"v_lshlrev_b32 v250, 7, v{vL}")
        A.opt(f"buffer_load_dword v255, v250, {srd(SRD_WQKV)}, s{sT0} offen")
        A(f"s_mov_b64 exec, s[{sEXS}:{sEXS+1}]")
        A.label(le)

    def t0_dma2(self):
        for q in range(self.cfg.preA, self.cfg.pre_chunks): self.emit_groups(self.chunk_dma(q))

    def weight_touch(self, tlb_only=False, with_ws=True):
        A = self.A
        if not self.cfg.touch: return
        le = A.newlabel("lte")
        labels = [A.newlabel("lt") for _ in range(4)]
        A(f"s_mov_b64 s[{sEXS}:{sEXS+1}], exec")
        A(f"v_lshlrev_b32 v250, 7, v{vL}")
        plan = (((SRD_W2, 16, 0), (SRD_WO, 16, 0)), ((SRD_W3, 22, 0), (SRD_W3, 21, 22)), ((SRD_W4, 22, 0), (SRD_W4, 21, 22)), None)
        for w, items in enumerate(plan):
            A.label(labels[w])
            f = A if w == 0 else A.opt
            if w < 3:
                A(f"s_cmp_eq_u32 s{sW}, {w}"); A(f"s_cbranch_scc0 {labels[w+1]}")
                for (srdn, n, first) in items:
                    tot = 16 if srdn in (SRD_W2, SRD_WO) else 43
                    A(f"s_bfm_b64 exec, {n}, 0")
                    A(f"s_mul_i32 s{sT5}, s2, {tot*128}")
                    if first: A(f"s_add_u32 s{sT5}, s{sT5}, {first*128}")
                    f(f"buffer_load_dword v255, v250, {srd(srdn)}, s{sT5} offen")
                A(f"s_branch {le}")
            else:
                A("s_mov_b64 exec, 3"); A(f"v_lshlrev_b32 v250, 20, v{vL}")
                f(f"buffer_load_dword v255, v250, {srd(SRD_OUT)}, 0 offen")
                A("s_mov_b64 exec, 1")
                f(f"buffer_load_dword v255, v246, {srd(SRD_DBG)}, 0 offen")
        A.label(le)
        A(f"s_mov_b64 exec, s[{sEXS}:{sEXS+1}]")

    def l2_touch(self, what):
        A = self.A
        if what not in self.cfg.l2touch.split("+"): return
        T = 240
        srdn, nlines = {"w2": (SRD_W2, 4096), "wo": (SRD_WO, 4096), "w4": (SRD_W4, 11008), "w3": (SRD_W3, 11008),
                        "wq": (SRD_WQKV, 4096), "wv": (SRD_WQKV, 4096)}[what]
        per = nlines // 128
        A(f"s_lshr_b32 s{sT5}, s2, 3"); A(f"s_lshl_b32 s{sT5}, s{sT5}, 2"); A(f"s_add_u32 s{sT5}, s{sT5}, s{sW}")
        if what in ("wq", "wv"):
            A(f"s_mul_i32 s{sT5}, s{sT5}, {4*3072}")
            if what == "wv": A(f"s_add_u32 s{sT5}, s{sT5}, 2048")
            A(f"v_lshrrev_b32 v{T}, 3, v{vL}"); A(f"v_mul_u32_u24 v{T}, 3072, v{T}"); A(f"v_and_b32 v{T+1}, 7, v{vL}")
            A(f"v_lshl_add_u32 v{T}, v{T+1}, 7, v{T}")
        else:
            A(f"s_mul_i32 s{sT5}, s{sT5}, {per*128}")
            A(f"v_lshlrev_b32 v{T}, 7, v{vL}")
        A(f"s_mov_b64 s[{sEXS}:{sEXS+1}], exec")
        for r0 in range(0, per, 64):
            n = min(64, per - r0)
            if n < 64: A(f"s_bfm_b64 exec, {n}, 0")
            if r0: A(f"s_add_u32 s{sT5}, s{sT5}, {64*128}")
            A(f"buffer_load_dword v255, v{T}, {srd(srdn)}, s{sT5} offen")
        A(f"s_mov_b64 exec, s[{sEXS}:{sEXS+1}]")

    def l2_touch_rows(self, srdn, ranges, tmp):
        A = self.A
        A(f"s_lshr_b32 s{sT5}, s2, 3"); A(f"s_lshl_b32 s{sT5}, s{sT5}, 2"); A(f"s_add_u32 s{sT5}, s{sT5}, s{sW}")
        A(f"v_lshlrev_b32 v{tmp}, 7, v{vL}")
        A(f"s_mov_b64 s[{sEXS}:{sEXS+1}], exec")
        for (r0, nr) in ranges:
            per = (nr * 8 + 127) // 128
            assert per <= 64
            A(f"s_mul_i32 s{sT0}, s{sT5}, {per*128}"); A(f"s_add_u32 s{sT0}, s{sT0}, {r0*1024}")
            A(f"s_bfm_b64 exec, {per}, 0") if per < 64 else A("s_mov_b64 exec, -1")
            A(f"buffer_load_dword v255, v{tmp}, {srd(srdn)}, s{sT0} offen")
        A(f"s_mov_b64 exec, s[{sEXS}:{sEXS+1}]")

    def chunk_dma(self, q):
        gs = [[f"s_add_u32 s{sD1}, s{sROT}, {q}", f"s_and_b32 s{sD1}, s{sD1}, 7", f"s_lshl_b32 s{sD0}, s{sD1}, 7",
               f"s_add_u32 m0, s{sWL}, {A0 + q*8192}", f"s_add_u32 s{sD0}, s{sD0}, s{sXG}",
               f"buffer_load_dwordx4 v14, {srd(SRD_X)}, s{sD0} offen lds"],
              [f"buffer_load_dwordx4 v{vX2}, {srd(SRD_X)}, s{sD0} offen offset:1024 lds"],
              [f"s_lshl_b32 s{sD0}, s{sD1}, 16",
               f"s_add_u32 m0, s{sWL}, {B0 + q*8192}", f"s_add_u32 s{sD0}, s{sD0}, s{sW1G}",
               f"buffer_load_dwordx4 v{vSTR}, {srd(SRD_W1)}, s{sD0} offen lds"],
              [f"buffer_load_dwordx4 v{vSTRJ[1]}, {srd(SRD_W1)}, s{sD0} offen offset:1024 lds"]]
        def mark(q=q): self.chunk_pos[q] = self.A.vm_pos()
        gs[-1].append(mark)
        return gs

    def quad(self, pre, srdn, vregs):
        return [(pre if j == 0 else []) + [f"buffer_load_dwordx4 v{vregs[j]}, {srd(srdn)}, s{sG} offen" + (f" offset:{1024*j}" if j else "") + " lds"]
                for j in range(4)]

    def job_strip_qkv(self, which, s0, ns, lds0):
        assert ns % 8 == 0
        groups = []
        for J in range(ns // 8):
            pre = [f"s_add_u32 m0, s{sW4K}, {lds0 + 16384*J}", f"s_add_u32 s{sD0}, s{sROT8}, {2*s0 + 16*J}", f"s_and_b32 s{sD0}, s{sD0}, 63",
                   f"s_mul_i32 s{sD0}, s{sD0}, {8*3072}", f"s_lshl_b32 s{sG}, s{sC}, 7", f"s_add_u32 s{sG}, s{sG}, s{sD0}"]
            if which: pre.append(f"s_add_u32 s{sG}, s{sG}, {which*1024}")
            groups += self.quad(pre, SRD_WQKV, vSTRQJ)
        return groups

    def job_strip(self, srdn, u0, nunits, lds_base):
        assert u0 % 16 == 0 and nunits % 16 == 0 and not self.cfg.krot
        groups = []
        for J in range(nunits // 16):
            u = u0 + 16*J
            pre = [f"s_add_u32 m0, s{sW4K}, {lds_base + 1024*u}", f"s_add_u32 s{sG}, s{sBW}, {u*8192}"]
            groups += self.quad(pre, srdn, vSTRJ)
        return groups

    def job_w3(self, s0, ns, lds0):
        groups = []
        full_prev = False
        for j in range((ns + 3)//4):
            full = 4*j + 3 < ns
            if full and full_prev:
                g = [f"s_add_u32 m0, m0, {4*3072}", f"s_add_u32 s{sG}, s{sG}, {4*16*2752}"]
            else:
                if full:
                    g = [f"s_add_u32 m0, s{sW3L}, {lds0 + 4*j*3072}", f"s_add_u32 s{sD0}, s{sW}, {s0 + 4*j}"]
                else:
                    g = [f"s_add_u32 s{sD1}, s{sW}, {4*j}", f"s_min_u32 s{sD1}, s{sD1}, {ns-1}", f"s_mul_i32 s{sD0}, s{sD1}, 3072",
                         f"s_add_u32 m0, s{sD0}, {lds0}", f"s_add_u32 s{sD0}, s{sD1}, {s0}"]
                g += [f"s_mul_i32 s{sD0}, s{sD0}, {16*2752}", f"s_lshl_b32 s{sD1}, s{sCB0}, 6", f"s_add_u32 s{sG}, s{sD0}, s{sD1}"]
            full_prev = full
            for i in range(3):
                ins = f"buffer_load_dwordx4 v{vW3[i]}, {srd(SRD_W3)}, s{sG} offen" + (f" offset:{1024*i}" if i else "") + " lds"
                groups.append((g if i == 0 else []) + [ins])
        return groups

    def setup2(self):
        A = self.A
        A(f"s_mov_b32 s{sONES}, 0x3f803f80"); A(f"s_mov_b32 s{sPLO}, 0x05040100"); A(f"s_mov_b32 s{sPHI}, 0x07060302")
        if self.cfg.ftswap:
            A(f"s_cmp_eq_u32 s{sFT}, 3"); A(f"s_cselect_b32 s{sT0}, 12, s{sFT}")
            A(f"s_cmp_eq_u32 s{sFT}, 12"); A(f"s_cselect_b32 s{sFT}, 3, s{sT0}")
        A(f"s_mul_i32 s{sCB0}, s{sFT}, 3"); A(f"s_mov_b32 s{sNBLK}, 3")
        A(f"s_cmp_lt_u32 s{sFT}, 11"); l = A.newlabel("ft"); A(f"s_cbranch_scc1 {l}")
        A(f"s_lshl_b32 s{sCB0}, s{sFT}, 1"); A(f"s_add_u32 s{sCB0}, s{sCB0}, 11"); A(f"s_mov_b32 s{sNBLK}, 2")
        A.label(l)
        A(f"s_lshl_b32 s{sBW}, s{sC}, 7"); A(f"s_lshl_b32 s{sT0}, s{sW}, 15"); A(f"s_add_u32 s{sBW}, s{sBW}, s{sT0}")
        A(f"s_lshl_b32 s{sT1}, s{sC}, 7"); A(f"s_mul_i32 s{sT0}, s{sW}, {3*32768}"); A(f"s_add_u32 s{sW4S[3]}, s{sT0}, s{sT1}")
        A(f"s_lshl_b32 s{sT0}, s{sW}, 16"); A(f"s_add_u32 s{sW4S[2]}, s{sT0}, s{sT1}")
        A(f"s_mul_i32 s{sW3L}, s{sW}, 3072")
        A(f"s_mov_b32 s{sR3}, 0"); A(f"s_mov_b32 s{sKR}, 0")
        for j in (2, 3): A(f"v_add_u32 v{vSTRJ[j]}, {7168*j}, v{vSTR}")
        A(f"v_add_u32 v{vS4J[2]}, {43*16384 - 2048}, v{vSTR}"); A(f"v_add_u32 v{vS4J[3]}, {43*16384 + 8192 - 3072}, v{vSTR}")
        for j in (1, 2, 3): A(f"v_add_u32 v{vSTRQJ[j]}, {23552*j}, v{vSTRQ}")
        T = vT
        A(f"v_bfe_u32 v{T}, v{vL}, 2, 2")
        A(f"v_and_b32 v{T+1}, 3, v{vL}"); A(f"v_lshlrev_b32 v{T+1}, 3, v{T+1}")
        A(f"v_bfe_u32 v{T+2}, v{vL}, 4, 1"); A(f"v_lshl_add_u32 v{T+1}, v{T+2}, 5, v{T+1}")
        A(f"v_lshrrev_b32 v{T+2}, 1, v{T}")
        A(f"v_xor_b32 v{T+3}, s{sCG}, v{T+2}")
        A(f"v_lshlrev_b32 v{T+3}, 6, v{T+3}")
        A(f"v_lshl_add_u32 v{T+4}, v{T}, 7, v{T+1}")
        A(f"v_add_u32 v{T+4}, v{T+4}, v{T+3}")
        A(f"v_lshl_add_u32 v{vTRN}, v{vH}, 10, v{T+4}")
        A(f"v_lshl_add_u32 v{vTRC0}, v{vH}, 9, v{T+4}")
        A(f"v_xor_b32 v{vTRC1}, 64, v{vTRC0}")
        A(f"v_mul_u32_u24 v{T+5}, 192, v{T}"); A(f"v_add_u32 v{T+5}, v{T+5}, v{T+1}")
        A(f"v_mul_u32_u24 v{T+6}, 768, v{vH}"); A(f"v_add_u32 v{vTR3}, v{T+5}, v{T+6}")
        A(f"s_mov_b32 s{sT0}, 43691"); A(f"s_movk_i32 s{sT1}, 2752")
        for j in range(3):
            A(f"v_add_u32 v{T}, {64*j}, v{vL}")
            A(f"v_mul_u32_u24 v{T+1}, s{sT0}, v{T}"); A(f"v_lshrrev_b32 v{T+1}, 19, v{T+1}")
            A(f"v_mul_u32_u24 v{T+2}, 12, v{T+1}"); A(f"v_sub_u32 v{T+2}, v{T}, v{T+2}")
            A(f"v_mul_u32_u24 v{T+1}, s{sT1}, v{T+1}")
            A(f"v_lshl_add_u32 v{vW3[j]}, v{T+2}, 4, v{T+1}")
            if j: A(f"v_subrev_u32 v{vW3[j]}, {1024*j}, v{vW3[j]}")

    def p1_h(self):
        A = self.A
        T = vT
        vXA = [T, T+1, T+2, T+3]; vXS = [T+4, T+5]
        A(f"s_lshl_b32 s{sT0}, s{sRBK}, 5"); A(f"v_add_u32 v{T+6}, s{sT0}, v{vM}")
        A(f"v_bfe_u32 v{T+7}, v{T+6}, 1, 3"); A(f"v_xor_b32 v{T+7}, v{T+7}, v{vH}"); A(f"v_lshlrev_b32 v{T+7}, 4, v{T+7}")
        A(f"v_lshl_add_u32 v{vXA[0]}, v{T+6}, 7, v{T+7}")
        for s in range(1, 4): A(f"v_xor_b32 v{vXA[s]}, {32*s}, v{vXA[0]}")
        A(f"s_lshl_b32 s{sT0}, s{sCG}, 6"); A(f"v_xor_b32 v{vXS[0]}, s{sT0}, v{vXA[0]}"); A(f"v_xor_b32 v{vXS[1]}, 32, v{vXS[0]}")
        vXR = T+8
        A(f"v_bfe_u32 v{T+7}, v{T+6}, 1, 3"); A(f"s_lshl_b32 s{sT0}, s{sCG}, 2"); A(f"v_xor_b32 v{T+7}, s{sT0}, v{T+7}")
        A(f"v_lshlrev_b32 v{T+7}, 4, v{T+7}"); A(f"v_lshl_add_u32 v{T+7}, v{T+6}, 7, v{T+7}")
        A(f"v_lshl_add_u32 v{T+7}, v{vH}, 3, v{T+7}")
        A(f"s_sub_u32 s{sXSLOT}, s{sC}, s{sROT}"); A(f"s_and_b32 s{sXSLOT}, s{sXSLOT}, 7"); A(f"s_lshl_b32 s{sT0}, s{sXSLOT}, 13"); A(f"v_add_u32 v{vXR}, s{sT0}, v{T+7}")
        vWB = T+9
        A(f"v_add_u32 v{vWB}, {B0}, v{vTRN}")
        vS0, vS1, vQ0, vQ1, vC0, vC1 = T+10, T+11, T+12, T+13, T+14, T+15
        for r in (vS0, vS1, vQ0, vQ1, vC0, vC1): A(f"v_mov_b32 v{r}, 0")
        XT = T+16
        acc = vACC0
        def reads(q):
            L = []
            for s in range(4):
                b = vRING + 4*(4*(q & 1) + s)
                st = 4*q + s
                L.append([f"ds_read_b128 {a(4*st,4)}, v{vXA[s]} offset:{q*8192}",
                          f"ds_read_b64_tr_b16 {v(b,2)}, v{vWB} offset:{st*2048}",
                          f"ds_read_b64_tr_b16 {v(b+2,2)}, v{vWB} offset:{st*2048+512}"])
            L[0].append(f"ds_read_b128 {v(XT+8*(q&1),4)}, v{vXS[0]} offset:{q*8192}")
            L[1].append(f"ds_read_b128 {v(XT+8*(q&1)+4,4)}, v{vXS[1]} offset:{q*8192}")
            return L
        def burst(q):
            x = XT + 8*(q & 1)
            for i in range(8):
                A(f"v_dot2c_f32_bf16 v{vS0 + (i&1)}, s{sONES}, v{x+i}")
                A(f"v_dot2c_f32_bf16 v{vQ0 + (i&1)}, v{x+i}, v{x+i}")
            l1 = A.newlabel("cs"); l2 = A.newlabel("ce")
            b = vRING + 16*(q & 1)
            A(f"s_cmp_lg_u32 s{sRBK}, 0"); A(f"s_cbranch_scc1 {l1}")
            for i in range(8): A(f"v_dot2c_f32_bf16 v{vC0 + (i&1)}, s{sONES}, v{b+i}")
            A(f"s_branch {l2}")
            A.label(l1)
            for i in range(8): A(f"v_dot2c_f32_bf16 v{vC0 + (i&1)}, s{sONES}, v{b+8+i}")
            A.label(l2)
        for q in range(9):
            if q < 8:
                A.wait(vm=self.chunk_pos[q])
                if q == self.cfg.preA:
                    l = A.newlabel("fi")
                    A(f"s_cmp_lg_u32 s2, 0"); A(f"s_cbranch_scc1 {l}")
                    A(f"s_cmp_lg_u32 s{sW}, 3"); A(f"s_cbranch_scc1 {l}")
                    A("v_mov_b32 v250, 0"); A("v_mov_b32 v251, 1")
                    A(f"s_mov_b64 s[{sEXS}:{sEXS+1}], exec"); A("s_mov_b64 exec, 1")
                    A.opt(f"buffer_store_dword v251, v250, {srd(SRD_DBG)}, 0 offen sc1")
                    A(f"s_mov_b64 exec, s[{sEXS}:{sEXS+1}]")
                    A.label(l)
            A.wait_all_lg()
            if q < 8: A("s_barrier")
            rd = reads(q) if q < 8 else [[], [], [], []]
            if q < 8 and (q == 0 or self.cfg.chunkstamps):
                self.stamp(f"chunk{q}")
            if q in (0, 2, 4, 6):
                l = A.newlabel("xr")
                A(f"s_cmp_lg_u32 s{sXSLOT}, {q}"); A(f"s_cbranch_scc1 {l}")
                for g in range(4):
                    A(f"v_xor_b32 v{T+32}, {16*g}, v{vXR}")
                    A.opt(f"ds_read_b64 {v(vXRES+2*g,2)}, v{T+32}")
                A.label(l)
            if q == 0:
                for g in rd:
                    for ins in g: A(ins)
                continue
            p = q - 1
            nxt = q + self.cfg.pre_chunks - 1
            if nxt <= 7: self.side += self.chunk_dma(nxt)
            elif not self.kA_queued:
                assert q >= 6
                self.kA_queued = True
                self.queue(self.job_strip_qkv(1, 0, 8, C0))
                self.queue(self.job_strip_qkv(1, 8, 16, A0))
                self.queue(self.job_strip_qkv(1, 24, 8, A0 + 32768), "pos_kB")
                if self.cfg.early_kv: self.queue(self.job_strip_qkv(2, 0, 16, B0))
            if q == 6: self.init_poll_issue()
            if q == 5 and self.cfg.touch:
                A(f"s_mov_b64 s[{sEXS}:{sEXS+1}], exec"); A("s_mov_b64 exec, 1")
                A(f"buffer_load_dword v255, v246, {srd(SRD_WS)}, s{sSLAB} offen")
                A(f"s_mov_b64 exec, s[{sEXS}:{sEXS+1}]")
            for s in range(4):
                st = 4*p + s
                b = vRING + 4*(4*(p & 1) + s)
                c = "0" if st == 0 else v(acc, 16)
                A(f"v_mfma_f32_32x32x16_bf16 {v(acc,16)}, {v(b,4)}, {a(4*st,4)}, {c}")
                for ins in rd[s]: A(ins)
                self.pump(2 if q >= 6 else 1)
            burst(p)
        self.flush_side()
        self.vS = (vS0, vS1, vQ0, vQ1, vC0, vC1)

    def colsum_finish(self, vC0, vC1, scr_off, tmp, pre=None, post=None):
        A = self.A
        A.nop(3)
        A(f"v_add_f32 v{vC0}, v{vC0}, v{vC1}")
        self.swap_add(vC0, tmp)
        A(f"s_lshl_b32 s{sT0}, s{sW}, 7"); A(f"v_lshl_add_u32 v{tmp}, v{vM}, 2, s{sT0}")
        A(f"v_add_u32 v{tmp}, {scr_off}, v{tmp}")
        A(f"ds_write_b32 v{tmp}, v{vC0}")
        if pre: pre()
        A.wait_all_lg()
        A("s_barrier")
        A(f"v_xor_b32 v{tmp}, 128, v{tmp}")
        A(f"ds_read_b32 v{vC1}, v{tmp}")
        if post: post()
        A(f"v_cmp_gt_u32 vcc, 32, v{vL}")
        A.wait_all_lg()
        A(f"v_add_f32 v{vC0}, v{vC0}, v{vC1}")
        A(f"v_cndmask_b32 v{vC0}, 0, v{vC0}, vcc")

    def p1_h_finish(self):
        A = self.A
        T = vT
        vS0, vS1, vQ0, vQ1, vC0, vC1 = self.vS
        acc = vACC0
        A.nop(3)
        A(f"v_add_f32 v{vS0}, v{vS0}, v{vS1}"); A(f"v_add_f32 v{vQ0}, v{vQ0}, v{vQ1}"); A(f"v_add_f32 v{vC0}, v{vC0}, v{vC1}")
        tmp = T+33
        self.swap_add(vS0, tmp); self.swap_add(vQ0, tmp); self.swap_add(vC0, tmp)
        A(f"s_lshl_b32 s{sT0}, s{sW}, 8"); A(f"v_lshl_add_u32 v{tmp}, v{vM}, 3, s{sT0}"); A(f"v_add_u32 v{tmp}, {SCR1}, v{tmp}")
        A(f"v_mov_b32 v{vS1}, v{vQ0}")
        A(f"ds_write_b64 v{tmp}, {v(vS0,2)}")
        A(f"s_lshl_b32 s{sT0}, s{sW}, 7"); A(f"v_lshl_add_u32 v{tmp+1}, v{vM}, 2, s{sT0}"); A(f"v_add_u32 v{tmp+1}, {SCR1+1024}, v{tmp+1}")
        A(f"ds_write_b32 v{tmp+1}, v{vC0}")
        A.wait_all_lg()
        A("s_barrier")
        A(f"v_xor_b32 v{tmp}, 512, v{tmp}"); A(f"v_xor_b32 v{tmp+1}, 128, v{tmp+1}")
        A(f"ds_read_b64 {v(vQ0,2)}, v{tmp}")
        A(f"ds_read_b32 v{vC1}, v{tmp+1}")
        if self.cfg.early_kv: self.queue(self.job_strip_qkv(2, 16, 16, B0 + 32768), "pos_v")
        else: self.queue(self.job_strip_qkv(2, 0, 32, B0), "pos_v")
        A.auto = self.cfg.auto
        A(f"v_cmp_gt_u32 vcc, 32, v{vL}")
        A.wait_all_lg()
        A(f"v_add_f32 v{vS0}, v{vS0}, v{vQ0}"); A(f"v_add_f32 v{vS1}, v{vS1}, v{vQ1}"); A(f"v_add_f32 v{vC0}, v{vC0}, v{vC1}")
        A(f"v_cndmask_b32 v{vC0}, 0, v{vC0}, vcc")
        self.fstamp("he", "he:exch")
        A(f"v_mul_f32 v{vS0}, {fbits(1/512)}, v{vS0}")
        A(f"v_mul_f32 v{vS1}, {fbits(1/512)}, v{vS1}")
        A(f"v_sub_f32 v{vNMU}, 0, v{vS0}")
        A(f"v_fma_f32 v{vS1}, v{vNMU}, v{vS0}, v{vS1}")
        A(f"v_max_f32 v{vS1}, 0, v{vS1}")
        A(f"v_mfma_f32_32x32x2_f32 {v(acc,16)}, v{vC0}, v{vNMU}, {v(acc,16)}")
        mk = A.mark()
        A(f"v_add_f32 v{vQ0}, {fbits(1e-5)}, v{vS1}")
        A(f"v_rsq_f32 v{vR}, v{vQ0}")
        A.nop(1)
        A(f"v_mul_f32 v{vQ0}, v{vR}, v{vR}"); A(f"v_mul_f32 v{vQ0}, v{vQ0}, v{vS1}")
        A(f"v_add_f32 v{vQ0}, {fbits(1e-5)}, v{vQ0}")
        A(f"v_rsq_f32 v{vQ0}, v{vQ0}")
        A.nop(1)
        A(f"v_mul_f32 v{vQ0}, v{vQ0}, v{vR}")
        self.fstamp("he", "he:stats")
        self.gelu_block(acc, vQ0, T+34, mk)
        self.fstamp("he", "he:gelu")
        self.frag_dest(sT0, WS_H)
        self.pstore(f"buffer_store_dwordx4 {v(acc,4)}, v{vL16}, {srd(SRD_WS)}, s{sT0} offen sc1")
        self.pstore(f"buffer_store_dwordx4 {v(acc+4,4)}, v{vL16}, {srd(SRD_WS)}, s{sT0} offen offset:1024 sc1")
        self.pos_h = A.vm_pos()
        A.auto = 0
        self.flush_side()
        if self.cfg.touch_mode == "late": self.weight_touch()
        self.l2_touch("w2"); self.l2_touch("wq")

    def gelu_consts(self, vS, tmp):
        A = self.A
        K1, K0, RI = tmp, tmp+2, tmp+4
        A(f"v_mul_f32 v{K0}, {fbits(C0G)}, v{vS}")
        A(f"v_mul_f32 v{K1}, v{vS}, v{vS}"); A(f"v_mul_f32 v{K1}, v{K1}, v{vS}"); A(f"v_mul_f32 v{K1}, {fbits(C1G)}, v{K1}")
        A(f"v_rcp_f32 v{RI}, v{vS}")
        A(f"v_mov_b32 v{K0+1}, v{K0}"); A(f"v_mov_b32 v{K1+1}, v{K1}"); A(f"v_mov_b32 v{RI+1}, v{RI}")
        return (K1, K0, RI, tmp + 6)

    def gelu_body(self, acc, GK):
        A = self.A
        K1, K0, RI, t = GK
        for p in range(0, 16, 4):
            x0, x1 = acc + p, acc + p + 2
            u0, u1 = t, t + 2
            A(f"v_pk_mul_f32 {v(u0,2)}, {v(x0,2)}, {v(x0,2)}")
            A(f"v_pk_mul_f32 {v(u1,2)}, {v(x1,2)}, {v(x1,2)}")
            A(f"v_pk_fma_f32 {v(u0,2)}, {v(u0,2)}, {v(K1,2)}, {v(K0,2)}")
            A(f"v_pk_fma_f32 {v(u1,2)}, {v(u1,2)}, {v(K1,2)}, {v(K0,2)}")
            A(f"v_pk_mul_f32 {v(u0,2)}, {v(u0,2)}, {v(x0,2)}")
            A(f"v_pk_mul_f32 {v(u1,2)}, {v(u1,2)}, {v(x1,2)}")
            for r in (u0, u0+1, u1, u1+1): A(f"v_exp_f32 v{r}, v{r}")
            A(f"v_pk_fma_f32 {v(u0,2)}, {v(u0,2)}, {v(RI,2)}, {v(RI,2)}")
            A(f"v_pk_fma_f32 {v(u1,2)}, {v(u1,2)}, {v(RI,2)}, {v(RI,2)}")
            for r in (u0, u0+1, u1, u1+1): A(f"v_rcp_f32 v{r}, v{r}")
            A(f"v_pk_mul_f32 {v(u0,2)}, {v(u0,2)}, {v(x0,2)}")
            A(f"v_pk_mul_f32 {v(u1,2)}, {v(u1,2)}, {v(x1,2)}")
            A(f"v_cvt_pk_bf16_f32 v{acc + p//2}, v{u0}, v{u0+1}")
            A(f"v_cvt_pk_bf16_f32 v{acc + p//2 + 1}, v{u1}, v{u1+1}")

    def gelu_block(self, acc, vS, tmp, mk):
        GK = self.gelu_consts(vS, tmp)
        self.A.pad(mk, 18)
        self.gelu_body(acc, GK)

    def qkv_main(self, addr, hooks, side_rate=2, mid=None):
        A = self.A
        T = vT
        acc = vACC0
        PD = 2
        bases = {}
        for st in range(32):
            for d in (0, 512):
                win = (addr(st) + d) // 65536
                if win not in bases:
                    r = T + 40 + len(bases)
                    if win: A(f"v_add_u32 v{r}, {win*65536}, v{vTRN}")
                    else: A(f"v_mov_b32 v{r}, v{vTRN}")
                    bases[win] = r
        vC0, vC1 = T+14, T+15
        A(f"v_mov_b32 v{vC0}, 0"); A(f"v_mov_b32 v{vC1}, 0")
        lgpos = {}
        def burst(steps):
            for st in steps:
                b = vRING + 4*(st % 18)
                for i in range(4): A(f"v_dot2c_f32_bf16 v{vC0 + (i&1)}, s{sONES}, v{b+i}")
                self.tick(18)
        self.credit = 0
        for s in range(32 + PD):
            if s < 32:
                if s in hooks: hooks[s]()
                ad = addr(s)
                b = vRING + 4*(s % 18)
                for (kk, d) in ((0, 0), (2, 512)):
                    x = ad + d
                    A(f"ds_read_b64_tr_b16 {v(b+kk,2)}, v{bases[x // 65536]} offset:{x % 65536}")
                lgpos[s] = A.lg_pos()
            if s >= PD:
                t = s - PD
                A.wait(lg=lgpos[t])
                b = vRING + 4*(t % 18)
                c = "0" if t == 0 else v(acc, 16)
                A(f"v_mfma_f32_32x32x16_bf16 {v(acc,16)}, {v(b,4)}, {a(4*t,4)}, {c}")
                self.tick(33)
                if mid and t in mid: mid[t]()
                if t == 15:
                    self.fstamp("qkv", "t15>")
                    burst(range(0, 16))
                    self.fstamp("qkv", "t15<")
        self.fstamp("qkv", "loop<")
        burst(range(16, 32))

    def qkv_tail(self, dst, keep_auto=False):
        A = self.A
        T = vT
        acc = vACC0
        vC0, vC1 = T+14, T+15
        A(f"v_cmp_gt_u32 vcc, 32, v{vL}")
        A.nop(2)
        A(f"v_add_f32 v{vC0}, v{vC0}, v{vC1}")
        self.swap_add(vC0, T+33)
        A(f"v_cndmask_b32 v{vC0}, 0, v{vC0}, vcc")
        A.nop(2)
        A(f"v_mfma_f32_32x32x2_f32 {v(acc,16)}, v{vC0}, v{vNMU}, {v(acc,16)}")
        mk = A.mark()
        A.auto = 0
        self.pump(3)
        A.pad(mk, 18)
        A.auto = self.cfg.auto
        for i in range(8):
            A(f"v_mul_f32 v{acc+2*i}, v{vR}, v{acc+2*i}"); A(f"v_mul_f32 v{acc+2*i+1}, v{vR}, v{acc+2*i+1}")
            A(f"v_cvt_pk_bf16_f32 v{dst+i}, v{acc+2*i}, v{acc+2*i+1}")
        A.auto = 0
        A.nop(2)
        for i in range(4): A(f"v_permlane32_swap_b32 v{dst+i}, v{dst+4+i}")

    def shadow1(self):
        A = self.A
        def addr_k(s): return C0 + s*2048 if s < 8 else A0 + (s-8)*2048
        def hk0(): A.wait(vm=self.pos_kB); A("s_barrier"); self.stamp("hk0")
        n1 = self.cfg.w2_in_k
        mids = {8: lambda: self.l2_touch("w3")}
        if n1: mids[16] = lambda: self.queue(self.job_strip(SRD_W2, 64 - n1, n1, A0))
        self.qkv_main(addr_k, {0: hk0}, mid=mids)
        self.flush_side()
        self.stamp("k loop")
        A.wait(vm=self.pos_h)
        A("s_barrier")
        self.stamp("h drained")
        self.signal(CNT_H, sRB64, "h", init_check=True)
        self.queue(self.job_strip(SRD_W2, 0, 64 - n1, A0), "pos_w2")
        self.queue(self.job_w3(0, 8, C0) + self.job_w3_small(30, 2, C0 + 8*3072))
        self.qkv_tail(vKP)
        self.stamp("k done")
        self.p2_setup()
        def hv0(): A.wait(vm=self.pos_v); A("s_barrier"); self.stamp("hv0")
        hcode = [f"s_add_u32 s{sT5}, s{sRB64}, -1", f"v_add_u32 v250, s{sT5}, v{vL}",
                 "v_max_i32 v250, 0, v250", "v_min_i32 v250, 31, v250"] + self.cnt64_v(CNT_H)
        self.qkv_main(lambda s: B0 + s*2048, {0: hv0}, side_rate=1, mid={self.cfg.hpoll_at: lambda: self.poll_issue(hcode, 3, 8, "h"), 20: lambda: self.l2_touch("wo")})
        self.flush_side()
        self.stamp("v loop")

    def halo_publish(self):
        A = self.A
        l = A.newlabel("halo")
        A(f"s_cmp_lg_u32 s{sRBK}, 1"); A(f"s_cbranch_scc1 {l}")
        T = vT
        A(f"s_and_b32 s{sT0}, s{sRB64}, 3"); A(f"s_lshl_b32 s{sT0}, s{sT0}, 3"); A(f"s_add_u32 s{sT0}, s{sT0}, s{sC}"); A(f"s_lshl_b32 s{sT0}, s{sT0}, 12")
        A(f"s_lshl_b32 s{sT1}, s{sCG}, 10"); A(f"s_add_u32 s{sT0}, s{sT0}, s{sT1}"); A(f"s_add_u32 s{sT0}, s{sT0}, s{sSLAB}"); A(f"s_add_u32 s{sT0}, s{sT0}, {WS_KV}")
        A(f"v_subrev_u32 v{T}, 16, v{vM}"); A(f"v_lshlrev_b32 v{T}, 4, v{T}"); A(f"v_lshl_add_u32 v{T}, v{vH}, 9, v{T}")
        A(f"v_cmp_le_u32 vcc, 16, v{vM}")
        A(f"s_and_saveexec_b64 s[{sEXS}:{sEXS+1}], vcc")
        self.pstore(f"buffer_store_dwordx4 {v(vKP,4)}, v{T}, {srd(SRD_WS)}, s{sT0} offen sc1", opt=True)
        self.pstore(f"buffer_store_dwordx4 {v(vKP+4,4)}, v{T}, {srd(SRD_WS)}, s{sT0} offen offset:256 sc1", opt=True)
        self.pstore(f"buffer_store_dwordx4 {v(vVP,4)}, v{T}, {srd(SRD_WS)}, s{sT0} offen offset:2048 sc1", opt=True)
        self.pstore(f"buffer_store_dwordx4 {v(vVP+4,4)}, v{T}, {srd(SRD_WS)}, s{sT0} offen offset:2304 sc1", opt=True)
        A(f"s_mov_b64 exec, s[{sEXS}:{sEXS+1}]")
        A.label(l)
        self.pos_halo = A.vm_pos()

    def ksplit_gemm(self, nsteps, wbase_vregs, waddr, act_load, first, nring_regs, PDL, hooks=None, side_rate=1, tail=None, pre=None, window=None, mid=None):
        A = self.A
        hooks = hooks or {}
        acts = {}; apos = {}
        def issue(i):
            acts[i] = act_load(i); apos[i] = A.vm_pos()
        if act_load is None:
            acts, apos = pre
        elif window:
            rest = self.side
            self.side = [[(lambda i=i: issue(i))] for i in range(min(PDL, nsteps))]
            self.pump(2)
            assert not rest
            window()
            while len(apos) < min(PDL, nsteps): self.pump(1)
        else:
            for i in range(min(PDL, nsteps)): issue(i)
        PD = 2
        lgpos = {}
        def wreads(s, cb):
            ad = waddr(s)
            if ad is None: return
            b = vRING + 4*(2*(s % 4) + cb)
            A(f"ds_read_b64_tr_b16 {v(b,2)}, v{wbase_vregs[cb]} offset:{ad}")
            A(f"ds_read_b64_tr_b16 {v(b+2,2)}, v{wbase_vregs[cb]} offset:{ad+1024}")
        for s in range(min(PD, nsteps)):
            wreads(s, 0); wreads(s, 1); lgpos[s] = A.lg_pos()
        for t in range(nsteps):
            s = t + PD
            A.wait(vm=apos[t], lg=lgpos[t] if waddr(t) is not None else None)
            for cb in range(2):
                acc = (vACC0, vACC1)[cb]
                c = "0" if (first and t == 0) else v(acc, 16)
                if waddr(t) is not None:
                    wa = v(vRING + 4*(2*(t % 4) + cb), 4)
                else:
                    wa = a(tail(t)[cb], 4)
                A(f"v_mfma_f32_32x32x16_bf16 {v(acc,16)}, {wa}, {a(acts[t],4)}, {c}")
                if s < nsteps: wreads(s, cb)
                if cb == 0 and waddr(t) is None:
                    if t % side_rate == 0: self.pump(1)
            if s < nsteps: lgpos[s] = A.lg_pos()
            if act_load is not None and t + PDL < nsteps: issue(t + PDL)
            elif waddr(t) is not None and t % side_rate == 0: self.pump(1)
            if mid and t in mid: mid[t]()

    def pair_reduce(self, scr, pre=None, post=None):
        A = self.A
        T = vT
        A(f"s_lshl_b32 s{sT0}, s{sW}, 12"); A(f"s_add_u32 s{sT1}, s{sT0}, {scr}"); A(f"v_add_u32 v{T}, s{sT1}, v{vL16}")
        A(f"s_xor_b32 s{sT0}, s{sT0}, 8192"); A(f"s_add_u32 s{sT0}, s{sT0}, {scr}"); A(f"v_add_u32 v{T+1}, s{sT0}, v{vL16}")
        A.nop(12 - 6)
        for j in range(4): A(f"ds_write_b128 v{T}, {v(vACC1+4*j,4)} offset:{1024*j}")
        self.fstamp("p2e", "red:written")
        if pre: pre()
        A.wait_all_lg()
        self.fstamp("p2e", "red:waited")
        A("s_barrier")
        self.fstamp("p2e", "red:barrier")
        for j in range(4): A(f"ds_read_b128 {v(T+4+4*j,4)}, v{T+1} offset:{1024*j}")
        if post: post()
        for j in range(4):
            A.wait(lg=A.lg_pos() - (3 - j))
            for i in range(4): A(f"v_add_f32 v{vACC0+4*j+i}, v{vACC0+4*j+i}, v{T+4+4*j+i}")

    def p2_setup(self):
        A = self.A
        T = vT
        vA, vB = T+50, T+51
        A(f"s_lshl_b32 s{sT0}, s{sRB64}, 6"); A(f"s_lshl_b32 s{sT1}, s{sRBK}, 5"); A(f"s_add_u32 s{sT0}, s{sT0}, s{sT1}")
        A(f"s_add_u32 s{sT1}, s{sCG}, 1")
        for (dst, sign) in ((vA, -1), (vB, +1)):
            A(f"v_add_u32 v{T}, s{sT0}, v{vM}")
            if sign < 0: A(f"v_subrev_u32 v{T}, s{sT1}, v{T}")
            else: A(f"v_add_u32 v{T}, s{sT1}, v{T}")
            A(f"v_lshrrev_b32 v{T+1}, 8, v{T}"); A(f"v_lshlrev_b32 v{T+1}, {SLAB_SH}, v{T+1}")
            A(f"v_bfe_u32 v{T+2}, v{T}, 5, 3"); A(f"v_lshl_add_u32 v{T+1}, v{T+2}, 15, v{T+1}")
            A(f"v_and_b32 v{T+2}, 31, v{T}"); A(f"v_lshl_add_u32 v{T+1}, v{T+2}, 4, v{T+1}")
            A(f"v_lshl_add_u32 v{T+1}, v{vH}, 9, v{T+1}")
            A(f"v_mov_b32 v{T+2}, 0x80000000")
            A(f"s_movk_i32 s{sT2}, 2048"); A(f"v_cmp_gt_u32 vcc, s{sT2}, v{T}")
            A.nop(2)
            A(f"v_cndmask_b32 v{dst}, v{T+2}, v{T+1}, vcc")
        vW0, vW1 = T+52, T+53
        A(f"s_lshl_b32 s{sT0}, s{sCG}, 15"); A(f"v_add_u32 v{vW0}, s{sT0}, v{vTRC0}"); A(f"v_add_u32 v{vW1}, s{sT0}, v{vTRC1}")

    def p2(self):
        A = self.A
        T = vT
        vA, vB = T+50, T+51
        vW0, vW1 = T+52, T+53
        A(f"s_lshl_b32 s{sAS}, s{sCG}, 14"); A(f"s_add_u32 s{sAS}, s{sAS}, {WS_H}")
        A(f"s_add_u32 s{sAE}, s{sAS}, 8192"); A(f"s_lshl_b32 s{sT3}, s{sKR}, 10"); A(f"s_add_u32 s{sT3}, s{sT3}, s{sAS}")
        A.wait(vm=self.pos_w2)
        self.poll_check()
        self.stamp("sync1")
        def act(i):
            r = 128 + 4*i
            if not self.cfg.krot:
                if i % 4 == 0 and i > 0: A(f"s_add_u32 s{sT3}, s{sT3}, 4096")
                A(f"buffer_load_dwordx4 {a(r,4)}, v{vA if i < 8 else vB}, {srd(SRD_WS)}, s{sT3} offen offset:{(i%4)*1024} sc1")
                return r
            if i == 8:
                A(f"s_add_u32 s{sAS}, s{sAS}, 8192"); A(f"s_add_u32 s{sAE}, s{sAE}, 8192")
                A(f"s_lshl_b32 s{sT3}, s{sKR}, 10"); A(f"s_add_u32 s{sT3}, s{sT3}, s{sAS}")
            elif i > 0:
                A(f"s_add_u32 s{sT3}, s{sT3}, 1024"); A(f"s_cmp_eq_u32 s{sT3}, s{sAE}"); A(f"s_cselect_b32 s{sT3}, s{sAS}, s{sT3}")
            A(f"buffer_load_dwordx4 {a(r,4)}, v{vA if i < 8 else vB}, {srd(SRD_WS)}, s{sT3} offen sc1")
            return r
        def window():
            A.auto = self.cfg.auto
            self.qkv_tail(vVP, keep_auto=True)
            A.auto = 0
            self.halo_publish()
            qj = self.job_strip_qkv(0, 0, 32, B0)
            for J in range(4): self.queue(qj[4*J:4*J+4], f"pos_q{J}")
            self.stamp("v tail")
        self.ksplit_gemm(16, (vW0, vW1), lambda i: i*2048, act, True, 0, self.cfg.pdl2, side_rate=1, window=window)
        A("s_barrier")
        self.stamp("p2 main")
        self.pair_reduce(A0 + 51200, pre=lambda: A.wait(vm=self.pos_halo), post=lambda: self.signal(CNT_KV, sRB64, "kv halo"))
        self.fstamp("p2e", "red:done")
        A.auto = self.cfg.auto
        X = T+20
        for j in range(8):
            A(f"v_lshlrev_b32 v{X+2*j}, 16, v{vXRES+j}"); A(f"v_and_b32 v{X+2*j+1}, 0xffff0000, v{vXRES+j}")
        S0, S1 = T+40, T+41
        NM, RR, TT, SA, SB = T+36, T+38, T+42, T+44, T+46
        A(f"v_mov_b32 v{NM}, v{vNMU}"); A(f"v_mov_b32 v{NM+1}, v{vNMU}"); A(f"v_mov_b32 v{RR}, v{vR}"); A(f"v_mov_b32 v{RR+1}, v{vR}")
        for i in range(0, 16, 2):
            A(f"v_pk_add_f32 {v(TT,2)}, {v(X+i,2)}, {v(NM,2)}")
            A(f"v_pk_fma_f32 {v(vACC0+i,2)}, {v(TT,2)}, {v(RR,2)}, {v(vACC0+i,2)}")
            A(f"v_pk_add_f32 {v(vRESID+i,2)}, {v(X+i,2)}, {v(vACC0+i,2)}")
            if i == 0:
                A(f"v_mov_b32 v{SA}, v{vACC0}"); A(f"v_mov_b32 v{SA+1}, v{vACC0+1}")
                A(f"v_pk_mul_f32 {v(SB,2)}, {v(vACC0,2)}, {v(vACC0,2)}")
            else:
                A(f"v_pk_add_f32 {v(SA,2)}, {v(SA,2)}, {v(vACC0+i,2)}")
                A(f"v_pk_fma_f32 {v(SB,2)}, {v(vACC0+i,2)}, {v(vACC0+i,2)}, {v(SB,2)}")
        A(f"v_add_f32 v{S0}, v{SA}, v{SA+1}"); A(f"v_add_f32 v{S1}, v{SB}, v{SB+1}")
        for i in range(8): A(f"v_cvt_pk_bf16_f32 v{X+i}, v{vACC0+2*i}, v{vACC0+2*i+1}")
        self.fstamp("p2e", "epi:math")
        self.frag_dest(sT2, WS_X1)
        self.pstore(f"buffer_store_dwordx4 {v(X,4)}, v{vL16}, {srd(SRD_WS)}, s{sT2} offen sc1")
        self.pstore(f"buffer_store_dwordx4 {v(X+4,4)}, v{vL16}, {srd(SRD_WS)}, s{sT2} offen offset:1024 sc1")
        self.swap_add(S0, T+42); self.swap_add(S1, T+42)
        A(f"s_lshl_b32 s{sT0}, s{sR32L}, 12"); A(f"s_lshl_b32 s{sT1}, s{sC}, 9"); A(f"s_add_u32 s{sT0}, s{sT0}, s{sT1}")
        A(f"s_lshl_b32 s{sT1}, s{sCG}, 8"); A(f"s_add_u32 s{sT0}, s{sT0}, s{sT1}"); A(f"s_add_u32 s{sT0}, s{sT0}, s{sSLAB}"); A(f"s_add_u32 s{sT0}, s{sT0}, {WS_X1S}")
        A(f"v_lshlrev_b32 v{T+42}, 3, v{vM}")
        self.pstore(f"buffer_store_dwordx2 {v(S0,2)}, v{T+42}, {srd(SRD_WS)}, s{sT0} offen sc1")
        self.pos_x1 = A.vm_pos()
        A.auto = 0
        self.fstamp("p2e", "epi:stored")
        self.flush_side()

    def shadow2(self):
        A = self.A
        T = vT
        def hqJ(J):
            A.wait(vm=getattr(self, f"pos_q{J}")); A("s_barrier")
        def hq0():
            hqJ(0)
            self.stamp("hq0")
            self.l2_touch("w4")
            self.queue(self.job_w3(8, 15, A0), "pos_w3a")
        kvcode = self.cnt_addr(CNT_KV, sRB64, -1)
        H = T+44
        def halo_load():
            self.stamp("kv chk>")
            self.poll_check()
            self.stamp("kv chk<")
            A(f"v_mov_b32 v{H}, 0"); A(f"v_mov_b32 v{H+1}, 0"); A(f"v_mov_b32 v{H+2}, 0"); A(f"v_mov_b32 v{H+3}, 0")
            l = A.newlabel("nohalo")
            A(f"s_cmp_eq_u32 s{sRB64}, 0"); A(f"s_cbranch_scc1 {l}")
            A(f"s_add_u32 s{sT1}, s{sRB64}, -1"); A(f"s_and_b32 s{sT0}, s{sT1}, 3"); A(f"s_lshl_b32 s{sT0}, s{sT0}, 3"); A(f"s_add_u32 s{sT0}, s{sT0}, s{sC}")
            A(f"s_lshl_b32 s{sT0}, s{sT0}, 12"); A(f"s_lshr_b32 s{sT1}, s{sT1}, 2"); A(f"s_lshl_b32 s{sT1}, s{sT1}, {SLAB_SH}")
            A(f"s_add_u32 s{sT0}, s{sT0}, s{sT1}"); A(f"s_add_u32 s{sT0}, s{sT0}, {WS_KV}")
            A(f"v_lshlrev_b32 v{T+48}, 4, v0")
            A.opt(f"buffer_load_dwordx4 {v(H,4)}, v{T+48}, {srd(SRD_WS)}, s{sT0} offen sc1")
            A.label(l)
            self.pos_hl = A.vm_pos()
        self.qkv_main(lambda s: B0 + s*2048, {0: hq0, 8: lambda: hqJ(1), 16: lambda: hqJ(2), 24: lambda: hqJ(3)}, side_rate=2,
                      mid={self.cfg.kvpoll_at: lambda: self.poll_issue(kvcode, 1, 8, "kv halo"), self.cfg.kvchk_at: halo_load})
        self.flush_side()
        self.stamp("q loop")
        A.wait(vm=self.pos_x1)
        A("s_barrier")
        self.stamp("x1 drained")
        self.signal(CNT_X1, sRB128, "x1")
        self.queue(self.job_strip(SRD_WO, 0, 64, B0), "pos_wo")
        self.qkv_tail(vQP)
        self.stamp("q done")
        pos_hl = self.pos_hl
        KV = A0 + 46080
        vKA = T
        A(f"s_lshl_b32 s{sT0}, s{sCG}, 1"); A(f"v_add_u32 v{T+1}, s{sT0}, v{vH}")
        A(f"v_mul_u32_u24 v{T+1}, 2560, v{T+1}")
        A(f"s_lshl_b32 s{sT0}, s{sRBK}, 5"); A(f"s_add_u32 s{sT0}, s{sT0}, 16"); A(f"v_add_u32 v{T+2}, s{sT0}, v{vM}")
        A(f"v_lshl_add_u32 v{vKA}, v{T+2}, 4, v{T+1}"); A(f"v_add_u32 v{vKA}, {KV}, v{vKA}")
        A(f"ds_write_b128 v{vKA}, {v(vKP,4)}"); A(f"ds_write_b128 v{vKA}, {v(vKP+4,4)} offset:1280")
        A(f"ds_write_b128 v{vKA}, {v(vVP,4)} offset:10240"); A(f"ds_write_b128 v{vKA}, {v(vVP+4,4)} offset:11520")
        A.wait(vm=pos_hl)
        A(f"v_lshrrev_b32 v{T+8}, 4, v0"); A(f"v_mul_u32_u24 v{T+8}, 1280, v{T+8}")
        A(f"v_and_b32 v{T+9}, 15, v0"); A(f"v_lshl_add_u32 v{T+8}, v{T+9}, 4, v{T+8}"); A(f"v_add_u32 v{T+8}, {KV}, v{T+8}")
        A(f"ds_write_b128 v{T+8}, {v(H,4)}")
        A.wait_all_lg()
        A("s_barrier")
        A.auto = self.cfg.auto
        self.stamp("kv staged")
        Q = vQP
        KB = vRING
        LG = T+12
        A(f"v_subrev_u32 v{T+10}, {14*16}, v{vKA}")
        for w in range(8):
            off = (14 - 2*w) * 16
            A(f"ds_read_b128 {v(KB+8*w,4)}, v{T+10} offset:{off}")
            A(f"ds_read_b128 {v(KB+8*w+4,4)}, v{T+10} offset:{off+1280}")
        base_lg = A.lg_pos() - 16
        for w in range(8): A(f"v_mov_b32 v{LG+w}, 0")
        for w in range(8):
            A.wait(lg=base_lg + 2*(w+1))
            for i in range(8): A(f"v_dot2c_f32_bf16 v{LG+w}, v{Q+i}, v{KB+8*w+i}")
        self.fstamp("at", "at:qk")
        au = A.auto; A.auto = 0
        self.poll_issue(self.cnt_addr(CNT_X1, sRB128), 1, 16, "x1")
        A.auto = au
        A.nop(3)
        for w in range(8):
            off = (14 - 2*w) * 16
            A(f"ds_read_b128 {v(KB+8*w,4)}, v{T+10} offset:{off+10240}")
            A(f"ds_read_b128 {v(KB+8*w+4,4)}, v{T+10} offset:{off+11520}")
        base_lg = A.lg_pos() - 16
        l = A.newlabel("nomask")
        A.auto = 0
        A(f"s_cmp_lg_u32 s{sRB64}, 0"); A(f"s_cbranch_scc1 {l}")
        A(f"s_lshl_b32 s{sT0}, s{sRBK}, 5"); A(f"v_add_u32 v{T+11}, s{sT0}, v{vM}")
        A(f"v_mov_b32 v{T+20}, 0xff800000")
        for w in range(1, 8):
            A(f"v_cmp_le_u32 vcc, {2*w}, v{T+11}")
            A.nop(2)
            A(f"v_cndmask_b32 v{LG+w}, v{T+20}, v{LG+w}, vcc")
        A.label(l)
        A.auto = self.cfg.auto
        MX = T+20
        A(f"v_max3_f32 v{MX}, v{LG}, v{LG+1}, v{LG+2}"); A(f"v_max3_f32 v{MX}, v{MX}, v{LG+3}, v{LG+4}")
        A(f"v_max3_f32 v{MX}, v{MX}, v{LG+5}, v{LG+6}"); A(f"v_max_f32 v{MX}, v{MX}, v{LG+7}")
        cs = 0.25 * 1.4426950408889634
        A(f"s_mov_b32 s{sT0}, {fbits(cs)}")
        A(f"v_mul_f32 v{MX}, {fbits(-cs)}, v{MX}")
        for w in range(8): A(f"v_fma_f32 v{LG+w}, v{LG+w}, s{sT0}, v{MX}")
        for w in range(8): A(f"v_exp_f32 v{LG+w}, v{LG+w}")
        SM = T+21
        A(f"v_add_f32 v{SM}, v{LG}, v{LG+1}")
        for w in range(2, 8): A(f"v_add_f32 v{SM}, v{SM}, v{LG+w}")
        A(f"v_rcp_f32 v{SM}, v{SM}")
        A.nop(1)
        for w in range(8): A(f"v_mul_f32 v{LG+w}, v{SM}, v{LG+w}")
        PP = T+22
        for u in range(4): A(f"v_cvt_pk_bf16_f32 v{PP+u}, v{LG+2*u}, v{LG+2*u+1}")
        self.fstamp("at", "at:sm")
        A.auto = 0
        self.flush_side()
        self.p3_bases()
        self.poll_check()
        self.stamp("sync2")
        self.queue_x1_acts()
        A.auto = self.cfg.auto
        O = vACC0
        TP = T+26
        for u in range(4):
            A.wait(lg=base_lg + 4*(u+1))
            va, vb = KB + 16*u, KB + 16*u + 8
            for i in range(8):
                t0, t1 = TP + 2*(i & 1), TP + 2*(i & 1) + 1
                A(f"v_perm_b32 v{t0}, v{vb+i}, v{va+i}, s{sPLO}")
                A(f"v_perm_b32 v{t1}, v{vb+i}, v{va+i}, s{sPHI}")
                if u == 0:
                    A(f"v_dot2_f32_bf16 v{O+2*i}, v{t0}, v{PP+u}, 0"); A(f"v_dot2_f32_bf16 v{O+2*i+1}, v{t1}, v{PP+u}, 0")
                else:
                    A(f"v_dot2c_f32_bf16 v{O+2*i}, v{t0}, v{PP+u}"); A(f"v_dot2c_f32_bf16 v{O+2*i+1}, v{t1}, v{PP+u}")
        A.nop(3)
        self.fstamp("at", "at:pv")
        OP = T+32
        for i in range(8): A(f"v_cvt_pk_bf16_f32 v{OP+i}, v{O+2*i}, v{O+2*i+1}")
        A.nop(2)
        for i in range(4): A(f"v_permlane32_swap_b32 v{OP+i}, v{OP+4+i}")
        self.frag_dest(sT0, WS_O)
        self.pstore(f"buffer_store_dwordx4 {v(OP,4)}, v{vL16}, {srd(SRD_WS)}, s{sT0} offen sc1")
        self.pstore(f"buffer_store_dwordx4 {v(OP+4,4)}, v{vL16}, {srd(SRD_WS)}, s{sT0} offen offset:1024 sc1")
        self.pos_o = A.vm_pos()
        A.auto = 0
        self.fstamp("at", "at:flushed")
        A.wait(vm=self.pos_wo)
        A("s_barrier")
        self.fstamp("at", "at:bar")
        self.emit_groups(self.job_w3(23, 7, A0 + 46080))
        self.pos_w3 = A.vm_pos()
        self.stamp("attn done")

    def c3_pass(self):
        A = self.A
        T = vT
        vLo, vHi = T, T+1
        A(f"s_add_u32 s{sT0}, s{sW}, -1"); A(f"s_mul_i32 s{sT0}, s{sT0}, {8*3072}")
        A(f"s_cmp_eq_u32 s{sW}, 0"); A(f"s_cselect_b32 s{sT0}, {C0}, s{sT0}")
        A(f"s_cmp_eq_u32 s{sW}, 3"); A(f"s_cselect_b32 s{sT1}, {C0 + 2*3072}, s{sT0}")
        A(f"v_add_u32 v{vLo}, s{sT0}, v{vTR3}"); A(f"v_add_u32 v{vHi}, s{sT1}, v{vTR3}")
        CS = T+8
        for i in range(6): A(f"v_mov_b32 v{CS+i}, 0")
        A.auto = self.cfg.auto
        def c3_reads(i):
            for blk in range(3):
                b = vRING + 4*(3*(i % 3) + blk)
                r = vLo if i < 6 else vHi
                A(f"ds_read_b64_tr_b16 {v(b,2)}, v{r} offset:{i*3072 + blk*64}")
                A(f"ds_read_b64_tr_b16 {v(b+2,2)}, v{r} offset:{i*3072 + blk*64+1536}")
            return A.lg_pos()
        cpos = {0: c3_reads(0), 1: c3_reads(1)}
        for i in range(8):
            if i + 2 < 8: cpos[i+2] = c3_reads(i+2)
            A.wait(lg=cpos[i])
            for blk in range(3):
                b = vRING + 4*(3*(i % 3) + blk)
                for r in range(4): A(f"v_dot2c_f32_bf16 v{CS+2*blk+(r&1)}, s{sONES}, v{b+r}")
        A.auto = 0
        A.nop(3)
        SC3 = B0
        for blk in range(3):
            A(f"v_add_f32 v{CS+2*blk}, v{CS+2*blk}, v{CS+2*blk+1}")
            self.swap_add(CS+2*blk, T+4)
        A(f"s_mul_i32 s{sT0}, s{sW}, 384"); A(f"v_lshl_add_u32 v{T+4}, v{vM}, 2, s{sT0}"); A(f"v_add_u32 v{T+4}, {SC3}, v{T+4}")
        for blk in range(3): A(f"ds_write_b32 v{T+4}, v{CS+2*blk} offset:{128*blk}")
        A.wait(vm=self.pos_o)
        A.wait_all_lg()
        A("s_barrier")
        self.signal(CNT_O, sRB64, "o")
        A(f"v_lshlrev_b32 v{T+4}, 2, v{vM}"); A(f"v_add_u32 v{T+4}, {SC3}, v{T+4}")
        for w in range(4):
            for blk in range(3): A(f"ds_read_b32 v{T+16+4*blk+w}, v{T+4} offset:{384*w+128*blk}")
        A(f"v_cmp_gt_u32 vcc, 32, v{vL}")
        A.wait_all_lg()
        self.vC3 = [T+46, T+47, T+48]
        for blk in range(3):
            b = T+16+4*blk
            A(f"v_add_f32 v{b}, v{b}, v{b+1}"); A(f"v_add_f32 v{b+2}, v{b+2}, v{b+3}"); A(f"v_add_f32 v{b}, v{b}, v{b+2}")
            A(f"v_cndmask_b32 v{self.vC3[blk]}, 0, v{b}, vcc")
        A("s_barrier")
        self.stamp("c3 done")

    def job_w3_small(self, s0, ns, lds0):
        return self.job_w3(s0, ns, lds0)

    def w3_addr(self, s):
        if s < 8: return C0 + s*3072
        if s < 30: return A0 + (s-8)*3072
        return C0 + (s-22)*3072

    def p3_bases(self):
        A = self.A
        A(f"s_lshl_b32 s{sP2}, s{sR32P}, 15"); A(f"s_add_u32 s{sP2}, s{sP2}, s{sSLAB}"); A(f"s_add_u32 s{sP2}, s{sP2}, {WS_X1}")
        A(f"s_lshl_b32 s{sP3}, s{sR32P}, 12"); A(f"s_add_u32 s{sP3}, s{sP3}, s{sSLAB}"); A(f"s_add_u32 s{sP3}, s{sP3}, {WS_X1S}")
        A(f"s_mul_i32 s{sP4}, s{sR32P}, {86*1024}"); A(f"s_add_u32 s{sP4}, s{sP4}, s{sSLAB}"); A(f"s_add_u32 s{sP4}, s{sP4}, {WS_G}")
        A(f"s_lshl_b32 s{sT1}, s{sCB0}, 11"); A(f"s_add_u32 s{sP4}, s{sP4}, s{sT1}")

    def queue_x1_acts(self):
        A = self.A
        self.x1_pos = {}
        for i in range(32):
            g = []
            if i % 4 == 0:
                g += [f"s_add_u32 s{sAS}, s{sR3}, {i//4}", f"s_and_b32 s{sAS}, s{sAS}, 7", f"s_lshl_b32 s{sAS}, s{sAS}, 12", f"s_add_u32 s{sAS}, s{sAS}, s{sP2}"]
            g.append(f"buffer_load_dwordx4 {a(4*i,4)}, v{vL16}, {srd(SRD_WS)}, s{sAS} offen offset:{(i%4)*1024} sc1")
            def m(i=i): self.x1_pos[i] = A.vm_pos()
            g.append(m)
            self.side.append(g)

    def p3(self):
        A = self.A
        T = vT
        vA0, vA1 = T+54, T+55
        A(f"s_lshl_b32 s{sT0}, s{sCG}, 15"); A(f"s_add_u32 s{sT0}, s{sT0}, {B0}")
        A(f"v_add_u32 v{vA0}, s{sT0}, v{vTRC0}"); A(f"v_add_u32 v{vA1}, s{sT0}, v{vTRC1}")
        A.auto = self.cfg.auto
        for i in range(16):
            for cb in range(2):
                r = 128 + 8*i + 4*cb
                A(f"ds_read_b64_tr_b16 {a(r,2)}, v{(vA0,vA1)[cb]} offset:{i*2048}")
                A(f"ds_read_b64_tr_b16 {a(r+2,2)}, v{(vA0,vA1)[cb]} offset:{i*2048 + 1024}")
        A.auto = 0
        A.wait(vm=self.pos_w3a)
        A.wait_all_lg()
        A("s_barrier")
        self.stamp("wo->reg")
        apos = self.x1_pos
        A(f"v_lshlrev_b32 v{T+3}, 3, v{vM}"); A(f"v_lshl_add_u32 v{T+3}, v{vH}, 11, v{T+3}")
        for j in range(8):
            A(f"buffer_load_dwordx2 {v(T+20+2*j,2)}, v{T+3}, {srd(SRD_WS)}, s{sP3} offen offset:{256*j} sc1")
        spos = A.vm_pos()
        self.queue(self.job_w4([39, 40, 41, 42], lambda i: B0 + 12*4096 + (i-39)*4096), "pos_tails")
        self.queue(self.job_w4(list(range(0, 12))), "pos_w4b")
        vB = [T, T+1, T+2]
        A(f"v_mov_b32 v{vB[0]}, v{vTR3}"); A(f"v_add_u32 v{vB[1]}, 65536, v{vTR3}"); A(f"v_add_u32 v{vB[2]}, 131072, v{vTR3}")
        CS = T+8
        for i in range(6): A(f"v_mov_b32 v{CS+i}, 0")
        def buf(s, blk): return vRING + 4*(3*(s % 6) + blk)
        def wread(s, blk):
            ad = self.w3_addr(s) + blk*64
            for (k, d) in ((0, 0), (2, 1536)):
                x = ad + d
                A(f"ds_read_b64_tr_b16 {v(buf(s, blk)+k,2)}, v{vB[x // 65536]} offset:{x % 65536}")
        PD = 2
        lgpos = {}
        for s in range(PD):
            for blk in range(3): wread(s, blk)
            lgpos[s] = A.lg_pos()
        for t in range(32):
            s = t + PD
            while t not in apos: self.pump(1)
            if t == 8:
                A.wait(vm=self.pos_o)
                A("s_barrier")
                self.signal(CNT_O, sRB64, "o")
            if t == 19:
                A.wait(vm=self.pos_w3)
                A("s_barrier")
            if t == 22: self.poll_issue(self.cnt_addr(CNT_O, sRB64), 1, 8, "o")
            A.wait(vm=apos[t], lg=lgpos[t])
            if t in (0, 8, 16, 24): self.fstamp("p4", f"p3:t{t}")
            for blk in range(3):
                acc = (vACC0, vACC1, vACC2)[blk]
                c = "0" if t == 0 else v(acc, 16)
                A(f"v_mfma_f32_32x32x16_bf16 {v(acc,16)}, {v(buf(t, blk),4)}, {a(4*t,4)}, {c}")
                if s < 32: wread(s, blk)
            if s < 32: lgpos[s] = A.lg_pos()
            self.pump(1)
            if t % 4 == 3:
                l = A.newlabel("cb")
                A(f"s_cmp_lg_u32 s{sW}, {t >> 3}"); A(f"s_cbranch_scc1 {l}")
                for tt in range(t - 3, t + 1):
                    for blk in range(3):
                        for r in range(4): A(f"v_dot2c_f32_bf16 v{CS+2*blk+(r&1)}, s{sONES}, v{buf(tt, blk)+r}")
                A.label(l)
        self.fstamp("p3", "pass1<")
        self.flush_side()
        SC3 = C0
        A.nop(3)
        for blk in range(3):
            A(f"v_add_f32 v{CS+2*blk}, v{CS+2*blk}, v{CS+2*blk+1}")
            self.swap_add(CS+2*blk, T+4)
        A(f"s_mul_i32 s{sT0}, s{sW}, 384"); A(f"v_lshl_add_u32 v{T+4}, v{vM}, 2, s{sT0}"); A(f"v_add_u32 v{T+4}, {SC3}, v{T+4}")
        for blk in range(3): A(f"ds_write_b32 v{T+4}, v{CS+2*blk} offset:{128*blk}")
        A.wait(vm=spos)
        S0, S1 = T+20, T+21
        for j in range(1, 8):
            A(f"v_add_f32 v{S0}, v{S0}, v{T+20+2*j}"); A(f"v_add_f32 v{S1}, v{S1}, v{T+21+2*j}")
        self.swap_add(S0, T+7); self.swap_add(S1, T+7)
        NMU1, R1 = T+5, T+6
        A(f"v_mul_f32 v{S0}, {fbits(1/512)}, v{S0}"); A(f"v_mul_f32 v{S1}, {fbits(1/512)}, v{S1}")
        A(f"v_sub_f32 v{NMU1}, 0, v{S0}"); A(f"v_fma_f32 v{S1}, v{NMU1}, v{S0}, v{S1}"); A(f"v_max_f32 v{S1}, 0, v{S1}")
        A(f"v_add_f32 v{S1}, {fbits(1e-5)}, v{S1}"); A(f"v_rsq_f32 v{R1}, v{S1}")
        A.wait(vm=self.pos_tails)
        A.wait_all_lg()
        self.poll_check()
        self.stamp("p3 main")
        A(f"v_lshlrev_b32 v{T+4}, 2, v{vM}"); A(f"v_add_u32 v{T+4}, {SC3}, v{T+4}")
        for w in range(4):
            for blk in range(3): A(f"ds_read_b32 v{T+16+4*blk+w}, v{T+4} offset:{384*w+128*blk}")
        A(f"v_cmp_gt_u32 vcc, 32, v{vL}")
        A(f"s_lshl_b32 s{sOA}, s{sR32L}, 15"); A(f"s_lshl_b32 s{sT1}, s{sCG}, 14"); A(f"s_add_u32 s{sOA}, s{sOA}, s{sT1}")
        A(f"s_add_u32 s{sOA}, s{sOA}, s{sSLAB}"); A(f"s_add_u32 s{sOA}, s{sOA}, {WS_O}")
        self.o_acts = {}; self.o_pos = {}
        A(f"s_mov_b32 s{sAS}, s{sOA}"); A(f"s_add_u32 s{sAE}, s{sOA}, 16384")
        A(f"s_lshl_b32 s{sT1}, s{sKR}, 11"); A(f"s_and_b32 s{sT1}, s{sT1}, 16383"); A(f"s_add_u32 s{sOA}, s{sOA}, s{sT1}")
        for i in range(16):
            g = []
            if not self.cfg.krot:
                if i % 4 == 0 and i > 0: g.append(f"s_add_u32 s{sOA}, s{sOA}, 4096")
                g.append(f"buffer_load_dwordx4 {a(4*i,4)}, v{vL16}, {srd(SRD_WS)}, s{sOA} offen offset:{(i%4)*1024} sc1")
            else:
                if i > 0: g += [f"s_add_u32 s{sOA}, s{sOA}, 1024", f"s_cmp_eq_u32 s{sOA}, s{sAE}", f"s_cselect_b32 s{sOA}, s{sAS}, s{sOA}"]
                g.append(f"buffer_load_dwordx4 {a(4*i,4)}, v{vL16}, {srd(SRD_WS)}, s{sOA} offen sc1")
            def m(i=i):
                self.o_acts[i] = 4*i; self.o_pos[i] = A.vm_pos()
            g.append(m)
            self.side.append(g)
        ne = self.cfg.w4_in_ge
        if ne: self.queue(self.job_w4(list(range(12, 12 + ne))))
        A.wait_all_lg()
        self.vC3 = [T+46, T+47, T+48]
        for blk in range(3):
            b = T+16+4*blk
            A(f"v_add_f32 v{b}, v{b}, v{b+1}"); A(f"v_add_f32 v{b+2}, v{b+2}, v{b+3}"); A(f"v_add_f32 v{b}, v{b}, v{b+2}")
            A(f"v_cndmask_b32 v{self.vC3[blk]}, 0, v{b}, vcc")
        A.nop(2)
        A(f"v_mfma_f32_32x32x2_f32 {v(vACC0,16)}, v{self.vC3[0]}, v{NMU1}, {v(vACC0,16)}")
        mk0 = A.mark()
        A(f"v_mfma_f32_32x32x2_f32 {v(vACC1,16)}, v{self.vC3[1]}, v{NMU1}, {v(vACC1,16)}")
        A(f"v_mfma_f32_32x32x2_f32 {v(vACC2,16)}, v{self.vC3[2]}, v{NMU1}, {v(vACC2,16)}")
        GK = self.gelu_consts(R1, T+34)
        self.pump(3)
        A.pad(mk0, 19)
        self.fstamp("ge", "g:start")
        self.pos_g = {}
        for blk in range(3):
            acc = (vACC0, vACC1, vACC2)[blk]
            if blk == 2:
                lskip3 = A.newlabel("nog2")
                A(f"s_cmp_lt_u32 s{sNBLK}, 3"); A(f"s_cbranch_scc1 {lskip3}")
            else:
                A.auto = self.cfg.auto_g
            self.gelu_body(acc, GK)
            A.auto = 0
            if blk < 2: self.fstamp("ge", f"g:blk{blk}")
            i1 = f"buffer_store_dwordx4 {v(acc,4)}, v{vL16}, {srd(SRD_WS)}, s{sP4} offen offset:{blk*2048 % 4096} sc1"
            i2 = f"buffer_store_dwordx4 {v(acc+4,4)}, v{vL16}, {srd(SRD_WS)}, s{sP4} offen offset:{blk*2048 % 4096 + 1024} sc1"
            if blk == 2:
                A(f"s_add_u32 s{sP4}, s{sP4}, 4096")
                self.pstore(i1, opt=True); self.pstore(i2, opt=True)
                A.label(lskip3)
            else:
                self.pstore(i1); self.pstore(i2)
            self.pos_g[blk] = A.vm_pos()
        vA0, vA1 = T+54, T+55
        A(f"s_lshl_b32 s{sT0}, s{sCG}, 11"); A(f"v_add_u32 v{vA0}, s{sT0}, v{vTRC0}"); A(f"v_add_u32 v{vA1}, s{sT0}, v{vTRC1}")
        A(f"v_add_u32 v{T+52}, {B0 + 12*4096}, v{vA0}"); A(f"v_add_u32 v{T+53}, {B0 + 12*4096}, v{vA1}")
        for i in range(4):
            for cb in range(2):
                r = 96 + 8*i + 4*cb
                A(f"ds_read_b64_tr_b16 {v(r,2)}, v{T+52+cb} offset:{i*4096}")
                A(f"ds_read_b64_tr_b16 {v(r+2,2)}, v{T+52+cb} offset:{i*4096 + 1024}")
        self.queue(self.job_w4(list(range(12 + ne, 28))), "pos_w4a")
        self.w4c_job = self.job_w4(list(range(28, 35)))

    def job_w4(self, slots, lds_of=None):
        lds_of = lds_of or self.w4_slot
        groups = []
        for J in range((len(slots) + 3)//4):
            rd = [slots[min(4*J + w, len(slots) - 1)] for w in range(4)]
            cb = [CB4[i] for i in rd]; ld = [lds_of(i) for i in rd]
            dc = cb[1] - cb[0]; dl = ld[1] - ld[0]
            affine = all(cb[w] == cb[0] + w*dc and ld[w] == ld[0] + w*dl for w in range(4)) and dl == 4096 and dc in (2, 3)
            if affine:
                pre = [f"s_add_u32 m0, s{sW4K}, {ld[0]}", f"s_add_u32 s{sG}, s{sW4S[dc]}, {cb[0]*32768}"]
            else:
                pre = [f"s_mov_b32 s{sD0}, {cb[0]*32768}", f"s_mov_b32 s{sD1}, {ld[0]}"]
                for w in range(1, 4):
                    if cb[w] == cb[w-1] and ld[w] == ld[w-1] and all(cb[x] == cb[w] for x in range(w, 4)) and w > 1 and False: continue
                    pre += [f"s_cmp_ge_u32 s{sW}, {w}", f"s_cselect_b32 s{sD0}, {cb[w]*32768}, s{sD0}", f"s_cselect_b32 s{sD1}, {ld[w]}, s{sD1}"]
                pre += [f"s_mov_b32 m0, s{sD1}", f"s_lshl_b32 s{sG}, s{sC}, 7", f"s_add_u32 s{sG}, s{sG}, s{sD0}"]
            groups += self.quad(pre, SRD_W4, vSTRJ)
        return groups

    def w4_slot(self, i):
        if i < 12: return B0 + i*4096
        if i < 28: return A0 + (i-12)*4096
        if i < 35: return C0 + (i-28)*4096
        return B0 + 12*4096 + (i-35)*4096

    def p4(self):
        A = self.A
        T = vT
        vA0, vA1 = T+54, T+55
        A(f"s_mul_i32 s{sT4}, s{sR32L}, {86*1024}"); A(f"s_lshl_b32 s{sT1}, s{sCG}, 10"); A(f"s_add_u32 s{sT4}, s{sT4}, s{sT1}")
        A(f"s_add_u32 s{sT4}, s{sT4}, s{sSLAB}"); A(f"s_add_u32 s{sAS}, s{sT4}, {WS_G}")
        def gsig(b, extra_lg=False):
            A.wait(vm=self.pos_g[b])
            if extra_lg: A.wait_all_lg()
            A("s_barrier")
            self.signal(CNT_G + 2*b, sRB128, f"g{b}")
        gsig(0, extra_lg=True)
        self.stamp("g0 sig")
        self.queue(self.w4c_job, "pos_w4e")
        self.queue(self.job_w4([35, 36, 37, 38]), "pos_w4l")
        while len(self.o_pos) < 16: self.pump(1)
        def mid8(): gsig(1)
        def mid12(): self.poll_issue(self.cnt_addr(CNT_G, sRB128), 1, 16, "g0")
        self.ksplit_gemm(16, None, lambda i: None, None, True, 0, 16, side_rate=1, pre=(self.o_acts, self.o_pos),
                         tail=lambda i: (128 + 8*i, 128 + 8*i + 4), mid={self.cfg.g1sig_at: mid8, 13: mid12})
        self.stamp("wo done")
        gsig(2)
        self.stamp("g drained")
        self.flush_side()
        vb = {}
        for win in range(3):
            for cb in range(2):
                r = T + 44 + 2*win + cb
                A(f"v_add_u32 v{r}, {win*65536}, v{(vA0,vA1)[cb]}")
                vb[(win, cb)] = r
        A.wait(vm=self.pos_w4b)
        self.poll_check()
        self.stamp("sync3")
        self.poll_issue(self.cnt_addr(CNT_G + 2, sRB128), 1, 16, "g1")
        acts = {}; apos = {}
        def act_g(i):
            if i == 16:
                self.poll_check()
                self.poll_issue(self.cnt_addr(CNT_G + 4, sRB128), 1, 16, "g2")
            if i == 32: self.poll_check()
            A(f"s_add_u32 s{sT4}, s{sAS}, {CB4[i]*2048}")
            r = 4*(i % 32)
            A(f"buffer_load_dwordx4 {a(r,4)}, v{vL16}, {srd(SRD_WS)}, s{sT4} offen sc1")
            acts[i] = r; apos[i] = A.vm_pos()
        PDL = self.cfg.pdl4; PD = 2; N = 43
        for i in range(PDL): act_g(i)
        lgpos = {}
        def w4reads(s, cb):
            if s >= 39: return
            ad = self.w4_slot(s)
            b = vRING + 4*(2*(s % 4) + cb)
            for (k, d) in ((0, 0), (2, 1024)):
                x = ad + d
                A(f"ds_read_b64_tr_b16 {v(b+k,2)}, v{vb[(x // 65536, cb)]} offset:{x % 65536}")
        for s in range(PD):
            w4reads(s, 0); w4reads(s, 1); lgpos[s] = A.lg_pos()
        for t in range(N):
            s = t + PD
            if s == 12:
                A("s_barrier")
            A.wait(vm=apos[t], lg=lgpos[t] if t < 39 else None)
            if t in (0, 8, 16, 24, 32, 40): self.fstamp("p4", f"p4:t{t}")
            for cb in range(2):
                acc = (vACC0, vACC1)[cb]
                wa = v(vRING + 4*(2*(t % 4) + cb), 4) if t < 39 else v(96 + 8*(t-39) + 4*cb, 4)
                A(f"v_mfma_f32_32x32x16_bf16 {v(acc,16)}, {wa}, {a(acts[t],4)}, {v(acc,16)}")
                if s < N: w4reads(s, cb)
            if s < N: lgpos[s] = A.lg_pos()
            if t + PDL < N: act_g(t + PDL)
        A("s_barrier")
        self.stamp("p4 main")
        self.pair_reduce(A0)
        for i in range(16): A(f"v_add_f32 v{vACC0+i}, v{vACC0+i}, v{vRESID+i}")
        P = T+24
        for i in range(8): A(f"v_cvt_pk_bf16_f32 v{P+i}, v{vACC0+2*i}, v{vACC0+2*i+1}")
        A.nop(2)
        for (x, y) in ((0, 2), (1, 3), (4, 6), (5, 7)):
            A(f"v_permlane32_swap_b32 v{P+x}, v{P+y}")
        A(f"s_lshl_b32 s{sT0}, s{sRB64}, 6"); A(f"s_lshl_b32 s{sT1}, s{sRBK}, 5"); A(f"s_add_u32 s{sT0}, s{sT0}, s{sT1}")
        A(f"v_add_u32 v{T}, s{sT0}, v{vM}"); A(f"v_lshlrev_b32 v{T}, 10, v{T}"); A(f"v_lshl_add_u32 v{T}, v{vH}, 4, v{T}")
        A(f"s_lshl_b32 s{sT0}, s{sC}, 7"); A(f"s_lshl_b32 s{sT1}, s{sCG}, 6"); A(f"s_add_u32 s{sT0}, s{sT0}, s{sT1}")
        fl = {0: "", 1: " sc1", 2: " sc0 sc1", 3: " nt"}[self.cfg.out_mode]
        A(f"buffer_store_dwordx4 {v(P,4)}, v{T}, {srd(SRD_OUT)}, s{sT0} offen{fl}")
        A(f"buffer_store_dwordx4 {v(P+4,4)}, v{T}, {srd(SRD_OUT)}, s{sT0} offen offset:32{fl}")
        self.stamp("stored")

    def build(self):
        A = self.A
        stop = self.cfg.stop_after
        self.prologue()
        self.t0_dma()
        self.setup2()
        self.stamp("setup2")
        self.t0_dma2()
        self.stamp("start")
        self.p1_h(); self.stamp("h main")
        self.p1_h_finish(); self.stamp("h pub")
        if stop != "h":
            self.shadow1(); self.stamp("kv pub")
            if stop != "kv":
                self.p2(); self.stamp("x1 pub")
                if stop != "x1":
                    self.shadow2()
                    if stop != "o":
                        self.p3(); self.stamp("g pub")
                        if stop != "g":
                            self.p4()
        self.flush_side()
        if self.cfg.final_wait or self.cfg.stamps: A("s_waitcnt vmcnt(0)")
        self.stamp("end")
        self.stamp_end()
        A.label("L_end")
        A("s_endpgm")
        return A

HEADER = """; Fused persistent kernel: x + attn(LN x) + mixer(LN x).  256 workgroups (one per CU), 4 waves each.
; @launch grid=(256,1,1) block=(256,1,1) lds=163840
.amdgcn_target "amdgcn-amd-amdhsa--gfx950"
.text
.globl {name}
.p2align 8
.type {name},@function
{name}:
"""
FOOTER = """
.section .rodata,"a"
.p2align 6
.amdhsa_kernel {name}
  .amdhsa_next_free_vgpr 512
  .amdhsa_next_free_sgpr 102
  .amdhsa_accum_offset 256
  .amdhsa_group_segment_fixed_size 0
  .amdhsa_kernarg_size 88
  .amdhsa_user_sgpr_count 2
  .amdhsa_user_sgpr_kernarg_segment_ptr 1
  .amdhsa_system_sgpr_workgroup_id_x 1
.end_amdhsa_kernel
"""

def generate(cfg):
    k = K(cfg)
    A = k.build()
    if cfg.nodma:
        keep = (srd(SRD_X), srd(SRD_W1))
        A.lines = [l for l in A.lines if not (l.endswith(" lds") and "buffer_load" in l and not any(k_ in l for k_ in keep))]
    if cfg.dma_flag:
        fl = cfg.dma_flag.replace("+", " ")
        A.lines = [l[:-4] + f" {fl} lds" if (l.endswith(" lds") and "buffer_load" in l and srd(SRD_X) not in l) else l for l in A.lines]
    probs = check_hazards(A.lines)
    generate.names = k.stamp_names
    return HEADER.format(name=NAME) + A.text() + FOOTER.format(name=NAME), probs

if __name__ == "__main__":
    cfg = Cfg()
    out = sys.argv[1] if len(sys.argv) > 1 else "parallel_sum__sliding_local_dilated__mixer_s_mlp__prompt.s"
    for arg in sys.argv[2:]:
        k, val = arg.split("=")
        setattr(cfg, k, {"True": True, "False": False, "None": None}.get(val, int(val) if val.isdigit() else val))
    txt, probs = generate(cfg)
    for p in probs: print("HAZARD:", p)
    open(out, "w").write(txt)
    print("wrote", out, len(txt), "bytes;", txt.count("\n"), "lines;", len(probs), "hazards")
```

```python
import sys, os
from asmlib import Asm, check_hazards

NAME = "parallel_sum__sliding_local_dilated__mixer_s_mlp__prompt_kernel"

class Cfg:
    stamps = False
    stop_after = None
    spin_limit = 400000
    dbgtime = False
    wallonly = False
    fine = None
    pre_chunks = 3
    preA = 2
    touch = 1
    hpoll_at = 26
    auto = 64
    cost_w3 = 96
    pdl2 = 8
    pdl3 = 22
    pdl4 = 10
    kvchk_at = 24
    kvpoll_at = 10
    auto_g = 48
    w4_in_ge = 8
    w4_before_sig = 8
    early_kv = 1
    w2_in_k = 0
    rot = 1
    hpump = 2
    auto_h = 64
    hflush = 0
    wgxor = 0
    g1sig_at = 12
    code0 = 48
    map2d = 1
    wo_in_drain = 0
    tlb1 = 0
    tlb1_wave = 0
    nodma = 0
    dma_flag = ""
    out_mode = 3
    final_wait = 0
    dstore = 0
    krot = 0
    ftswap = 1
    cxor = 0
    chunkstamps = 0
    touch_mode = "late"
    stouch = 0
    l2touch = ""
    mallt = 1
    stouch_wave = 1
    early_touch = 0

SLAB_SH = 21
WS_H    = 0x000000
WS_O    = 0x040000
WS_X1   = 0x080000
WS_G    = 0x0C0000
WS_X1S  = 0x170000
WS_KV   = 0x180000
WS_CNT  = 0x1A0000
WS_IDLE = 0x1F0000
CNT_H, CNT_KV, CNT_X1, CNT_O, CNT_G = 0, 4, 8, 12, 16
CNT_STRIDE = 256
WS_STAMP= 0x1000000
WS_SIZE = 0x1100000

A0 = 0
B0 = 67584
C0 = 133120
SCR1 = 160768
LDS_TOTAL = 163840

sW, sRBK, sCG = 3, 4, 5
sRB64, sC, sRB128, sFT = 6, 7, 8, 9
SRD_X, SRD_WQKV, SRD_WO, SRD_W1, SRD_W2, SRD_W3, SRD_W4, SRD_OUT, SRD_WS, SRD_DBG = 40, 44, 48, 52, 56, 60, 64, 68, 72, 76
sONES, sPLO, sPHI = 80, 81, 82
sG, sG2, sT0, sT1, sT2, sT3 = 83, 84, 85, 86, 87, 88
sCB0, sNBLK = 89, 90
sSPIN = 91
sSTAMP = 22
sEXS = 94
sT4, sT5 = 96, 97
sXG, sW1G, sWL = 10, 11, 38
sD0, sD1 = 39, 92
sP2, sP3, sP4 = 16, 17, 18
sSLAB, sR32L, sR32P = 19, 20, 21
sBW, sRW2, sRWO, sR3, sR3W, sW3L, sBW4, sG4E, sAS, sAE = 27, 28, 29, 30, 31, 32, 33, 34, 35, 36
sKR = 37
sW4K = 12
sW4S = {3: 33, 2: 34}
sXSLOT = 26
sOA = 93
sROT = 14
sROT8 = 15
sRT0, sCY0 = 98, 100
vST = 253

def srd(n): return f"s[{n}:{n+3}]"

vL, vM, vH, vL16 = 1, 2, 3, 4
vSTR, vSTRQ = 5, 6
vW3 = (7, 8, 9)
vTRN, vTRC0, vTRC1, vTR3 = 10, 11, 12, 13
vNMU, vR = 14, 15
vXRES = 16
vRESID = 24
vKP, vVP, vQP = 40, 48, 56
vRING = 64
vSTRJ = (5, 136, 137, 138)
vS4J = (5, 136, 139, 140)
vSTRQJ = (6, 141, 142, 143)
vX2 = 179
vACC0, vACC1, vACC2 = 144, 160, 176
vT = 192

def v(i, n=1): return f"v{i}" if n == 1 else f"v[{i}:{i+n-1}]"
def a(i, n=1): return f"a{i}" if n == 1 else f"a[{i}:{i+n-1}]"

C0G = -2.0 * 0.7978845608028654 * 1.4426950408889634
C1G = C0G * 0.044715
import struct
def fbits(x): return "0x%08x" % struct.unpack("<I", struct.pack("<f", x))[0]

CB4 = [3*i if i <= 11 else 33 + 2*(i - 11) for i in range(16)] + [3*j + 1 if j <= 11 else 34 + 2*(j - 11) for j in range(16)] + [3*j + 2 for j in range(11)]
assert sorted(CB4) == list(range(43))

class K:
    def __init__(self, cfg):
        self.cfg = cfg
        self.A = Asm()
        self.side = []
        self.nstamp = 0
        self.stamp_names = []
        self.kA_queued = False
        self.A.pump_cb = self.paced_pump
        self.credit = 0

    def pump(self, n=1):
        for _ in range(n):
            if self.side:
                g = self.side.pop(0)
                for ins in g:
                    if callable(ins): ins()
                    else: self.A(ins)

    def group_cost(self, g):
        for x in g:
            if isinstance(x, str) and x.startswith("buffer_load") and srd(SRD_W3) in x: return self.cfg.cost_w3
        return self.cfg.auto

    def paced_pump(self, cost):
        if self.side and cost >= self.group_cost(self.side[0]):
            self.pump(1)
            return True
        return False

    def tick(self, cycles):
        self.credit += cycles
        while self.side and self.credit >= self.group_cost(self.side[0]):
            self.credit -= self.group_cost(self.side[0])
            self.pump(1)
        if not self.side: self.credit = min(self.credit, self.cfg.auto)

    def queue(self, groups, mark=None):
        groups = [list(g) for g in groups]
        if mark:
            def m(mark=mark): setattr(self, mark, self.A.vm_pos())
            groups[-1].append(m)
        self.side += groups

    def pstore(self, text, opt=False):
        A = self.A
        f = A.opt if opt else A
        f(text)
        if self.cfg.dstore: f(text.replace(" sc1", ""))

    def flush_side(self):
        self.pump(len(self.side))

    def stamp(self, name):
        if not self.cfg.stamps: return
        if self.cfg.wallonly and name != "end": return
        if self.cfg.fine and name in ("kernarg", "touched", "preA", "setup2", "start", "hk0", "hk12>", "hk12<", "hv0", "hq0", "v loop", "kv chk>", "kv chk<", "h drained", "x1 drained", "g drained"): return
        A = self.A
        i = self.nstamp; self.nstamp += 1
        self.stamp_names.append(name)
        cur = sSTAMP + 2*(i & 1); prev = sSTAMP + 2*((i+1) & 1)
        if i > 0: A(f"v_writelane_b32 v{vST}, s{prev}, {i-1}")
        A(f"s_memtime s[{cur}:{cur+1}]")

    def fstamp(self, region, name):
        if self.cfg.fine == region: self.stamp(name)

    def stamp_end(self):
        A = self.A
        if self.cfg.stamps:
            i = self.nstamp
            prev = sSTAMP + 2*((i+1) & 1)
            A("s_waitcnt lgkmcnt(0)")
            A(f"v_writelane_b32 v{vST}, s{prev}, {i-1}")
            A(f"s_memrealtime s[{sSTAMP}:{sSTAMP+1}]")
            A("s_waitcnt lgkmcnt(0)")
            A(f"v_writelane_b32 v{vST}, s{sSTAMP}, 62")
            A(f"v_writelane_b32 v{vST}, s{sRT0}, 61")
            A(f"v_writelane_b32 v{vST}, s{sCY0}, 60")
            A(f"s_lshl_b32 s{sT5}, s2, 2"); A(f"s_add_u32 s{sT5}, s{sT5}, s{sW}"); A(f"s_lshl_b32 s{sT5}, s{sT5}, 8")
            A(f"s_add_u32 s{sT5}, s{sT5}, {WS_STAMP}")
            A(f"v_lshlrev_b32 v254, 2, v{vL}")
            A(f"buffer_store_dword v{vST}, v254, {srd(SRD_WS)}, s{sT5} offen")
        if self.cfg.dbgtime:
            l = A.newlabel("dt")
            A("s_cmp_ge_u32 s2, 7"); A(f"s_cbranch_scc1 {l}")
            A(f"s_cmp_lg_u32 s{sW}, 0"); A(f"s_cbranch_scc1 {l}")
            A(f"s_memrealtime s[{sSTAMP}:{sSTAMP+1}]"); A(f"s_memtime s[{sSTAMP+2}:{sSTAMP+3}]")
            A("s_waitcnt lgkmcnt(0)")
            A(f"s_sub_u32 s{sT0}, s{sSTAMP}, s{sRT0}"); A(f"s_sub_u32 s{sT1}, s{sSTAMP+2}, s{sCY0}")
            A(f"v_mov_b32 v250, s{sT0}"); A(f"v_mov_b32 v251, s{sT1}")
            A(f"s_lshl_b32 s{sT0}, s2, 3"); A(f"s_add_u32 s{sT0}, s{sT0}, 8"); A(f"v_mov_b32 v252, s{sT0}")
            A("s_mov_b64 exec, 1")
            A(f"buffer_store_dwordx2 v[250:251], v252, {srd(SRD_DBG)}, 0 offen")
            A.label(l)

    def dma_units(self, srdn, vregs, gbase_code, gstep, lds0, n, lstep=None):
        m = len(vregs)
        if lstep is None: lstep = 1024 * m
        assert n >= 4
        groups = []
        rounds = (n + 3) // 4
        for j in range(rounds):
            if j == 0:
                g = list(gbase_code)
                g += [f"s_mul_i32 s{sD0}, s{sW}, {lstep}", f"s_add_u32 m0, s{sD0}, {lds0}",
                      f"s_mul_i32 s{sD0}, s{sW}, {gstep}", f"s_add_u32 s{sG}, s{sG2}, s{sD0}"]
            elif 4 * j + 3 < n:
                g = [f"s_add_u32 m0, m0, {4*lstep - (m-1)*1024}", f"s_add_u32 s{sG}, s{sG}, {4*gstep}"]
            else:
                g = [f"s_add_u32 s{sD0}, s{sW}, {4*j}", f"s_min_u32 s{sD0}, s{sD0}, {n-1}",
                     f"s_mul_i32 s{sD1}, s{sD0}, {lstep}", f"s_add_u32 m0, s{sD1}, {lds0}",
                     f"s_mul_i32 s{sD1}, s{sD0}, {gstep}", f"s_add_u32 s{sG}, s{sG2}, s{sD1}"]
            for i, vr in enumerate(vregs):
                if i > 0:
                    groups.append(g)
                    g = ["s_add_u32 m0, m0, 1024", "s_nop 0"]
                g = g + [f"buffer_load_dwordx4 v{vr}, {srd(srdn)}, s{sG} offen lds"]
            groups.append(g)
        return groups

    def poll_issue(self, addr_code, nl, target, what):
        A = self.A
        skip = A.newlabel("piskip")
        A(f"s_cmp_lg_u32 s{sW}, 3"); A(f"s_cbranch_scc1 {skip}")
        for ins in addr_code: A(ins)
        A(f"v_mov_b32 v251, {target}")
        A(f"s_mov_b64 s[{sEXS}:{sEXS+1}], exec"); A(f"s_mov_b64 exec, {(1 << nl) - 1}")
        A.opt(f"buffer_load_dword v252, v250, {srd(SRD_WS)}, 0 offen sc1")
        A(f"s_mov_b64 exec, s[{sEXS}:{sEXS+1}]")
        A.label(skip)
        self.poll_state = (nl, A.vm_pos(), what)

    def poll_check(self, srdn=None):
        A = self.A
        nl, pos, what = self.poll_state
        skip = A.newlabel("pskip"); loop = A.newlabel("ploop"); done = A.newlabel("pdone"); chk = A.newlabel("pchk")
        A(f"s_cmp_lg_u32 s{sW}, 3"); A(f"s_cbranch_scc1 {skip}")
        A(f"s_mov_b64 s[{sEXS}:{sEXS+1}], exec"); A(f"s_mov_b64 exec, {(1 << nl) - 1}")
        A(f"s_mov_b32 s{sSPIN}, {self.cfg.spin_limit}")
        A.wait(vm=pos)
        A(f"s_branch {chk}")
        A.label(loop)
        A.opt(f"buffer_load_dword v252, v250, {srd(SRD_WS)}, 0 offen sc1")
        A("s_waitcnt vmcnt(0)")
        A.label(chk)
        A("v_cmp_ge_u32 vcc, v252, v251")
        A(f"s_sub_u32 s{sSPIN}, s{sSPIN}, 1"); A(f"s_cbranch_scc1 {done}")
        A("s_cmp_eq_u64 vcc, exec"); A(f"s_cbranch_scc0 {loop}")
        A.label(done)
        A(f"s_mov_b64 exec, s[{sEXS}:{sEXS+1}]")
        A.label(skip)
        A("s_barrier")

    def poll(self, addr_code, nl, target, what):
        self.poll_issue(addr_code, nl, target, what)
        self.poll_check()

    def signal(self, cnt, sidx, what, init_check=False):
        A = self.A
        skip = A.newlabel("askip")
        A(f"s_cmp_lg_u32 s{sW}, 3"); A(f"s_cbranch_scc1 {skip}")
        A(f"s_mov_b64 s[{sEXS}:{sEXS+1}], exec"); A("s_mov_b64 exec, 1")
        if init_check:
            loop = A.newlabel("iloop"); done = A.newlabel("idone"); chk = A.newlabel("ichk")
            A(f"s_mov_b32 s{sSPIN}, {self.cfg.spin_limit}")
            A(f"s_branch {chk}")
            A.label(loop)
            A.opt(f"buffer_load_dword v247, v246, {srd(SRD_DBG)}, 0 offen sc1")
            A("s_waitcnt vmcnt(0)")
            A.label(chk)
            A("v_cmp_eq_u32 vcc, 1, v247")
            A(f"s_sub_u32 s{sSPIN}, s{sSPIN}, 1"); A(f"s_cbranch_scc1 {done}")
            A("s_cmp_eq_u64 vcc, exec"); A(f"s_cbranch_scc0 {loop}")
            A.label(done)
        A(f"s_and_b32 s{sT5}, s{sidx}, {3 if sidx == sRB64 else 1}"); A(f"s_lshl_b32 s{sT5}, s{sT5}, 8"); A(f"s_add_u32 s{sT5}, s{sT5}, s{sSLAB}")
        A(f"s_add_u32 s{sT5}, s{sT5}, {WS_CNT + cnt*CNT_STRIDE}")
        A(f"v_mov_b32 v248, s{sT5}"); A("v_mov_b32 v249, 1")
        A.opt(f"buffer_atomic_add v249, v248, {srd(SRD_WS)}, 0 offen")
        A(f"s_mov_b64 exec, s[{sEXS}:{sEXS+1}]")
        A.label(skip)

    def init_poll_issue(self):
        A = self.A
        skip = A.newlabel("iiskip")
        A(f"s_cmp_lg_u32 s{sW}, 3"); A(f"s_cbranch_scc1 {skip}")
        A.opt(f"buffer_load_dword v247, v246, {srd(SRD_DBG)}, 0 offen sc1")
        A.label(skip)

    def cnt_addr(self, cnt, sidx, delta=0):
        if delta == 0:
            return [f"s_and_b32 s{sT5}, s{sidx}, {3 if sidx == sRB64 else 1}", f"s_lshl_b32 s{sT5}, s{sT5}, 8", f"s_add_u32 s{sT5}, s{sT5}, s{sSLAB}",
                    f"s_add_u32 s{sT5}, s{sT5}, {WS_CNT + cnt*CNT_STRIDE}", f"v_mov_b32 v250, s{sT5}"]
        assert sidx == sRB64
        return [f"s_add_u32 s{sT5}, s{sidx}, {delta}", f"s_max_i32 s{sT5}, s{sT5}, 0", f"v_mov_b32 v250, s{sT5}"] + self.cnt64_v(cnt)

    def cnt64_v(self, cnt):
        return ["v_lshrrev_b32 v251, 2, v250", f"v_lshlrev_b32 v251, {SLAB_SH}, v251", "v_and_b32 v250, 3, v250",
                "v_lshl_add_u32 v250, v250, 8, v251", f"v_add_u32 v250, {WS_CNT + cnt*CNT_STRIDE}, v250"]

    def frag_dest(self, sdst, region):
        A = self.A
        A(f"s_lshl_b32 s{sdst}, s{sR32L}, 15"); A(f"s_lshl_b32 s{sT1}, s{sC}, 12"); A(f"s_add_u32 s{sdst}, s{sdst}, s{sT1}")
        A(f"s_lshl_b32 s{sT1}, s{sCG}, 11"); A(f"s_add_u32 s{sdst}, s{sdst}, s{sT1}"); A(f"s_add_u32 s{sdst}, s{sdst}, s{sSLAB}")
        A(f"s_add_u32 s{sdst}, s{sdst}, {region}")

    def swap_add(self, x, tmp):
        A = self.A
        A(f"v_mov_b32 v{tmp}, v{x}")
        A.nop(2)
        A(f"v_permlane32_swap_b32 v{x}, v{tmp}")
        A.nop(1)
        A(f"v_add_f32 v{x}, v{x}, v{tmp}")

    def prologue(self):
        A = self.A
        A("s_cmp_ge_u32 s2, 256"); A("s_cbranch_scc1 L_end")
        if self.cfg.wgxor: A(f"s_xor_b32 s2, s2, {self.cfg.wgxor}")
        if self.cfg.stamps or self.cfg.dbgtime:
            A(f"s_memrealtime s[{sRT0}:{sRT0+1}]"); A(f"s_memtime s[{sCY0}:{sCY0+1}]")
        A("s_load_dwordx16 s[16:31], s[0:1], 0")
        A("s_load_dwordx4 s[32:35], s[0:1], 64")
        A("s_load_dwordx2 s[36:37], s[0:1], 80")
        if self.cfg.code0:
            A("s_getpc_b64 s[96:97]")
            A("v_lshlrev_b32 v6, 7, v0")
            A(f"v_cmp_gt_u32 vcc, {self.cfg.code0}, v0")
            A(f"s_and_saveexec_b64 s[{sEXS}:{sEXS+1}], vcc")
            l0 = A.newlabel("c0")
            A(f"s_cbranch_execz {l0}")
            A.opt("global_load_dword v255, v6, s[96:97]")
            A.label(l0)
            A(f"s_mov_b64 exec, s[{sEXS}:{sEXS+1}]")
        A(f"v_lshrrev_b32 v5, 6, v0")
        A(f"v_and_b32 v{vL}, 63, v0")
        A(f"v_readfirstlane_b32 s{sW}, v5")
        A(f"v_and_b32 v{vM}, 31, v{vL}")
        A(f"v_lshrrev_b32 v{vH}, 5, v{vL}")
        A(f"v_lshlrev_b32 v{vL16}, 4, v{vL}")
        A("s_and_b32 s10, s2, 7"); A("s_lshr_b32 s11, s2, 3")
        if self.cfg.map2d:
            A(f"s_lshr_b32 s{sT1}, s10, 1"); A(f"s_and_b32 s{sT2}, s10, 1")
            A(f"s_lshr_b32 s{sT0}, s11, 2"); A(f"s_lshl_b32 s{sRB64}, s{sT1}, 3"); A(f"s_add_u32 s{sRB64}, s{sRB64}, s{sT0}")
            A(f"s_and_b32 s{sC}, s11, 3"); A(f"s_lshl_b32 s{sT0}, s{sT2}, 2"); A(f"s_add_u32 s{sC}, s{sC}, s{sT0}")
            A(f"s_lshr_b32 s{sT0}, s11, 3"); A(f"s_lshl_b32 s{sRB128}, s{sT1}, 2"); A(f"s_add_u32 s{sRB128}, s{sRB128}, s{sT0}")
            A(f"s_and_b32 s{sFT}, s11, 7"); A(f"s_lshl_b32 s{sT0}, s{sT2}, 3"); A(f"s_add_u32 s{sFT}, s{sFT}, s{sT0}")
        else:
            A(f"s_lshr_b32 s{sT0}, s11, 3"); A(f"s_lshl_b32 s{sRB64}, s10, 2"); A(f"s_add_u32 s{sRB64}, s{sRB64}, s{sT0}")
            A(f"s_and_b32 s{sC}, s11, 7")
            if self.cfg.cxor: A(f"s_xor_b32 s{sC}, s{sC}, {self.cfg.cxor}")
            A(f"s_lshr_b32 s{sT0}, s11, 4"); A(f"s_lshl_b32 s{sRB128}, s10, 1"); A(f"s_add_u32 s{sRB128}, s{sRB128}, s{sT0}")
            A(f"s_and_b32 s{sFT}, s11, 15")
        A(f"s_and_b32 s{sRBK}, s{sW}, 1"); A(f"s_lshr_b32 s{sCG}, s{sW}, 1")
        if self.cfg.rot:
            A(f"s_and_b32 s{sROT}, s{sRB64}, 3"); A(f"s_lshl_b32 s{sROT}, s{sROT}, 1"); A(f"s_add_u32 s{sROT}, s{sROT}, s{sC}"); A(f"s_and_b32 s{sROT}, s{sROT}, 7")
        else:
            A(f"s_mov_b32 s{sROT}, 0")
        A(f"s_lshl_b32 s{sROT8}, s{sROT}, 1"); A(f"s_add_u32 s{sROT8}, s{sROT8}, s{sW}"); A(f"s_lshl_b32 s{sROT8}, s{sROT8}, 2")
        A(f"s_lshl_b32 s{sW4K}, s{sW}, 12")
        A(f"s_lshr_b32 s{sT3}, s2, 3")
        A(f"v_lshrrev_b32 v7, 3, v{vL}")
        A(f"v_and_b32 v8, 7, v{vL}")
        A(f"v_bfe_u32 v9, v{vL}, 4, 1"); A("v_lshlrev_b32 v9, 2, v9"); A("v_xor_b32 v9, v8, v9"); A("v_lshlrev_b32 v9, 4, v9")
        A(f"v_lshl_add_u32 v{vSTR}, v7, 10, v9")
        A(f"v_mul_u32_u24 v{vSTRQ}, 3072, v7"); A(f"v_add_u32 v{vSTRQ}, v{vSTRQ}, v9")
        A(f"v_lshrrev_b32 v9, 4, v{vL}"); A("v_xor_b32 v9, v8, v9"); A("v_lshlrev_b32 v9, 4, v9"); A("v_lshl_add_u32 v14, v7, 10, v9")
        A(f"v_xor_b32 v{vX2}, 64, v14"); A(f"v_add_u32 v{vX2}, 7168, v{vX2}")
        A(f"v_add_u32 v{vSTRJ[1]}, 7168, v{vSTR}")
        A("s_waitcnt lgkmcnt(0)")
        self.stamp("kernarg")
        if self.cfg.tlb1:
            wsel = self.cfg.tlb1_wave
            l = A.newlabel("tl")
            if wsel >= 0: A(f"s_cmp_lg_u32 s{sW}, {wsel}"); A(f"s_cbranch_scc1 {l}")
            ptrs = [16, 24, 18, 36, 26, 28, 20, 30, 32, 34][:self.cfg.tlb1]
            A("v_mov_b32 v250, s16"); A("v_mov_b32 v251, s17")
            A(f"s_lshr_b32 s{sT0}, s{sRB64}, 2"); A(f"s_lshl_b32 s{sT0}, s{sT0}, {SLAB_SH}"); A(f"s_add_u32 s{sT0}, s{sT0}, s36"); A(f"s_addc_u32 s{sT1}, s37, 0")
            for i, p in enumerate(ptrs):
                if i == 0: continue
                lo, hi = (sT0, sT1) if p == 36 else (p, p + 1)
                A(f"v_writelane_b32 v250, s{lo}, {i}"); A(f"v_writelane_b32 v251, s{hi}, {i}")
            A(f"s_mov_b64 s[{sEXS}:{sEXS+1}], exec"); A(f"s_bfm_b64 exec, {len(ptrs)}, 0")
            (A if wsel < 0 else A.opt)("global_load_dword v255, v[250:251], off")
            A(f"s_mov_b64 exec, s[{sEXS}:{sEXS+1}]")
            A.label(l)
        self.build_srds(((SRD_X, 16, 2097152), (SRD_W1, 24, 524288), (SRD_WQKV, 18, 1572864)))

    def scalar_touch(self):
        A = self.A
        if not self.cfg.stouch: return
        l = A.newlabel("st")
        A(f"s_cmp_lg_u32 s{sW}, {self.cfg.stouch_wave}"); A(f"s_cbranch_scc1 {l}")
        for p in (18, 26, 28, 20, 30, 32, 34):
            A(f"s_load_dword s{sT4}, s[{p}:{p+1}], 0")
        A("s_mov_b32 s12, s36"); A("s_mov_b32 s13, s37")
        for i in range(8):
            A(f"s_load_dword s{sT4}, s[12:13], 0")
            if i < 7: A("s_add_u32 s12, s12, 0x200000"); A("s_addc_u32 s13, s13, 0")
        A.label(l)

    def build_srds(self, lst):
        A = self.A
        for (n, p, size) in lst:
            A(f"s_mov_b32 s{n}, s{p}"); A(f"s_and_b32 s{n+1}, s{p+1}, 0xffff")
            A(f"s_mov_b32 s{n+2}, {size}"); A(f"s_mov_b32 s{n+3}, 0x20000")

    def emit_groups(self, gs):
        for g in gs:
            for ins in g:
                if callable(ins): ins()
                else: self.A(ins)

    def t0_dma(self):
        A = self.A
        self.stamp("touched")
        A(f"s_lshl_b32 s{sXG}, s{sRB64}, 16"); A(f"s_lshl_b32 s{sT0}, s{sW}, 14"); A(f"s_add_u32 s{sXG}, s{sXG}, s{sT0}")
        A(f"s_lshl_b32 s{sW1G}, s{sC}, 7"); A(f"s_add_u32 s{sW1G}, s{sW1G}, s{sT0}")
        A(f"s_lshl_b32 s{sWL}, s{sW}, 11")
        self.chunk_pos = {}
        for q in range(self.cfg.preA): self.emit_groups(self.chunk_dma(q))
        self.scalar_touch()
        self.start_touch()
        self.stamp("preA")
        self.build_srds(((SRD_WS, 36, WS_SIZE), (SRD_DBG, 34, 256), (SRD_WO, 20, 524288), (SRD_W2, 26, 524288),
                         (SRD_W3, 28, 1409024), (SRD_W4, 30, 1409024), (SRD_OUT, 32, 2097152)))
        A(f"s_lshr_b32 s{sSLAB}, s{sRB64}, 2"); A(f"s_lshl_b32 s{sSLAB}, s{sSLAB}, {SLAB_SH}")
        A(f"s_and_b32 s{sR32L}, s{sRB64}, 3"); A(f"s_lshl_b32 s{sR32L}, s{sR32L}, 1"); A(f"s_add_u32 s{sR32L}, s{sR32L}, s{sRBK}")
        A(f"s_and_b32 s{sR32P}, s{sRB128}, 1"); A(f"s_lshl_b32 s{sR32P}, s{sR32P}, 2"); A(f"s_add_u32 s{sR32P}, s{sR32P}, s{sW}")
        l = A.newlabel("zi")
        A(f"s_cmp_lg_u32 s2, 0"); A(f"s_cbranch_scc1 {l}")
        A(f"s_cmp_lg_u32 s{sW}, 3"); A(f"s_cbranch_scc1 {l}")
        A(f"v_lshrrev_b32 v250, 5, v{vL}"); A(f"v_lshlrev_b32 v250, {SLAB_SH}, v250"); A(f"v_and_b32 v251, 31, v{vL}")
        A("v_lshl_add_u32 v250, v251, 8, v250"); A(f"v_add_u32 v250, {WS_CNT}, v250"); A("v_mov_b32 v251, 0")
        for i in range(4):
            A.opt(f"buffer_store_dword v251, v250, {srd(SRD_WS)}, 0 offen sc1")
            if i < 3: A(f"v_add_u32 v250, {2 << SLAB_SH}, v250")
        A.label(l)
        A("v_mov_b32 v246, 0"); A("v_mov_b32 v250, 0")
        self.pos_zero = A.vm_pos()
        if self.cfg.touch_mode == "early": self.weight_touch()

    def start_touch(self):
        A = self.A
        if not self.cfg.touch: return
        le = A.newlabel("te")
        A(f"s_cmp_eq_u32 s{sW}, 3"); A(f"s_cbranch_scc0 {le}")
        A(f"s_mov_b64 s[{sEXS}:{sEXS+1}], exec")
        A("s_mov_b64 exec, 0xff")
        A("s_getpc_b64 s[96:97]")
        A.label("L_pc")
        A(f"s_lshl_b32 s{sT0}, s{sT3}, 10"); A(f"v_lshlrev_b32 v250, 7, v{vL}"); A(f"v_add_u32 v250, s{sT0}, v250")
        A("v_min_u32 v250, L_end-L_pc, v250")
        A.opt("global_load_dword v255, v250, s[96:97]")
        A("s_bfm_b64 exec, 48, 0")
        A(f"s_mul_i32 s{sT0}, s2, {48*128}"); A(f"v_lshlrev_b32 v250, 7, v{vL}")
        A.opt(f"buffer_load_dword v255, v250, {srd(SRD_WQKV)}, s{sT0} offen")
        A(f"s_mov_b64 exec, s[{sEXS}:{sEXS+1}]")
        A.label(le)

    def t0_dma2(self):
        for q in range(self.cfg.preA, self.cfg.pre_chunks): self.emit_groups(self.chunk_dma(q))

    def weight_touch(self, tlb_only=False, with_ws=True):
        A = self.A
        if not self.cfg.touch: return
        le = A.newlabel("lte")
        labels = [A.newlabel("lt") for _ in range(4)]
        A(f"s_mov_b64 s[{sEXS}:{sEXS+1}], exec")
        A(f"v_lshlrev_b32 v250, 7, v{vL}")
        plan = (((SRD_W2, 16, 0), (SRD_WO, 16, 0)), ((SRD_W3, 22, 0), (SRD_W3, 21, 22)), ((SRD_W4, 22, 0), (SRD_W4, 21, 22)), None)
        for w, items in enumerate(plan):
            A.label(labels[w])
            f = A if w == 0 else A.opt
            if w < 3:
                A(f"s_cmp_eq_u32 s{sW}, {w}"); A(f"s_cbranch_scc0 {labels[w+1]}")
                for (srdn, n, first) in items:
                    tot = 16 if srdn in (SRD_W2, SRD_WO) else 43
                    A(f"s_bfm_b64 exec, {n}, 0")
                    A(f"s_mul_i32 s{sT5}, s2, {tot*128}")
                    if first: A(f"s_add_u32 s{sT5}, s{sT5}, {first*128}")
                    f(f"buffer_load_dword v255, v250, {srd(srdn)}, s{sT5} offen")
                A(f"s_branch {le}")
            else:
                A("s_mov_b64 exec, 3"); A(f"v_lshlrev_b32 v250, 20, v{vL}")
                f(f"buffer_load_dword v255, v250, {srd(SRD_OUT)}, 0 offen")
                A("s_mov_b64 exec, 1"); A(f"s_add_u32 s{sT5}, s{sSLAB}, {WS_IDLE}")
                f(f"buffer_load_dword v255, v246, {srd(SRD_WS)}, s{sT5} offen")
        A.label(le)
        A(f"s_mov_b64 exec, s[{sEXS}:{sEXS+1}]")

    def l2_touch(self, what):
        A = self.A
        if what not in self.cfg.l2touch.split("+"): return
        T = 240
        srdn, nlines = {"w2": (SRD_W2, 4096), "wo": (SRD_WO, 4096), "w4": (SRD_W4, 11008), "w3": (SRD_W3, 11008),
                        "wq": (SRD_WQKV, 4096), "wv": (SRD_WQKV, 4096)}[what]
        per = nlines // 128
        A(f"s_lshr_b32 s{sT5}, s2, 3"); A(f"s_lshl_b32 s{sT5}, s{sT5}, 2"); A(f"s_add_u32 s{sT5}, s{sT5}, s{sW}")
        if what in ("wq", "wv"):
            A(f"s_mul_i32 s{sT5}, s{sT5}, {4*3072}")
            if what == "wv": A(f"s_add_u32 s{sT5}, s{sT5}, 2048")
            A(f"v_lshrrev_b32 v{T}, 3, v{vL}"); A(f"v_mul_u32_u24 v{T}, 3072, v{T}"); A(f"v_and_b32 v{T+1}, 7, v{vL}")
            A(f"v_lshl_add_u32 v{T}, v{T+1}, 7, v{T}")
        else:
            A(f"s_mul_i32 s{sT5}, s{sT5}, {per*128}")
            A(f"v_lshlrev_b32 v{T}, 7, v{vL}")
        A(f"s_mov_b64 s[{sEXS}:{sEXS+1}], exec")
        for r0 in range(0, per, 64):
            n = min(64, per - r0)
            if n < 64: A(f"s_bfm_b64 exec, {n}, 0")
            if r0: A(f"s_add_u32 s{sT5}, s{sT5}, {64*128}")
            A(f"buffer_load_dword v255, v{T}, {srd(srdn)}, s{sT5} offen")
        A(f"s_mov_b64 exec, s[{sEXS}:{sEXS+1}]")

    def l2_touch_rows(self, srdn, ranges, tmp):
        A = self.A
        A(f"s_lshr_b32 s{sT5}, s2, 3"); A(f"s_lshl_b32 s{sT5}, s{sT5}, 2"); A(f"s_add_u32 s{sT5}, s{sT5}, s{sW}")
        A(f"v_lshlrev_b32 v{tmp}, 7, v{vL}")
        A(f"s_mov_b64 s[{sEXS}:{sEXS+1}], exec")
        for (r0, nr) in ranges:
            per = (nr * 8 + 127) // 128
            assert per <= 64
            A(f"s_mul_i32 s{sT0}, s{sT5}, {per*128}"); A(f"s_add_u32 s{sT0}, s{sT0}, {r0*1024}")
            A(f"s_bfm_b64 exec, {per}, 0") if per < 64 else A("s_mov_b64 exec, -1")
            A(f"buffer_load_dword v255, v{tmp}, {srd(srdn)}, s{sT0} offen")
        A(f"s_mov_b64 exec, s[{sEXS}:{sEXS+1}]")

    def chunk_dma(self, q):
        gs = [[f"s_add_u32 s{sD1}, s{sROT}, {q}", f"s_and_b32 s{sD1}, s{sD1}, 7", f"s_lshl_b32 s{sD0}, s{sD1}, 7",
               f"s_add_u32 m0, s{sWL}, {A0 + q*8192}", f"s_add_u32 s{sD0}, s{sD0}, s{sXG}",
               f"buffer_load_dwordx4 v14, {srd(SRD_X)}, s{sD0} offen lds"],
              [f"buffer_load_dwordx4 v{vX2}, {srd(SRD_X)}, s{sD0} offen offset:1024 lds"],
              [f"s_lshl_b32 s{sD0}, s{sD1}, 16",
               f"s_add_u32 m0, s{sWL}, {B0 + q*8192}", f"s_add_u32 s{sD0}, s{sD0}, s{sW1G}",
               f"buffer_load_dwordx4 v{vSTR}, {srd(SRD_W1)}, s{sD0} offen lds"],
              [f"buffer_load_dwordx4 v{vSTRJ[1]}, {srd(SRD_W1)}, s{sD0} offen offset:1024 lds"]]
        def mark(q=q): self.chunk_pos[q] = self.A.vm_pos()
        gs[-1].append(mark)
        return gs

    def quad(self, pre, srdn, vregs):
        return [(pre if j == 0 else []) + [f"buffer_load_dwordx4 v{vregs[j]}, {srd(srdn)}, s{sG} offen" + (f" offset:{1024*j}" if j else "") + " lds"]
                for j in range(4)]

    def job_strip_qkv(self, which, s0, ns, lds0):
        assert ns % 8 == 0
        groups = []
        for J in range(ns // 8):
            pre = [f"s_add_u32 m0, s{sW4K}, {lds0 + 16384*J}", f"s_add_u32 s{sD0}, s{sROT8}, {2*s0 + 16*J}", f"s_and_b32 s{sD0}, s{sD0}, 63",
                   f"s_mul_i32 s{sD0}, s{sD0}, {8*3072}", f"s_lshl_b32 s{sG}, s{sC}, 7", f"s_add_u32 s{sG}, s{sG}, s{sD0}"]
            if which: pre.append(f"s_add_u32 s{sG}, s{sG}, {which*1024}")
            groups += self.quad(pre, SRD_WQKV, vSTRQJ)
        return groups

    def job_strip(self, srdn, u0, nunits, lds_base):
        assert u0 % 16 == 0 and nunits % 16 == 0 and not self.cfg.krot
        groups = []
        for J in range(nunits // 16):
            u = u0 + 16*J
            pre = [f"s_add_u32 m0, s{sW4K}, {lds_base + 1024*u}", f"s_add_u32 s{sG}, s{sBW}, {u*8192}"]
            groups += self.quad(pre, srdn, vSTRJ)
        return groups

    def job_w3(self, s0, ns, lds0):
        groups = []
        full_prev = False
        for j in range((ns + 3)//4):
            full = 4*j + 3 < ns
            if full and full_prev:
                g = [f"s_add_u32 m0, m0, {4*3072}", f"s_add_u32 s{sG}, s{sG}, {4*16*2752}"]
            else:
                if full:
                    g = [f"s_add_u32 m0, s{sW3L}, {lds0 + 4*j*3072}", f"s_add_u32 s{sD0}, s{sW}, {s0 + 4*j}"]
                else:
                    g = [f"s_add_u32 s{sD1}, s{sW}, {4*j}", f"s_min_u32 s{sD1}, s{sD1}, {ns-1}", f"s_mul_i32 s{sD0}, s{sD1}, 3072",
                         f"s_add_u32 m0, s{sD0}, {lds0}", f"s_add_u32 s{sD0}, s{sD1}, {s0}"]
                g += [f"s_mul_i32 s{sD0}, s{sD0}, {16*2752}", f"s_lshl_b32 s{sD1}, s{sCB0}, 6", f"s_add_u32 s{sG}, s{sD0}, s{sD1}"]
            full_prev = full
            for i in range(3):
                ins = f"buffer_load_dwordx4 v{vW3[i]}, {srd(SRD_W3)}, s{sG} offen" + (f" offset:{1024*i}" if i else "") + " lds"
                groups.append((g if i == 0 else []) + [ins])
        return groups

    def setup2(self):
        A = self.A
        A(f"s_mov_b32 s{sONES}, 0x3f803f80"); A(f"s_mov_b32 s{sPLO}, 0x05040100"); A(f"s_mov_b32 s{sPHI}, 0x07060302")
        if self.cfg.ftswap:
            A(f"s_cmp_eq_u32 s{sFT}, 3"); A(f"s_cselect_b32 s{sT0}, 12, s{sFT}")
            A(f"s_cmp_eq_u32 s{sFT}, 12"); A(f"s_cselect_b32 s{sFT}, 3, s{sT0}")
        A(f"s_mul_i32 s{sCB0}, s{sFT}, 3"); A(f"s_mov_b32 s{sNBLK}, 3")
        A(f"s_cmp_lt_u32 s{sFT}, 11"); l = A.newlabel("ft"); A(f"s_cbranch_scc1 {l}")
        A(f"s_lshl_b32 s{sCB0}, s{sFT}, 1"); A(f"s_add_u32 s{sCB0}, s{sCB0}, 11"); A(f"s_mov_b32 s{sNBLK}, 2")
        A.label(l)
        A(f"s_lshl_b32 s{sBW}, s{sC}, 7"); A(f"s_lshl_b32 s{sT0}, s{sW}, 15"); A(f"s_add_u32 s{sBW}, s{sBW}, s{sT0}")
        A(f"s_lshl_b32 s{sT1}, s{sC}, 7"); A(f"s_mul_i32 s{sT0}, s{sW}, {3*32768}"); A(f"s_add_u32 s{sW4S[3]}, s{sT0}, s{sT1}")
        A(f"s_lshl_b32 s{sT0}, s{sW}, 16"); A(f"s_add_u32 s{sW4S[2]}, s{sT0}, s{sT1}")
        A(f"s_mul_i32 s{sW3L}, s{sW}, 3072")
        A(f"s_mov_b32 s{sR3}, 0"); A(f"s_mov_b32 s{sKR}, 0")
        for j in (2, 3): A(f"v_add_u32 v{vSTRJ[j]}, {7168*j}, v{vSTR}")
        A(f"v_add_u32 v{vS4J[2]}, {43*16384 - 2048}, v{vSTR}"); A(f"v_add_u32 v{vS4J[3]}, {43*16384 + 8192 - 3072}, v{vSTR}")
        for j in (1, 2, 3): A(f"v_add_u32 v{vSTRQJ[j]}, {23552*j}, v{vSTRQ}")
        T = vT
        A(f"v_bfe_u32 v{T}, v{vL}, 2, 2")
        A(f"v_and_b32 v{T+1}, 3, v{vL}"); A(f"v_lshlrev_b32 v{T+1}, 3, v{T+1}")
        A(f"v_bfe_u32 v{T+2}, v{vL}, 4, 1"); A(f"v_lshl_add_u32 v{T+1}, v{T+2}, 5, v{T+1}")
        A(f"v_lshrrev_b32 v{T+2}, 1, v{T}")
        A(f"v_xor_b32 v{T+3}, s{sCG}, v{T+2}")
        A(f"v_lshlrev_b32 v{T+3}, 6, v{T+3}")
        A(f"v_lshl_add_u32 v{T+4}, v{T}, 7, v{T+1}")
        A(f"v_add_u32 v{T+4}, v{T+4}, v{T+3}")
        A(f"v_lshl_add_u32 v{vTRN}, v{vH}, 10, v{T+4}")
        A(f"v_lshl_add_u32 v{vTRC0}, v{vH}, 9, v{T+4}")
        A(f"v_xor_b32 v{vTRC1}, 64, v{vTRC0}")
        A(f"v_mul_u32_u24 v{T+5}, 192, v{T}"); A(f"v_add_u32 v{T+5}, v{T+5}, v{T+1}")
        A(f"v_mul_u32_u24 v{T+6}, 768, v{vH}"); A(f"v_add_u32 v{vTR3}, v{T+5}, v{T+6}")
        A(f"s_mov_b32 s{sT0}, 43691"); A(f"s_movk_i32 s{sT1}, 2752")
        for j in range(3):
            A(f"v_add_u32 v{T}, {64*j}, v{vL}")
            A(f"v_mul_u32_u24 v{T+1}, s{sT0}, v{T}"); A(f"v_lshrrev_b32 v{T+1}, 19, v{T+1}")
            A(f"v_mul_u32_u24 v{T+2}, 12, v{T+1}"); A(f"v_sub_u32 v{T+2}, v{T}, v{T+2}")
            A(f"v_mul_u32_u24 v{T+1}, s{sT1}, v{T+1}")
            A(f"v_lshl_add_u32 v{vW3[j]}, v{T+2}, 4, v{T+1}")
            if j: A(f"v_subrev_u32 v{vW3[j]}, {1024*j}, v{vW3[j]}")

    def p1_h(self):
        A = self.A
        T = vT
        vXA = [T, T+1, T+2, T+3]; vXS = [T+4, T+5]
        A(f"s_lshl_b32 s{sT0}, s{sRBK}, 5"); A(f"v_add_u32 v{T+6}, s{sT0}, v{vM}")
        A(f"v_bfe_u32 v{T+7}, v{T+6}, 1, 3"); A(f"v_xor_b32 v{T+7}, v{T+7}, v{vH}"); A(f"v_lshlrev_b32 v{T+7}, 4, v{T+7}")
        A(f"v_lshl_add_u32 v{vXA[0]}, v{T+6}, 7, v{T+7}")
        for s in range(1, 4): A(f"v_xor_b32 v{vXA[s]}, {32*s}, v{vXA[0]}")
        A(f"s_lshl_b32 s{sT0}, s{sCG}, 6"); A(f"v_xor_b32 v{vXS[0]}, s{sT0}, v{vXA[0]}"); A(f"v_xor_b32 v{vXS[1]}, 32, v{vXS[0]}")
        vXR = T+8
        A(f"v_bfe_u32 v{T+7}, v{T+6}, 1, 3"); A(f"s_lshl_b32 s{sT0}, s{sCG}, 2"); A(f"v_xor_b32 v{T+7}, s{sT0}, v{T+7}")
        A(f"v_lshlrev_b32 v{T+7}, 4, v{T+7}"); A(f"v_lshl_add_u32 v{T+7}, v{T+6}, 7, v{T+7}")
        A(f"v_lshl_add_u32 v{T+7}, v{vH}, 3, v{T+7}")
        A(f"s_sub_u32 s{sXSLOT}, s{sC}, s{sROT}"); A(f"s_and_b32 s{sXSLOT}, s{sXSLOT}, 7"); A(f"s_lshl_b32 s{sT0}, s{sXSLOT}, 13"); A(f"v_add_u32 v{vXR}, s{sT0}, v{T+7}")
        vWB = T+9
        A(f"v_add_u32 v{vWB}, {B0}, v{vTRN}")
        vS0, vS1, vQ0, vQ1, vC0, vC1 = T+10, T+11, T+12, T+13, T+14, T+15
        for r in (vS0, vS1, vQ0, vQ1, vC0, vC1): A(f"v_mov_b32 v{r}, 0")
        XT = T+16
        acc = vACC0
        def reads(q):
            L = []
            for s in range(4):
                b = vRING + 4*(4*(q & 1) + s)
                st = 4*q + s
                L.append([f"ds_read_b128 {a(4*st,4)}, v{vXA[s]} offset:{q*8192}",
                          f"ds_read_b64_tr_b16 {v(b,2)}, v{vWB} offset:{st*2048}",
                          f"ds_read_b64_tr_b16 {v(b+2,2)}, v{vWB} offset:{st*2048+512}"])
            L[0].append(f"ds_read_b128 {v(XT+8*(q&1),4)}, v{vXS[0]} offset:{q*8192}")
            L[1].append(f"ds_read_b128 {v(XT+8*(q&1)+4,4)}, v{vXS[1]} offset:{q*8192}")
            return L
        def burst(q):
            x = XT + 8*(q & 1)
            for i in range(8):
                A(f"v_dot2c_f32_bf16 v{vS0 + (i&1)}, s{sONES}, v{x+i}")
                A(f"v_dot2c_f32_bf16 v{vQ0 + (i&1)}, v{x+i}, v{x+i}")
            l1 = A.newlabel("cs"); l2 = A.newlabel("ce")
            b = vRING + 16*(q & 1)
            A(f"s_cmp_lg_u32 s{sRBK}, 0"); A(f"s_cbranch_scc1 {l1}")
            for i in range(8): A(f"v_dot2c_f32_bf16 v{vC0 + (i&1)}, s{sONES}, v{b+i}")
            A(f"s_branch {l2}")
            A.label(l1)
            for i in range(8): A(f"v_dot2c_f32_bf16 v{vC0 + (i&1)}, s{sONES}, v{b+8+i}")
            A.label(l2)
        for q in range(9):
            if q < 8:
                A.wait(vm=self.chunk_pos[q])
                if q == self.cfg.preA:
                    l = A.newlabel("fi")
                    A(f"s_cmp_lg_u32 s2, 0"); A(f"s_cbranch_scc1 {l}")
                    A(f"s_cmp_lg_u32 s{sW}, 3"); A(f"s_cbranch_scc1 {l}")
                    A("v_mov_b32 v250, 0"); A("v_mov_b32 v251, 1")
                    A(f"s_mov_b64 s[{sEXS}:{sEXS+1}], exec"); A("s_mov_b64 exec, 1")
                    A.opt(f"buffer_store_dword v251, v250, {srd(SRD_DBG)}, 0 offen sc1")
                    A(f"s_mov_b64 exec, s[{sEXS}:{sEXS+1}]")
                    A.label(l)
            A.wait_all_lg()
            if q < 8: A("s_barrier")
            rd = reads(q) if q < 8 else [[], [], [], []]
            if q < 8 and (q == 0 or self.cfg.chunkstamps):
                self.stamp(f"chunk{q}")
            if q in (0, 2, 4, 6):
                l = A.newlabel("xr")
                A(f"s_cmp_lg_u32 s{sXSLOT}, {q}"); A(f"s_cbranch_scc1 {l}")
                for g in range(4):
                    A(f"v_xor_b32 v{T+32}, {16*g}, v{vXR}")
                    A.opt(f"ds_read_b64 {v(vXRES+2*g,2)}, v{T+32}")
                A.label(l)
            if q == 0:
                for g in rd:
                    for ins in g: A(ins)
                continue
            p = q - 1
            nxt = q + self.cfg.pre_chunks - 1
            if nxt <= 7: self.side += self.chunk_dma(nxt)
            elif not self.kA_queued:
                assert q >= 6
                self.kA_queued = True
                self.queue(self.job_strip_qkv(1, 0, 8, C0))
                self.queue(self.job_strip_qkv(1, 8, 16, A0))
                self.queue(self.job_strip_qkv(1, 24, 8, A0 + 32768), "pos_kB")
                if self.cfg.early_kv: self.queue(self.job_strip_qkv(2, 0, 16, B0))
            if q == 6: self.init_poll_issue()
            if q == 5 and self.cfg.touch:
                A(f"s_mov_b64 s[{sEXS}:{sEXS+1}], exec"); A("s_mov_b64 exec, 1")
                A(f"s_add_u32 s{sT5}, s{sSLAB}, {WS_IDLE}")
                A(f"buffer_load_dword v255, v246, {srd(SRD_WS)}, s{sT5} offen")
                A(f"s_mov_b64 exec, s[{sEXS}:{sEXS+1}]")
            for s in range(4):
                st = 4*p + s
                b = vRING + 4*(4*(p & 1) + s)
                c = "0" if st == 0 else v(acc, 16)
                A(f"v_mfma_f32_32x32x16_bf16 {v(acc,16)}, {v(b,4)}, {a(4*st,4)}, {c}")
                for ins in rd[s]: A(ins)
                self.pump(self.cfg.hpump if q >= 6 else 1)
            burst(p)
        if self.cfg.hpump >= 2: self.flush_side()
        self.vS = (vS0, vS1, vQ0, vQ1, vC0, vC1)

    def colsum_finish(self, vC0, vC1, scr_off, tmp, pre=None, post=None):
        A = self.A
        A.nop(3)
        A(f"v_add_f32 v{vC0}, v{vC0}, v{vC1}")
        self.swap_add(vC0, tmp)
        A(f"s_lshl_b32 s{sT0}, s{sW}, 7"); A(f"v_lshl_add_u32 v{tmp}, v{vM}, 2, s{sT0}")
        A(f"v_add_u32 v{tmp}, {scr_off}, v{tmp}")
        A(f"ds_write_b32 v{tmp}, v{vC0}")
        if pre: pre()
        A.wait_all_lg()
        A("s_barrier")
        A(f"v_xor_b32 v{tmp}, 128, v{tmp}")
        A(f"ds_read_b32 v{vC1}, v{tmp}")
        if post: post()
        A(f"v_cmp_gt_u32 vcc, 32, v{vL}")
        A.wait_all_lg()
        A(f"v_add_f32 v{vC0}, v{vC0}, v{vC1}")
        A(f"v_cndmask_b32 v{vC0}, 0, v{vC0}, vcc")

    def p1_h_finish(self):
        A = self.A
        T = vT
        vS0, vS1, vQ0, vQ1, vC0, vC1 = self.vS
        acc = vACC0
        A.nop(3)
        A(f"v_add_f32 v{vS0}, v{vS0}, v{vS1}"); A(f"v_add_f32 v{vQ0}, v{vQ0}, v{vQ1}"); A(f"v_add_f32 v{vC0}, v{vC0}, v{vC1}")
        tmp = T+33
        self.swap_add(vS0, tmp); self.swap_add(vQ0, tmp); self.swap_add(vC0, tmp)
        A(f"s_lshl_b32 s{sT0}, s{sW}, 8"); A(f"v_lshl_add_u32 v{tmp}, v{vM}, 3, s{sT0}"); A(f"v_add_u32 v{tmp}, {SCR1}, v{tmp}")
        A(f"v_mov_b32 v{vS1}, v{vQ0}")
        A(f"ds_write_b64 v{tmp}, {v(vS0,2)}")
        A(f"s_lshl_b32 s{sT0}, s{sW}, 7"); A(f"v_lshl_add_u32 v{tmp+1}, v{vM}, 2, s{sT0}"); A(f"v_add_u32 v{tmp+1}, {SCR1+1024}, v{tmp+1}")
        A(f"ds_write_b32 v{tmp+1}, v{vC0}")
        A.wait_all_lg()
        A("s_barrier")
        A(f"v_xor_b32 v{tmp}, 512, v{tmp}"); A(f"v_xor_b32 v{tmp+1}, 128, v{tmp+1}")
        A(f"ds_read_b64 {v(vQ0,2)}, v{tmp}")
        A(f"ds_read_b32 v{vC1}, v{tmp+1}")
        if self.cfg.early_kv: self.queue(self.job_strip_qkv(2, 16, 16, B0 + 32768), "pos_v")
        else: self.queue(self.job_strip_qkv(2, 0, 32, B0), "pos_v")
        A.auto = self.cfg.auto_h
        A(f"v_cmp_gt_u32 vcc, 32, v{vL}")
        A.wait_all_lg()
        A(f"v_add_f32 v{vS0}, v{vS0}, v{vQ0}"); A(f"v_add_f32 v{vS1}, v{vS1}, v{vQ1}"); A(f"v_add_f32 v{vC0}, v{vC0}, v{vC1}")
        A(f"v_cndmask_b32 v{vC0}, 0, v{vC0}, vcc")
        self.fstamp("he", "he:exch")
        A(f"v_mul_f32 v{vS0}, {fbits(1/512)}, v{vS0}")
        A(f"v_mul_f32 v{vS1}, {fbits(1/512)}, v{vS1}")
        A(f"v_sub_f32 v{vNMU}, 0, v{vS0}")
        A(f"v_fma_f32 v{vS1}, v{vNMU}, v{vS0}, v{vS1}")
        A(f"v_max_f32 v{vS1}, 0, v{vS1}")
        A(f"v_mfma_f32_32x32x2_f32 {v(acc,16)}, v{vC0}, v{vNMU}, {v(acc,16)}")
        mk = A.mark()
        A(f"v_add_f32 v{vQ0}, {fbits(1e-5)}, v{vS1}")
        A(f"v_rsq_f32 v{vR}, v{vQ0}")
        A.nop(1)
        A(f"v_mul_f32 v{vQ0}, v{vR}, v{vR}"); A(f"v_mul_f32 v{vQ0}, v{vQ0}, v{vS1}")
        A(f"v_add_f32 v{vQ0}, {fbits(1e-5)}, v{vQ0}")
        A(f"v_rsq_f32 v{vQ0}, v{vQ0}")
        A.nop(1)
        A(f"v_mul_f32 v{vQ0}, v{vQ0}, v{vR}")
        self.fstamp("he", "he:stats")
        self.gelu_block(acc, vQ0, T+34, mk)
        self.fstamp("he", "he:gelu")
        self.frag_dest(sT0, WS_H)
        self.pstore(f"buffer_store_dwordx4 {v(acc,4)}, v{vL16}, {srd(SRD_WS)}, s{sT0} offen sc1")
        self.pstore(f"buffer_store_dwordx4 {v(acc+4,4)}, v{vL16}, {srd(SRD_WS)}, s{sT0} offen offset:1024 sc1")
        self.pos_h = A.vm_pos()
        A.auto = 0
        while not hasattr(self, "pos_kB"): self.pump(1)
        if self.cfg.hflush: self.flush_side()
        if self.cfg.touch_mode == "late": self.weight_touch()
        self.l2_touch("w2"); self.l2_touch("wq")

    def gelu_consts(self, vS, tmp):
        A = self.A
        K1, K0, RI = tmp, tmp+2, tmp+4
        A(f"v_mul_f32 v{K0}, {fbits(C0G)}, v{vS}")
        A(f"v_mul_f32 v{K1}, v{vS}, v{vS}"); A(f"v_mul_f32 v{K1}, v{K1}, v{vS}"); A(f"v_mul_f32 v{K1}, {fbits(C1G)}, v{K1}")
        A(f"v_rcp_f32 v{RI}, v{vS}")
        A(f"v_mov_b32 v{K0+1}, v{K0}"); A(f"v_mov_b32 v{K1+1}, v{K1}"); A(f"v_mov_b32 v{RI+1}, v{RI}")
        return (K1, K0, RI, tmp + 6)

    def gelu_body(self, acc, GK):
        A = self.A
        K1, K0, RI, t = GK
        for p in range(0, 16, 4):
            x0, x1 = acc + p, acc + p + 2
            u0, u1 = t, t + 2
            A(f"v_pk_mul_f32 {v(u0,2)}, {v(x0,2)}, {v(x0,2)}")
            A(f"v_pk_mul_f32 {v(u1,2)}, {v(x1,2)}, {v(x1,2)}")
            A(f"v_pk_fma_f32 {v(u0,2)}, {v(u0,2)}, {v(K1,2)}, {v(K0,2)}")
            A(f"v_pk_fma_f32 {v(u1,2)}, {v(u1,2)}, {v(K1,2)}, {v(K0,2)}")
            A(f"v_pk_mul_f32 {v(u0,2)}, {v(u0,2)}, {v(x0,2)}")
            A(f"v_pk_mul_f32 {v(u1,2)}, {v(u1,2)}, {v(x1,2)}")
            for r in (u0, u0+1, u1, u1+1): A(f"v_exp_f32 v{r}, v{r}")
            A(f"v_pk_fma_f32 {v(u0,2)}, {v(u0,2)}, {v(RI,2)}, {v(RI,2)}")
            A(f"v_pk_fma_f32 {v(u1,2)}, {v(u1,2)}, {v(RI,2)}, {v(RI,2)}")
            for r in (u0, u0+1, u1, u1+1): A(f"v_rcp_f32 v{r}, v{r}")
            A(f"v_pk_mul_f32 {v(u0,2)}, {v(u0,2)}, {v(x0,2)}")
            A(f"v_pk_mul_f32 {v(u1,2)}, {v(u1,2)}, {v(x1,2)}")
            A(f"v_cvt_pk_bf16_f32 v{acc + p//2}, v{u0}, v{u0+1}")
            A(f"v_cvt_pk_bf16_f32 v{acc + p//2 + 1}, v{u1}, v{u1+1}")

    def gelu_block(self, acc, vS, tmp, mk):
        GK = self.gelu_consts(vS, tmp)
        self.A.pad(mk, 18)
        self.gelu_body(acc, GK)

    def qkv_main(self, addr, hooks, side_rate=2, mid=None):
        A = self.A
        T = vT
        acc = vACC0
        PD = 2
        bases = {}
        for st in range(32):
            for d in (0, 512):
                win = (addr(st) + d) // 65536
                if win not in bases:
                    r = T + 40 + len(bases)
                    if win: A(f"v_add_u32 v{r}, {win*65536}, v{vTRN}")
                    else: A(f"v_mov_b32 v{r}, v{vTRN}")
                    bases[win] = r
        vC0, vC1 = T+14, T+15
        A(f"v_mov_b32 v{vC0}, 0"); A(f"v_mov_b32 v{vC1}, 0")
        lgpos = {}
        def burst(steps):
            for st in steps:
                b = vRING + 4*(st % 18)
                for i in range(4): A(f"v_dot2c_f32_bf16 v{vC0 + (i&1)}, s{sONES}, v{b+i}")
                self.tick(18)
        self.credit = 0
        for s in range(32 + PD):
            if s < 32:
                if s in hooks: hooks[s]()
                ad = addr(s)
                b = vRING + 4*(s % 18)
                for (kk, d) in ((0, 0), (2, 512)):
                    x = ad + d
                    A(f"ds_read_b64_tr_b16 {v(b+kk,2)}, v{bases[x // 65536]} offset:{x % 65536}")
                lgpos[s] = A.lg_pos()
            if s >= PD:
                t = s - PD
                A.wait(lg=lgpos[t])
                b = vRING + 4*(t % 18)
                c = "0" if t == 0 else v(acc, 16)
                A(f"v_mfma_f32_32x32x16_bf16 {v(acc,16)}, {v(b,4)}, {a(4*t,4)}, {c}")
                self.tick(33)
                if mid and t in mid: mid[t]()
                if t == 15:
                    self.fstamp("qkv", "t15>")
                    burst(range(0, 16))
                    self.fstamp("qkv", "t15<")
        self.fstamp("qkv", "loop<")
        burst(range(16, 32))

    def qkv_tail(self, dst, keep_auto=False):
        A = self.A
        T = vT
        acc = vACC0
        vC0, vC1 = T+14, T+15
        A(f"v_cmp_gt_u32 vcc, 32, v{vL}")
        A.nop(2)
        A(f"v_add_f32 v{vC0}, v{vC0}, v{vC1}")
        self.swap_add(vC0, T+33)
        A(f"v_cndmask_b32 v{vC0}, 0, v{vC0}, vcc")
        A.nop(2)
        A(f"v_mfma_f32_32x32x2_f32 {v(acc,16)}, v{vC0}, v{vNMU}, {v(acc,16)}")
        mk = A.mark()
        A.auto = 0
        self.pump(3)
        A.pad(mk, 18)
        A.auto = self.cfg.auto
        for i in range(8):
            A(f"v_mul_f32 v{acc+2*i}, v{vR}, v{acc+2*i}"); A(f"v_mul_f32 v{acc+2*i+1}, v{vR}, v{acc+2*i+1}")
            A(f"v_cvt_pk_bf16_f32 v{dst+i}, v{acc+2*i}, v{acc+2*i+1}")
        A.auto = 0
        A.nop(2)
        for i in range(4): A(f"v_permlane32_swap_b32 v{dst+i}, v{dst+4+i}")

    def shadow1(self):
        A = self.A
        def addr_k(s): return C0 + s*2048 if s < 8 else A0 + (s-8)*2048
        def hk0(): A.wait(vm=self.pos_kB); A("s_barrier"); self.stamp("hk0")
        n1 = self.cfg.w2_in_k
        mids = {8: lambda: self.l2_touch("w3")}
        if n1: mids[16] = lambda: self.queue(self.job_strip(SRD_W2, 64 - n1, n1, A0))
        self.qkv_main(addr_k, {0: hk0}, mid=mids)
        self.flush_side()
        self.stamp("k loop")
        A.wait(vm=self.pos_h)
        A("s_barrier")
        self.stamp("h drained")
        self.signal(CNT_H, sRB64, "h", init_check=True)
        self.queue(self.job_strip(SRD_W2, 0, 64 - n1, A0), "pos_w2")
        self.queue(self.job_w3(0, 8, C0) + self.job_w3_small(30, 2, C0 + 8*3072))
        self.qkv_tail(vKP)
        self.stamp("k done")
        self.p2_setup()
        def hv0(): A.wait(vm=self.pos_v); A("s_barrier"); self.stamp("hv0")
        hcode = [f"s_add_u32 s{sT5}, s{sRB64}, -1", f"v_add_u32 v250, s{sT5}, v{vL}",
                 "v_max_i32 v250, 0, v250", "v_min_i32 v250, 31, v250"] + self.cnt64_v(CNT_H)
        self.qkv_main(lambda s: B0 + s*2048, {0: hv0}, side_rate=1, mid={self.cfg.hpoll_at: lambda: self.poll_issue(hcode, 3, 8, "h"), 20: lambda: self.l2_touch("wo")})
        self.flush_side()
        self.stamp("v loop")

    def halo_publish(self):
        A = self.A
        l = A.newlabel("halo")
        A(f"s_cmp_lg_u32 s{sRBK}, 1"); A(f"s_cbranch_scc1 {l}")
        T = vT
        A(f"s_and_b32 s{sT0}, s{sRB64}, 3"); A(f"s_lshl_b32 s{sT0}, s{sT0}, 3"); A(f"s_add_u32 s{sT0}, s{sT0}, s{sC}"); A(f"s_lshl_b32 s{sT0}, s{sT0}, 12")
        A(f"s_lshl_b32 s{sT1}, s{sCG}, 10"); A(f"s_add_u32 s{sT0}, s{sT0}, s{sT1}"); A(f"s_add_u32 s{sT0}, s{sT0}, s{sSLAB}"); A(f"s_add_u32 s{sT0}, s{sT0}, {WS_KV}")
        A(f"v_subrev_u32 v{T}, 16, v{vM}"); A(f"v_lshlrev_b32 v{T}, 4, v{T}"); A(f"v_lshl_add_u32 v{T}, v{vH}, 9, v{T}")
        A(f"v_cmp_le_u32 vcc, 16, v{vM}")
        A(f"s_and_saveexec_b64 s[{sEXS}:{sEXS+1}], vcc")
        self.pstore(f"buffer_store_dwordx4 {v(vKP,4)}, v{T}, {srd(SRD_WS)}, s{sT0} offen sc1", opt=True)
        self.pstore(f"buffer_store_dwordx4 {v(vKP+4,4)}, v{T}, {srd(SRD_WS)}, s{sT0} offen offset:256 sc1", opt=True)
        self.pstore(f"buffer_store_dwordx4 {v(vVP,4)}, v{T}, {srd(SRD_WS)}, s{sT0} offen offset:2048 sc1", opt=True)
        self.pstore(f"buffer_store_dwordx4 {v(vVP+4,4)}, v{T}, {srd(SRD_WS)}, s{sT0} offen offset:2304 sc1", opt=True)
        A(f"s_mov_b64 exec, s[{sEXS}:{sEXS+1}]")
        A.label(l)
        self.pos_halo = A.vm_pos()

    def ksplit_gemm(self, nsteps, wbase_vregs, waddr, act_load, first, nring_regs, PDL, hooks=None, side_rate=1, tail=None, pre=None, window=None, mid=None):
        A = self.A
        hooks = hooks or {}
        acts = {}; apos = {}
        def issue(i):
            acts[i] = act_load(i); apos[i] = A.vm_pos()
        if act_load is None:
            acts, apos = pre
        elif window:
            rest = self.side
            self.side = [[(lambda i=i: issue(i))] for i in range(min(PDL, nsteps))]
            self.pump(2)
            assert not rest
            window()
            while len(apos) < min(PDL, nsteps): self.pump(1)
        else:
            for i in range(min(PDL, nsteps)): issue(i)
        PD = 2
        lgpos = {}
        def wreads(s, cb):
            ad = waddr(s)
            if ad is None: return
            b = vRING + 4*(2*(s % 4) + cb)
            A(f"ds_read_b64_tr_b16 {v(b,2)}, v{wbase_vregs[cb]} offset:{ad}")
            A(f"ds_read_b64_tr_b16 {v(b+2,2)}, v{wbase_vregs[cb]} offset:{ad+1024}")
        for s in range(min(PD, nsteps)):
            wreads(s, 0); wreads(s, 1); lgpos[s] = A.lg_pos()
        for t in range(nsteps):
            s = t + PD
            A.wait(vm=apos[t], lg=lgpos[t] if waddr(t) is not None else None)
            for cb in range(2):
                acc = (vACC0, vACC1)[cb]
                c = "0" if (first and t == 0) else v(acc, 16)
                if waddr(t) is not None:
                    wa = v(vRING + 4*(2*(t % 4) + cb), 4)
                else:
                    wa = a(tail(t)[cb], 4)
                A(f"v_mfma_f32_32x32x16_bf16 {v(acc,16)}, {wa}, {a(acts[t],4)}, {c}")
                if s < nsteps: wreads(s, cb)
                if cb == 0 and waddr(t) is None:
                    if t % side_rate == 0: self.pump(1)
            if s < nsteps: lgpos[s] = A.lg_pos()
            if act_load is not None and t + PDL < nsteps: issue(t + PDL)
            elif waddr(t) is not None and t % side_rate == 0: self.pump(1)
            if mid and t in mid: mid[t]()

    def pair_reduce(self, scr, pre=None, post=None):
        A = self.A
        T = vT
        A(f"s_lshl_b32 s{sT0}, s{sW}, 12"); A(f"s_add_u32 s{sT1}, s{sT0}, {scr}"); A(f"v_add_u32 v{T}, s{sT1}, v{vL16}")
        A(f"s_xor_b32 s{sT0}, s{sT0}, 8192"); A(f"s_add_u32 s{sT0}, s{sT0}, {scr}"); A(f"v_add_u32 v{T+1}, s{sT0}, v{vL16}")
        A.nop(12 - 6)
        for j in range(4): A(f"ds_write_b128 v{T}, {v(vACC1+4*j,4)} offset:{1024*j}")
        self.fstamp("p2e", "red:written")
        if pre: pre()
        A.wait_all_lg()
        self.fstamp("p2e", "red:waited")
        A("s_barrier")
        self.fstamp("p2e", "red:barrier")
        for j in range(4): A(f"ds_read_b128 {v(T+4+4*j,4)}, v{T+1} offset:{1024*j}")
        if post: post()
        for j in range(4):
            A.wait(lg=A.lg_pos() - (3 - j))
            for i in range(4): A(f"v_add_f32 v{vACC0+4*j+i}, v{vACC0+4*j+i}, v{T+4+4*j+i}")

    def p2_setup(self):
        A = self.A
        T = vT
        vA, vB = T+50, T+51
        A(f"s_lshl_b32 s{sT0}, s{sRB64}, 6"); A(f"s_lshl_b32 s{sT1}, s{sRBK}, 5"); A(f"s_add_u32 s{sT0}, s{sT0}, s{sT1}")
        A(f"s_add_u32 s{sT1}, s{sCG}, 1")
        for (dst, sign) in ((vA, -1), (vB, +1)):
            A(f"v_add_u32 v{T}, s{sT0}, v{vM}")
            if sign < 0: A(f"v_subrev_u32 v{T}, s{sT1}, v{T}")
            else: A(f"v_add_u32 v{T}, s{sT1}, v{T}")
            A(f"v_lshrrev_b32 v{T+1}, 8, v{T}"); A(f"v_lshlrev_b32 v{T+1}, {SLAB_SH}, v{T+1}")
            A(f"v_bfe_u32 v{T+2}, v{T}, 5, 3"); A(f"v_lshl_add_u32 v{T+1}, v{T+2}, 15, v{T+1}")
            A(f"v_and_b32 v{T+2}, 31, v{T}"); A(f"v_lshl_add_u32 v{T+1}, v{T+2}, 4, v{T+1}")
            A(f"v_lshl_add_u32 v{T+1}, v{vH}, 9, v{T+1}")
            A(f"v_mov_b32 v{T+2}, 0x80000000")
            A(f"s_movk_i32 s{sT2}, 2048"); A(f"v_cmp_gt_u32 vcc, s{sT2}, v{T}")
            A.nop(2)
            A(f"v_cndmask_b32 v{dst}, v{T+2}, v{T+1}, vcc")
        vW0, vW1 = T+52, T+53
        A(f"s_lshl_b32 s{sT0}, s{sCG}, 15"); A(f"v_add_u32 v{vW0}, s{sT0}, v{vTRC0}"); A(f"v_add_u32 v{vW1}, s{sT0}, v{vTRC1}")

    def p2(self):
        A = self.A
        T = vT
        vA, vB = T+50, T+51
        vW0, vW1 = T+52, T+53
        A(f"s_lshl_b32 s{sAS}, s{sCG}, 14"); A(f"s_add_u32 s{sAS}, s{sAS}, {WS_H}")
        A(f"s_add_u32 s{sAE}, s{sAS}, 8192"); A(f"s_lshl_b32 s{sT3}, s{sKR}, 10"); A(f"s_add_u32 s{sT3}, s{sT3}, s{sAS}")
        A.wait(vm=self.pos_w2)
        self.poll_check()
        self.stamp("sync1")
        def act(i):
            r = 128 + 4*i
            if not self.cfg.krot:
                if i % 4 == 0 and i > 0: A(f"s_add_u32 s{sT3}, s{sT3}, 4096")
                A(f"buffer_load_dwordx4 {a(r,4)}, v{vA if i < 8 else vB}, {srd(SRD_WS)}, s{sT3} offen offset:{(i%4)*1024} sc1")
                return r
            if i == 8:
                A(f"s_add_u32 s{sAS}, s{sAS}, 8192"); A(f"s_add_u32 s{sAE}, s{sAE}, 8192")
                A(f"s_lshl_b32 s{sT3}, s{sKR}, 10"); A(f"s_add_u32 s{sT3}, s{sT3}, s{sAS}")
            elif i > 0:
                A(f"s_add_u32 s{sT3}, s{sT3}, 1024"); A(f"s_cmp_eq_u32 s{sT3}, s{sAE}"); A(f"s_cselect_b32 s{sT3}, s{sAS}, s{sT3}")
            A(f"buffer_load_dwordx4 {a(r,4)}, v{vA if i < 8 else vB}, {srd(SRD_WS)}, s{sT3} offen sc1")
            return r
        def window():
            A.auto = self.cfg.auto
            self.qkv_tail(vVP, keep_auto=True)
            A.auto = 0
            self.halo_publish()
            qj = self.job_strip_qkv(0, 0, 32, B0)
            for J in range(4): self.queue(qj[4*J:4*J+4], f"pos_q{J}")
            self.stamp("v tail")
        self.ksplit_gemm(16, (vW0, vW1), lambda i: i*2048, act, True, 0, self.cfg.pdl2, side_rate=1, window=window)
        A("s_barrier")
        self.stamp("p2 main")
        self.pair_reduce(A0 + 51200, pre=lambda: A.wait(vm=self.pos_halo), post=lambda: self.signal(CNT_KV, sRB64, "kv halo"))
        self.fstamp("p2e", "red:done")
        A.auto = self.cfg.auto
        X = T+20
        for j in range(8):
            A(f"v_lshlrev_b32 v{X+2*j}, 16, v{vXRES+j}"); A(f"v_and_b32 v{X+2*j+1}, 0xffff0000, v{vXRES+j}")
        S0, S1 = T+40, T+41
        NM, RR, TT, SA, SB = T+36, T+38, T+42, T+44, T+46
        A(f"v_mov_b32 v{NM}, v{vNMU}"); A(f"v_mov_b32 v{NM+1}, v{vNMU}"); A(f"v_mov_b32 v{RR}, v{vR}"); A(f"v_mov_b32 v{RR+1}, v{vR}")
        for i in range(0, 16, 2):
            A(f"v_pk_add_f32 {v(TT,2)}, {v(X+i,2)}, {v(NM,2)}")
            A(f"v_pk_fma_f32 {v(vACC0+i,2)}, {v(TT,2)}, {v(RR,2)}, {v(vACC0+i,2)}")
            A(f"v_pk_add_f32 {v(vRESID+i,2)}, {v(X+i,2)}, {v(vACC0+i,2)}")
            if i == 0:
                A(f"v_mov_b32 v{SA}, v{vACC0}"); A(f"v_mov_b32 v{SA+1}, v{vACC0+1}")
                A(f"v_pk_mul_f32 {v(SB,2)}, {v(vACC0,2)}, {v(vACC0,2)}")
            else:
                A(f"v_pk_add_f32 {v(SA,2)}, {v(SA,2)}, {v(vACC0+i,2)}")
                A(f"v_pk_fma_f32 {v(SB,2)}, {v(vACC0+i,2)}, {v(vACC0+i,2)}, {v(SB,2)}")
        A(f"v_add_f32 v{S0}, v{SA}, v{SA+1}"); A(f"v_add_f32 v{S1}, v{SB}, v{SB+1}")
        for i in range(8): A(f"v_cvt_pk_bf16_f32 v{X+i}, v{vACC0+2*i}, v{vACC0+2*i+1}")
        self.fstamp("p2e", "epi:math")
        self.frag_dest(sT2, WS_X1)
        self.pstore(f"buffer_store_dwordx4 {v(X,4)}, v{vL16}, {srd(SRD_WS)}, s{sT2} offen sc1")
        self.pstore(f"buffer_store_dwordx4 {v(X+4,4)}, v{vL16}, {srd(SRD_WS)}, s{sT2} offen offset:1024 sc1")
        self.swap_add(S0, T+42); self.swap_add(S1, T+42)
        A(f"s_lshl_b32 s{sT0}, s{sR32L}, 12"); A(f"s_lshl_b32 s{sT1}, s{sC}, 9"); A(f"s_add_u32 s{sT0}, s{sT0}, s{sT1}")
        A(f"s_lshl_b32 s{sT1}, s{sCG}, 8"); A(f"s_add_u32 s{sT0}, s{sT0}, s{sT1}"); A(f"s_add_u32 s{sT0}, s{sT0}, s{sSLAB}"); A(f"s_add_u32 s{sT0}, s{sT0}, {WS_X1S}")
        A(f"v_lshlrev_b32 v{T+42}, 3, v{vM}")
        self.pstore(f"buffer_store_dwordx2 {v(S0,2)}, v{T+42}, {srd(SRD_WS)}, s{sT0} offen sc1")
        self.pos_x1 = A.vm_pos()
        A.auto = 0
        self.fstamp("p2e", "epi:stored")
        self.flush_side()

    def shadow2(self):
        A = self.A
        T = vT
        def hqJ(J):
            A.wait(vm=getattr(self, f"pos_q{J}")); A("s_barrier")
        def hq0():
            hqJ(0)
            self.stamp("hq0")
            self.l2_touch("w4")
            self.queue(self.job_w3(8, 15, A0), "pos_w3a")
        kvcode = self.cnt_addr(CNT_KV, sRB64, -1)
        H = T+44
        def halo_load():
            self.stamp("kv chk>")
            self.poll_check()
            self.stamp("kv chk<")
            A(f"v_mov_b32 v{H}, 0"); A(f"v_mov_b32 v{H+1}, 0"); A(f"v_mov_b32 v{H+2}, 0"); A(f"v_mov_b32 v{H+3}, 0")
            l = A.newlabel("nohalo")
            A(f"s_cmp_eq_u32 s{sRB64}, 0"); A(f"s_cbranch_scc1 {l}")
            A(f"s_add_u32 s{sT1}, s{sRB64}, -1"); A(f"s_and_b32 s{sT0}, s{sT1}, 3"); A(f"s_lshl_b32 s{sT0}, s{sT0}, 3"); A(f"s_add_u32 s{sT0}, s{sT0}, s{sC}")
            A(f"s_lshl_b32 s{sT0}, s{sT0}, 12"); A(f"s_lshr_b32 s{sT1}, s{sT1}, 2"); A(f"s_lshl_b32 s{sT1}, s{sT1}, {SLAB_SH}")
            A(f"s_add_u32 s{sT0}, s{sT0}, s{sT1}"); A(f"s_add_u32 s{sT0}, s{sT0}, {WS_KV}")
            A(f"v_lshlrev_b32 v{T+48}, 4, v0")
            A.opt(f"buffer_load_dwordx4 {v(H,4)}, v{T+48}, {srd(SRD_WS)}, s{sT0} offen sc1")
            A.label(l)
            self.pos_hl = A.vm_pos()
        self.qkv_main(lambda s: B0 + s*2048, {0: hq0, 8: lambda: hqJ(1), 16: lambda: hqJ(2), 24: lambda: hqJ(3)}, side_rate=2,
                      mid={self.cfg.kvpoll_at: lambda: self.poll_issue(kvcode, 1, 8, "kv halo"), self.cfg.kvchk_at: halo_load})
        self.flush_side()
        self.stamp("q loop")
        A.wait(vm=self.pos_x1)
        A("s_barrier")
        self.stamp("x1 drained")
        self.signal(CNT_X1, sRB128, "x1")
        self.queue(self.job_strip(SRD_WO, 0, 64, B0), "pos_wo")
        self.qkv_tail(vQP)
        self.stamp("q done")
        pos_hl = self.pos_hl
        KV = A0 + 46080
        vKA = T
        A(f"s_lshl_b32 s{sT0}, s{sCG}, 1"); A(f"v_add_u32 v{T+1}, s{sT0}, v{vH}")
        A(f"v_mul_u32_u24 v{T+1}, 2560, v{T+1}")
        A(f"s_lshl_b32 s{sT0}, s{sRBK}, 5"); A(f"s_add_u32 s{sT0}, s{sT0}, 16"); A(f"v_add_u32 v{T+2}, s{sT0}, v{vM}")
        A(f"v_lshl_add_u32 v{vKA}, v{T+2}, 4, v{T+1}"); A(f"v_add_u32 v{vKA}, {KV}, v{vKA}")
        A(f"ds_write_b128 v{vKA}, {v(vKP,4)}"); A(f"ds_write_b128 v{vKA}, {v(vKP+4,4)} offset:1280")
        A(f"ds_write_b128 v{vKA}, {v(vVP,4)} offset:10240"); A(f"ds_write_b128 v{vKA}, {v(vVP+4,4)} offset:11520")
        A.wait(vm=pos_hl)
        A(f"v_lshrrev_b32 v{T+8}, 4, v0"); A(f"v_mul_u32_u24 v{T+8}, 1280, v{T+8}")
        A(f"v_and_b32 v{T+9}, 15, v0"); A(f"v_lshl_add_u32 v{T+8}, v{T+9}, 4, v{T+8}"); A(f"v_add_u32 v{T+8}, {KV}, v{T+8}")
        A(f"ds_write_b128 v{T+8}, {v(H,4)}")
        A.wait_all_lg()
        A("s_barrier")
        A.auto = self.cfg.auto
        self.stamp("kv staged")
        Q = vQP
        KB = vRING
        LG = T+12
        A(f"v_subrev_u32 v{T+10}, {14*16}, v{vKA}")
        for w in range(8):
            off = (14 - 2*w) * 16
            A(f"ds_read_b128 {v(KB+8*w,4)}, v{T+10} offset:{off}")
            A(f"ds_read_b128 {v(KB+8*w+4,4)}, v{T+10} offset:{off+1280}")
        base_lg = A.lg_pos() - 16
        for w in range(8): A(f"v_mov_b32 v{LG+w}, 0")
        for w in range(8):
            A.wait(lg=base_lg + 2*(w+1))
            for i in range(8): A(f"v_dot2c_f32_bf16 v{LG+w}, v{Q+i}, v{KB+8*w+i}")
        self.fstamp("at", "at:qk")
        au = A.auto; A.auto = 0
        self.poll_issue(self.cnt_addr(CNT_X1, sRB128), 1, 16, "x1")
        A.auto = au
        A.nop(3)
        for w in range(8):
            off = (14 - 2*w) * 16
            A(f"ds_read_b128 {v(KB+8*w,4)}, v{T+10} offset:{off+10240}")
            A(f"ds_read_b128 {v(KB+8*w+4,4)}, v{T+10} offset:{off+11520}")
        base_lg = A.lg_pos() - 16
        l = A.newlabel("nomask")
        A.auto = 0
        A(f"s_cmp_lg_u32 s{sRB64}, 0"); A(f"s_cbranch_scc1 {l}")
        A(f"s_lshl_b32 s{sT0}, s{sRBK}, 5"); A(f"v_add_u32 v{T+11}, s{sT0}, v{vM}")
        A(f"v_mov_b32 v{T+20}, 0xff800000")
        for w in range(1, 8):
            A(f"v_cmp_le_u32 vcc, {2*w}, v{T+11}")
            A.nop(2)
            A(f"v_cndmask_b32 v{LG+w}, v{T+20}, v{LG+w}, vcc")
        A.label(l)
        A.auto = self.cfg.auto
        MX = T+20
        A(f"v_max3_f32 v{MX}, v{LG}, v{LG+1}, v{LG+2}"); A(f"v_max3_f32 v{MX}, v{MX}, v{LG+3}, v{LG+4}")
        A(f"v_max3_f32 v{MX}, v{MX}, v{LG+5}, v{LG+6}"); A(f"v_max_f32 v{MX}, v{MX}, v{LG+7}")
        cs = 0.25 * 1.4426950408889634
        A(f"s_mov_b32 s{sT0}, {fbits(cs)}")
        A(f"v_mul_f32 v{MX}, {fbits(-cs)}, v{MX}")
        for w in range(8): A(f"v_fma_f32 v{LG+w}, v{LG+w}, s{sT0}, v{MX}")
        for w in range(8): A(f"v_exp_f32 v{LG+w}, v{LG+w}")
        SM = T+21
        A(f"v_add_f32 v{SM}, v{LG}, v{LG+1}")
        for w in range(2, 8): A(f"v_add_f32 v{SM}, v{SM}, v{LG+w}")
        A(f"v_rcp_f32 v{SM}, v{SM}")
        A.nop(1)
        for w in range(8): A(f"v_mul_f32 v{LG+w}, v{SM}, v{LG+w}")
        PP = T+22
        for u in range(4): A(f"v_cvt_pk_bf16_f32 v{PP+u}, v{LG+2*u}, v{LG+2*u+1}")
        self.fstamp("at", "at:sm")
        A.auto = 0
        self.flush_side()
        self.p3_bases()
        self.poll_check()
        self.stamp("sync2")
        self.queue_x1_acts()
        A.auto = self.cfg.auto
        O = vACC0
        TP = T+26
        for u in range(4):
            A.wait(lg=base_lg + 4*(u+1))
            va, vb = KB + 16*u, KB + 16*u + 8
            for i in range(8):
                t0, t1 = TP + 2*(i & 1), TP + 2*(i & 1) + 1
                A(f"v_perm_b32 v{t0}, v{vb+i}, v{va+i}, s{sPLO}")
                A(f"v_perm_b32 v{t1}, v{vb+i}, v{va+i}, s{sPHI}")
                if u == 0:
                    A(f"v_dot2_f32_bf16 v{O+2*i}, v{t0}, v{PP+u}, 0"); A(f"v_dot2_f32_bf16 v{O+2*i+1}, v{t1}, v{PP+u}, 0")
                else:
                    A(f"v_dot2c_f32_bf16 v{O+2*i}, v{t0}, v{PP+u}"); A(f"v_dot2c_f32_bf16 v{O+2*i+1}, v{t1}, v{PP+u}")
        A.nop(3)
        self.fstamp("at", "at:pv")
        OP = T+32
        for i in range(8): A(f"v_cvt_pk_bf16_f32 v{OP+i}, v{O+2*i}, v{O+2*i+1}")
        A.nop(2)
        for i in range(4): A(f"v_permlane32_swap_b32 v{OP+i}, v{OP+4+i}")
        self.frag_dest(sT0, WS_O)
        self.pstore(f"buffer_store_dwordx4 {v(OP,4)}, v{vL16}, {srd(SRD_WS)}, s{sT0} offen sc1")
        self.pstore(f"buffer_store_dwordx4 {v(OP+4,4)}, v{vL16}, {srd(SRD_WS)}, s{sT0} offen offset:1024 sc1")
        self.pos_o = A.vm_pos()
        A.auto = 0
        self.fstamp("at", "at:flushed")
        A.wait(vm=self.pos_wo)
        A("s_barrier")
        self.fstamp("at", "at:bar")
        self.emit_groups(self.job_w3(23, 7, A0 + 46080))
        self.pos_w3 = A.vm_pos()
        self.stamp("attn done")

    def c3_pass(self):
        A = self.A
        T = vT
        vLo, vHi = T, T+1
        A(f"s_add_u32 s{sT0}, s{sW}, -1"); A(f"s_mul_i32 s{sT0}, s{sT0}, {8*3072}")
        A(f"s_cmp_eq_u32 s{sW}, 0"); A(f"s_cselect_b32 s{sT0}, {C0}, s{sT0}")
        A(f"s_cmp_eq_u32 s{sW}, 3"); A(f"s_cselect_b32 s{sT1}, {C0 + 2*3072}, s{sT0}")
        A(f"v_add_u32 v{vLo}, s{sT0}, v{vTR3}"); A(f"v_add_u32 v{vHi}, s{sT1}, v{vTR3}")
        CS = T+8
        for i in range(6): A(f"v_mov_b32 v{CS+i}, 0")
        A.auto = self.cfg.auto
        def c3_reads(i):
            for blk in range(3):
                b = vRING + 4*(3*(i % 3) + blk)
                r = vLo if i < 6 else vHi
                A(f"ds_read_b64_tr_b16 {v(b,2)}, v{r} offset:{i*3072 + blk*64}")
                A(f"ds_read_b64_tr_b16 {v(b+2,2)}, v{r} offset:{i*3072 + blk*64+1536}")
            return A.lg_pos()
        cpos = {0: c3_reads(0), 1: c3_reads(1)}
        for i in range(8):
            if i + 2 < 8: cpos[i+2] = c3_reads(i+2)
            A.wait(lg=cpos[i])
            for blk in range(3):
                b = vRING + 4*(3*(i % 3) + blk)
                for r in range(4): A(f"v_dot2c_f32_bf16 v{CS+2*blk+(r&1)}, s{sONES}, v{b+r}")
        A.auto = 0
        A.nop(3)
        SC3 = B0
        for blk in range(3):
            A(f"v_add_f32 v{CS+2*blk}, v{CS+2*blk}, v{CS+2*blk+1}")
            self.swap_add(CS+2*blk, T+4)
        A(f"s_mul_i32 s{sT0}, s{sW}, 384"); A(f"v_lshl_add_u32 v{T+4}, v{vM}, 2, s{sT0}"); A(f"v_add_u32 v{T+4}, {SC3}, v{T+4}")
        for blk in range(3): A(f"ds_write_b32 v{T+4}, v{CS+2*blk} offset:{128*blk}")
        A.wait(vm=self.pos_o)
        A.wait_all_lg()
        A("s_barrier")
        self.signal(CNT_O, sRB64, "o")
        A(f"v_lshlrev_b32 v{T+4}, 2, v{vM}"); A(f"v_add_u32 v{T+4}, {SC3}, v{T+4}")
        for w in range(4):
            for blk in range(3): A(f"ds_read_b32 v{T+16+4*blk+w}, v{T+4} offset:{384*w+128*blk}")
        A(f"v_cmp_gt_u32 vcc, 32, v{vL}")
        A.wait_all_lg()
        self.vC3 = [T+46, T+47, T+48]
        for blk in range(3):
            b = T+16+4*blk
            A(f"v_add_f32 v{b}, v{b}, v{b+1}"); A(f"v_add_f32 v{b+2}, v{b+2}, v{b+3}"); A(f"v_add_f32 v{b}, v{b}, v{b+2}")
            A(f"v_cndmask_b32 v{self.vC3[blk]}, 0, v{b}, vcc")
        A("s_barrier")
        self.stamp("c3 done")

    def job_w3_small(self, s0, ns, lds0):
        return self.job_w3(s0, ns, lds0)

    def w3_addr(self, s):
        if s < 8: return C0 + s*3072
        if s < 30: return A0 + (s-8)*3072
        return C0 + (s-22)*3072

    def p3_bases(self):
        A = self.A
        A(f"s_lshl_b32 s{sP2}, s{sR32P}, 15"); A(f"s_add_u32 s{sP2}, s{sP2}, s{sSLAB}"); A(f"s_add_u32 s{sP2}, s{sP2}, {WS_X1}")
        A(f"s_lshl_b32 s{sP3}, s{sR32P}, 12"); A(f"s_add_u32 s{sP3}, s{sP3}, s{sSLAB}"); A(f"s_add_u32 s{sP3}, s{sP3}, {WS_X1S}")
        A(f"s_mul_i32 s{sP4}, s{sR32P}, {86*1024}"); A(f"s_add_u32 s{sP4}, s{sP4}, s{sSLAB}"); A(f"s_add_u32 s{sP4}, s{sP4}, {WS_G}")
        A(f"s_lshl_b32 s{sT1}, s{sCB0}, 11"); A(f"s_add_u32 s{sP4}, s{sP4}, s{sT1}")

    def queue_x1_acts(self):
        A = self.A
        self.x1_pos = {}
        for i in range(32):
            g = []
            if i % 4 == 0:
                g += [f"s_add_u32 s{sAS}, s{sR3}, {i//4}", f"s_and_b32 s{sAS}, s{sAS}, 7", f"s_lshl_b32 s{sAS}, s{sAS}, 12", f"s_add_u32 s{sAS}, s{sAS}, s{sP2}"]
            g.append(f"buffer_load_dwordx4 {a(4*i,4)}, v{vL16}, {srd(SRD_WS)}, s{sAS} offen offset:{(i%4)*1024} sc1")
            def m(i=i): self.x1_pos[i] = A.vm_pos()
            g.append(m)
            self.side.append(g)

    def p3(self):
        A = self.A
        T = vT
        vA0, vA1 = T+54, T+55
        A(f"s_lshl_b32 s{sT0}, s{sCG}, 15"); A(f"s_add_u32 s{sT0}, s{sT0}, {B0}")
        A(f"v_add_u32 v{vA0}, s{sT0}, v{vTRC0}"); A(f"v_add_u32 v{vA1}, s{sT0}, v{vTRC1}")
        A.auto = self.cfg.auto
        for i in range(16):
            for cb in range(2):
                r = 128 + 8*i + 4*cb
                A(f"ds_read_b64_tr_b16 {a(r,2)}, v{(vA0,vA1)[cb]} offset:{i*2048}")
                A(f"ds_read_b64_tr_b16 {a(r+2,2)}, v{(vA0,vA1)[cb]} offset:{i*2048 + 1024}")
        A.auto = 0
        A.wait(vm=self.pos_w3a)
        A.wait_all_lg()
        A("s_barrier")
        self.stamp("wo->reg")
        apos = self.x1_pos
        A(f"v_lshlrev_b32 v{T+3}, 3, v{vM}"); A(f"v_lshl_add_u32 v{T+3}, v{vH}, 11, v{T+3}")
        for j in range(8):
            A(f"buffer_load_dwordx2 {v(T+20+2*j,2)}, v{T+3}, {srd(SRD_WS)}, s{sP3} offen offset:{256*j} sc1")
        spos = A.vm_pos()
        self.queue(self.job_w4([39, 40, 41, 42], lambda i: B0 + 12*4096 + (i-39)*4096), "pos_tails")
        self.queue(self.job_w4(list(range(0, 12))), "pos_w4b")
        vB = [T, T+1, T+2]
        A(f"v_mov_b32 v{vB[0]}, v{vTR3}"); A(f"v_add_u32 v{vB[1]}, 65536, v{vTR3}"); A(f"v_add_u32 v{vB[2]}, 131072, v{vTR3}")
        CS = T+8
        for i in range(6): A(f"v_mov_b32 v{CS+i}, 0")
        def buf(s, blk): return vRING + 4*(3*(s % 6) + blk)
        def wread(s, blk):
            ad = self.w3_addr(s) + blk*64
            for (k, d) in ((0, 0), (2, 1536)):
                x = ad + d
                A(f"ds_read_b64_tr_b16 {v(buf(s, blk)+k,2)}, v{vB[x // 65536]} offset:{x % 65536}")
        PD = 2
        lgpos = {}
        for s in range(PD):
            for blk in range(3): wread(s, blk)
            lgpos[s] = A.lg_pos()
        for t in range(32):
            s = t + PD
            while t not in apos: self.pump(1)
            if t == 8:
                A.wait(vm=self.pos_o)
                A("s_barrier")
                self.signal(CNT_O, sRB64, "o")
            if t == 19:
                A.wait(vm=self.pos_w3)
                A("s_barrier")
            if t == 22: self.poll_issue(self.cnt_addr(CNT_O, sRB64), 1, 8, "o")
            A.wait(vm=apos[t], lg=lgpos[t])
            if t in (0, 8, 16, 24): self.fstamp("p4", f"p3:t{t}")
            for blk in range(3):
                acc = (vACC0, vACC1, vACC2)[blk]
                c = "0" if t == 0 else v(acc, 16)
                A(f"v_mfma_f32_32x32x16_bf16 {v(acc,16)}, {v(buf(t, blk),4)}, {a(4*t,4)}, {c}")
                if s < 32: wread(s, blk)
            if s < 32: lgpos[s] = A.lg_pos()
            self.pump(1)
            if t % 4 == 3:
                l = A.newlabel("cb")
                A(f"s_cmp_lg_u32 s{sW}, {t >> 3}"); A(f"s_cbranch_scc1 {l}")
                for tt in range(t - 3, t + 1):
                    for blk in range(3):
                        for r in range(4): A(f"v_dot2c_f32_bf16 v{CS+2*blk+(r&1)}, s{sONES}, v{buf(tt, blk)+r}")
                A.label(l)
        self.fstamp("p3", "pass1<")
        self.flush_side()
        SC3 = C0
        A.nop(3)
        for blk in range(3):
            A(f"v_add_f32 v{CS+2*blk}, v{CS+2*blk}, v{CS+2*blk+1}")
            self.swap_add(CS+2*blk, T+4)
        A(f"s_mul_i32 s{sT0}, s{sW}, 384"); A(f"v_lshl_add_u32 v{T+4}, v{vM}, 2, s{sT0}"); A(f"v_add_u32 v{T+4}, {SC3}, v{T+4}")
        for blk in range(3): A(f"ds_write_b32 v{T+4}, v{CS+2*blk} offset:{128*blk}")
        A.wait(vm=spos)
        S0, S1 = T+20, T+21
        for j in range(1, 8):
            A(f"v_add_f32 v{S0}, v{S0}, v{T+20+2*j}"); A(f"v_add_f32 v{S1}, v{S1}, v{T+21+2*j}")
        self.swap_add(S0, T+7); self.swap_add(S1, T+7)
        NMU1, R1 = T+5, T+6
        A(f"v_mul_f32 v{S0}, {fbits(1/512)}, v{S0}"); A(f"v_mul_f32 v{S1}, {fbits(1/512)}, v{S1}")
        A(f"v_sub_f32 v{NMU1}, 0, v{S0}"); A(f"v_fma_f32 v{S1}, v{NMU1}, v{S0}, v{S1}"); A(f"v_max_f32 v{S1}, 0, v{S1}")
        A(f"v_add_f32 v{S1}, {fbits(1e-5)}, v{S1}"); A(f"v_rsq_f32 v{R1}, v{S1}")
        A.wait(vm=self.pos_tails)
        A.wait_all_lg()
        self.poll_check()
        self.stamp("p3 main")
        A(f"v_lshlrev_b32 v{T+4}, 2, v{vM}"); A(f"v_add_u32 v{T+4}, {SC3}, v{T+4}")
        for w in range(4):
            for blk in range(3): A(f"ds_read_b32 v{T+16+4*blk+w}, v{T+4} offset:{384*w+128*blk}")
        A(f"v_cmp_gt_u32 vcc, 32, v{vL}")
        A(f"s_lshl_b32 s{sOA}, s{sR32L}, 15"); A(f"s_lshl_b32 s{sT1}, s{sCG}, 14"); A(f"s_add_u32 s{sOA}, s{sOA}, s{sT1}")
        A(f"s_add_u32 s{sOA}, s{sOA}, s{sSLAB}"); A(f"s_add_u32 s{sOA}, s{sOA}, {WS_O}")
        self.o_acts = {}; self.o_pos = {}
        A(f"s_mov_b32 s{sAS}, s{sOA}"); A(f"s_add_u32 s{sAE}, s{sOA}, 16384")
        A(f"s_lshl_b32 s{sT1}, s{sKR}, 11"); A(f"s_and_b32 s{sT1}, s{sT1}, 16383"); A(f"s_add_u32 s{sOA}, s{sOA}, s{sT1}")
        for i in range(16):
            g = []
            if not self.cfg.krot:
                if i % 4 == 0 and i > 0: g.append(f"s_add_u32 s{sOA}, s{sOA}, 4096")
                g.append(f"buffer_load_dwordx4 {a(4*i,4)}, v{vL16}, {srd(SRD_WS)}, s{sOA} offen offset:{(i%4)*1024} sc1")
            else:
                if i > 0: g += [f"s_add_u32 s{sOA}, s{sOA}, 1024", f"s_cmp_eq_u32 s{sOA}, s{sAE}", f"s_cselect_b32 s{sOA}, s{sAS}, s{sOA}"]
                g.append(f"buffer_load_dwordx4 {a(4*i,4)}, v{vL16}, {srd(SRD_WS)}, s{sOA} offen sc1")
            def m(i=i):
                self.o_acts[i] = 4*i; self.o_pos[i] = A.vm_pos()
            g.append(m)
            self.side.append(g)
        ne = self.cfg.w4_in_ge
        if ne: self.queue(self.job_w4(list(range(12, 12 + ne))))
        GK = self.gelu_consts(R1, T+34)
        A.wait_all_lg()
        self.vC3 = [T+46, T+47, T+48]
        for blk in range(3):
            b = T+16+4*blk
            A(f"v_add_f32 v{b}, v{b}, v{b+1}"); A(f"v_add_f32 v{b+2}, v{b+2}, v{b+3}"); A(f"v_add_f32 v{b}, v{b}, v{b+2}")
            A(f"v_cndmask_b32 v{self.vC3[blk]}, 0, v{b}, vcc")
        A.nop(2)
        A(f"v_mfma_f32_32x32x2_f32 {v(vACC0,16)}, v{self.vC3[0]}, v{NMU1}, {v(vACC0,16)}")
        mk0 = A.mark()
        A(f"v_mfma_f32_32x32x2_f32 {v(vACC1,16)}, v{self.vC3[1]}, v{NMU1}, {v(vACC1,16)}")
        A(f"v_mfma_f32_32x32x2_f32 {v(vACC2,16)}, v{self.vC3[2]}, v{NMU1}, {v(vACC2,16)}")
        self.pump(3)
        A.pad(mk0, 19)
        self.fstamp("ge", "g:start")
        self.pos_g = {}
        for blk in range(3):
            acc = (vACC0, vACC1, vACC2)[blk]
            if blk == 2:
                lskip3 = A.newlabel("nog2")
                A(f"s_cmp_lt_u32 s{sNBLK}, 3"); A(f"s_cbranch_scc1 {lskip3}")
            else:
                A.auto = self.cfg.auto_g
            self.gelu_body(acc, GK)
            A.auto = 0
            if blk < 2: self.fstamp("ge", f"g:blk{blk}")
            i1 = f"buffer_store_dwordx4 {v(acc,4)}, v{vL16}, {srd(SRD_WS)}, s{sP4} offen offset:{blk*2048 % 4096} sc1"
            i2 = f"buffer_store_dwordx4 {v(acc+4,4)}, v{vL16}, {srd(SRD_WS)}, s{sP4} offen offset:{blk*2048 % 4096 + 1024} sc1"
            if blk == 2:
                A(f"s_add_u32 s{sP4}, s{sP4}, 4096")
                self.pstore(i1, opt=True); self.pstore(i2, opt=True)
                A.label(lskip3)
            else:
                self.pstore(i1); self.pstore(i2)
            self.pos_g[blk] = A.vm_pos()
        vA0, vA1 = T+54, T+55
        A(f"s_lshl_b32 s{sT0}, s{sCG}, 11"); A(f"v_add_u32 v{vA0}, s{sT0}, v{vTRC0}"); A(f"v_add_u32 v{vA1}, s{sT0}, v{vTRC1}")
        A(f"v_add_u32 v{T+52}, {B0 + 12*4096}, v{vA0}"); A(f"v_add_u32 v{T+53}, {B0 + 12*4096}, v{vA1}")
        for i in range(4):
            for cb in range(2):
                r = 96 + 8*i + 4*cb
                A(f"ds_read_b64_tr_b16 {v(r,2)}, v{T+52+cb} offset:{i*4096}")
                A(f"ds_read_b64_tr_b16 {v(r+2,2)}, v{T+52+cb} offset:{i*4096 + 1024}")
        self.queue(self.job_w4(list(range(12 + ne, 28))), "pos_w4a")
        self.w4c_job = self.job_w4(list(range(28, 35)))

    def job_w4(self, slots, lds_of=None):
        lds_of = lds_of or self.w4_slot
        groups = []
        for J in range((len(slots) + 3)//4):
            rd = [slots[min(4*J + w, len(slots) - 1)] for w in range(4)]
            cb = [CB4[i] for i in rd]; ld = [lds_of(i) for i in rd]
            dc = cb[1] - cb[0]; dl = ld[1] - ld[0]
            affine = all(cb[w] == cb[0] + w*dc and ld[w] == ld[0] + w*dl for w in range(4)) and dl == 4096 and dc in (2, 3)
            if affine:
                pre = [f"s_add_u32 m0, s{sW4K}, {ld[0]}", f"s_add_u32 s{sG}, s{sW4S[dc]}, {cb[0]*32768}"]
            else:
                pre = [f"s_mov_b32 s{sD0}, {cb[0]*32768}", f"s_mov_b32 s{sD1}, {ld[0]}"]
                for w in range(1, 4):
                    if cb[w] == cb[w-1] and ld[w] == ld[w-1] and all(cb[x] == cb[w] for x in range(w, 4)) and w > 1 and False: continue
                    pre += [f"s_cmp_ge_u32 s{sW}, {w}", f"s_cselect_b32 s{sD0}, {cb[w]*32768}, s{sD0}", f"s_cselect_b32 s{sD1}, {ld[w]}, s{sD1}"]
                pre += [f"s_mov_b32 m0, s{sD1}", f"s_lshl_b32 s{sG}, s{sC}, 7", f"s_add_u32 s{sG}, s{sG}, s{sD0}"]
            groups += self.quad(pre, SRD_W4, vSTRJ)
        return groups

    def w4_slot(self, i):
        if i < 12: return B0 + i*4096
        if i < 28: return A0 + (i-12)*4096
        if i < 35: return C0 + (i-28)*4096
        return B0 + 12*4096 + (i-35)*4096

    def p4(self):
        A = self.A
        T = vT
        vA0, vA1 = T+54, T+55
        A(f"s_mul_i32 s{sT4}, s{sR32L}, {86*1024}"); A(f"s_lshl_b32 s{sT1}, s{sCG}, 10"); A(f"s_add_u32 s{sT4}, s{sT4}, s{sT1}")
        A(f"s_add_u32 s{sT4}, s{sT4}, s{sSLAB}"); A(f"s_add_u32 s{sAS}, s{sT4}, {WS_G}")
        def gsig(b, extra_lg=False):
            A.wait(vm=self.pos_g[b])
            if extra_lg: A.wait_all_lg()
            A("s_barrier")
            self.signal(CNT_G + 2*b, sRB128, f"g{b}")
        gsig(0, extra_lg=True)
        self.stamp("g0 sig")
        self.queue(self.w4c_job, "pos_w4e")
        self.queue(self.job_w4([35, 36, 37, 38]), "pos_w4l")
        while len(self.o_pos) < 16: self.pump(1)
        def mid8(): gsig(1)
        def mid12(): self.poll_issue(self.cnt_addr(CNT_G, sRB128), 1, 16, "g0")
        self.ksplit_gemm(16, None, lambda i: None, None, True, 0, 16, side_rate=1, pre=(self.o_acts, self.o_pos),
                         tail=lambda i: (128 + 8*i, 128 + 8*i + 4), mid={self.cfg.g1sig_at: mid8, 13: mid12})
        self.stamp("wo done")
        gsig(2)
        self.stamp("g drained")
        self.flush_side()
        vb = {}
        for win in range(3):
            for cb in range(2):
                r = T + 44 + 2*win + cb
                A(f"v_add_u32 v{r}, {win*65536}, v{(vA0,vA1)[cb]}")
                vb[(win, cb)] = r
        A.wait(vm=self.pos_w4b)
        self.poll_check()
        self.stamp("sync3")
        self.poll_issue(self.cnt_addr(CNT_G + 2, sRB128), 1, 16, "g1")
        acts = {}; apos = {}
        def act_g(i):
            if i == 16:
                self.poll_check()
                self.poll_issue(self.cnt_addr(CNT_G + 4, sRB128), 1, 16, "g2")
            if i == 32: self.poll_check()
            A(f"s_add_u32 s{sT4}, s{sAS}, {CB4[i]*2048}")
            r = 4*(i % 32)
            A(f"buffer_load_dwordx4 {a(r,4)}, v{vL16}, {srd(SRD_WS)}, s{sT4} offen sc1")
            acts[i] = r; apos[i] = A.vm_pos()
        PDL = self.cfg.pdl4; PD = 2; N = 43
        for i in range(PDL): act_g(i)
        lgpos = {}
        def w4reads(s, cb):
            if s >= 39: return
            ad = self.w4_slot(s)
            b = vRING + 4*(2*(s % 4) + cb)
            for (k, d) in ((0, 0), (2, 1024)):
                x = ad + d
                A(f"ds_read_b64_tr_b16 {v(b+k,2)}, v{vb[(x // 65536, cb)]} offset:{x % 65536}")
        for s in range(PD):
            w4reads(s, 0); w4reads(s, 1); lgpos[s] = A.lg_pos()
        for t in range(N):
            s = t + PD
            if s == 12:
                A("s_barrier")
            A.wait(vm=apos[t], lg=lgpos[t] if t < 39 else None)
            if t in (0, 8, 16, 24, 32, 40): self.fstamp("p4", f"p4:t{t}")
            for cb in range(2):
                acc = (vACC0, vACC1)[cb]
                wa = v(vRING + 4*(2*(t % 4) + cb), 4) if t < 39 else v(96 + 8*(t-39) + 4*cb, 4)
                A(f"v_mfma_f32_32x32x16_bf16 {v(acc,16)}, {wa}, {a(acts[t],4)}, {v(acc,16)}")
                if s < N: w4reads(s, cb)
            if s < N: lgpos[s] = A.lg_pos()
            if t + PDL < N: act_g(t + PDL)
        self.stamp("p4 main")
        self.pair_reduce(B0)
        for i in range(16): A(f"v_add_f32 v{vACC0+i}, v{vACC0+i}, v{vRESID+i}")
        P = T+24
        for i in range(8): A(f"v_cvt_pk_bf16_f32 v{P+i}, v{vACC0+2*i}, v{vACC0+2*i+1}")
        A.nop(2)
        for (x, y) in ((0, 2), (1, 3), (4, 6), (5, 7)):
            A(f"v_permlane32_swap_b32 v{P+x}, v{P+y}")
        A(f"s_lshl_b32 s{sT0}, s{sRB64}, 6"); A(f"s_lshl_b32 s{sT1}, s{sRBK}, 5"); A(f"s_add_u32 s{sT0}, s{sT0}, s{sT1}")
        A(f"v_add_u32 v{T}, s{sT0}, v{vM}"); A(f"v_lshlrev_b32 v{T}, 10, v{T}"); A(f"v_lshl_add_u32 v{T}, v{vH}, 4, v{T}")
        A(f"s_lshl_b32 s{sT0}, s{sC}, 7"); A(f"s_lshl_b32 s{sT1}, s{sCG}, 6"); A(f"s_add_u32 s{sT0}, s{sT0}, s{sT1}")
        fl = {0: "", 1: " sc1", 2: " sc0 sc1", 3: " nt"}[self.cfg.out_mode]
        A(f"buffer_store_dwordx4 {v(P,4)}, v{T}, {srd(SRD_OUT)}, s{sT0} offen{fl}")
        A(f"buffer_store_dwordx4 {v(P+4,4)}, v{T}, {srd(SRD_OUT)}, s{sT0} offen offset:32{fl}")
        self.stamp("stored")

    def build(self):
        A = self.A
        stop = self.cfg.stop_after
        self.prologue()
        self.t0_dma()
        self.setup2()
        self.stamp("setup2")
        self.t0_dma2()
        self.stamp("start")
        self.p1_h(); self.stamp("h main")
        self.p1_h_finish(); self.stamp("h pub")
        if stop != "h":
            self.shadow1(); self.stamp("kv pub")
            if stop != "kv":
                self.p2(); self.stamp("x1 pub")
                if stop != "x1":
                    self.shadow2()
                    if stop != "o":
                        self.p3(); self.stamp("g pub")
                        if stop != "g":
                            self.p4()
        self.flush_side()
        if self.cfg.final_wait or self.cfg.stamps: A("s_waitcnt vmcnt(0)")
        self.stamp("end")
        self.stamp_end()
        A.label("L_end")
        A("s_endpgm")
        return A

HEADER = """; Fused persistent kernel: x + attn(LN x) + mixer(LN x).  256 workgroups (one per CU), 4 waves each.
; @launch grid=(256,1,1) block=(256,1,1) lds=163840
.amdgcn_target "amdgcn-amd-amdhsa--gfx950"
.text
.globl {name}
.p2align 8
.type {name},@function
{name}:
"""
FOOTER = """
.section .rodata,"a"
.p2align 6
.amdhsa_kernel {name}
  .amdhsa_next_free_vgpr 512
  .amdhsa_next_free_sgpr 102
  .amdhsa_accum_offset 256
  .amdhsa_group_segment_fixed_size 0
  .amdhsa_kernarg_size 88
  .amdhsa_user_sgpr_count 2
  .amdhsa_user_sgpr_kernarg_segment_ptr 1
  .amdhsa_system_sgpr_workgroup_id_x 1
.end_amdhsa_kernel
"""

def generate(cfg):
    k = K(cfg)
    A = k.build()
    if cfg.nodma:
        keep = (srd(SRD_X), srd(SRD_W1))
        A.lines = [l for l in A.lines if not (l.endswith(" lds") and "buffer_load" in l and not any(k_ in l for k_ in keep))]
    if cfg.dma_flag:
        fl = cfg.dma_flag.replace("+", " ")
        A.lines = [l[:-4] + f" {fl} lds" if (l.endswith(" lds") and "buffer_load" in l and srd(SRD_X) not in l) else l for l in A.lines]
    probs = check_hazards(A.lines)
    generate.names = k.stamp_names
    return HEADER.format(name=NAME) + A.text() + FOOTER.format(name=NAME), probs

if __name__ == "__main__":
    cfg = Cfg()
    out = sys.argv[1] if len(sys.argv) > 1 else "parallel_sum__sliding_local_dilated__mixer_s_mlp__prompt.s"
    for arg in sys.argv[2:]:
        k, val = arg.split("=")
        setattr(cfg, k, {"True": True, "False": False, "None": None}.get(val, int(val) if val.isdigit() else val))
    txt, probs = generate(cfg)
    for p in probs: print("HAZARD:", p)
    open(out, "w").write(txt)
    print("wrote", out, len(txt), "bytes;", txt.count("\n"), "lines;", len(probs), "hazards")
```

```python
import sys, os
from asmlib import Asm, check_hazards

NAME = "parallel_sum__sliding_local_dilated__mixer_s_mlp__prompt_kernel"

class Cfg:
    stamps = False
    stop_after = None
    spin_limit = 400000
    dbgtime = False
    wallonly = False
    fine = None
    pre_chunks = 3
    preA = 2
    touch = 1
    hpoll_at = 26
    auto = 64
    cost_w3 = 96
    pdl2 = 8
    pdl3 = 22
    pdl4 = 10
    kvchk_at = 24
    kvpoll_at = 10
    auto_g = 48
    w4_in_ge = 8
    w4_before_sig = 8
    early_kv = 1
    w2_in_k = 0
    rot = 1
    out_lds = 1
    jrot = 0
    hpump = 2
    auto_h = 64
    hflush = 0
    wgxor = 0
    g1sig_at = 12
    code0 = 48
    map2d = 1
    wo_in_drain = 0
    tlb1 = 0
    tlb1_wave = 0
    nodma = 0
    dma_flag = ""
    out_mode = 3
    final_wait = 0
    dstore = 0
    krot = 0
    ftswap = 0
    cxor = 0
    chunkstamps = 0
    touch_mode = "late"
    stouch = 0
    l2touch = ""
    mallt = 1
    stouch_wave = 1
    early_touch = 0

SLAB_SH = 21
WS_H    = 0x000000
WS_O    = 0x040000
WS_X1   = 0x080000
WS_G    = 0x0C0000
WS_X1S  = 0x170000
WS_KV   = 0x180000
WS_CNT  = 0x1A0000
WS_IDLE = 0x1F0000
CNT_H, CNT_KV, CNT_X1, CNT_O, CNT_G = 0, 4, 8, 12, 16
CNT_STRIDE = 256
WS_STAMP= 0x1000000
WS_SIZE = 0x1100000

A0 = 0
B0 = 67584
C0 = 133120
SCR1 = 160768
LDS_TOTAL = 163840

sW, sRBK, sCG = 3, 4, 5
sRB64, sC, sRB128, sFT = 6, 7, 8, 9
SRD_X, SRD_WQKV, SRD_WO, SRD_W1, SRD_W2, SRD_W3, SRD_W4, SRD_OUT, SRD_WS, SRD_DBG = 40, 44, 48, 52, 56, 60, 64, 68, 72, 76
sONES, sPLO, sPHI = 80, 81, 82
sG, sG2, sT0, sT1, sT2, sT3 = 83, 84, 85, 86, 87, 88
sCB0, sNBLK = 89, 90
sSPIN = 91
sSTAMP = 22
sEXS = 94
sT4, sT5 = 96, 97
sXG, sW1G, sWL = 10, 11, 38
sD0, sD1 = 39, 92
sP2, sP3, sP4 = 16, 17, 18
sSLAB, sR32L, sR32P = 19, 20, 21
sBW, sRW2, sRWO, sR3, sR3W, sW3L, sBW4, sG4E, sAS, sAE = 27, 28, 29, 30, 31, 32, 33, 34, 35, 36
sKR = 37
sW4K = 12
sW4S = {3: 33, 2: 34}
sXSLOT = 26
sOA = 93
sROT = 14
sROT8 = 15
sRT0, sCY0 = 98, 100
vST = 253

def srd(n): return f"s[{n}:{n+3}]"

vL, vM, vH, vL16 = 1, 2, 3, 4
vSTR, vSTRQ = 5, 6
vW3 = (7, 8, 9)
vTRN, vTRC0, vTRC1, vTR3 = 10, 11, 12, 13
vNMU, vR = 14, 15
vXRES = 16
vRESID = 24
vKP, vVP, vQP = 40, 48, 56
vRING = 64
vSTRJ = (5, 136, 137, 138)
vS4J = (5, 136, 139, 140)
vSTRQJ = (6, 141, 142, 143)
vX2 = 179
vACC0, vACC1, vACC2 = 144, 160, 176
vT = 192

def v(i, n=1): return f"v{i}" if n == 1 else f"v[{i}:{i+n-1}]"
def a(i, n=1): return f"a{i}" if n == 1 else f"a[{i}:{i+n-1}]"

C0G = -2.0 * 0.7978845608028654 * 1.4426950408889634
C1G = C0G * 0.044715
import struct
def fbits(x): return "0x%08x" % struct.unpack("<I", struct.pack("<f", x))[0]

CB4 = [3*i if i <= 11 else 33 + 2*(i - 11) for i in range(16)] + [3*j + 1 if j <= 11 else 34 + 2*(j - 11) for j in range(16)] + [3*j + 2 for j in range(11)]
assert sorted(CB4) == list(range(43))

class K:
    def __init__(self, cfg):
        self.cfg = cfg
        self.A = Asm()
        self.side = []
        self.nstamp = 0
        self.stamp_names = []
        self.kA_queued = False
        self.A.pump_cb = self.paced_pump
        self.credit = 0

    def pump(self, n=1):
        for _ in range(n):
            if self.side:
                g = self.side.pop(0)
                for ins in g:
                    if callable(ins): ins()
                    else: self.A(ins)

    def group_cost(self, g):
        for x in g:
            if isinstance(x, str) and x.startswith("buffer_load") and srd(SRD_W3) in x: return self.cfg.cost_w3
        return self.cfg.auto

    def paced_pump(self, cost):
        if self.side and cost >= self.group_cost(self.side[0]):
            self.pump(1)
            return True
        return False

    def tick(self, cycles):
        self.credit += cycles
        while self.side and self.credit >= self.group_cost(self.side[0]):
            self.credit -= self.group_cost(self.side[0])
            self.pump(1)
        if not self.side: self.credit = min(self.credit, self.cfg.auto)

    def queue(self, groups, mark=None):
        groups = [list(g) for g in groups]
        if mark:
            def m(mark=mark): setattr(self, mark, self.A.vm_pos())
            groups[-1].append(m)
        self.side += groups

    def pstore(self, text, opt=False):
        A = self.A
        f = A.opt if opt else A
        f(text)
        if self.cfg.dstore: f(text.replace(" sc1", ""))

    def flush_side(self):
        self.pump(len(self.side))

    def stamp(self, name):
        if not self.cfg.stamps: return
        if self.cfg.wallonly and name != "end": return
        if self.cfg.fine and name in ("kernarg", "touched", "preA", "setup2", "start", "hk0", "hk12>", "hk12<", "hv0", "hq0", "v loop", "kv chk>", "kv chk<", "h drained", "x1 drained", "g drained"): return
        A = self.A
        i = self.nstamp; self.nstamp += 1
        self.stamp_names.append(name)
        cur = sSTAMP + 2*(i & 1); prev = sSTAMP + 2*((i+1) & 1)
        if i > 0: A(f"v_writelane_b32 v{vST}, s{prev}, {i-1}")
        A(f"s_memtime s[{cur}:{cur+1}]")

    def fstamp(self, region, name):
        if self.cfg.fine == region: self.stamp(name)

    def stamp_end(self):
        A = self.A
        if self.cfg.stamps:
            i = self.nstamp
            prev = sSTAMP + 2*((i+1) & 1)
            A("s_waitcnt lgkmcnt(0)")
            A(f"v_writelane_b32 v{vST}, s{prev}, {i-1}")
            A(f"s_memrealtime s[{sSTAMP}:{sSTAMP+1}]")
            A("s_waitcnt lgkmcnt(0)")
            A(f"v_writelane_b32 v{vST}, s{sSTAMP}, 62")
            A(f"v_writelane_b32 v{vST}, s{sRT0}, 61")
            A(f"v_writelane_b32 v{vST}, s{sCY0}, 60")
            A(f"s_lshl_b32 s{sT5}, s2, 2"); A(f"s_add_u32 s{sT5}, s{sT5}, s{sW}"); A(f"s_lshl_b32 s{sT5}, s{sT5}, 8")
            A(f"s_add_u32 s{sT5}, s{sT5}, {WS_STAMP}")
            A(f"v_lshlrev_b32 v254, 2, v{vL}")
            A(f"buffer_store_dword v{vST}, v254, {srd(SRD_WS)}, s{sT5} offen")
        if self.cfg.dbgtime:
            l = A.newlabel("dt")
            A("s_cmp_ge_u32 s2, 7"); A(f"s_cbranch_scc1 {l}")
            A(f"s_cmp_lg_u32 s{sW}, 0"); A(f"s_cbranch_scc1 {l}")
            A(f"s_memrealtime s[{sSTAMP}:{sSTAMP+1}]"); A(f"s_memtime s[{sSTAMP+2}:{sSTAMP+3}]")
            A("s_waitcnt lgkmcnt(0)")
            A(f"s_sub_u32 s{sT0}, s{sSTAMP}, s{sRT0}"); A(f"s_sub_u32 s{sT1}, s{sSTAMP+2}, s{sCY0}")
            A(f"v_mov_b32 v250, s{sT0}"); A(f"v_mov_b32 v251, s{sT1}")
            A(f"s_lshl_b32 s{sT0}, s2, 3"); A(f"s_add_u32 s{sT0}, s{sT0}, 8"); A(f"v_mov_b32 v252, s{sT0}")
            A("s_mov_b64 exec, 1")
            A(f"buffer_store_dwordx2 v[250:251], v252, {srd(SRD_DBG)}, 0 offen")
            A.label(l)

    def dma_units(self, srdn, vregs, gbase_code, gstep, lds0, n, lstep=None):
        m = len(vregs)
        if lstep is None: lstep = 1024 * m
        assert n >= 4
        groups = []
        rounds = (n + 3) // 4
        for j in range(rounds):
            if j == 0:
                g = list(gbase_code)
                g += [f"s_mul_i32 s{sD0}, s{sW}, {lstep}", f"s_add_u32 m0, s{sD0}, {lds0}",
                      f"s_mul_i32 s{sD0}, s{sW}, {gstep}", f"s_add_u32 s{sG}, s{sG2}, s{sD0}"]
            elif 4 * j + 3 < n:
                g = [f"s_add_u32 m0, m0, {4*lstep - (m-1)*1024}", f"s_add_u32 s{sG}, s{sG}, {4*gstep}"]
            else:
                g = [f"s_add_u32 s{sD0}, s{sW}, {4*j}", f"s_min_u32 s{sD0}, s{sD0}, {n-1}",
                     f"s_mul_i32 s{sD1}, s{sD0}, {lstep}", f"s_add_u32 m0, s{sD1}, {lds0}",
                     f"s_mul_i32 s{sD1}, s{sD0}, {gstep}", f"s_add_u32 s{sG}, s{sG2}, s{sD1}"]
            for i, vr in enumerate(vregs):
                if i > 0:
                    groups.append(g)
                    g = ["s_add_u32 m0, m0, 1024", "s_nop 0"]
                g = g + [f"buffer_load_dwordx4 v{vr}, {srd(srdn)}, s{sG} offen lds"]
            groups.append(g)
        return groups

    def poll_issue(self, addr_code, nl, target, what):
        A = self.A
        skip = A.newlabel("piskip")
        A(f"s_cmp_lg_u32 s{sW}, 3"); A(f"s_cbranch_scc1 {skip}")
        for ins in addr_code: A(ins)
        A(f"v_mov_b32 v251, {target}")
        A(f"s_mov_b64 s[{sEXS}:{sEXS+1}], exec"); A(f"s_mov_b64 exec, {(1 << nl) - 1}")
        A.opt(f"buffer_load_dword v252, v250, {srd(SRD_WS)}, 0 offen sc1")
        A(f"s_mov_b64 exec, s[{sEXS}:{sEXS+1}]")
        A.label(skip)
        self.poll_state = (nl, A.vm_pos(), what)

    def poll_check(self, srdn=None):
        A = self.A
        nl, pos, what = self.poll_state
        skip = A.newlabel("pskip"); loop = A.newlabel("ploop"); done = A.newlabel("pdone"); chk = A.newlabel("pchk")
        A(f"s_cmp_lg_u32 s{sW}, 3"); A(f"s_cbranch_scc1 {skip}")
        A(f"s_mov_b64 s[{sEXS}:{sEXS+1}], exec"); A(f"s_mov_b64 exec, {(1 << nl) - 1}")
        A(f"s_mov_b32 s{sSPIN}, {self.cfg.spin_limit}")
        A.wait(vm=pos)
        A(f"s_branch {chk}")
        A.label(loop)
        A.opt(f"buffer_load_dword v252, v250, {srd(SRD_WS)}, 0 offen sc1")
        A("s_waitcnt vmcnt(0)")
        A.label(chk)
        A("v_cmp_ge_u32 vcc, v252, v251")
        A(f"s_sub_u32 s{sSPIN}, s{sSPIN}, 1"); A(f"s_cbranch_scc1 {done}")
        A("s_cmp_eq_u64 vcc, exec"); A(f"s_cbranch_scc0 {loop}")
        A.label(done)
        A(f"s_mov_b64 exec, s[{sEXS}:{sEXS+1}]")
        A.label(skip)
        A("s_barrier")

    def poll(self, addr_code, nl, target, what):
        self.poll_issue(addr_code, nl, target, what)
        self.poll_check()

    def signal(self, cnt, sidx, what, init_check=False):
        A = self.A
        skip = A.newlabel("askip")
        A(f"s_cmp_lg_u32 s{sW}, 3"); A(f"s_cbranch_scc1 {skip}")
        A(f"s_mov_b64 s[{sEXS}:{sEXS+1}], exec"); A("s_mov_b64 exec, 1")
        if init_check:
            loop = A.newlabel("iloop"); done = A.newlabel("idone"); chk = A.newlabel("ichk")
            A(f"s_mov_b32 s{sSPIN}, {self.cfg.spin_limit}")
            A(f"s_branch {chk}")
            A.label(loop)
            A.opt(f"buffer_load_dword v247, v246, {srd(SRD_DBG)}, 0 offen sc1")
            A("s_waitcnt vmcnt(0)")
            A.label(chk)
            A("v_cmp_eq_u32 vcc, 1, v247")
            A(f"s_sub_u32 s{sSPIN}, s{sSPIN}, 1"); A(f"s_cbranch_scc1 {done}")
            A("s_cmp_eq_u64 vcc, exec"); A(f"s_cbranch_scc0 {loop}")
            A.label(done)
        A(f"s_and_b32 s{sT5}, s{sidx}, {3 if sidx == sRB64 else 1}"); A(f"s_lshl_b32 s{sT5}, s{sT5}, 8"); A(f"s_add_u32 s{sT5}, s{sT5}, s{sSLAB}")
        A(f"s_add_u32 s{sT5}, s{sT5}, {WS_CNT + cnt*CNT_STRIDE}")
        A(f"v_mov_b32 v248, s{sT5}"); A("v_mov_b32 v249, 1")
        A.opt(f"buffer_atomic_add v249, v248, {srd(SRD_WS)}, 0 offen")
        A(f"s_mov_b64 exec, s[{sEXS}:{sEXS+1}]")
        A.label(skip)

    def init_poll_issue(self):
        A = self.A
        skip = A.newlabel("iiskip")
        A(f"s_cmp_lg_u32 s{sW}, 3"); A(f"s_cbranch_scc1 {skip}")
        A.opt(f"buffer_load_dword v247, v246, {srd(SRD_DBG)}, 0 offen sc1")
        A.label(skip)

    def cnt_addr(self, cnt, sidx, delta=0):
        if delta == 0:
            return [f"s_and_b32 s{sT5}, s{sidx}, {3 if sidx == sRB64 else 1}", f"s_lshl_b32 s{sT5}, s{sT5}, 8", f"s_add_u32 s{sT5}, s{sT5}, s{sSLAB}",
                    f"s_add_u32 s{sT5}, s{sT5}, {WS_CNT + cnt*CNT_STRIDE}", f"v_mov_b32 v250, s{sT5}"]
        assert sidx == sRB64
        return [f"s_add_u32 s{sT5}, s{sidx}, {delta}", f"s_max_i32 s{sT5}, s{sT5}, 0", f"v_mov_b32 v250, s{sT5}"] + self.cnt64_v(cnt)

    def cnt64_v(self, cnt):
        return ["v_lshrrev_b32 v251, 2, v250", f"v_lshlrev_b32 v251, {SLAB_SH}, v251", "v_and_b32 v250, 3, v250",
                "v_lshl_add_u32 v250, v250, 8, v251", f"v_add_u32 v250, {WS_CNT + cnt*CNT_STRIDE}, v250"]

    def frag_dest(self, sdst, region):
        A = self.A
        A(f"s_lshl_b32 s{sdst}, s{sR32L}, 15"); A(f"s_lshl_b32 s{sT1}, s{sC}, 12"); A(f"s_add_u32 s{sdst}, s{sdst}, s{sT1}")
        A(f"s_lshl_b32 s{sT1}, s{sCG}, 11"); A(f"s_add_u32 s{sdst}, s{sdst}, s{sT1}"); A(f"s_add_u32 s{sdst}, s{sdst}, s{sSLAB}")
        A(f"s_add_u32 s{sdst}, s{sdst}, {region}")

    def swap_add(self, x, tmp):
        A = self.A
        A(f"v_mov_b32 v{tmp}, v{x}")
        A.nop(2)
        A(f"v_permlane32_swap_b32 v{x}, v{tmp}")
        A.nop(1)
        A(f"v_add_f32 v{x}, v{x}, v{tmp}")

    def prologue(self):
        A = self.A
        A("s_cmp_ge_u32 s2, 256"); A("s_cbranch_scc1 L_end")
        if self.cfg.wgxor: A(f"s_xor_b32 s2, s2, {self.cfg.wgxor}")
        if self.cfg.stamps or self.cfg.dbgtime:
            A(f"s_memrealtime s[{sRT0}:{sRT0+1}]"); A(f"s_memtime s[{sCY0}:{sCY0+1}]")
        A("s_load_dwordx16 s[16:31], s[0:1], 0")
        A("s_load_dwordx4 s[32:35], s[0:1], 64")
        A("s_load_dwordx2 s[36:37], s[0:1], 80")
        if self.cfg.code0:
            A("s_getpc_b64 s[96:97]")
            A("v_lshlrev_b32 v6, 7, v0")
            A(f"v_cmp_gt_u32 vcc, {self.cfg.code0}, v0")
            A(f"s_and_saveexec_b64 s[{sEXS}:{sEXS+1}], vcc")
            l0 = A.newlabel("c0")
            A(f"s_cbranch_execz {l0}")
            A.opt("global_load_dword v255, v6, s[96:97]")
            A.label(l0)
            A(f"s_mov_b64 exec, s[{sEXS}:{sEXS+1}]")
        A(f"v_lshrrev_b32 v5, 6, v0")
        A(f"v_and_b32 v{vL}, 63, v0")
        A(f"v_readfirstlane_b32 s{sW}, v5")
        A(f"v_and_b32 v{vM}, 31, v{vL}")
        A(f"v_lshrrev_b32 v{vH}, 5, v{vL}")
        A(f"v_lshlrev_b32 v{vL16}, 4, v{vL}")
        A("s_and_b32 s10, s2, 7"); A("s_lshr_b32 s11, s2, 3")
        if self.cfg.map2d:
            A(f"s_lshr_b32 s{sT1}, s10, 1"); A(f"s_and_b32 s{sT2}, s10, 1")
            A(f"s_lshr_b32 s{sT0}, s11, 2"); A(f"s_lshl_b32 s{sRB64}, s{sT1}, 3"); A(f"s_add_u32 s{sRB64}, s{sRB64}, s{sT0}")
            A(f"s_and_b32 s{sC}, s11, 3"); A(f"s_lshl_b32 s{sT0}, s{sT2}, 2"); A(f"s_add_u32 s{sC}, s{sC}, s{sT0}")
            A(f"s_lshr_b32 s{sT0}, s11, 3"); A(f"s_lshl_b32 s{sRB128}, s{sT1}, 2"); A(f"s_add_u32 s{sRB128}, s{sRB128}, s{sT0}")
            A(f"s_and_b32 s{sFT}, s11, 7"); A(f"s_lshl_b32 s{sT0}, s{sT2}, 3"); A(f"s_add_u32 s{sFT}, s{sFT}, s{sT0}")
        else:
            A(f"s_lshr_b32 s{sT0}, s11, 3"); A(f"s_lshl_b32 s{sRB64}, s10, 2"); A(f"s_add_u32 s{sRB64}, s{sRB64}, s{sT0}")
            A(f"s_and_b32 s{sC}, s11, 7")
            if self.cfg.cxor: A(f"s_xor_b32 s{sC}, s{sC}, {self.cfg.cxor}")
            A(f"s_lshr_b32 s{sT0}, s11, 4"); A(f"s_lshl_b32 s{sRB128}, s10, 1"); A(f"s_add_u32 s{sRB128}, s{sRB128}, s{sT0}")
            A(f"s_and_b32 s{sFT}, s11, 15")
        A(f"s_and_b32 s{sRBK}, s{sW}, 1"); A(f"s_lshr_b32 s{sCG}, s{sW}, 1")
        if self.cfg.rot == 2:
            A(f"s_add_u32 s{sROT}, s{sRB64}, s{sC}"); A(f"s_and_b32 s{sROT}, s{sROT}, 7")
        elif self.cfg.rot == 3:
            A(f"s_lshl_b32 s{sROT}, s{sC}, 1"); A(f"s_add_u32 s{sROT}, s{sROT}, s{sRB64}"); A(f"s_and_b32 s{sROT}, s{sROT}, 7")
        elif self.cfg.rot:
            A(f"s_and_b32 s{sROT}, s{sRB64}, 3"); A(f"s_lshl_b32 s{sROT}, s{sROT}, 1"); A(f"s_add_u32 s{sROT}, s{sROT}, s{sC}"); A(f"s_and_b32 s{sROT}, s{sROT}, 7")
        else:
            A(f"s_mov_b32 s{sROT}, 0")
        A(f"s_lshl_b32 s{sROT8}, s{sROT}, 1"); A(f"s_add_u32 s{sROT8}, s{sROT8}, s{sW}"); A(f"s_lshl_b32 s{sROT8}, s{sROT8}, 2")
        A(f"s_lshl_b32 s{sW4K}, s{sW}, 12")
        A(f"s_lshr_b32 s{sT3}, s2, 3")
        A(f"v_lshrrev_b32 v7, 3, v{vL}")
        A(f"v_and_b32 v8, 7, v{vL}")
        A(f"v_bfe_u32 v9, v{vL}, 4, 1"); A("v_lshlrev_b32 v9, 2, v9"); A("v_xor_b32 v9, v8, v9"); A("v_lshlrev_b32 v9, 4, v9")
        A(f"v_lshl_add_u32 v{vSTR}, v7, 10, v9")
        A(f"v_mul_u32_u24 v{vSTRQ}, 3072, v7"); A(f"v_add_u32 v{vSTRQ}, v{vSTRQ}, v9")
        A(f"v_lshrrev_b32 v9, 4, v{vL}"); A("v_xor_b32 v9, v8, v9"); A("v_lshlrev_b32 v9, 4, v9"); A("v_lshl_add_u32 v14, v7, 10, v9")
        A(f"v_xor_b32 v{vX2}, 64, v14"); A(f"v_add_u32 v{vX2}, 7168, v{vX2}")
        A(f"v_add_u32 v{vSTRJ[1]}, 7168, v{vSTR}")
        A("s_waitcnt lgkmcnt(0)")
        self.stamp("kernarg")
        if self.cfg.tlb1:
            wsel = self.cfg.tlb1_wave
            l = A.newlabel("tl")
            if wsel >= 0: A(f"s_cmp_lg_u32 s{sW}, {wsel}"); A(f"s_cbranch_scc1 {l}")
            ptrs = [16, 24, 18, 36, 26, 28, 20, 30, 32, 34][:self.cfg.tlb1]
            A("v_mov_b32 v250, s16"); A("v_mov_b32 v251, s17")
            A(f"s_lshr_b32 s{sT0}, s{sRB64}, 2"); A(f"s_lshl_b32 s{sT0}, s{sT0}, {SLAB_SH}"); A(f"s_add_u32 s{sT0}, s{sT0}, s36"); A(f"s_addc_u32 s{sT1}, s37, 0")
            for i, p in enumerate(ptrs):
                if i == 0: continue
                lo, hi = (sT0, sT1) if p == 36 else (p, p + 1)
                A(f"v_writelane_b32 v250, s{lo}, {i}"); A(f"v_writelane_b32 v251, s{hi}, {i}")
            A(f"s_mov_b64 s[{sEXS}:{sEXS+1}], exec"); A(f"s_bfm_b64 exec, {len(ptrs)}, 0")
            (A if wsel < 0 else A.opt)("global_load_dword v255, v[250:251], off")
            A(f"s_mov_b64 exec, s[{sEXS}:{sEXS+1}]")
            A.label(l)
        self.build_srds(((SRD_X, 16, 2097152), (SRD_W1, 24, 524288), (SRD_WQKV, 18, 1572864)))

    def scalar_touch(self):
        A = self.A
        if not self.cfg.stouch: return
        l = A.newlabel("st")
        A(f"s_cmp_lg_u32 s{sW}, {self.cfg.stouch_wave}"); A(f"s_cbranch_scc1 {l}")
        for p in (18, 26, 28, 20, 30, 32, 34):
            A(f"s_load_dword s{sT4}, s[{p}:{p+1}], 0")
        A("s_mov_b32 s12, s36"); A("s_mov_b32 s13, s37")
        for i in range(8):
            A(f"s_load_dword s{sT4}, s[12:13], 0")
            if i < 7: A("s_add_u32 s12, s12, 0x200000"); A("s_addc_u32 s13, s13, 0")
        A.label(l)

    def build_srds(self, lst):
        A = self.A
        for (n, p, size) in lst:
            A(f"s_mov_b32 s{n}, s{p}"); A(f"s_and_b32 s{n+1}, s{p+1}, 0xffff")
            A(f"s_mov_b32 s{n+2}, {size}"); A(f"s_mov_b32 s{n+3}, 0x20000")

    def emit_groups(self, gs):
        for g in gs:
            for ins in g:
                if callable(ins): ins()
                else: self.A(ins)

    def t0_dma(self):
        A = self.A
        self.stamp("touched")
        A(f"s_lshl_b32 s{sXG}, s{sRB64}, 16"); A(f"s_lshl_b32 s{sT0}, s{sW}, 14"); A(f"s_add_u32 s{sXG}, s{sXG}, s{sT0}")
        A(f"s_lshl_b32 s{sW1G}, s{sC}, 7"); A(f"s_add_u32 s{sW1G}, s{sW1G}, s{sT0}")
        A(f"s_lshl_b32 s{sWL}, s{sW}, 11")
        self.chunk_pos = {}
        for q in range(self.cfg.preA): self.emit_groups(self.chunk_dma(q))
        self.scalar_touch()
        self.start_touch()
        self.stamp("preA")
        self.build_srds(((SRD_WS, 36, WS_SIZE), (SRD_DBG, 34, 256), (SRD_WO, 20, 524288), (SRD_W2, 26, 524288),
                         (SRD_W3, 28, 1409024), (SRD_W4, 30, 1409024), (SRD_OUT, 32, 2097152)))
        A(f"s_lshr_b32 s{sSLAB}, s{sRB64}, 2"); A(f"s_lshl_b32 s{sSLAB}, s{sSLAB}, {SLAB_SH}")
        A(f"s_and_b32 s{sR32L}, s{sRB64}, 3"); A(f"s_lshl_b32 s{sR32L}, s{sR32L}, 1"); A(f"s_add_u32 s{sR32L}, s{sR32L}, s{sRBK}")
        A(f"s_and_b32 s{sR32P}, s{sRB128}, 1"); A(f"s_lshl_b32 s{sR32P}, s{sR32P}, 2"); A(f"s_add_u32 s{sR32P}, s{sR32P}, s{sW}")
        l = A.newlabel("zi")
        A(f"s_cmp_lg_u32 s2, 0"); A(f"s_cbranch_scc1 {l}")
        A(f"s_cmp_lg_u32 s{sW}, 3"); A(f"s_cbranch_scc1 {l}")
        A(f"v_lshrrev_b32 v250, 5, v{vL}"); A(f"v_lshlrev_b32 v250, {SLAB_SH}, v250"); A(f"v_and_b32 v251, 31, v{vL}")
        A("v_lshl_add_u32 v250, v251, 8, v250"); A(f"v_add_u32 v250, {WS_CNT}, v250"); A("v_mov_b32 v251, 0")
        for i in range(4):
            A.opt(f"buffer_store_dword v251, v250, {srd(SRD_WS)}, 0 offen sc1")
            if i < 3: A(f"v_add_u32 v250, {2 << SLAB_SH}, v250")
        A.label(l)
        A("v_mov_b32 v246, 0"); A("v_mov_b32 v250, 0")
        self.pos_zero = A.vm_pos()
        if self.cfg.touch_mode == "early": self.weight_touch()

    def start_touch(self):
        A = self.A
        if not self.cfg.touch: return
        le = A.newlabel("te")
        A(f"s_cmp_eq_u32 s{sW}, 3"); A(f"s_cbranch_scc0 {le}")
        A(f"s_mov_b64 s[{sEXS}:{sEXS+1}], exec")
        A("s_mov_b64 exec, 0xff")
        A("s_getpc_b64 s[96:97]")
        A.label("L_pc")
        A(f"s_lshl_b32 s{sT0}, s{sT3}, 10"); A(f"v_lshlrev_b32 v250, 7, v{vL}"); A(f"v_add_u32 v250, s{sT0}, v250")
        A("v_min_u32 v250, L_end-L_pc, v250")
        A.opt("global_load_dword v255, v250, s[96:97]")
        A("s_bfm_b64 exec, 48, 0")
        A(f"s_mul_i32 s{sT0}, s2, {48*128}"); A(f"v_lshlrev_b32 v250, 7, v{vL}")
        A.opt(f"buffer_load_dword v255, v250, {srd(SRD_WQKV)}, s{sT0} offen")
        A(f"s_mov_b64 exec, s[{sEXS}:{sEXS+1}]")
        A.label(le)

    def t0_dma2(self):
        for q in range(self.cfg.preA, self.cfg.pre_chunks): self.emit_groups(self.chunk_dma(q))

    def weight_touch(self, tlb_only=False, with_ws=True):
        A = self.A
        if not self.cfg.touch: return
        le = A.newlabel("lte")
        labels = [A.newlabel("lt") for _ in range(4)]
        A(f"s_mov_b64 s[{sEXS}:{sEXS+1}], exec")
        A(f"v_lshlrev_b32 v250, 7, v{vL}")
        plan = (((SRD_W2, 16, 0), (SRD_WO, 16, 0)), ((SRD_W3, 22, 0), (SRD_W3, 21, 22)), ((SRD_W4, 22, 0), (SRD_W4, 21, 22)), None)
        for w, items in enumerate(plan):
            A.label(labels[w])
            f = A if w == 0 else A.opt
            if w < 3:
                A(f"s_cmp_eq_u32 s{sW}, {w}"); A(f"s_cbranch_scc0 {labels[w+1]}")
                for (srdn, n, first) in items:
                    tot = 16 if srdn in (SRD_W2, SRD_WO) else 43
                    A(f"s_bfm_b64 exec, {n}, 0")
                    A(f"s_mul_i32 s{sT5}, s2, {tot*128}")
                    if first: A(f"s_add_u32 s{sT5}, s{sT5}, {first*128}")
                    f(f"buffer_load_dword v255, v250, {srd(srdn)}, s{sT5} offen")
                A(f"s_branch {le}")
            else:
                A("s_mov_b64 exec, 3"); A(f"v_lshlrev_b32 v250, 20, v{vL}")
                f(f"buffer_load_dword v255, v250, {srd(SRD_OUT)}, 0 offen")
                A("s_mov_b64 exec, 1"); A(f"s_add_u32 s{sT5}, s{sSLAB}, {WS_IDLE}")
                f(f"buffer_load_dword v255, v246, {srd(SRD_WS)}, s{sT5} offen")
        A.label(le)
        A(f"s_mov_b64 exec, s[{sEXS}:{sEXS+1}]")

    def l2_touch(self, what):
        A = self.A
        if what not in self.cfg.l2touch.split("+"): return
        T = 240
        srdn, nlines = {"w2": (SRD_W2, 4096), "wo": (SRD_WO, 4096), "w4": (SRD_W4, 11008), "w3": (SRD_W3, 11008),
                        "wq": (SRD_WQKV, 4096), "wv": (SRD_WQKV, 4096)}[what]
        per = nlines // 128
        A(f"s_lshr_b32 s{sT5}, s2, 3"); A(f"s_lshl_b32 s{sT5}, s{sT5}, 2"); A(f"s_add_u32 s{sT5}, s{sT5}, s{sW}")
        if what in ("wq", "wv"):
            A(f"s_mul_i32 s{sT5}, s{sT5}, {4*3072}")
            if what == "wv": A(f"s_add_u32 s{sT5}, s{sT5}, 2048")
            A(f"v_lshrrev_b32 v{T}, 3, v{vL}"); A(f"v_mul_u32_u24 v{T}, 3072, v{T}"); A(f"v_and_b32 v{T+1}, 7, v{vL}")
            A(f"v_lshl_add_u32 v{T}, v{T+1}, 7, v{T}")
        else:
            A(f"s_mul_i32 s{sT5}, s{sT5}, {per*128}")
            A(f"v_lshlrev_b32 v{T}, 7, v{vL}")
        A(f"s_mov_b64 s[{sEXS}:{sEXS+1}], exec")
        for r0 in range(0, per, 64):
            n = min(64, per - r0)
            if n < 64: A(f"s_bfm_b64 exec, {n}, 0")
            if r0: A(f"s_add_u32 s{sT5}, s{sT5}, {64*128}")
            A(f"buffer_load_dword v255, v{T}, {srd(srdn)}, s{sT5} offen")
        A(f"s_mov_b64 exec, s[{sEXS}:{sEXS+1}]")

    def l2_touch_rows(self, srdn, ranges, tmp):
        A = self.A
        A(f"s_lshr_b32 s{sT5}, s2, 3"); A(f"s_lshl_b32 s{sT5}, s{sT5}, 2"); A(f"s_add_u32 s{sT5}, s{sT5}, s{sW}")
        A(f"v_lshlrev_b32 v{tmp}, 7, v{vL}")
        A(f"s_mov_b64 s[{sEXS}:{sEXS+1}], exec")
        for (r0, nr) in ranges:
            per = (nr * 8 + 127) // 128
            assert per <= 64
            A(f"s_mul_i32 s{sT0}, s{sT5}, {per*128}"); A(f"s_add_u32 s{sT0}, s{sT0}, {r0*1024}")
            A(f"s_bfm_b64 exec, {per}, 0") if per < 64 else A("s_mov_b64 exec, -1")
            A(f"buffer_load_dword v255, v{tmp}, {srd(srdn)}, s{sT0} offen")
        A(f"s_mov_b64 exec, s[{sEXS}:{sEXS+1}]")

    def chunk_dma(self, q):
        gs = [[f"s_add_u32 s{sD1}, s{sROT}, {q}", f"s_and_b32 s{sD1}, s{sD1}, 7", f"s_lshl_b32 s{sD0}, s{sD1}, 7",
               f"s_add_u32 m0, s{sWL}, {A0 + q*8192}", f"s_add_u32 s{sD0}, s{sD0}, s{sXG}",
               f"buffer_load_dwordx4 v14, {srd(SRD_X)}, s{sD0} offen lds"],
              [f"buffer_load_dwordx4 v{vX2}, {srd(SRD_X)}, s{sD0} offen offset:1024 lds"],
              [f"s_lshl_b32 s{sD0}, s{sD1}, 16",
               f"s_add_u32 m0, s{sWL}, {B0 + q*8192}", f"s_add_u32 s{sD0}, s{sD0}, s{sW1G}",
               f"buffer_load_dwordx4 v{vSTR}, {srd(SRD_W1)}, s{sD0} offen lds"],
              [f"buffer_load_dwordx4 v{vSTRJ[1]}, {srd(SRD_W1)}, s{sD0} offen offset:1024 lds"]]
        def mark(q=q): self.chunk_pos[q] = self.A.vm_pos()
        gs[-1].append(mark)
        return gs

    def quad(self, pre, srdn, vregs):
        return [(pre if j == 0 else []) + [f"buffer_load_dwordx4 v{vregs[j]}, {srd(srdn)}, s{sG} offen" + (f" offset:{1024*j}" if j else "") + " lds"]
                for j in range(4)]

    def job_strip_qkv(self, which, s0, ns, lds0):
        assert ns % 8 == 0
        groups = []
        for J in range(ns // 8):
            pre = [f"s_add_u32 m0, s{sW4K}, {lds0 + 16384*J}", f"s_add_u32 s{sD0}, s{sROT8}, {2*s0 + 16*J}", f"s_and_b32 s{sD0}, s{sD0}, 63",
                   f"s_mul_i32 s{sD0}, s{sD0}, {8*3072}", f"s_lshl_b32 s{sG}, s{sC}, 7", f"s_add_u32 s{sG}, s{sG}, s{sD0}"]
            if which: pre.append(f"s_add_u32 s{sG}, s{sG}, {which*1024}")
            groups += self.quad(pre, SRD_WQKV, vSTRQJ)
        return groups

    def job_strip(self, srdn, u0, nunits, lds_base):
        assert u0 % 16 == 0 and nunits % 16 == 0 and not self.cfg.krot
        groups = []
        for J in range(nunits // 16):
            u = u0 + 16*J
            if self.cfg.jrot and u0 == 0 and nunits == 64:
                pre = [f"s_add_u32 s{sD0}, s{sRB64}, {J}", f"s_and_b32 s{sD0}, s{sD0}, 3", f"s_lshl_b32 s{sD1}, s{sD0}, 14", f"s_add_u32 s{sD1}, s{sD1}, s{sW4K}",
                       f"s_add_u32 m0, s{sD1}, {lds_base}", f"s_lshl_b32 s{sD0}, s{sD0}, 17", f"s_add_u32 s{sG}, s{sBW}, s{sD0}"]
            else:
                pre = [f"s_add_u32 m0, s{sW4K}, {lds_base + 1024*u}", f"s_add_u32 s{sG}, s{sBW}, {u*8192}"]
            groups += self.quad(pre, srdn, vSTRJ)
        return groups

    def job_w3(self, s0, ns, lds0):
        groups = []
        full_prev = False
        for j in range((ns + 3)//4):
            full = 4*j + 3 < ns
            if full and full_prev:
                g = [f"s_add_u32 m0, m0, {4*3072}", f"s_add_u32 s{sG}, s{sG}, {4*16*2752}"]
            else:
                if full:
                    g = [f"s_add_u32 m0, s{sW3L}, {lds0 + 4*j*3072}", f"s_add_u32 s{sD0}, s{sW}, {s0 + 4*j}"]
                else:
                    g = [f"s_add_u32 s{sD1}, s{sW}, {4*j}", f"s_min_u32 s{sD1}, s{sD1}, {ns-1}", f"s_mul_i32 s{sD0}, s{sD1}, 3072",
                         f"s_add_u32 m0, s{sD0}, {lds0}", f"s_add_u32 s{sD0}, s{sD1}, {s0}"]
                g += [f"s_mul_i32 s{sD0}, s{sD0}, {16*2752}", f"s_lshl_b32 s{sD1}, s{sCB0}, 6", f"s_add_u32 s{sG}, s{sD0}, s{sD1}"]
            full_prev = full
            for i in range(3):
                ins = f"buffer_load_dwordx4 v{vW3[i]}, {srd(SRD_W3)}, s{sG} offen" + (f" offset:{1024*i}" if i else "") + " lds"
                groups.append((g if i == 0 else []) + [ins])
        return groups

    def setup2(self):
        A = self.A
        A(f"s_mov_b32 s{sONES}, 0x3f803f80"); A(f"s_mov_b32 s{sPLO}, 0x05040100"); A(f"s_mov_b32 s{sPHI}, 0x07060302")
        if self.cfg.ftswap:
            A(f"s_cmp_eq_u32 s{sFT}, 3"); A(f"s_cselect_b32 s{sT0}, 12, s{sFT}")
            A(f"s_cmp_eq_u32 s{sFT}, 12"); A(f"s_cselect_b32 s{sFT}, 3, s{sT0}")
        A(f"s_mul_i32 s{sCB0}, s{sFT}, 3"); A(f"s_mov_b32 s{sNBLK}, 3")
        A(f"s_cmp_lt_u32 s{sFT}, 11"); l = A.newlabel("ft"); A(f"s_cbranch_scc1 {l}")
        A(f"s_lshl_b32 s{sCB0}, s{sFT}, 1"); A(f"s_add_u32 s{sCB0}, s{sCB0}, 11"); A(f"s_mov_b32 s{sNBLK}, 2")
        A.label(l)
        A(f"s_lshl_b32 s{sBW}, s{sC}, 7"); A(f"s_lshl_b32 s{sT0}, s{sW}, 15"); A(f"s_add_u32 s{sBW}, s{sBW}, s{sT0}")
        A(f"s_lshl_b32 s{sT1}, s{sC}, 7"); A(f"s_mul_i32 s{sT0}, s{sW}, {3*32768}"); A(f"s_add_u32 s{sW4S[3]}, s{sT0}, s{sT1}")
        A(f"s_lshl_b32 s{sT0}, s{sW}, 16"); A(f"s_add_u32 s{sW4S[2]}, s{sT0}, s{sT1}")
        A(f"s_mul_i32 s{sW3L}, s{sW}, 3072")
        A(f"s_mov_b32 s{sR3}, 0"); A(f"s_mov_b32 s{sKR}, 0")
        for j in (2, 3): A(f"v_add_u32 v{vSTRJ[j]}, {7168*j}, v{vSTR}")
        A(f"v_add_u32 v{vS4J[2]}, {43*16384 - 2048}, v{vSTR}"); A(f"v_add_u32 v{vS4J[3]}, {43*16384 + 8192 - 3072}, v{vSTR}")
        for j in (1, 2, 3): A(f"v_add_u32 v{vSTRQJ[j]}, {23552*j}, v{vSTRQ}")
        T = vT
        A(f"v_bfe_u32 v{T}, v{vL}, 2, 2")
        A(f"v_and_b32 v{T+1}, 3, v{vL}"); A(f"v_lshlrev_b32 v{T+1}, 3, v{T+1}")
        A(f"v_bfe_u32 v{T+2}, v{vL}, 4, 1"); A(f"v_lshl_add_u32 v{T+1}, v{T+2}, 5, v{T+1}")
        A(f"v_lshrrev_b32 v{T+2}, 1, v{T}")
        A(f"v_xor_b32 v{T+3}, s{sCG}, v{T+2}")
        A(f"v_lshlrev_b32 v{T+3}, 6, v{T+3}")
        A(f"v_lshl_add_u32 v{T+4}, v{T}, 7, v{T+1}")
        A(f"v_add_u32 v{T+4}, v{T+4}, v{T+3}")
        A(f"v_lshl_add_u32 v{vTRN}, v{vH}, 10, v{T+4}")
        A(f"v_lshl_add_u32 v{vTRC0}, v{vH}, 9, v{T+4}")
        A(f"v_xor_b32 v{vTRC1}, 64, v{vTRC0}")
        A(f"v_mul_u32_u24 v{T+5}, 192, v{T}"); A(f"v_add_u32 v{T+5}, v{T+5}, v{T+1}")
        A(f"v_mul_u32_u24 v{T+6}, 768, v{vH}"); A(f"v_add_u32 v{vTR3}, v{T+5}, v{T+6}")
        A(f"s_mov_b32 s{sT0}, 43691"); A(f"s_movk_i32 s{sT1}, 2752")
        for j in range(3):
            A(f"v_add_u32 v{T}, {64*j}, v{vL}")
            A(f"v_mul_u32_u24 v{T+1}, s{sT0}, v{T}"); A(f"v_lshrrev_b32 v{T+1}, 19, v{T+1}")
            A(f"v_mul_u32_u24 v{T+2}, 12, v{T+1}"); A(f"v_sub_u32 v{T+2}, v{T}, v{T+2}")
            A(f"v_mul_u32_u24 v{T+1}, s{sT1}, v{T+1}")
            A(f"v_lshl_add_u32 v{vW3[j]}, v{T+2}, 4, v{T+1}")
            if j: A(f"v_subrev_u32 v{vW3[j]}, {1024*j}, v{vW3[j]}")

    def p1_h(self):
        A = self.A
        T = vT
        vXA = [T, T+1, T+2, T+3]; vXS = [T+4, T+5]
        A(f"s_lshl_b32 s{sT0}, s{sRBK}, 5"); A(f"v_add_u32 v{T+6}, s{sT0}, v{vM}")
        A(f"v_bfe_u32 v{T+7}, v{T+6}, 1, 3"); A(f"v_xor_b32 v{T+7}, v{T+7}, v{vH}"); A(f"v_lshlrev_b32 v{T+7}, 4, v{T+7}")
        A(f"v_lshl_add_u32 v{vXA[0]}, v{T+6}, 7, v{T+7}")
        for s in range(1, 4): A(f"v_xor_b32 v{vXA[s]}, {32*s}, v{vXA[0]}")
        A(f"s_lshl_b32 s{sT0}, s{sCG}, 6"); A(f"v_xor_b32 v{vXS[0]}, s{sT0}, v{vXA[0]}"); A(f"v_xor_b32 v{vXS[1]}, 32, v{vXS[0]}")
        vXR = T+8
        A(f"v_bfe_u32 v{T+7}, v{T+6}, 1, 3"); A(f"s_lshl_b32 s{sT0}, s{sCG}, 2"); A(f"v_xor_b32 v{T+7}, s{sT0}, v{T+7}")
        A(f"v_lshlrev_b32 v{T+7}, 4, v{T+7}"); A(f"v_lshl_add_u32 v{T+7}, v{T+6}, 7, v{T+7}")
        A(f"v_lshl_add_u32 v{T+7}, v{vH}, 3, v{T+7}")
        A(f"s_sub_u32 s{sXSLOT}, s{sC}, s{sROT}"); A(f"s_and_b32 s{sXSLOT}, s{sXSLOT}, 7"); A(f"s_lshl_b32 s{sT0}, s{sXSLOT}, 13"); A(f"v_add_u32 v{vXR}, s{sT0}, v{T+7}")
        vWB = T+9
        A(f"v_add_u32 v{vWB}, {B0}, v{vTRN}")
        vS0, vS1, vQ0, vQ1, vC0, vC1 = T+10, T+11, T+12, T+13, T+14, T+15
        for r in (vS0, vS1, vQ0, vQ1, vC0, vC1): A(f"v_mov_b32 v{r}, 0")
        XT = T+16
        acc = vACC0
        def reads(q):
            L = []
            for s in range(4):
                b = vRING + 4*(4*(q & 1) + s)
                st = 4*q + s
                L.append([f"ds_read_b128 {a(4*st,4)}, v{vXA[s]} offset:{q*8192}",
                          f"ds_read_b64_tr_b16 {v(b,2)}, v{vWB} offset:{st*2048}",
                          f"ds_read_b64_tr_b16 {v(b+2,2)}, v{vWB} offset:{st*2048+512}"])
            L[0].append(f"ds_read_b128 {v(XT+8*(q&1),4)}, v{vXS[0]} offset:{q*8192}")
            L[1].append(f"ds_read_b128 {v(XT+8*(q&1)+4,4)}, v{vXS[1]} offset:{q*8192}")
            return L
        def burst(q):
            x = XT + 8*(q & 1)
            for i in range(8):
                A(f"v_dot2c_f32_bf16 v{vS0 + (i&1)}, s{sONES}, v{x+i}")
                A(f"v_dot2c_f32_bf16 v{vQ0 + (i&1)}, v{x+i}, v{x+i}")
            l1 = A.newlabel("cs"); l2 = A.newlabel("ce")
            b = vRING + 16*(q & 1)
            A(f"s_cmp_lg_u32 s{sRBK}, 0"); A(f"s_cbranch_scc1 {l1}")
            for i in range(8): A(f"v_dot2c_f32_bf16 v{vC0 + (i&1)}, s{sONES}, v{b+i}")
            A(f"s_branch {l2}")
            A.label(l1)
            for i in range(8): A(f"v_dot2c_f32_bf16 v{vC0 + (i&1)}, s{sONES}, v{b+8+i}")
            A.label(l2)
        for q in range(9):
            if q < 8:
                A.wait(vm=self.chunk_pos[q])
                if q == self.cfg.preA:
                    l = A.newlabel("fi")
                    A(f"s_cmp_lg_u32 s2, 0"); A(f"s_cbranch_scc1 {l}")
                    A(f"s_cmp_lg_u32 s{sW}, 3"); A(f"s_cbranch_scc1 {l}")
                    A("v_mov_b32 v250, 0"); A("v_mov_b32 v251, 1")
                    A(f"s_mov_b64 s[{sEXS}:{sEXS+1}], exec"); A("s_mov_b64 exec, 1")
                    A.opt(f"buffer_store_dword v251, v250, {srd(SRD_DBG)}, 0 offen sc1")
                    A(f"s_mov_b64 exec, s[{sEXS}:{sEXS+1}]")
                    A.label(l)
            A.wait_all_lg()
            if q < 8: A("s_barrier")
            rd = reads(q) if q < 8 else [[], [], [], []]
            if q < 8 and (q == 0 or self.cfg.chunkstamps):
                self.stamp(f"chunk{q}")
            if q in ((0, 2, 4, 6) if self.cfg.rot == 1 else range(8)):
                l = A.newlabel("xr")
                A(f"s_cmp_lg_u32 s{sXSLOT}, {q}"); A(f"s_cbranch_scc1 {l}")
                for g in range(4):
                    A(f"v_xor_b32 v{T+32}, {16*g}, v{vXR}")
                    A.opt(f"ds_read_b64 {v(vXRES+2*g,2)}, v{T+32}")
                A.label(l)
            if q == 0:
                for g in rd:
                    for ins in g: A(ins)
                continue
            p = q - 1
            nxt = q + self.cfg.pre_chunks - 1
            if nxt <= 7: self.side += self.chunk_dma(nxt)
            elif not self.kA_queued:
                assert q >= 6
                self.kA_queued = True
                self.queue(self.job_strip_qkv(1, 0, 8, C0))
                self.queue(self.job_strip_qkv(1, 8, 16, A0))
                self.queue(self.job_strip_qkv(1, 24, 8, A0 + 32768), "pos_kB")
                if self.cfg.early_kv: self.queue(self.job_strip_qkv(2, 0, 16, B0))
            if q == 6: self.init_poll_issue()
            if q == 5 and self.cfg.touch:
                A(f"s_mov_b64 s[{sEXS}:{sEXS+1}], exec"); A("s_mov_b64 exec, 1")
                A(f"s_add_u32 s{sT5}, s{sSLAB}, {WS_IDLE}")
                A(f"buffer_load_dword v255, v246, {srd(SRD_WS)}, s{sT5} offen")
                A(f"s_mov_b64 exec, s[{sEXS}:{sEXS+1}]")
            for s in range(4):
                st = 4*p + s
                b = vRING + 4*(4*(p & 1) + s)
                c = "0" if st == 0 else v(acc, 16)
                A(f"v_mfma_f32_32x32x16_bf16 {v(acc,16)}, {v(b,4)}, {a(4*st,4)}, {c}")
                for ins in rd[s]: A(ins)
                self.pump(self.cfg.hpump if q >= 6 else 1)
            burst(p)
        if self.cfg.hpump >= 2: self.flush_side()
        self.vS = (vS0, vS1, vQ0, vQ1, vC0, vC1)

    def colsum_finish(self, vC0, vC1, scr_off, tmp, pre=None, post=None):
        A = self.A
        A.nop(3)
        A(f"v_add_f32 v{vC0}, v{vC0}, v{vC1}")
        self.swap_add(vC0, tmp)
        A(f"s_lshl_b32 s{sT0}, s{sW}, 7"); A(f"v_lshl_add_u32 v{tmp}, v{vM}, 2, s{sT0}")
        A(f"v_add_u32 v{tmp}, {scr_off}, v{tmp}")
        A(f"ds_write_b32 v{tmp}, v{vC0}")
        if pre: pre()
        A.wait_all_lg()
        A("s_barrier")
        A(f"v_xor_b32 v{tmp}, 128, v{tmp}")
        A(f"ds_read_b32 v{vC1}, v{tmp}")
        if post: post()
        A(f"v_cmp_gt_u32 vcc, 32, v{vL}")
        A.wait_all_lg()
        A(f"v_add_f32 v{vC0}, v{vC0}, v{vC1}")
        A(f"v_cndmask_b32 v{vC0}, 0, v{vC0}, vcc")

    def p1_h_finish(self):
        A = self.A
        T = vT
        vS0, vS1, vQ0, vQ1, vC0, vC1 = self.vS
        acc = vACC0
        A.nop(3)
        A(f"v_add_f32 v{vS0}, v{vS0}, v{vS1}"); A(f"v_add_f32 v{vQ0}, v{vQ0}, v{vQ1}"); A(f"v_add_f32 v{vC0}, v{vC0}, v{vC1}")
        tmp = T+33
        self.swap_add(vS0, tmp); self.swap_add(vQ0, tmp); self.swap_add(vC0, tmp)
        A(f"s_lshl_b32 s{sT0}, s{sW}, 8"); A(f"v_lshl_add_u32 v{tmp}, v{vM}, 3, s{sT0}"); A(f"v_add_u32 v{tmp}, {SCR1}, v{tmp}")
        A(f"v_mov_b32 v{vS1}, v{vQ0}")
        A(f"ds_write_b64 v{tmp}, {v(vS0,2)}")
        A(f"s_lshl_b32 s{sT0}, s{sW}, 7"); A(f"v_lshl_add_u32 v{tmp+1}, v{vM}, 2, s{sT0}"); A(f"v_add_u32 v{tmp+1}, {SCR1+1024}, v{tmp+1}")
        A(f"ds_write_b32 v{tmp+1}, v{vC0}")
        A.wait_all_lg()
        A("s_barrier")
        A(f"v_xor_b32 v{tmp}, 512, v{tmp}"); A(f"v_xor_b32 v{tmp+1}, 128, v{tmp+1}")
        A(f"ds_read_b64 {v(vQ0,2)}, v{tmp}")
        A(f"ds_read_b32 v{vC1}, v{tmp+1}")
        if self.cfg.early_kv: self.queue(self.job_strip_qkv(2, 16, 16, B0 + 32768), "pos_v")
        else: self.queue(self.job_strip_qkv(2, 0, 32, B0), "pos_v")
        A.auto = self.cfg.auto_h
        A(f"v_cmp_gt_u32 vcc, 32, v{vL}")
        A.wait_all_lg()
        A(f"v_add_f32 v{vS0}, v{vS0}, v{vQ0}"); A(f"v_add_f32 v{vS1}, v{vS1}, v{vQ1}"); A(f"v_add_f32 v{vC0}, v{vC0}, v{vC1}")
        A(f"v_cndmask_b32 v{vC0}, 0, v{vC0}, vcc")
        self.fstamp("he", "he:exch")
        A(f"v_mul_f32 v{vS0}, {fbits(1/512)}, v{vS0}")
        A(f"v_mul_f32 v{vS1}, {fbits(1/512)}, v{vS1}")
        A(f"v_sub_f32 v{vNMU}, 0, v{vS0}")
        A(f"v_fma_f32 v{vS1}, v{vNMU}, v{vS0}, v{vS1}")
        A(f"v_max_f32 v{vS1}, 0, v{vS1}")
        A(f"v_mfma_f32_32x32x2_f32 {v(acc,16)}, v{vC0}, v{vNMU}, {v(acc,16)}")
        mk = A.mark()
        A(f"v_add_f32 v{vQ0}, {fbits(1e-5)}, v{vS1}")
        A(f"v_rsq_f32 v{vR}, v{vQ0}")
        A.nop(1)
        A(f"v_mul_f32 v{vQ0}, v{vR}, v{vR}"); A(f"v_mul_f32 v{vQ0}, v{vQ0}, v{vS1}")
        A(f"v_add_f32 v{vQ0}, {fbits(1e-5)}, v{vQ0}")
        A(f"v_rsq_f32 v{vQ0}, v{vQ0}")
        A.nop(1)
        A(f"v_mul_f32 v{vQ0}, v{vQ0}, v{vR}")
        self.fstamp("he", "he:stats")
        self.gelu_block(acc, vQ0, T+34, mk)
        self.fstamp("he", "he:gelu")
        self.frag_dest(sT0, WS_H)
        self.pstore(f"buffer_store_dwordx4 {v(acc,4)}, v{vL16}, {srd(SRD_WS)}, s{sT0} offen sc1")
        self.pstore(f"buffer_store_dwordx4 {v(acc+4,4)}, v{vL16}, {srd(SRD_WS)}, s{sT0} offen offset:1024 sc1")
        self.pos_h = A.vm_pos()
        A.auto = 0
        while not hasattr(self, "pos_kB"): self.pump(1)
        if self.cfg.hflush: self.flush_side()
        if self.cfg.touch_mode == "late": self.weight_touch()
        self.l2_touch("w2"); self.l2_touch("wq")

    def gelu_consts(self, vS, tmp):
        A = self.A
        K1, K0, RI = tmp, tmp+2, tmp+4
        A(f"v_mul_f32 v{K0}, {fbits(C0G)}, v{vS}")
        A(f"v_mul_f32 v{K1}, v{vS}, v{vS}"); A(f"v_mul_f32 v{K1}, v{K1}, v{vS}"); A(f"v_mul_f32 v{K1}, {fbits(C1G)}, v{K1}")
        A(f"v_rcp_f32 v{RI}, v{vS}")
        A(f"v_mov_b32 v{K0+1}, v{K0}"); A(f"v_mov_b32 v{K1+1}, v{K1}"); A(f"v_mov_b32 v{RI+1}, v{RI}")
        return (K1, K0, RI, tmp + 6)

    def gelu_body(self, acc, GK):
        A = self.A
        K1, K0, RI, t = GK
        for p in range(0, 16, 4):
            x0, x1 = acc + p, acc + p + 2
            u0, u1 = t, t + 2
            A(f"v_pk_mul_f32 {v(u0,2)}, {v(x0,2)}, {v(x0,2)}")
            A(f"v_pk_mul_f32 {v(u1,2)}, {v(x1,2)}, {v(x1,2)}")
            A(f"v_pk_fma_f32 {v(u0,2)}, {v(u0,2)}, {v(K1,2)}, {v(K0,2)}")
            A(f"v_pk_fma_f32 {v(u1,2)}, {v(u1,2)}, {v(K1,2)}, {v(K0,2)}")
            A(f"v_pk_mul_f32 {v(u0,2)}, {v(u0,2)}, {v(x0,2)}")
            A(f"v_pk_mul_f32 {v(u1,2)}, {v(u1,2)}, {v(x1,2)}")
            for r in (u0, u0+1, u1, u1+1): A(f"v_exp_f32 v{r}, v{r}")
            A(f"v_pk_fma_f32 {v(u0,2)}, {v(u0,2)}, {v(RI,2)}, {v(RI,2)}")
            A(f"v_pk_fma_f32 {v(u1,2)}, {v(u1,2)}, {v(RI,2)}, {v(RI,2)}")
            for r in (u0, u0+1, u1, u1+1): A(f"v_rcp_f32 v{r}, v{r}")
            A(f"v_pk_mul_f32 {v(u0,2)}, {v(u0,2)}, {v(x0,2)}")
            A(f"v_pk_mul_f32 {v(u1,2)}, {v(u1,2)}, {v(x1,2)}")
            A(f"v_cvt_pk_bf16_f32 v{acc + p//2}, v{u0}, v{u0+1}")
            A(f"v_cvt_pk_bf16_f32 v{acc + p//2 + 1}, v{u1}, v{u1+1}")

    def gelu_block(self, acc, vS, tmp, mk):
        GK = self.gelu_consts(vS, tmp)
        self.A.pad(mk, 18)
        self.gelu_body(acc, GK)

    def qkv_main(self, addr, hooks, side_rate=2, mid=None):
        A = self.A
        T = vT
        acc = vACC0
        PD = 2
        bases = {}
        for st in range(32):
            for d in (0, 512):
                win = (addr(st) + d) // 65536
                if win not in bases:
                    r = T + 40 + len(bases)
                    if win: A(f"v_add_u32 v{r}, {win*65536}, v{vTRN}")
                    else: A(f"v_mov_b32 v{r}, v{vTRN}")
                    bases[win] = r
        vC0, vC1 = T+14, T+15
        A(f"v_mov_b32 v{vC0}, 0"); A(f"v_mov_b32 v{vC1}, 0")
        lgpos = {}
        def burst(steps):
            for st in steps:
                b = vRING + 4*(st % 18)
                for i in range(4): A(f"v_dot2c_f32_bf16 v{vC0 + (i&1)}, s{sONES}, v{b+i}")
                self.tick(18)
        self.credit = 0
        for s in range(32 + PD):
            if s < 32:
                if s in hooks: hooks[s]()
                ad = addr(s)
                b = vRING + 4*(s % 18)
                for (kk, d) in ((0, 0), (2, 512)):
                    x = ad + d
                    A(f"ds_read_b64_tr_b16 {v(b+kk,2)}, v{bases[x // 65536]} offset:{x % 65536}")
                lgpos[s] = A.lg_pos()
            if s >= PD:
                t = s - PD
                A.wait(lg=lgpos[t])
                b = vRING + 4*(t % 18)
                c = "0" if t == 0 else v(acc, 16)
                A(f"v_mfma_f32_32x32x16_bf16 {v(acc,16)}, {v(b,4)}, {a(4*t,4)}, {c}")
                self.tick(33)
                if mid and t in mid: mid[t]()
                if t == 15:
                    self.fstamp("qkv", "t15>")
                    burst(range(0, 16))
                    self.fstamp("qkv", "t15<")
        self.fstamp("qkv", "loop<")
        burst(range(16, 32))

    def qkv_tail(self, dst, keep_auto=False):
        A = self.A
        T = vT
        acc = vACC0
        vC0, vC1 = T+14, T+15
        A(f"v_cmp_gt_u32 vcc, 32, v{vL}")
        A.nop(2)
        A(f"v_add_f32 v{vC0}, v{vC0}, v{vC1}")
        self.swap_add(vC0, T+33)
        A(f"v_cndmask_b32 v{vC0}, 0, v{vC0}, vcc")
        A.nop(2)
        A(f"v_mfma_f32_32x32x2_f32 {v(acc,16)}, v{vC0}, v{vNMU}, {v(acc,16)}")
        mk = A.mark()
        A.auto = 0
        self.pump(3)
        A.pad(mk, 18)
        A.auto = self.cfg.auto
        for i in range(8):
            A(f"v_mul_f32 v{acc+2*i}, v{vR}, v{acc+2*i}"); A(f"v_mul_f32 v{acc+2*i+1}, v{vR}, v{acc+2*i+1}")
            A(f"v_cvt_pk_bf16_f32 v{dst+i}, v{acc+2*i}, v{acc+2*i+1}")
        A.auto = 0
        A.nop(2)
        for i in range(4): A(f"v_permlane32_swap_b32 v{dst+i}, v{dst+4+i}")

    def shadow1(self):
        A = self.A
        def addr_k(s): return C0 + s*2048 if s < 8 else A0 + (s-8)*2048
        def hk0(): A.wait(vm=self.pos_kB); A("s_barrier"); self.stamp("hk0")
        n1 = self.cfg.w2_in_k
        mids = {8: lambda: self.l2_touch("w3")}
        if n1: mids[16] = lambda: self.queue(self.job_strip(SRD_W2, 64 - n1, n1, A0))
        self.qkv_main(addr_k, {0: hk0}, mid=mids)
        self.flush_side()
        self.stamp("k loop")
        A.wait(vm=self.pos_h)
        A("s_barrier")
        self.stamp("h drained")
        self.signal(CNT_H, sRB64, "h", init_check=True)
        self.queue(self.job_strip(SRD_W2, 0, 64 - n1, A0), "pos_w2")
        self.queue(self.job_w3(0, 8, C0) + self.job_w3_small(30, 2, C0 + 8*3072))
        self.qkv_tail(vKP)
        self.stamp("k done")
        self.p2_setup()
        def hv0(): A.wait(vm=self.pos_v); A("s_barrier"); self.stamp("hv0")
        hcode = [f"s_add_u32 s{sT5}, s{sRB64}, -1", f"v_add_u32 v250, s{sT5}, v{vL}",
                 "v_max_i32 v250, 0, v250", "v_min_i32 v250, 31, v250"] + self.cnt64_v(CNT_H)
        self.qkv_main(lambda s: B0 + s*2048, {0: hv0}, side_rate=1, mid={self.cfg.hpoll_at: lambda: self.poll_issue(hcode, 3, 8, "h"), 20: lambda: self.l2_touch("wo")})
        self.flush_side()
        self.stamp("v loop")

    def halo_publish(self):
        A = self.A
        l = A.newlabel("halo")
        A(f"s_cmp_lg_u32 s{sRBK}, 1"); A(f"s_cbranch_scc1 {l}")
        T = vT
        A(f"s_and_b32 s{sT0}, s{sRB64}, 3"); A(f"s_lshl_b32 s{sT0}, s{sT0}, 3"); A(f"s_add_u32 s{sT0}, s{sT0}, s{sC}"); A(f"s_lshl_b32 s{sT0}, s{sT0}, 12")
        A(f"s_lshl_b32 s{sT1}, s{sCG}, 10"); A(f"s_add_u32 s{sT0}, s{sT0}, s{sT1}"); A(f"s_add_u32 s{sT0}, s{sT0}, s{sSLAB}"); A(f"s_add_u32 s{sT0}, s{sT0}, {WS_KV}")
        A(f"v_subrev_u32 v{T}, 16, v{vM}"); A(f"v_lshlrev_b32 v{T}, 4, v{T}"); A(f"v_lshl_add_u32 v{T}, v{vH}, 9, v{T}")
        A(f"v_cmp_le_u32 vcc, 16, v{vM}")
        A(f"s_and_saveexec_b64 s[{sEXS}:{sEXS+1}], vcc")
        self.pstore(f"buffer_store_dwordx4 {v(vKP,4)}, v{T}, {srd(SRD_WS)}, s{sT0} offen sc1", opt=True)
        self.pstore(f"buffer_store_dwordx4 {v(vKP+4,4)}, v{T}, {srd(SRD_WS)}, s{sT0} offen offset:256 sc1", opt=True)
        self.pstore(f"buffer_store_dwordx4 {v(vVP,4)}, v{T}, {srd(SRD_WS)}, s{sT0} offen offset:2048 sc1", opt=True)
        self.pstore(f"buffer_store_dwordx4 {v(vVP+4,4)}, v{T}, {srd(SRD_WS)}, s{sT0} offen offset:2304 sc1", opt=True)
        A(f"s_mov_b64 exec, s[{sEXS}:{sEXS+1}]")
        A.label(l)
        self.pos_halo = A.vm_pos()

    def ksplit_gemm(self, nsteps, wbase_vregs, waddr, act_load, first, nring_regs, PDL, hooks=None, side_rate=1, tail=None, pre=None, window=None, mid=None):
        A = self.A
        hooks = hooks or {}
        acts = {}; apos = {}
        def issue(i):
            acts[i] = act_load(i); apos[i] = A.vm_pos()
        if act_load is None:
            acts, apos = pre
        elif window:
            rest = self.side
            self.side = [[(lambda i=i: issue(i))] for i in range(min(PDL, nsteps))]
            self.pump(2)
            assert not rest
            window()
            while len(apos) < min(PDL, nsteps): self.pump(1)
        else:
            for i in range(min(PDL, nsteps)): issue(i)
        PD = 2
        lgpos = {}
        def wreads(s, cb):
            ad = waddr(s)
            if ad is None: return
            b = vRING + 4*(2*(s % 4) + cb)
            A(f"ds_read_b64_tr_b16 {v(b,2)}, v{wbase_vregs[cb]} offset:{ad}")
            A(f"ds_read_b64_tr_b16 {v(b+2,2)}, v{wbase_vregs[cb]} offset:{ad+1024}")
        for s in range(min(PD, nsteps)):
            wreads(s, 0); wreads(s, 1); lgpos[s] = A.lg_pos()
        for t in range(nsteps):
            s = t + PD
            A.wait(vm=apos[t], lg=lgpos[t] if waddr(t) is not None else None)
            for cb in range(2):
                acc = (vACC0, vACC1)[cb]
                c = "0" if (first and t == 0) else v(acc, 16)
                if waddr(t) is not None:
                    wa = v(vRING + 4*(2*(t % 4) + cb), 4)
                else:
                    wa = a(tail(t)[cb], 4)
                A(f"v_mfma_f32_32x32x16_bf16 {v(acc,16)}, {wa}, {a(acts[t],4)}, {c}")
                if s < nsteps: wreads(s, cb)
                if cb == 0 and waddr(t) is None:
                    if t % side_rate == 0: self.pump(1)
            if s < nsteps: lgpos[s] = A.lg_pos()
            if act_load is not None and t + PDL < nsteps: issue(t + PDL)
            elif waddr(t) is not None and t % side_rate == 0: self.pump(1)
            if mid and t in mid: mid[t]()

    def pair_reduce(self, scr, pre=None, post=None):
        A = self.A
        T = vT
        A(f"s_lshl_b32 s{sT0}, s{sW}, 12"); A(f"s_add_u32 s{sT1}, s{sT0}, {scr}"); A(f"v_add_u32 v{T}, s{sT1}, v{vL16}")
        A(f"s_xor_b32 s{sT0}, s{sT0}, 8192"); A(f"s_add_u32 s{sT0}, s{sT0}, {scr}"); A(f"v_add_u32 v{T+1}, s{sT0}, v{vL16}")
        A.nop(12 - 6)
        for j in range(4): A(f"ds_write_b128 v{T}, {v(vACC1+4*j,4)} offset:{1024*j}")
        self.fstamp("p2e", "red:written")
        if pre: pre()
        A.wait_all_lg()
        self.fstamp("p2e", "red:waited")
        A("s_barrier")
        self.fstamp("p2e", "red:barrier")
        for j in range(4): A(f"ds_read_b128 {v(T+4+4*j,4)}, v{T+1} offset:{1024*j}")
        if post: post()
        for j in range(4):
            A.wait(lg=A.lg_pos() - (3 - j))
            for i in range(4): A(f"v_add_f32 v{vACC0+4*j+i}, v{vACC0+4*j+i}, v{T+4+4*j+i}")

    def p2_setup(self):
        A = self.A
        T = vT
        vA, vB = T+50, T+51
        A(f"s_lshl_b32 s{sT0}, s{sRB64}, 6"); A(f"s_lshl_b32 s{sT1}, s{sRBK}, 5"); A(f"s_add_u32 s{sT0}, s{sT0}, s{sT1}")
        A(f"s_add_u32 s{sT1}, s{sCG}, 1")
        for (dst, sign) in ((vA, -1), (vB, +1)):
            A(f"v_add_u32 v{T}, s{sT0}, v{vM}")
            if sign < 0: A(f"v_subrev_u32 v{T}, s{sT1}, v{T}")
            else: A(f"v_add_u32 v{T}, s{sT1}, v{T}")
            A(f"v_lshrrev_b32 v{T+1}, 8, v{T}"); A(f"v_lshlrev_b32 v{T+1}, {SLAB_SH}, v{T+1}")
            A(f"v_bfe_u32 v{T+2}, v{T}, 5, 3"); A(f"v_lshl_add_u32 v{T+1}, v{T+2}, 15, v{T+1}")
            A(f"v_and_b32 v{T+2}, 31, v{T}"); A(f"v_lshl_add_u32 v{T+1}, v{T+2}, 4, v{T+1}")
            A(f"v_lshl_add_u32 v{T+1}, v{vH}, 9, v{T+1}")
            A(f"v_mov_b32 v{T+2}, 0x80000000")
            A(f"s_movk_i32 s{sT2}, 2048"); A(f"v_cmp_gt_u32 vcc, s{sT2}, v{T}")
            A.nop(2)
            A(f"v_cndmask_b32 v{dst}, v{T+2}, v{T+1}, vcc")
        vW0, vW1 = T+52, T+53
        A(f"s_lshl_b32 s{sT0}, s{sCG}, 15"); A(f"v_add_u32 v{vW0}, s{sT0}, v{vTRC0}"); A(f"v_add_u32 v{vW1}, s{sT0}, v{vTRC1}")

    def p2(self):
        A = self.A
        T = vT
        vA, vB = T+50, T+51
        vW0, vW1 = T+52, T+53
        A(f"s_lshl_b32 s{sAS}, s{sCG}, 14"); A(f"s_add_u32 s{sAS}, s{sAS}, {WS_H}")
        A(f"s_add_u32 s{sAE}, s{sAS}, 8192"); A(f"s_lshl_b32 s{sT3}, s{sKR}, 10"); A(f"s_add_u32 s{sT3}, s{sT3}, s{sAS}")
        A.wait(vm=self.pos_w2)
        self.poll_check()
        self.stamp("sync1")
        def act(i):
            r = 128 + 4*i
            if not self.cfg.krot:
                if i % 4 == 0 and i > 0: A(f"s_add_u32 s{sT3}, s{sT3}, 4096")
                A(f"buffer_load_dwordx4 {a(r,4)}, v{vA if i < 8 else vB}, {srd(SRD_WS)}, s{sT3} offen offset:{(i%4)*1024} sc1")
                return r
            if i == 8:
                A(f"s_add_u32 s{sAS}, s{sAS}, 8192"); A(f"s_add_u32 s{sAE}, s{sAE}, 8192")
                A(f"s_lshl_b32 s{sT3}, s{sKR}, 10"); A(f"s_add_u32 s{sT3}, s{sT3}, s{sAS}")
            elif i > 0:
                A(f"s_add_u32 s{sT3}, s{sT3}, 1024"); A(f"s_cmp_eq_u32 s{sT3}, s{sAE}"); A(f"s_cselect_b32 s{sT3}, s{sAS}, s{sT3}")
            A(f"buffer_load_dwordx4 {a(r,4)}, v{vA if i < 8 else vB}, {srd(SRD_WS)}, s{sT3} offen sc1")
            return r
        def window():
            A.auto = self.cfg.auto
            self.qkv_tail(vVP, keep_auto=True)
            A.auto = 0
            self.halo_publish()
            qj = self.job_strip_qkv(0, 0, 32, B0)
            for J in range(4): self.queue(qj[4*J:4*J+4], f"pos_q{J}")
            self.stamp("v tail")
        self.ksplit_gemm(16, (vW0, vW1), lambda i: i*2048, act, True, 0, self.cfg.pdl2, side_rate=1, window=window)
        A("s_barrier")
        self.stamp("p2 main")
        self.pair_reduce(A0 + 51200, pre=lambda: A.wait(vm=self.pos_halo), post=lambda: self.signal(CNT_KV, sRB64, "kv halo"))
        self.fstamp("p2e", "red:done")
        A.auto = self.cfg.auto
        X = T+20
        for j in range(8):
            A(f"v_lshlrev_b32 v{X+2*j}, 16, v{vXRES+j}"); A(f"v_and_b32 v{X+2*j+1}, 0xffff0000, v{vXRES+j}")
        S0, S1 = T+40, T+41
        NM, RR, TT, SA, SB = T+36, T+38, T+42, T+44, T+46
        A(f"v_mov_b32 v{NM}, v{vNMU}"); A(f"v_mov_b32 v{NM+1}, v{vNMU}"); A(f"v_mov_b32 v{RR}, v{vR}"); A(f"v_mov_b32 v{RR+1}, v{vR}")
        for i in range(0, 16, 2):
            A(f"v_pk_add_f32 {v(TT,2)}, {v(X+i,2)}, {v(NM,2)}")
            A(f"v_pk_fma_f32 {v(vACC0+i,2)}, {v(TT,2)}, {v(RR,2)}, {v(vACC0+i,2)}")
            A(f"v_pk_add_f32 {v(vRESID+i,2)}, {v(X+i,2)}, {v(vACC0+i,2)}")
            if i == 0:
                A(f"v_mov_b32 v{SA}, v{vACC0}"); A(f"v_mov_b32 v{SA+1}, v{vACC0+1}")
                A(f"v_pk_mul_f32 {v(SB,2)}, {v(vACC0,2)}, {v(vACC0,2)}")
            else:
                A(f"v_pk_add_f32 {v(SA,2)}, {v(SA,2)}, {v(vACC0+i,2)}")
                A(f"v_pk_fma_f32 {v(SB,2)}, {v(vACC0+i,2)}, {v(vACC0+i,2)}, {v(SB,2)}")
        A(f"v_add_f32 v{S0}, v{SA}, v{SA+1}"); A(f"v_add_f32 v{S1}, v{SB}, v{SB+1}")
        for i in range(8): A(f"v_cvt_pk_bf16_f32 v{X+i}, v{vACC0+2*i}, v{vACC0+2*i+1}")
        self.fstamp("p2e", "epi:math")
        self.frag_dest(sT2, WS_X1)
        self.pstore(f"buffer_store_dwordx4 {v(X,4)}, v{vL16}, {srd(SRD_WS)}, s{sT2} offen sc1")
        self.pstore(f"buffer_store_dwordx4 {v(X+4,4)}, v{vL16}, {srd(SRD_WS)}, s{sT2} offen offset:1024 sc1")
        self.swap_add(S0, T+42); self.swap_add(S1, T+42)
        A(f"s_lshl_b32 s{sT0}, s{sR32L}, 12"); A(f"s_lshl_b32 s{sT1}, s{sC}, 9"); A(f"s_add_u32 s{sT0}, s{sT0}, s{sT1}")
        A(f"s_lshl_b32 s{sT1}, s{sCG}, 8"); A(f"s_add_u32 s{sT0}, s{sT0}, s{sT1}"); A(f"s_add_u32 s{sT0}, s{sT0}, s{sSLAB}"); A(f"s_add_u32 s{sT0}, s{sT0}, {WS_X1S}")
        A(f"v_lshlrev_b32 v{T+42}, 3, v{vM}")
        self.pstore(f"buffer_store_dwordx2 {v(S0,2)}, v{T+42}, {srd(SRD_WS)}, s{sT0} offen sc1")
        self.pos_x1 = A.vm_pos()
        A.auto = 0
        self.fstamp("p2e", "epi:stored")
        self.flush_side()

    def shadow2(self):
        A = self.A
        T = vT
        def hqJ(J):
            A.wait(vm=getattr(self, f"pos_q{J}")); A("s_barrier")
        def hq0():
            hqJ(0)
            self.stamp("hq0")
            self.l2_touch("w4")
            self.queue(self.job_w3(8, 15, A0), "pos_w3a")
        kvcode = self.cnt_addr(CNT_KV, sRB64, -1)
        H = T+44
        def halo_load():
            self.stamp("kv chk>")
            self.poll_check()
            self.stamp("kv chk<")
            A(f"v_mov_b32 v{H}, 0"); A(f"v_mov_b32 v{H+1}, 0"); A(f"v_mov_b32 v{H+2}, 0"); A(f"v_mov_b32 v{H+3}, 0")
            l = A.newlabel("nohalo")
            A(f"s_cmp_eq_u32 s{sRB64}, 0"); A(f"s_cbranch_scc1 {l}")
            A(f"s_add_u32 s{sT1}, s{sRB64}, -1"); A(f"s_and_b32 s{sT0}, s{sT1}, 3"); A(f"s_lshl_b32 s{sT0}, s{sT0}, 3"); A(f"s_add_u32 s{sT0}, s{sT0}, s{sC}")
            A(f"s_lshl_b32 s{sT0}, s{sT0}, 12"); A(f"s_lshr_b32 s{sT1}, s{sT1}, 2"); A(f"s_lshl_b32 s{sT1}, s{sT1}, {SLAB_SH}")
            A(f"s_add_u32 s{sT0}, s{sT0}, s{sT1}"); A(f"s_add_u32 s{sT0}, s{sT0}, {WS_KV}")
            A(f"v_lshlrev_b32 v{T+48}, 4, v0")
            A.opt(f"buffer_load_dwordx4 {v(H,4)}, v{T+48}, {srd(SRD_WS)}, s{sT0} offen sc1")
            A.label(l)
            self.pos_hl = A.vm_pos()
        self.qkv_main(lambda s: B0 + s*2048, {0: hq0, 8: lambda: hqJ(1), 16: lambda: hqJ(2), 24: lambda: hqJ(3)}, side_rate=2,
                      mid={self.cfg.kvpoll_at: lambda: self.poll_issue(kvcode, 1, 8, "kv halo"), self.cfg.kvchk_at: halo_load})
        self.flush_side()
        self.stamp("q loop")
        A.wait(vm=self.pos_x1)
        A("s_barrier")
        self.stamp("x1 drained")
        self.signal(CNT_X1, sRB128, "x1")
        self.queue(self.job_strip(SRD_WO, 0, 64, B0), "pos_wo")
        self.qkv_tail(vQP)
        self.stamp("q done")
        pos_hl = self.pos_hl
        KV = A0 + 46080
        vKA = T
        A(f"s_lshl_b32 s{sT0}, s{sCG}, 1"); A(f"v_add_u32 v{T+1}, s{sT0}, v{vH}")
        A(f"v_mul_u32_u24 v{T+1}, 2560, v{T+1}")
        A(f"s_lshl_b32 s{sT0}, s{sRBK}, 5"); A(f"s_add_u32 s{sT0}, s{sT0}, 16"); A(f"v_add_u32 v{T+2}, s{sT0}, v{vM}")
        A(f"v_lshl_add_u32 v{vKA}, v{T+2}, 4, v{T+1}"); A(f"v_add_u32 v{vKA}, {KV}, v{vKA}")
        A(f"ds_write_b128 v{vKA}, {v(vKP,4)}"); A(f"ds_write_b128 v{vKA}, {v(vKP+4,4)} offset:1280")
        A(f"ds_write_b128 v{vKA}, {v(vVP,4)} offset:10240"); A(f"ds_write_b128 v{vKA}, {v(vVP+4,4)} offset:11520")
        A.wait(vm=pos_hl)
        A(f"v_lshrrev_b32 v{T+8}, 4, v0"); A(f"v_mul_u32_u24 v{T+8}, 1280, v{T+8}")
        A(f"v_and_b32 v{T+9}, 15, v0"); A(f"v_lshl_add_u32 v{T+8}, v{T+9}, 4, v{T+8}"); A(f"v_add_u32 v{T+8}, {KV}, v{T+8}")
        A(f"ds_write_b128 v{T+8}, {v(H,4)}")
        A.wait_all_lg()
        A("s_barrier")
        A.auto = self.cfg.auto
        self.stamp("kv staged")
        Q = vQP
        KB = vRING
        LG = T+12
        A(f"v_subrev_u32 v{T+10}, {14*16}, v{vKA}")
        for w in range(8):
            off = (14 - 2*w) * 16
            A(f"ds_read_b128 {v(KB+8*w,4)}, v{T+10} offset:{off}")
            A(f"ds_read_b128 {v(KB+8*w+4,4)}, v{T+10} offset:{off+1280}")
        base_lg = A.lg_pos() - 16
        for w in range(8): A(f"v_mov_b32 v{LG+w}, 0")
        for w in range(8):
            A.wait(lg=base_lg + 2*(w+1))
            for i in range(8): A(f"v_dot2c_f32_bf16 v{LG+w}, v{Q+i}, v{KB+8*w+i}")
        self.fstamp("at", "at:qk")
        au = A.auto; A.auto = 0
        self.poll_issue(self.cnt_addr(CNT_X1, sRB128), 1, 16, "x1")
        A.auto = au
        A.nop(3)
        for w in range(8):
            off = (14 - 2*w) * 16
            A(f"ds_read_b128 {v(KB+8*w,4)}, v{T+10} offset:{off+10240}")
            A(f"ds_read_b128 {v(KB+8*w+4,4)}, v{T+10} offset:{off+11520}")
        base_lg = A.lg_pos() - 16
        l = A.newlabel("nomask")
        A.auto = 0
        A(f"s_cmp_lg_u32 s{sRB64}, 0"); A(f"s_cbranch_scc1 {l}")
        A(f"s_lshl_b32 s{sT0}, s{sRBK}, 5"); A(f"v_add_u32 v{T+11}, s{sT0}, v{vM}")
        A(f"v_mov_b32 v{T+20}, 0xff800000")
        for w in range(1, 8):
            A(f"v_cmp_le_u32 vcc, {2*w}, v{T+11}")
            A.nop(2)
            A(f"v_cndmask_b32 v{LG+w}, v{T+20}, v{LG+w}, vcc")
        A.label(l)
        A.auto = self.cfg.auto
        MX = T+20
        A(f"v_max3_f32 v{MX}, v{LG}, v{LG+1}, v{LG+2}"); A(f"v_max3_f32 v{MX}, v{MX}, v{LG+3}, v{LG+4}")
        A(f"v_max3_f32 v{MX}, v{MX}, v{LG+5}, v{LG+6}"); A(f"v_max_f32 v{MX}, v{MX}, v{LG+7}")
        cs = 0.25 * 1.4426950408889634
        A(f"s_mov_b32 s{sT0}, {fbits(cs)}")
        A(f"v_mul_f32 v{MX}, {fbits(-cs)}, v{MX}")
        for w in range(8): A(f"v_fma_f32 v{LG+w}, v{LG+w}, s{sT0}, v{MX}")
        for w in range(8): A(f"v_exp_f32 v{LG+w}, v{LG+w}")
        SM = T+21
        A(f"v_add_f32 v{SM}, v{LG}, v{LG+1}")
        for w in range(2, 8): A(f"v_add_f32 v{SM}, v{SM}, v{LG+w}")
        A(f"v_rcp_f32 v{SM}, v{SM}")
        A.nop(1)
        for w in range(8): A(f"v_mul_f32 v{LG+w}, v{SM}, v{LG+w}")
        PP = T+22
        for u in range(4): A(f"v_cvt_pk_bf16_f32 v{PP+u}, v{LG+2*u}, v{LG+2*u+1}")
        self.fstamp("at", "at:sm")
        A.auto = 0
        self.flush_side()
        self.p3_bases()
        self.poll_check()
        self.stamp("sync2")
        self.queue_x1_acts()
        A.auto = self.cfg.auto
        O = vACC0
        TP = T+26
        for u in range(4):
            A.wait(lg=base_lg + 4*(u+1))
            va, vb = KB + 16*u, KB + 16*u + 8
            for i in range(8):
                t0, t1 = TP + 2*(i & 1), TP + 2*(i & 1) + 1
                A(f"v_perm_b32 v{t0}, v{vb+i}, v{va+i}, s{sPLO}")
                A(f"v_perm_b32 v{t1}, v{vb+i}, v{va+i}, s{sPHI}")
                if u == 0:
                    A(f"v_dot2_f32_bf16 v{O+2*i}, v{t0}, v{PP+u}, 0"); A(f"v_dot2_f32_bf16 v{O+2*i+1}, v{t1}, v{PP+u}, 0")
                else:
                    A(f"v_dot2c_f32_bf16 v{O+2*i}, v{t0}, v{PP+u}"); A(f"v_dot2c_f32_bf16 v{O+2*i+1}, v{t1}, v{PP+u}")
        A.nop(3)
        self.fstamp("at", "at:pv")
        OP = T+32
        for i in range(8): A(f"v_cvt_pk_bf16_f32 v{OP+i}, v{O+2*i}, v{O+2*i+1}")
        A.nop(2)
        for i in range(4): A(f"v_permlane32_swap_b32 v{OP+i}, v{OP+4+i}")
        self.frag_dest(sT0, WS_O)
        self.pstore(f"buffer_store_dwordx4 {v(OP,4)}, v{vL16}, {srd(SRD_WS)}, s{sT0} offen sc1")
        self.pstore(f"buffer_store_dwordx4 {v(OP+4,4)}, v{vL16}, {srd(SRD_WS)}, s{sT0} offen offset:1024 sc1")
        self.pos_o = A.vm_pos()
        A.auto = 0
        self.fstamp("at", "at:flushed")
        A.wait(vm=self.pos_wo)
        A("s_barrier")
        self.fstamp("at", "at:bar")
        self.emit_groups(self.job_w3(23, 7, A0 + 46080))
        self.pos_w3 = A.vm_pos()
        self.stamp("attn done")

    def c3_pass(self):
        A = self.A
        T = vT
        vLo, vHi = T, T+1
        A(f"s_add_u32 s{sT0}, s{sW}, -1"); A(f"s_mul_i32 s{sT0}, s{sT0}, {8*3072}")
        A(f"s_cmp_eq_u32 s{sW}, 0"); A(f"s_cselect_b32 s{sT0}, {C0}, s{sT0}")
        A(f"s_cmp_eq_u32 s{sW}, 3"); A(f"s_cselect_b32 s{sT1}, {C0 + 2*3072}, s{sT0}")
        A(f"v_add_u32 v{vLo}, s{sT0}, v{vTR3}"); A(f"v_add_u32 v{vHi}, s{sT1}, v{vTR3}")
        CS = T+8
        for i in range(6): A(f"v_mov_b32 v{CS+i}, 0")
        A.auto = self.cfg.auto
        def c3_reads(i):
            for blk in range(3):
                b = vRING + 4*(3*(i % 3) + blk)
                r = vLo if i < 6 else vHi
                A(f"ds_read_b64_tr_b16 {v(b,2)}, v{r} offset:{i*3072 + blk*64}")
                A(f"ds_read_b64_tr_b16 {v(b+2,2)}, v{r} offset:{i*3072 + blk*64+1536}")
            return A.lg_pos()
        cpos = {0: c3_reads(0), 1: c3_reads(1)}
        for i in range(8):
            if i + 2 < 8: cpos[i+2] = c3_reads(i+2)
            A.wait(lg=cpos[i])
            for blk in range(3):
                b = vRING + 4*(3*(i % 3) + blk)
                for r in range(4): A(f"v_dot2c_f32_bf16 v{CS+2*blk+(r&1)}, s{sONES}, v{b+r}")
        A.auto = 0
        A.nop(3)
        SC3 = B0
        for blk in range(3):
            A(f"v_add_f32 v{CS+2*blk}, v{CS+2*blk}, v{CS+2*blk+1}")
            self.swap_add(CS+2*blk, T+4)
        A(f"s_mul_i32 s{sT0}, s{sW}, 384"); A(f"v_lshl_add_u32 v{T+4}, v{vM}, 2, s{sT0}"); A(f"v_add_u32 v{T+4}, {SC3}, v{T+4}")
        for blk in range(3): A(f"ds_write_b32 v{T+4}, v{CS+2*blk} offset:{128*blk}")
        A.wait(vm=self.pos_o)
        A.wait_all_lg()
        A("s_barrier")
        self.signal(CNT_O, sRB64, "o")
        A(f"v_lshlrev_b32 v{T+4}, 2, v{vM}"); A(f"v_add_u32 v{T+4}, {SC3}, v{T+4}")
        for w in range(4):
            for blk in range(3): A(f"ds_read_b32 v{T+16+4*blk+w}, v{T+4} offset:{384*w+128*blk}")
        A(f"v_cmp_gt_u32 vcc, 32, v{vL}")
        A.wait_all_lg()
        self.vC3 = [T+46, T+47, T+48]
        for blk in range(3):
            b = T+16+4*blk
            A(f"v_add_f32 v{b}, v{b}, v{b+1}"); A(f"v_add_f32 v{b+2}, v{b+2}, v{b+3}"); A(f"v_add_f32 v{b}, v{b}, v{b+2}")
            A(f"v_cndmask_b32 v{self.vC3[blk]}, 0, v{b}, vcc")
        A("s_barrier")
        self.stamp("c3 done")

    def job_w3_small(self, s0, ns, lds0):
        return self.job_w3(s0, ns, lds0)

    def w3_addr(self, s):
        if s < 8: return C0 + s*3072
        if s < 30: return A0 + (s-8)*3072
        return C0 + (s-22)*3072

    def p3_bases(self):
        A = self.A
        A(f"s_lshl_b32 s{sP2}, s{sR32P}, 15"); A(f"s_add_u32 s{sP2}, s{sP2}, s{sSLAB}"); A(f"s_add_u32 s{sP2}, s{sP2}, {WS_X1}")
        A(f"s_lshl_b32 s{sP3}, s{sR32P}, 12"); A(f"s_add_u32 s{sP3}, s{sP3}, s{sSLAB}"); A(f"s_add_u32 s{sP3}, s{sP3}, {WS_X1S}")
        A(f"s_mul_i32 s{sP4}, s{sR32P}, {86*1024}"); A(f"s_add_u32 s{sP4}, s{sP4}, s{sSLAB}"); A(f"s_add_u32 s{sP4}, s{sP4}, {WS_G}")
        A(f"s_lshl_b32 s{sT1}, s{sCB0}, 11"); A(f"s_add_u32 s{sP4}, s{sP4}, s{sT1}")

    def queue_x1_acts(self):
        A = self.A
        self.x1_pos = {}
        for i in range(32):
            g = []
            if i % 4 == 0:
                g += [f"s_add_u32 s{sAS}, s{sR3}, {i//4}", f"s_and_b32 s{sAS}, s{sAS}, 7", f"s_lshl_b32 s{sAS}, s{sAS}, 12", f"s_add_u32 s{sAS}, s{sAS}, s{sP2}"]
            g.append(f"buffer_load_dwordx4 {a(4*i,4)}, v{vL16}, {srd(SRD_WS)}, s{sAS} offen offset:{(i%4)*1024} sc1")
            def m(i=i): self.x1_pos[i] = A.vm_pos()
            g.append(m)
            self.side.append(g)

    def p3(self):
        A = self.A
        T = vT
        vA0, vA1 = T+54, T+55
        A(f"s_lshl_b32 s{sT0}, s{sCG}, 15"); A(f"s_add_u32 s{sT0}, s{sT0}, {B0}")
        A(f"v_add_u32 v{vA0}, s{sT0}, v{vTRC0}"); A(f"v_add_u32 v{vA1}, s{sT0}, v{vTRC1}")
        A.auto = self.cfg.auto
        for i in range(16):
            for cb in range(2):
                r = 128 + 8*i + 4*cb
                A(f"ds_read_b64_tr_b16 {a(r,2)}, v{(vA0,vA1)[cb]} offset:{i*2048}")
                A(f"ds_read_b64_tr_b16 {a(r+2,2)}, v{(vA0,vA1)[cb]} offset:{i*2048 + 1024}")
        A.auto = 0
        A.wait(vm=self.pos_w3a)
        A.wait_all_lg()
        A("s_barrier")
        self.stamp("wo->reg")
        apos = self.x1_pos
        A(f"v_lshlrev_b32 v{T+3}, 3, v{vM}"); A(f"v_lshl_add_u32 v{T+3}, v{vH}, 11, v{T+3}")
        for j in range(8):
            A(f"buffer_load_dwordx2 {v(T+20+2*j,2)}, v{T+3}, {srd(SRD_WS)}, s{sP3} offen offset:{256*j} sc1")
        spos = A.vm_pos()
        self.queue(self.job_w4([39, 40, 41, 42], lambda i: B0 + 12*4096 + (i-39)*4096), "pos_tails")
        self.queue(self.job_w4(list(range(0, 12))), "pos_w4b")
        vB = [T, T+1, T+2]
        A(f"v_mov_b32 v{vB[0]}, v{vTR3}"); A(f"v_add_u32 v{vB[1]}, 65536, v{vTR3}"); A(f"v_add_u32 v{vB[2]}, 131072, v{vTR3}")
        CS = T+8
        for i in range(6): A(f"v_mov_b32 v{CS+i}, 0")
        def buf(s, blk): return vRING + 4*(3*(s % 6) + blk)
        def wread(s, blk):
            ad = self.w3_addr(s) + blk*64
            for (k, d) in ((0, 0), (2, 1536)):
                x = ad + d
                A(f"ds_read_b64_tr_b16 {v(buf(s, blk)+k,2)}, v{vB[x // 65536]} offset:{x % 65536}")
        PD = 2
        lgpos = {}
        for s in range(PD):
            for blk in range(3): wread(s, blk)
            lgpos[s] = A.lg_pos()
        for t in range(32):
            s = t + PD
            while t not in apos: self.pump(1)
            if t == 8:
                A.wait(vm=self.pos_o)
                A("s_barrier")
                self.signal(CNT_O, sRB64, "o")
            if t == 19:
                A.wait(vm=self.pos_w3)
                A("s_barrier")
            if t == 22: self.poll_issue(self.cnt_addr(CNT_O, sRB64), 1, 8, "o")
            A.wait(vm=apos[t], lg=lgpos[t])
            if t in (0, 8, 16, 24): self.fstamp("p4", f"p3:t{t}")
            for blk in range(3):
                acc = (vACC0, vACC1, vACC2)[blk]
                c = "0" if t == 0 else v(acc, 16)
                A(f"v_mfma_f32_32x32x16_bf16 {v(acc,16)}, {v(buf(t, blk),4)}, {a(4*t,4)}, {c}")
                if s < 32: wread(s, blk)
            if s < 32: lgpos[s] = A.lg_pos()
            self.pump(1)
            if t % 4 == 3:
                l = A.newlabel("cb")
                A(f"s_cmp_lg_u32 s{sW}, {t >> 3}"); A(f"s_cbranch_scc1 {l}")
                for tt in range(t - 3, t + 1):
                    for blk in range(3):
                        for r in range(4): A(f"v_dot2c_f32_bf16 v{CS+2*blk+(r&1)}, s{sONES}, v{buf(tt, blk)+r}")
                A.label(l)
        self.fstamp("p3", "pass1<")
        self.flush_side()
        SC3 = C0
        A.nop(3)
        for blk in range(3):
            A(f"v_add_f32 v{CS+2*blk}, v{CS+2*blk}, v{CS+2*blk+1}")
            self.swap_add(CS+2*blk, T+4)
        A(f"s_mul_i32 s{sT0}, s{sW}, 384"); A(f"v_lshl_add_u32 v{T+4}, v{vM}, 2, s{sT0}"); A(f"v_add_u32 v{T+4}, {SC3}, v{T+4}")
        for blk in range(3): A(f"ds_write_b32 v{T+4}, v{CS+2*blk} offset:{128*blk}")
        A.wait(vm=spos)
        S0, S1 = T+20, T+21
        for j in range(1, 8):
            A(f"v_add_f32 v{S0}, v{S0}, v{T+20+2*j}"); A(f"v_add_f32 v{S1}, v{S1}, v{T+21+2*j}")
        self.swap_add(S0, T+7); self.swap_add(S1, T+7)
        NMU1, R1 = T+5, T+6
        A(f"v_mul_f32 v{S0}, {fbits(1/512)}, v{S0}"); A(f"v_mul_f32 v{S1}, {fbits(1/512)}, v{S1}")
        A(f"v_sub_f32 v{NMU1}, 0, v{S0}"); A(f"v_fma_f32 v{S1}, v{NMU1}, v{S0}, v{S1}"); A(f"v_max_f32 v{S1}, 0, v{S1}")
        A(f"v_add_f32 v{S1}, {fbits(1e-5)}, v{S1}"); A(f"v_rsq_f32 v{R1}, v{S1}")
        A.wait(vm=self.pos_tails)
        A.wait_all_lg()
        self.poll_check()
        self.stamp("p3 main")
        A(f"v_lshlrev_b32 v{T+4}, 2, v{vM}"); A(f"v_add_u32 v{T+4}, {SC3}, v{T+4}")
        for w in range(4):
            for blk in range(3): A(f"ds_read_b32 v{T+16+4*blk+w}, v{T+4} offset:{384*w+128*blk}")
        A(f"v_cmp_gt_u32 vcc, 32, v{vL}")
        A(f"s_lshl_b32 s{sOA}, s{sR32L}, 15"); A(f"s_lshl_b32 s{sT1}, s{sCG}, 14"); A(f"s_add_u32 s{sOA}, s{sOA}, s{sT1}")
        A(f"s_add_u32 s{sOA}, s{sOA}, s{sSLAB}"); A(f"s_add_u32 s{sOA}, s{sOA}, {WS_O}")
        self.o_acts = {}; self.o_pos = {}
        A(f"s_mov_b32 s{sAS}, s{sOA}"); A(f"s_add_u32 s{sAE}, s{sOA}, 16384")
        A(f"s_lshl_b32 s{sT1}, s{sKR}, 11"); A(f"s_and_b32 s{sT1}, s{sT1}, 16383"); A(f"s_add_u32 s{sOA}, s{sOA}, s{sT1}")
        for i in range(16):
            g = []
            if not self.cfg.krot:
                if i % 4 == 0 and i > 0: g.append(f"s_add_u32 s{sOA}, s{sOA}, 4096")
                g.append(f"buffer_load_dwordx4 {a(4*i,4)}, v{vL16}, {srd(SRD_WS)}, s{sOA} offen offset:{(i%4)*1024} sc1")
            else:
                if i > 0: g += [f"s_add_u32 s{sOA}, s{sOA}, 1024", f"s_cmp_eq_u32 s{sOA}, s{sAE}", f"s_cselect_b32 s{sOA}, s{sAS}, s{sOA}"]
                g.append(f"buffer_load_dwordx4 {a(4*i,4)}, v{vL16}, {srd(SRD_WS)}, s{sOA} offen sc1")
            def m(i=i):
                self.o_acts[i] = 4*i; self.o_pos[i] = A.vm_pos()
            g.append(m)
            self.side.append(g)
        ne = self.cfg.w4_in_ge
        if ne: self.queue(self.job_w4(list(range(12, 12 + ne))))
        GK = self.gelu_consts(R1, T+34)
        A.wait_all_lg()
        self.vC3 = [T+46, T+47, T+48]
        for blk in range(3):
            b = T+16+4*blk
            A(f"v_add_f32 v{b}, v{b}, v{b+1}"); A(f"v_add_f32 v{b+2}, v{b+2}, v{b+3}"); A(f"v_add_f32 v{b}, v{b}, v{b+2}")
            A(f"v_cndmask_b32 v{self.vC3[blk]}, 0, v{b}, vcc")
        A.nop(2)
        A(f"v_mfma_f32_32x32x2_f32 {v(vACC0,16)}, v{self.vC3[0]}, v{NMU1}, {v(vACC0,16)}")
        mk0 = A.mark()
        A(f"v_mfma_f32_32x32x2_f32 {v(vACC1,16)}, v{self.vC3[1]}, v{NMU1}, {v(vACC1,16)}")
        A(f"v_mfma_f32_32x32x2_f32 {v(vACC2,16)}, v{self.vC3[2]}, v{NMU1}, {v(vACC2,16)}")
        self.pump(3)
        A.pad(mk0, 19)
        self.fstamp("ge", "g:start")
        self.pos_g = {}
        for blk in range(3):
            acc = (vACC0, vACC1, vACC2)[blk]
            if blk == 2:
                lskip3 = A.newlabel("nog2")
                A(f"s_cmp_lt_u32 s{sNBLK}, 3"); A(f"s_cbranch_scc1 {lskip3}")
            else:
                A.auto = self.cfg.auto_g
            self.gelu_body(acc, GK)
            A.auto = 0
            if blk < 2: self.fstamp("ge", f"g:blk{blk}")
            i1 = f"buffer_store_dwordx4 {v(acc,4)}, v{vL16}, {srd(SRD_WS)}, s{sP4} offen offset:{blk*2048 % 4096} sc1"
            i2 = f"buffer_store_dwordx4 {v(acc+4,4)}, v{vL16}, {srd(SRD_WS)}, s{sP4} offen offset:{blk*2048 % 4096 + 1024} sc1"
            if blk == 2:
                A(f"s_add_u32 s{sP4}, s{sP4}, 4096")
                self.pstore(i1, opt=True); self.pstore(i2, opt=True)
                A.label(lskip3)
            else:
                self.pstore(i1); self.pstore(i2)
            self.pos_g[blk] = A.vm_pos()
        vA0, vA1 = T+54, T+55
        A(f"s_lshl_b32 s{sT0}, s{sCG}, 11"); A(f"v_add_u32 v{vA0}, s{sT0}, v{vTRC0}"); A(f"v_add_u32 v{vA1}, s{sT0}, v{vTRC1}")
        A(f"v_add_u32 v{T+52}, {B0 + 12*4096}, v{vA0}"); A(f"v_add_u32 v{T+53}, {B0 + 12*4096}, v{vA1}")
        for i in range(4):
            for cb in range(2):
                r = 96 + 8*i + 4*cb
                A(f"ds_read_b64_tr_b16 {v(r,2)}, v{T+52+cb} offset:{i*4096}")
                A(f"ds_read_b64_tr_b16 {v(r+2,2)}, v{T+52+cb} offset:{i*4096 + 1024}")
        self.queue(self.job_w4(list(range(12 + ne, 28))), "pos_w4a")
        self.w4c_job = self.job_w4(list(range(28, 35)))

    def job_w4(self, slots, lds_of=None):
        lds_of = lds_of or self.w4_slot
        groups = []
        for J in range((len(slots) + 3)//4):
            rd = [slots[min(4*J + w, len(slots) - 1)] for w in range(4)]
            cb = [CB4[i] for i in rd]; ld = [lds_of(i) for i in rd]
            dc = cb[1] - cb[0]; dl = ld[1] - ld[0]
            affine = all(cb[w] == cb[0] + w*dc and ld[w] == ld[0] + w*dl for w in range(4)) and dl == 4096 and dc in (2, 3)
            if affine:
                pre = [f"s_add_u32 m0, s{sW4K}, {ld[0]}", f"s_add_u32 s{sG}, s{sW4S[dc]}, {cb[0]*32768}"]
            else:
                pre = [f"s_mov_b32 s{sD0}, {cb[0]*32768}", f"s_mov_b32 s{sD1}, {ld[0]}"]
                for w in range(1, 4):
                    if cb[w] == cb[w-1] and ld[w] == ld[w-1] and all(cb[x] == cb[w] for x in range(w, 4)) and w > 1 and False: continue
                    pre += [f"s_cmp_ge_u32 s{sW}, {w}", f"s_cselect_b32 s{sD0}, {cb[w]*32768}, s{sD0}", f"s_cselect_b32 s{sD1}, {ld[w]}, s{sD1}"]
                pre += [f"s_mov_b32 m0, s{sD1}", f"s_lshl_b32 s{sG}, s{sC}, 7", f"s_add_u32 s{sG}, s{sG}, s{sD0}"]
            groups += self.quad(pre, SRD_W4, vSTRJ)
        return groups

    def w4_slot(self, i):
        if i < 12: return B0 + i*4096
        if i < 28: return A0 + (i-12)*4096
        if i < 35: return C0 + (i-28)*4096
        return B0 + 12*4096 + (i-35)*4096

    def p4(self):
        A = self.A
        T = vT
        vA0, vA1 = T+54, T+55
        A(f"s_mul_i32 s{sT4}, s{sR32L}, {86*1024}"); A(f"s_lshl_b32 s{sT1}, s{sCG}, 10"); A(f"s_add_u32 s{sT4}, s{sT4}, s{sT1}")
        A(f"s_add_u32 s{sT4}, s{sT4}, s{sSLAB}"); A(f"s_add_u32 s{sAS}, s{sT4}, {WS_G}")
        def gsig(b, extra_lg=False):
            A.wait(vm=self.pos_g[b])
            if extra_lg: A.wait_all_lg()
            A("s_barrier")
            self.signal(CNT_G + 2*b, sRB128, f"g{b}")
        gsig(0, extra_lg=True)
        self.stamp("g0 sig")
        self.queue(self.w4c_job, "pos_w4e")
        self.queue(self.job_w4([35, 36, 37, 38]), "pos_w4l")
        while len(self.o_pos) < 16: self.pump(1)
        def mid8(): gsig(1)
        def mid12(): self.poll_issue(self.cnt_addr(CNT_G, sRB128), 1, 16, "g0")
        self.ksplit_gemm(16, None, lambda i: None, None, True, 0, 16, side_rate=1, pre=(self.o_acts, self.o_pos),
                         tail=lambda i: (128 + 8*i, 128 + 8*i + 4), mid={self.cfg.g1sig_at: mid8, 13: mid12})
        self.stamp("wo done")
        gsig(2)
        self.stamp("g drained")
        self.flush_side()
        vb = {}
        for win in range(3):
            for cb in range(2):
                r = T + 44 + 2*win + cb
                A(f"v_add_u32 v{r}, {win*65536}, v{(vA0,vA1)[cb]}")
                vb[(win, cb)] = r
        A.wait(vm=self.pos_w4b)
        self.poll_check()
        self.stamp("sync3")
        self.poll_issue(self.cnt_addr(CNT_G + 2, sRB128), 1, 16, "g1")
        acts = {}; apos = {}
        def act_g(i):
            if i == 16:
                self.poll_check()
                self.poll_issue(self.cnt_addr(CNT_G + 4, sRB128), 1, 16, "g2")
            if i == 32: self.poll_check()
            A(f"s_add_u32 s{sT4}, s{sAS}, {CB4[i]*2048}")
            r = 4*(i % 32)
            A(f"buffer_load_dwordx4 {a(r,4)}, v{vL16}, {srd(SRD_WS)}, s{sT4} offen sc1")
            acts[i] = r; apos[i] = A.vm_pos()
        PDL = self.cfg.pdl4; PD = 2; N = 43
        for i in range(PDL): act_g(i)
        lgpos = {}
        def w4reads(s, cb):
            if s >= 39: return
            ad = self.w4_slot(s)
            b = vRING + 4*(2*(s % 4) + cb)
            for (k, d) in ((0, 0), (2, 1024)):
                x = ad + d
                A(f"ds_read_b64_tr_b16 {v(b+k,2)}, v{vb[(x // 65536, cb)]} offset:{x % 65536}")
        for s in range(PD):
            w4reads(s, 0); w4reads(s, 1); lgpos[s] = A.lg_pos()
        for t in range(N):
            s = t + PD
            if s == 12:
                A("s_barrier")
            A.wait(vm=apos[t], lg=lgpos[t] if t < 39 else None)
            if t in (0, 8, 16, 24, 32, 40): self.fstamp("p4", f"p4:t{t}")
            for cb in range(2):
                acc = (vACC0, vACC1)[cb]
                wa = v(vRING + 4*(2*(t % 4) + cb), 4) if t < 39 else v(96 + 8*(t-39) + 4*cb, 4)
                A(f"v_mfma_f32_32x32x16_bf16 {v(acc,16)}, {wa}, {a(acts[t],4)}, {v(acc,16)}")
                if s < N: w4reads(s, cb)
            if s < N: lgpos[s] = A.lg_pos()
            if t + PDL < N: act_g(t + PDL)
        self.stamp("p4 main")
        self.pair_reduce(B0)
        for i in range(16): A(f"v_add_f32 v{vACC0+i}, v{vACC0+i}, v{vRESID+i}")
        P = T+24
        for i in range(8): A(f"v_cvt_pk_bf16_f32 v{P+i}, v{vACC0+2*i}, v{vACC0+2*i+1}")
        A.nop(2)
        for (x, y) in ((0, 2), (1, 3), (4, 6), (5, 7)):
            A(f"v_permlane32_swap_b32 v{P+x}, v{P+y}")
        fl = {0: "", 1: " sc1", 2: " sc0 sc1", 3: " nt", 4: " sc1 nt", 5: " sc0 sc1 nt"}[self.cfg.out_mode]
        if self.cfg.out_lds:
            OT = B0 + 16384
            A(f"s_lshl_b32 s{sT0}, s{sRBK}, 5"); A(f"v_add_u32 v{T}, s{sT0}, v{vM}")
            A(f"s_lshl_b32 s{sT1}, s{sCG}, 2"); A(f"v_add_u32 v{T+1}, s{sT1}, v{vH}")
            A(f"v_and_b32 v{T+2}, 7, v{T}"); A(f"v_xor_b32 v{T+3}, v{T+1}, v{T+2}"); A(f"v_add_u32 v{T+1}, 2, v{T+1}"); A(f"v_xor_b32 v{T+4}, v{T+1}, v{T+2}")
            A(f"v_lshlrev_b32 v{T}, 7, v{T}"); A(f"v_add_u32 v{T}, {OT}, v{T}")
            A(f"v_lshl_add_u32 v{T+3}, v{T+3}, 4, v{T}"); A(f"v_lshl_add_u32 v{T+4}, v{T+4}, 4, v{T}")
            A(f"ds_write_b128 v{T+3}, {v(P,4)}"); A(f"ds_write_b128 v{T+4}, {v(P+4,4)}")
            A(f"v_lshrrev_b32 v{T+5}, 3, v{vL}"); A(f"s_lshl_b32 s{sT0}, s{sW}, 4"); A(f"v_add_u32 v{T+5}, s{sT0}, v{T+5}")
            A(f"v_and_b32 v{T+6}, 7, v{vL}"); A(f"v_and_b32 v{T+7}, 7, v{T+5}"); A(f"v_xor_b32 v{T+7}, v{T+6}, v{T+7}")
            A(f"v_lshlrev_b32 v{T+8}, 7, v{T+5}"); A(f"v_lshl_add_u32 v{T+8}, v{T+7}, 4, v{T+8}"); A(f"v_add_u32 v{T+8}, {OT}, v{T+8}")
            A(f"s_lshl_b32 s{sT0}, s{sRB64}, 6"); A(f"v_add_u32 v{T+5}, s{sT0}, v{T+5}"); A(f"v_lshlrev_b32 v{T+5}, 10, v{T+5}"); A(f"v_lshl_add_u32 v{T+5}, v{T+6}, 4, v{T+5}")
            A(f"s_lshl_b32 s{sT0}, s{sC}, 7")
            A.wait_all_lg()
            A("s_barrier")
            A(f"ds_read_b128 {v(P,4)}, v{T+8}"); A(f"ds_read_b128 {v(P+4,4)}, v{T+8} offset:1024")
            A.wait(lg=A.lg_pos() - 1)
            A(f"buffer_store_dwordx4 {v(P,4)}, v{T+5}, {srd(SRD_OUT)}, s{sT0} offen{fl}")
            A(f"s_add_u32 s{sT0}, s{sT0}, 8192")
            A.wait_all_lg()
            A(f"buffer_store_dwordx4 {v(P+4,4)}, v{T+5}, {srd(SRD_OUT)}, s{sT0} offen{fl}")
        else:
            A(f"s_lshl_b32 s{sT0}, s{sRB64}, 6"); A(f"s_lshl_b32 s{sT1}, s{sRBK}, 5"); A(f"s_add_u32 s{sT0}, s{sT0}, s{sT1}")
            A(f"v_add_u32 v{T}, s{sT0}, v{vM}"); A(f"v_lshlrev_b32 v{T}, 10, v{T}"); A(f"v_lshl_add_u32 v{T}, v{vH}, 4, v{T}")
            A(f"s_lshl_b32 s{sT0}, s{sC}, 7"); A(f"s_lshl_b32 s{sT1}, s{sCG}, 6"); A(f"s_add_u32 s{sT0}, s{sT0}, s{sT1}")
            A(f"buffer_store_dwordx4 {v(P,4)}, v{T}, {srd(SRD_OUT)}, s{sT0} offen{fl}")
            A(f"buffer_store_dwordx4 {v(P+4,4)}, v{T}, {srd(SRD_OUT)}, s{sT0} offen offset:32{fl}")
        self.stamp("stored")

    def build(self):
        A = self.A
        stop = self.cfg.stop_after
        self.prologue()
        self.t0_dma()
        self.setup2()
        self.stamp("setup2")
        self.t0_dma2()
        self.stamp("start")
        self.p1_h(); self.stamp("h main")
        self.p1_h_finish(); self.stamp("h pub")
        if stop != "h":
            self.shadow1(); self.stamp("kv pub")
            if stop != "kv":
                self.p2(); self.stamp("x1 pub")
                if stop != "x1":
                    self.shadow2()
                    if stop != "o":
                        self.p3(); self.stamp("g pub")
                        if stop != "g":
                            self.p4()
        self.flush_side()
        if self.cfg.final_wait or self.cfg.stamps: A("s_waitcnt vmcnt(0)")
        self.stamp("end")
        self.stamp_end()
        A.label("L_end")
        A("s_endpgm")
        return A

HEADER = """; out = x + attn(LN x) + mixer(LN x)   (S = 2048 rows, D = 512, F = 1376) -- one persistent launch, 256 workgroups (one per CU,
;       h = gelu(...) is published first, k / v / q and the sliding-window attention (true row maximum) fill the hand-off latencies.
;   P2  x1 = LN(x) + shift(h) W2  (64 x 64 tile, K split over wave pairs), row sums of x1 published with it.
;   P3  g = gelu(LN(x1) W3)       (128 x 96 tile).
;   P4  out = x + x1 + o Wo + g W4 (64 x 64 tile).
; Hand-offs between workgroups: write-through (sc1) stores, vmcnt wait, barrier, one atomic add on a counter in its own line; consumers poll
; with sc1 loads and read the data with sc1 loads.  The counters sit in d_ws and are zeroed by workgroup 0, which then raises d_debug[0].
; @launch grid=(256,1,1) block=(256,1,1) lds=163840
.amdgcn_target "amdgcn-amd-amdhsa--gfx950"
.text
.globl {name}
.p2align 8
.type {name},@function
{name}:
"""
FOOTER = """
.section .rodata,"a"
.p2align 6
.amdhsa_kernel {name}
  .amdhsa_next_free_vgpr 512
  .amdhsa_next_free_sgpr 102
  .amdhsa_accum_offset 256
  .amdhsa_group_segment_fixed_size 0
  .amdhsa_kernarg_size 88
  .amdhsa_user_sgpr_count 2
  .amdhsa_user_sgpr_kernarg_segment_ptr 1
  .amdhsa_system_sgpr_workgroup_id_x 1
.end_amdhsa_kernel
"""

def generate(cfg):
    k = K(cfg)
    A = k.build()
    if cfg.nodma:
        keep = (srd(SRD_X), srd(SRD_W1))
        A.lines = [l for l in A.lines if not (l.endswith(" lds") and "buffer_load" in l and not any(k_ in l for k_ in keep))]
    if cfg.dma_flag:
        fl = cfg.dma_flag.replace("+", " ")
        A.lines = [l[:-4] + f" {fl} lds" if (l.endswith(" lds") and "buffer_load" in l and srd(SRD_X) not in l) else l for l in A.lines]
    probs = check_hazards(A.lines)
    generate.names = k.stamp_names
    return HEADER.format(name=NAME) + A.text() + FOOTER.format(name=NAME), probs

if __name__ == "__main__":
    cfg = Cfg()
    out = sys.argv[1] if len(sys.argv) > 1 else "parallel_sum__sliding_local_dilated__mixer_s_mlp__prompt.s"
    for arg in sys.argv[2:]:
        k, val = arg.split("=")
        setattr(cfg, k, {"True": True, "False": False, "None": None}.get(val, int(val) if val.isdigit() else val))
    txt, probs = generate(cfg)
    for p in probs: print("HAZARD:", p)
    open(out, "w").write(txt)
    print("wrote", out, len(txt), "bytes;", txt.count("\n"), "lines;", len(probs), "hazards")
```

```python
import sys, os
from asmlib import Asm, check_hazards

NAME = "parallel_sum__sliding_local_dilated__mixer_s_mlp__prompt_kernel"

class Cfg:
    stamps = False
    stop_after = None
    spin_limit = 400000
    dbgtime = False
    wallonly = False
    fine = None
    pre_chunks = 3
    preA = 2
    touch = 1
    hpoll_at = 26
    auto = 64
    cost_w3 = 96
    pdl2 = 8
    pdl3 = 22
    pdl4 = 10
    kvchk_at = 24
    kvpoll_at = 10
    auto_g = 48
    w4_in_ge = 8
    w4_before_sig = 8
    early_kv = 1
    w2_in_k = 0
    rot = 1
    p3two = 0
    out_lds = 1
    jrot = 0
    hpump = 2
    auto_h = 64
    hflush = 0
    wgxor = 0
    g1sig_at = 12
    code0 = 48
    map2d = 1
    wo_in_drain = 0
    tlb1 = 0
    tlb1_wave = 0
    nodma = 0
    dma_flag = ""
    out_mode = 3
    final_wait = 0
    dstore = 0
    krot = 0
    ftswap = 1
    cxor = 0
    chunkstamps = 0
    touch_mode = "late"
    stouch = 0
    l2touch = ""
    mallt = 1
    stouch_wave = 1
    early_touch = 0

SLAB_SH = 21
WS_H    = 0x000000
WS_O    = 0x040000
WS_X1   = 0x080000
WS_G    = 0x0C0000
WS_X1S  = 0x170000
WS_KV   = 0x180000
WS_CNT  = 0x1A0000
WS_IDLE = 0x1F0000
CNT_H, CNT_KV, CNT_X1, CNT_O, CNT_G = 0, 4, 8, 12, 16
CNT_STRIDE = 256
WS_STAMP= 0x1000000
WS_SIZE = 0x1100000

A0 = 0
B0 = 67584
C0 = 133120
SCR1 = 160768
LDS_TOTAL = 163840

sW, sRBK, sCG = 3, 4, 5
sRB64, sC, sRB128, sFT = 6, 7, 8, 9
SRD_X, SRD_WQKV, SRD_WO, SRD_W1, SRD_W2, SRD_W3, SRD_W4, SRD_OUT, SRD_WS, SRD_DBG = 40, 44, 48, 52, 56, 60, 64, 68, 72, 76
sONES, sPLO, sPHI = 80, 81, 82
sG, sG2, sT0, sT1, sT2, sT3 = 83, 84, 85, 86, 87, 88
sCB0, sNBLK = 89, 90
sSPIN = 91
sSTAMP = 22
sEXS = 94
sT4, sT5 = 96, 97
sXG, sW1G, sWL = 10, 11, 38
sD0, sD1 = 39, 92
sP2, sP3, sP4 = 16, 17, 18
sSLAB, sR32L, sR32P = 19, 20, 21
sBW, sRW2, sRWO, sR3, sR3W, sW3L, sBW4, sG4E, sAS, sAE = 27, 28, 29, 30, 31, 32, 33, 34, 35, 36
sKR = 37
sW4K = 12
sW4S = {3: 33, 2: 34}
sXSLOT = 26
sOA = 93
sROT = 14
sROT8 = 15
sRT0, sCY0 = 98, 100
vST = 253

def srd(n): return f"s[{n}:{n+3}]"

vL, vM, vH, vL16 = 1, 2, 3, 4
vSTR, vSTRQ = 5, 6
vW3 = (7, 8, 9)
vTRN, vTRC0, vTRC1, vTR3 = 10, 11, 12, 13
vNMU, vR = 14, 15
vXRES = 16
vRESID = 24
vKP, vVP, vQP = 40, 48, 56
vRING = 64
vSTRJ = (5, 136, 137, 138)
vS4J = (5, 136, 139, 140)
vSTRQJ = (6, 141, 142, 143)
vX2 = 179
vACC0, vACC1, vACC2 = 144, 160, 176
vT = 192

def v(i, n=1): return f"v{i}" if n == 1 else f"v[{i}:{i+n-1}]"
def a(i, n=1): return f"a{i}" if n == 1 else f"a[{i}:{i+n-1}]"

C0G = -2.0 * 0.7978845608028654 * 1.4426950408889634
C1G = C0G * 0.044715
import struct
def fbits(x): return "0x%08x" % struct.unpack("<I", struct.pack("<f", x))[0]

CB4 = [3*i if i <= 11 else 33 + 2*(i - 11) for i in range(16)] + [3*j + 1 if j <= 11 else 34 + 2*(j - 11) for j in range(16)] + [3*j + 2 for j in range(11)]
assert sorted(CB4) == list(range(43))

class K:
    def __init__(self, cfg):
        self.cfg = cfg
        self.A = Asm()
        self.side = []
        self.nstamp = 0
        self.stamp_names = []
        self.kA_queued = False
        self.A.pump_cb = self.paced_pump
        self.credit = 0

    def pump(self, n=1):
        for _ in range(n):
            if self.side:
                g = self.side.pop(0)
                for ins in g:
                    if callable(ins): ins()
                    else: self.A(ins)

    def group_cost(self, g):
        for x in g:
            if isinstance(x, str) and x.startswith("buffer_load") and srd(SRD_W3) in x: return self.cfg.cost_w3
        return self.cfg.auto

    def paced_pump(self, cost):
        if self.side and cost >= self.group_cost(self.side[0]):
            self.pump(1)
            return True
        return False

    def tick(self, cycles):
        self.credit += cycles
        while self.side and self.credit >= self.group_cost(self.side[0]):
            self.credit -= self.group_cost(self.side[0])
            self.pump(1)
        if not self.side: self.credit = min(self.credit, self.cfg.auto)

    def queue(self, groups, mark=None):
        groups = [list(g) for g in groups]
        if mark:
            def m(mark=mark): setattr(self, mark, self.A.vm_pos())
            groups[-1].append(m)
        self.side += groups

    def pstore(self, text, opt=False):
        A = self.A
        f = A.opt if opt else A
        f(text)
        if self.cfg.dstore: f(text.replace(" sc1", ""))

    def flush_side(self):
        self.pump(len(self.side))

    def stamp(self, name):
        if not self.cfg.stamps: return
        if self.cfg.wallonly and name != "end": return
        if self.cfg.fine and name in ("kernarg", "touched", "preA", "setup2", "start", "hk0", "hk12>", "hk12<", "hv0", "hq0", "v loop", "kv chk>", "kv chk<", "h drained", "x1 drained", "g drained"): return
        A = self.A
        i = self.nstamp; self.nstamp += 1
        self.stamp_names.append(name)
        cur = sSTAMP + 2*(i & 1); prev = sSTAMP + 2*((i+1) & 1)
        if i > 0: A(f"v_writelane_b32 v{vST}, s{prev}, {i-1}")
        A(f"s_memtime s[{cur}:{cur+1}]")

    def fstamp(self, region, name):
        if self.cfg.fine == region: self.stamp(name)

    def stamp_end(self):
        A = self.A
        if self.cfg.stamps:
            i = self.nstamp
            prev = sSTAMP + 2*((i+1) & 1)
            A("s_waitcnt lgkmcnt(0)")
            A(f"v_writelane_b32 v{vST}, s{prev}, {i-1}")
            A(f"s_memrealtime s[{sSTAMP}:{sSTAMP+1}]")
            A("s_waitcnt lgkmcnt(0)")
            A(f"v_writelane_b32 v{vST}, s{sSTAMP}, 62")
            A(f"v_writelane_b32 v{vST}, s{sRT0}, 61")
            A(f"v_writelane_b32 v{vST}, s{sCY0}, 60")
            A(f"s_lshl_b32 s{sT5}, s2, 2"); A(f"s_add_u32 s{sT5}, s{sT5}, s{sW}"); A(f"s_lshl_b32 s{sT5}, s{sT5}, 8")
            A(f"s_add_u32 s{sT5}, s{sT5}, {WS_STAMP}")
            A(f"v_lshlrev_b32 v254, 2, v{vL}")
            A(f"buffer_store_dword v{vST}, v254, {srd(SRD_WS)}, s{sT5} offen")
        if self.cfg.dbgtime:
            l = A.newlabel("dt")
            A("s_cmp_ge_u32 s2, 7"); A(f"s_cbranch_scc1 {l}")
            A(f"s_cmp_lg_u32 s{sW}, 0"); A(f"s_cbranch_scc1 {l}")
            A(f"s_memrealtime s[{sSTAMP}:{sSTAMP+1}]"); A(f"s_memtime s[{sSTAMP+2}:{sSTAMP+3}]")
            A("s_waitcnt lgkmcnt(0)")
            A(f"s_sub_u32 s{sT0}, s{sSTAMP}, s{sRT0}"); A(f"s_sub_u32 s{sT1}, s{sSTAMP+2}, s{sCY0}")
            A(f"v_mov_b32 v250, s{sT0}"); A(f"v_mov_b32 v251, s{sT1}")
            A(f"s_lshl_b32 s{sT0}, s2, 3"); A(f"s_add_u32 s{sT0}, s{sT0}, 8"); A(f"v_mov_b32 v252, s{sT0}")
            A("s_mov_b64 exec, 1")
            A(f"buffer_store_dwordx2 v[250:251], v252, {srd(SRD_DBG)}, 0 offen")
            A.label(l)

    def dma_units(self, srdn, vregs, gbase_code, gstep, lds0, n, lstep=None):
        m = len(vregs)
        if lstep is None: lstep = 1024 * m
        assert n >= 4
        groups = []
        rounds = (n + 3) // 4
        for j in range(rounds):
            if j == 0:
                g = list(gbase_code)
                g += [f"s_mul_i32 s{sD0}, s{sW}, {lstep}", f"s_add_u32 m0, s{sD0}, {lds0}",
                      f"s_mul_i32 s{sD0}, s{sW}, {gstep}", f"s_add_u32 s{sG}, s{sG2}, s{sD0}"]
            elif 4 * j + 3 < n:
                g = [f"s_add_u32 m0, m0, {4*lstep - (m-1)*1024}", f"s_add_u32 s{sG}, s{sG}, {4*gstep}"]
            else:
                g = [f"s_add_u32 s{sD0}, s{sW}, {4*j}", f"s_min_u32 s{sD0}, s{sD0}, {n-1}",
                     f"s_mul_i32 s{sD1}, s{sD0}, {lstep}", f"s_add_u32 m0, s{sD1}, {lds0}",
                     f"s_mul_i32 s{sD1}, s{sD0}, {gstep}", f"s_add_u32 s{sG}, s{sG2}, s{sD1}"]
            for i, vr in enumerate(vregs):
                if i > 0:
                    groups.append(g)
                    g = ["s_add_u32 m0, m0, 1024", "s_nop 0"]
                g = g + [f"buffer_load_dwordx4 v{vr}, {srd(srdn)}, s{sG} offen lds"]
            groups.append(g)
        return groups

    def poll_issue(self, addr_code, nl, target, what):
        A = self.A
        skip = A.newlabel("piskip")
        A(f"s_cmp_lg_u32 s{sW}, 3"); A(f"s_cbranch_scc1 {skip}")
        for ins in addr_code: A(ins)
        A(f"v_mov_b32 v251, {target}")
        A(f"s_mov_b64 s[{sEXS}:{sEXS+1}], exec"); A(f"s_mov_b64 exec, {(1 << nl) - 1}")
        A.opt(f"buffer_load_dword v252, v250, {srd(SRD_WS)}, 0 offen sc1")
        A(f"s_mov_b64 exec, s[{sEXS}:{sEXS+1}]")
        A.label(skip)
        self.poll_state = (nl, A.vm_pos(), what)

    def poll_check(self, srdn=None):
        A = self.A
        nl, pos, what = self.poll_state
        skip = A.newlabel("pskip"); loop = A.newlabel("ploop"); done = A.newlabel("pdone"); chk = A.newlabel("pchk")
        A(f"s_cmp_lg_u32 s{sW}, 3"); A(f"s_cbranch_scc1 {skip}")
        A(f"s_mov_b64 s[{sEXS}:{sEXS+1}], exec"); A(f"s_mov_b64 exec, {(1 << nl) - 1}")
        A(f"s_mov_b32 s{sSPIN}, {self.cfg.spin_limit}")
        A.wait(vm=pos)
        A(f"s_branch {chk}")
        A.label(loop)
        A.opt(f"buffer_load_dword v252, v250, {srd(SRD_WS)}, 0 offen sc1")
        A("s_waitcnt vmcnt(0)")
        A.label(chk)
        A("v_cmp_ge_u32 vcc, v252, v251")
        A(f"s_sub_u32 s{sSPIN}, s{sSPIN}, 1"); A(f"s_cbranch_scc1 {done}")
        A("s_cmp_eq_u64 vcc, exec"); A(f"s_cbranch_scc0 {loop}")
        A.label(done)
        A(f"s_mov_b64 exec, s[{sEXS}:{sEXS+1}]")
        A.label(skip)
        A("s_barrier")

    def poll(self, addr_code, nl, target, what):
        self.poll_issue(addr_code, nl, target, what)
        self.poll_check()

    def signal(self, cnt, sidx, what, init_check=False):
        A = self.A
        skip = A.newlabel("askip")
        A(f"s_cmp_lg_u32 s{sW}, 3"); A(f"s_cbranch_scc1 {skip}")
        A(f"s_mov_b64 s[{sEXS}:{sEXS+1}], exec"); A("s_mov_b64 exec, 1")
        if init_check:
            loop = A.newlabel("iloop"); done = A.newlabel("idone"); chk = A.newlabel("ichk")
            A(f"s_mov_b32 s{sSPIN}, {self.cfg.spin_limit}")
            A(f"s_branch {chk}")
            A.label(loop)
            A.opt(f"buffer_load_dword v247, v246, {srd(SRD_DBG)}, 0 offen sc1")
            A("s_waitcnt vmcnt(0)")
            A.label(chk)
            A("v_cmp_eq_u32 vcc, 1, v247")
            A(f"s_sub_u32 s{sSPIN}, s{sSPIN}, 1"); A(f"s_cbranch_scc1 {done}")
            A("s_cmp_eq_u64 vcc, exec"); A(f"s_cbranch_scc0 {loop}")
            A.label(done)
        A(f"s_and_b32 s{sT5}, s{sidx}, {3 if sidx == sRB64 else 1}"); A(f"s_lshl_b32 s{sT5}, s{sT5}, 8"); A(f"s_add_u32 s{sT5}, s{sT5}, s{sSLAB}")
        A(f"s_add_u32 s{sT5}, s{sT5}, {WS_CNT + cnt*CNT_STRIDE}")
        A(f"v_mov_b32 v248, s{sT5}"); A("v_mov_b32 v249, 1")
        A.opt(f"buffer_atomic_add v249, v248, {srd(SRD_WS)}, 0 offen")
        A(f"s_mov_b64 exec, s[{sEXS}:{sEXS+1}]")
        A.label(skip)

    def init_poll_issue(self):
        A = self.A
        skip = A.newlabel("iiskip")
        A(f"s_cmp_lg_u32 s{sW}, 3"); A(f"s_cbranch_scc1 {skip}")
        A.opt(f"buffer_load_dword v247, v246, {srd(SRD_DBG)}, 0 offen sc1")
        A.label(skip)

    def cnt_addr(self, cnt, sidx, delta=0):
        if delta == 0:
            return [f"s_and_b32 s{sT5}, s{sidx}, {3 if sidx == sRB64 else 1}", f"s_lshl_b32 s{sT5}, s{sT5}, 8", f"s_add_u32 s{sT5}, s{sT5}, s{sSLAB}",
                    f"s_add_u32 s{sT5}, s{sT5}, {WS_CNT + cnt*CNT_STRIDE}", f"v_mov_b32 v250, s{sT5}"]
        assert sidx == sRB64
        return [f"s_add_u32 s{sT5}, s{sidx}, {delta}", f"s_max_i32 s{sT5}, s{sT5}, 0", f"v_mov_b32 v250, s{sT5}"] + self.cnt64_v(cnt)

    def cnt64_v(self, cnt):
        return ["v_lshrrev_b32 v251, 2, v250", f"v_lshlrev_b32 v251, {SLAB_SH}, v251", "v_and_b32 v250, 3, v250",
                "v_lshl_add_u32 v250, v250, 8, v251", f"v_add_u32 v250, {WS_CNT + cnt*CNT_STRIDE}, v250"]

    def frag_dest(self, sdst, region):
        A = self.A
        A(f"s_lshl_b32 s{sdst}, s{sR32L}, 15"); A(f"s_lshl_b32 s{sT1}, s{sC}, 12"); A(f"s_add_u32 s{sdst}, s{sdst}, s{sT1}")
        A(f"s_lshl_b32 s{sT1}, s{sCG}, 11"); A(f"s_add_u32 s{sdst}, s{sdst}, s{sT1}"); A(f"s_add_u32 s{sdst}, s{sdst}, s{sSLAB}")
        A(f"s_add_u32 s{sdst}, s{sdst}, {region}")

    def swap_add2(self, x, y, t1, t2):
        A = self.A
        A(f"v_mov_b32 v{t1}, v{x}"); A(f"v_mov_b32 v{t2}, v{y}")
        A.nop(1)
        A(f"v_permlane32_swap_b32 v{x}, v{t1}"); A(f"v_permlane32_swap_b32 v{y}, v{t2}")
        A(f"v_add_f32 v{x}, v{x}, v{t1}"); A(f"v_add_f32 v{y}, v{y}, v{t2}")

    def swap_add(self, x, tmp):
        A = self.A
        A(f"v_mov_b32 v{tmp}, v{x}")
        A.nop(2)
        A(f"v_permlane32_swap_b32 v{x}, v{tmp}")
        A.nop(1)
        A(f"v_add_f32 v{x}, v{x}, v{tmp}")

    def prologue(self):
        A = self.A
        A("s_cmp_ge_u32 s2, 256"); A("s_cbranch_scc1 L_end")
        if self.cfg.wgxor: A(f"s_xor_b32 s2, s2, {self.cfg.wgxor}")
        if self.cfg.stamps or self.cfg.dbgtime:
            A(f"s_memrealtime s[{sRT0}:{sRT0+1}]"); A(f"s_memtime s[{sCY0}:{sCY0+1}]")
        A("s_load_dwordx16 s[16:31], s[0:1], 0")
        A("s_load_dwordx4 s[32:35], s[0:1], 64")
        A("s_load_dwordx2 s[36:37], s[0:1], 80")
        if self.cfg.code0:
            A("s_getpc_b64 s[96:97]")
            A("v_lshlrev_b32 v6, 7, v0")
            A(f"v_cmp_gt_u32 vcc, {self.cfg.code0}, v0")
            A(f"s_and_saveexec_b64 s[{sEXS}:{sEXS+1}], vcc")
            l0 = A.newlabel("c0")
            A(f"s_cbranch_execz {l0}")
            A.opt("global_load_dword v255, v6, s[96:97]")
            A.label(l0)
            A(f"s_mov_b64 exec, s[{sEXS}:{sEXS+1}]")
        A(f"v_lshrrev_b32 v5, 6, v0")
        A(f"v_and_b32 v{vL}, 63, v0")
        A(f"v_readfirstlane_b32 s{sW}, v5")
        A(f"v_and_b32 v{vM}, 31, v{vL}")
        A(f"v_lshrrev_b32 v{vH}, 5, v{vL}")
        A(f"v_lshlrev_b32 v{vL16}, 4, v{vL}")
        A("s_and_b32 s10, s2, 7"); A("s_lshr_b32 s11, s2, 3")
        if self.cfg.map2d:
            A(f"s_lshr_b32 s{sT1}, s10, 1"); A(f"s_and_b32 s{sT2}, s10, 1")
            A(f"s_lshr_b32 s{sT0}, s11, 2"); A(f"s_lshl_b32 s{sRB64}, s{sT1}, 3"); A(f"s_add_u32 s{sRB64}, s{sRB64}, s{sT0}")
            A(f"s_and_b32 s{sC}, s11, 3"); A(f"s_lshl_b32 s{sT0}, s{sT2}, 2"); A(f"s_add_u32 s{sC}, s{sC}, s{sT0}")
            A(f"s_lshr_b32 s{sT0}, s11, 3"); A(f"s_lshl_b32 s{sRB128}, s{sT1}, 2"); A(f"s_add_u32 s{sRB128}, s{sRB128}, s{sT0}")
            A(f"s_and_b32 s{sFT}, s11, 7"); A(f"s_lshl_b32 s{sT0}, s{sT2}, 3"); A(f"s_add_u32 s{sFT}, s{sFT}, s{sT0}")
        else:
            A(f"s_lshr_b32 s{sT0}, s11, 3"); A(f"s_lshl_b32 s{sRB64}, s10, 2"); A(f"s_add_u32 s{sRB64}, s{sRB64}, s{sT0}")
            A(f"s_and_b32 s{sC}, s11, 7")
            if self.cfg.cxor: A(f"s_xor_b32 s{sC}, s{sC}, {self.cfg.cxor}")
            A(f"s_lshr_b32 s{sT0}, s11, 4"); A(f"s_lshl_b32 s{sRB128}, s10, 1"); A(f"s_add_u32 s{sRB128}, s{sRB128}, s{sT0}")
            A(f"s_and_b32 s{sFT}, s11, 15")
        A(f"s_and_b32 s{sRBK}, s{sW}, 1"); A(f"s_lshr_b32 s{sCG}, s{sW}, 1")
        if self.cfg.rot == 2:
            A(f"s_add_u32 s{sROT}, s{sRB64}, s{sC}"); A(f"s_and_b32 s{sROT}, s{sROT}, 7")
        elif self.cfg.rot == 3:
            A(f"s_lshl_b32 s{sROT}, s{sC}, 1"); A(f"s_add_u32 s{sROT}, s{sROT}, s{sRB64}"); A(f"s_and_b32 s{sROT}, s{sROT}, 7")
        elif self.cfg.rot:
            A(f"s_and_b32 s{sROT}, s{sRB64}, 3"); A(f"s_lshl_b32 s{sROT}, s{sROT}, 1"); A(f"s_add_u32 s{sROT}, s{sROT}, s{sC}"); A(f"s_and_b32 s{sROT}, s{sROT}, 7")
        else:
            A(f"s_mov_b32 s{sROT}, 0")
        A(f"s_lshl_b32 s{sROT8}, s{sROT}, 1"); A(f"s_add_u32 s{sROT8}, s{sROT8}, s{sW}"); A(f"s_lshl_b32 s{sROT8}, s{sROT8}, 2")
        A(f"s_lshl_b32 s{sW4K}, s{sW}, 12")
        A(f"s_lshr_b32 s{sT3}, s2, 3")
        A(f"v_lshrrev_b32 v7, 3, v{vL}")
        A(f"v_and_b32 v8, 7, v{vL}")
        A(f"v_bfe_u32 v9, v{vL}, 4, 1"); A("v_lshlrev_b32 v9, 2, v9"); A("v_xor_b32 v9, v8, v9"); A("v_lshlrev_b32 v9, 4, v9")
        A(f"v_lshl_add_u32 v{vSTR}, v7, 10, v9")
        A(f"v_mul_u32_u24 v{vSTRQ}, 3072, v7"); A(f"v_add_u32 v{vSTRQ}, v{vSTRQ}, v9")
        A(f"v_lshrrev_b32 v9, 4, v{vL}"); A("v_xor_b32 v9, v8, v9"); A("v_lshlrev_b32 v9, 4, v9"); A("v_lshl_add_u32 v14, v7, 10, v9")
        A(f"v_xor_b32 v{vX2}, 64, v14"); A(f"v_add_u32 v{vX2}, 7168, v{vX2}")
        A(f"v_add_u32 v{vSTRJ[1]}, 7168, v{vSTR}")
        A("s_waitcnt lgkmcnt(0)")
        self.stamp("kernarg")
        if self.cfg.tlb1:
            wsel = self.cfg.tlb1_wave
            l = A.newlabel("tl")
            if wsel >= 0: A(f"s_cmp_lg_u32 s{sW}, {wsel}"); A(f"s_cbranch_scc1 {l}")
            ptrs = [16, 24, 18, 36, 26, 28, 20, 30, 32, 34][:self.cfg.tlb1]
            A("v_mov_b32 v250, s16"); A("v_mov_b32 v251, s17")
            A(f"s_lshr_b32 s{sT0}, s{sRB64}, 2"); A(f"s_lshl_b32 s{sT0}, s{sT0}, {SLAB_SH}"); A(f"s_add_u32 s{sT0}, s{sT0}, s36"); A(f"s_addc_u32 s{sT1}, s37, 0")
            for i, p in enumerate(ptrs):
                if i == 0: continue
                lo, hi = (sT0, sT1) if p == 36 else (p, p + 1)
                A(f"v_writelane_b32 v250, s{lo}, {i}"); A(f"v_writelane_b32 v251, s{hi}, {i}")
            A(f"s_mov_b64 s[{sEXS}:{sEXS+1}], exec"); A(f"s_bfm_b64 exec, {len(ptrs)}, 0")
            (A if wsel < 0 else A.opt)("global_load_dword v255, v[250:251], off")
            A(f"s_mov_b64 exec, s[{sEXS}:{sEXS+1}]")
            A.label(l)
        self.build_srds(((SRD_X, 16, 2097152), (SRD_W1, 24, 524288), (SRD_WQKV, 18, 1572864)))

    def scalar_touch(self):
        A = self.A
        if not self.cfg.stouch: return
        l = A.newlabel("st")
        A(f"s_cmp_lg_u32 s{sW}, {self.cfg.stouch_wave}"); A(f"s_cbranch_scc1 {l}")
        for p in (18, 26, 28, 20, 30, 32, 34):
            A(f"s_load_dword s{sT4}, s[{p}:{p+1}], 0")
        A("s_mov_b32 s12, s36"); A("s_mov_b32 s13, s37")
        for i in range(8):
            A(f"s_load_dword s{sT4}, s[12:13], 0")
            if i < 7: A("s_add_u32 s12, s12, 0x200000"); A("s_addc_u32 s13, s13, 0")
        A.label(l)

    def build_srds(self, lst):
        A = self.A
        for (n, p, size) in lst:
            A(f"s_mov_b32 s{n}, s{p}"); A(f"s_and_b32 s{n+1}, s{p+1}, 0xffff")
            A(f"s_mov_b32 s{n+2}, {size}"); A(f"s_mov_b32 s{n+3}, 0x20000")

    def emit_groups(self, gs):
        for g in gs:
            for ins in g:
                if callable(ins): ins()
                else: self.A(ins)

    def t0_dma(self):
        A = self.A
        self.stamp("touched")
        A(f"s_lshl_b32 s{sXG}, s{sRB64}, 16"); A(f"s_lshl_b32 s{sT0}, s{sW}, 14"); A(f"s_add_u32 s{sXG}, s{sXG}, s{sT0}")
        A(f"s_lshl_b32 s{sW1G}, s{sC}, 7"); A(f"s_add_u32 s{sW1G}, s{sW1G}, s{sT0}")
        A(f"s_lshl_b32 s{sWL}, s{sW}, 11")
        self.chunk_pos = {}
        for q in range(self.cfg.preA): self.emit_groups(self.chunk_dma(q))
        self.scalar_touch()
        self.start_touch()
        self.stamp("preA")
        self.build_srds(((SRD_WS, 36, WS_SIZE), (SRD_DBG, 34, 256), (SRD_WO, 20, 524288), (SRD_W2, 26, 524288),
                         (SRD_W3, 28, 1409024), (SRD_W4, 30, 1409024), (SRD_OUT, 32, 2097152)))
        A(f"s_lshr_b32 s{sSLAB}, s{sRB64}, 2"); A(f"s_lshl_b32 s{sSLAB}, s{sSLAB}, {SLAB_SH}")
        A(f"s_and_b32 s{sR32L}, s{sRB64}, 3"); A(f"s_lshl_b32 s{sR32L}, s{sR32L}, 1"); A(f"s_add_u32 s{sR32L}, s{sR32L}, s{sRBK}")
        A(f"s_and_b32 s{sR32P}, s{sRB128}, 1"); A(f"s_lshl_b32 s{sR32P}, s{sR32P}, 2"); A(f"s_add_u32 s{sR32P}, s{sR32P}, s{sW}")
        l = A.newlabel("zi")
        A(f"s_cmp_lg_u32 s2, 0"); A(f"s_cbranch_scc1 {l}")
        A(f"s_cmp_lg_u32 s{sW}, 3"); A(f"s_cbranch_scc1 {l}")
        A(f"v_lshrrev_b32 v250, 5, v{vL}"); A(f"v_lshlrev_b32 v250, {SLAB_SH}, v250"); A(f"v_and_b32 v251, 31, v{vL}")
        A("v_lshl_add_u32 v250, v251, 8, v250"); A(f"v_add_u32 v250, {WS_CNT}, v250"); A("v_mov_b32 v251, 0")
        for i in range(4):
            A.opt(f"buffer_store_dword v251, v250, {srd(SRD_WS)}, 0 offen sc1")
            if i < 3: A(f"v_add_u32 v250, {2 << SLAB_SH}, v250")
        A.label(l)
        A("v_mov_b32 v246, 0"); A("v_mov_b32 v250, 0")
        self.pos_zero = A.vm_pos()
        if self.cfg.touch_mode == "early": self.weight_touch()

    def start_touch(self):
        A = self.A
        if not self.cfg.touch: return
        le = A.newlabel("te")
        A(f"s_cmp_eq_u32 s{sW}, 3"); A(f"s_cbranch_scc0 {le}")
        A(f"s_mov_b64 s[{sEXS}:{sEXS+1}], exec")
        A("s_mov_b64 exec, 0xff")
        A("s_getpc_b64 s[96:97]")
        A.label("L_pc")
        A(f"s_lshl_b32 s{sT0}, s{sT3}, 10"); A(f"v_lshlrev_b32 v250, 7, v{vL}"); A(f"v_add_u32 v250, s{sT0}, v250")
        A("v_min_u32 v250, L_end-L_pc, v250")
        A.opt("global_load_dword v255, v250, s[96:97]")
        A("s_bfm_b64 exec, 48, 0")
        A(f"s_mul_i32 s{sT0}, s2, {48*128}"); A(f"v_lshlrev_b32 v250, 7, v{vL}")
        A.opt(f"buffer_load_dword v255, v250, {srd(SRD_WQKV)}, s{sT0} offen")
        A(f"s_mov_b64 exec, s[{sEXS}:{sEXS+1}]")
        A.label(le)

    def t0_dma2(self):
        for q in range(self.cfg.preA, self.cfg.pre_chunks): self.emit_groups(self.chunk_dma(q))

    def weight_touch(self, tlb_only=False, with_ws=True):
        A = self.A
        if not self.cfg.touch: return
        le = A.newlabel("lte")
        labels = [A.newlabel("lt") for _ in range(4)]
        A(f"s_mov_b64 s[{sEXS}:{sEXS+1}], exec")
        A(f"v_lshlrev_b32 v250, 7, v{vL}")
        plan = (((SRD_W2, 16, 0), (SRD_WO, 16, 0)), ((SRD_W3, 22, 0), (SRD_W3, 21, 22)), ((SRD_W4, 22, 0), (SRD_W4, 21, 22)), None)
        for w, items in enumerate(plan):
            A.label(labels[w])
            f = A if w == 0 else A.opt
            if w < 3:
                A(f"s_cmp_eq_u32 s{sW}, {w}"); A(f"s_cbranch_scc0 {labels[w+1]}")
                for (srdn, n, first) in items:
                    tot = 16 if srdn in (SRD_W2, SRD_WO) else 43
                    A(f"s_bfm_b64 exec, {n}, 0")
                    A(f"s_mul_i32 s{sT5}, s2, {tot*128}")
                    if first: A(f"s_add_u32 s{sT5}, s{sT5}, {first*128}")
                    f(f"buffer_load_dword v255, v250, {srd(srdn)}, s{sT5} offen")
                A(f"s_branch {le}")
            else:
                A("s_mov_b64 exec, 3"); A(f"v_lshlrev_b32 v250, 20, v{vL}")
                f(f"buffer_load_dword v255, v250, {srd(SRD_OUT)}, 0 offen")
                A("s_mov_b64 exec, 1"); A(f"s_add_u32 s{sT5}, s{sSLAB}, {WS_IDLE}")
                f(f"buffer_load_dword v255, v246, {srd(SRD_WS)}, s{sT5} offen")
        A.label(le)
        A(f"s_mov_b64 exec, s[{sEXS}:{sEXS+1}]")

    def l2_touch(self, what):
        A = self.A
        if what not in self.cfg.l2touch.split("+"): return
        T = 240
        srdn, nlines = {"w2": (SRD_W2, 4096), "wo": (SRD_WO, 4096), "w4": (SRD_W4, 11008), "w3": (SRD_W3, 11008),
                        "wq": (SRD_WQKV, 4096), "wv": (SRD_WQKV, 4096)}[what]
        per = nlines // 128
        A(f"s_lshr_b32 s{sT5}, s2, 3"); A(f"s_lshl_b32 s{sT5}, s{sT5}, 2"); A(f"s_add_u32 s{sT5}, s{sT5}, s{sW}")
        if what in ("wq", "wv"):
            A(f"s_mul_i32 s{sT5}, s{sT5}, {4*3072}")
            if what == "wv": A(f"s_add_u32 s{sT5}, s{sT5}, 2048")
            A(f"v_lshrrev_b32 v{T}, 3, v{vL}"); A(f"v_mul_u32_u24 v{T}, 3072, v{T}"); A(f"v_and_b32 v{T+1}, 7, v{vL}")
            A(f"v_lshl_add_u32 v{T}, v{T+1}, 7, v{T}")
        else:
            A(f"s_mul_i32 s{sT5}, s{sT5}, {per*128}")
            A(f"v_lshlrev_b32 v{T}, 7, v{vL}")
        A(f"s_mov_b64 s[{sEXS}:{sEXS+1}], exec")
        for r0 in range(0, per, 64):
            n = min(64, per - r0)
            if n < 64: A(f"s_bfm_b64 exec, {n}, 0")
            if r0: A(f"s_add_u32 s{sT5}, s{sT5}, {64*128}")
            A(f"buffer_load_dword v255, v{T}, {srd(srdn)}, s{sT5} offen")
        A(f"s_mov_b64 exec, s[{sEXS}:{sEXS+1}]")

    def l2_touch_rows(self, srdn, ranges, tmp):
        A = self.A
        A(f"s_lshr_b32 s{sT5}, s2, 3"); A(f"s_lshl_b32 s{sT5}, s{sT5}, 2"); A(f"s_add_u32 s{sT5}, s{sT5}, s{sW}")
        A(f"v_lshlrev_b32 v{tmp}, 7, v{vL}")
        A(f"s_mov_b64 s[{sEXS}:{sEXS+1}], exec")
        for (r0, nr) in ranges:
            per = (nr * 8 + 127) // 128
            assert per <= 64
            A(f"s_mul_i32 s{sT0}, s{sT5}, {per*128}"); A(f"s_add_u32 s{sT0}, s{sT0}, {r0*1024}")
            A(f"s_bfm_b64 exec, {per}, 0") if per < 64 else A("s_mov_b64 exec, -1")
            A(f"buffer_load_dword v255, v{tmp}, {srd(srdn)}, s{sT0} offen")
        A(f"s_mov_b64 exec, s[{sEXS}:{sEXS+1}]")

    def chunk_dma(self, q):
        gs = [[f"s_add_u32 s{sD1}, s{sROT}, {q}", f"s_and_b32 s{sD1}, s{sD1}, 7", f"s_lshl_b32 s{sD0}, s{sD1}, 7",
               f"s_add_u32 m0, s{sWL}, {A0 + q*8192}", f"s_add_u32 s{sD0}, s{sD0}, s{sXG}",
               f"buffer_load_dwordx4 v14, {srd(SRD_X)}, s{sD0} offen lds"],
              [f"buffer_load_dwordx4 v{vX2}, {srd(SRD_X)}, s{sD0} offen offset:1024 lds"],
              [f"s_lshl_b32 s{sD0}, s{sD1}, 16",
               f"s_add_u32 m0, s{sWL}, {B0 + q*8192}", f"s_add_u32 s{sD0}, s{sD0}, s{sW1G}",
               f"buffer_load_dwordx4 v{vSTR}, {srd(SRD_W1)}, s{sD0} offen lds"],
              [f"buffer_load_dwordx4 v{vSTRJ[1]}, {srd(SRD_W1)}, s{sD0} offen offset:1024 lds"]]
        def mark(q=q): self.chunk_pos[q] = self.A.vm_pos()
        gs[-1].append(mark)
        return gs

    def quad(self, pre, srdn, vregs):
        return [(pre if j == 0 else []) + [f"buffer_load_dwordx4 v{vregs[j]}, {srd(srdn)}, s{sG} offen" + (f" offset:{1024*j}" if j else "") + " lds"]
                for j in range(4)]

    def job_strip_qkv(self, which, s0, ns, lds0):
        assert ns % 8 == 0
        groups = []
        for J in range(ns // 8):
            pre = [f"s_add_u32 m0, s{sW4K}, {lds0 + 16384*J}", f"s_add_u32 s{sD0}, s{sROT8}, {2*s0 + 16*J}", f"s_and_b32 s{sD0}, s{sD0}, 63",
                   f"s_mul_i32 s{sD0}, s{sD0}, {8*3072}", f"s_lshl_b32 s{sG}, s{sC}, 7", f"s_add_u32 s{sG}, s{sG}, s{sD0}"]
            if which: pre.append(f"s_add_u32 s{sG}, s{sG}, {which*1024}")
            groups += self.quad(pre, SRD_WQKV, vSTRQJ)
        return groups

    def job_strip(self, srdn, u0, nunits, lds_base):
        assert u0 % 16 == 0 and nunits % 16 == 0 and not self.cfg.krot
        groups = []
        for J in range(nunits // 16):
            u = u0 + 16*J
            if self.cfg.jrot and u0 == 0 and nunits == 64:
                pre = [f"s_add_u32 s{sD0}, s{sRB64}, {J}", f"s_and_b32 s{sD0}, s{sD0}, 3", f"s_lshl_b32 s{sD1}, s{sD0}, 14", f"s_add_u32 s{sD1}, s{sD1}, s{sW4K}",
                       f"s_add_u32 m0, s{sD1}, {lds_base}", f"s_lshl_b32 s{sD0}, s{sD0}, 17", f"s_add_u32 s{sG}, s{sBW}, s{sD0}"]
            else:
                pre = [f"s_add_u32 m0, s{sW4K}, {lds_base + 1024*u}", f"s_add_u32 s{sG}, s{sBW}, {u*8192}"]
            groups += self.quad(pre, srdn, vSTRJ)
        return groups

    def job_w3(self, s0, ns, lds0):
        groups = []
        full_prev = False
        for j in range((ns + 3)//4):
            full = 4*j + 3 < ns
            if full and full_prev:
                g = [f"s_add_u32 m0, m0, {4*3072}", f"s_add_u32 s{sG}, s{sG}, {4*16*2752}"]
            else:
                if full:
                    g = [f"s_add_u32 m0, s{sW3L}, {lds0 + 4*j*3072}", f"s_add_u32 s{sD0}, s{sW}, {s0 + 4*j}"]
                else:
                    g = [f"s_add_u32 s{sD1}, s{sW}, {4*j}", f"s_min_u32 s{sD1}, s{sD1}, {ns-1}", f"s_mul_i32 s{sD0}, s{sD1}, 3072",
                         f"s_add_u32 m0, s{sD0}, {lds0}", f"s_add_u32 s{sD0}, s{sD1}, {s0}"]
                g += [f"s_mul_i32 s{sD0}, s{sD0}, {16*2752}", f"s_lshl_b32 s{sD1}, s{sCB0}, 6", f"s_add_u32 s{sG}, s{sD0}, s{sD1}"]
            full_prev = full
            for i in range(3):
                ins = f"buffer_load_dwordx4 v{vW3[i]}, {srd(SRD_W3)}, s{sG} offen" + (f" offset:{1024*i}" if i else "") + " lds"
                groups.append((g if i == 0 else []) + [ins])
        return groups

    def setup2(self):
        A = self.A
        A(f"s_mov_b32 s{sONES}, 0x3f803f80"); A(f"s_mov_b32 s{sPLO}, 0x05040100"); A(f"s_mov_b32 s{sPHI}, 0x07060302")
        if self.cfg.ftswap:
            A(f"s_mov_b32 s{sT0}, s{sFT}")
            for (x, y) in ((3, 11), (11, 3), (7, 12), (12, 7)):
                A(f"s_cmp_eq_u32 s{sFT}, {x}"); A(f"s_cselect_b32 s{sT0}, {y}, s{sT0}")
            A(f"s_mov_b32 s{sFT}, s{sT0}")
        A(f"s_mul_i32 s{sCB0}, s{sFT}, 3"); A(f"s_mov_b32 s{sNBLK}, 3")
        A(f"s_cmp_lt_u32 s{sFT}, 11"); l = A.newlabel("ft"); A(f"s_cbranch_scc1 {l}")
        A(f"s_lshl_b32 s{sCB0}, s{sFT}, 1"); A(f"s_add_u32 s{sCB0}, s{sCB0}, 11"); A(f"s_mov_b32 s{sNBLK}, 2")
        A.label(l)
        A(f"s_lshl_b32 s{sBW}, s{sC}, 7"); A(f"s_lshl_b32 s{sT0}, s{sW}, 15"); A(f"s_add_u32 s{sBW}, s{sBW}, s{sT0}")
        A(f"s_lshl_b32 s{sT1}, s{sC}, 7"); A(f"s_mul_i32 s{sT0}, s{sW}, {3*32768}"); A(f"s_add_u32 s{sW4S[3]}, s{sT0}, s{sT1}")
        A(f"s_lshl_b32 s{sT0}, s{sW}, 16"); A(f"s_add_u32 s{sW4S[2]}, s{sT0}, s{sT1}")
        A(f"s_mul_i32 s{sW3L}, s{sW}, 3072")
        A(f"s_mov_b32 s{sR3}, 0"); A(f"s_mov_b32 s{sKR}, 0")
        for j in (2, 3): A(f"v_add_u32 v{vSTRJ[j]}, {7168*j}, v{vSTR}")
        A(f"v_add_u32 v{vS4J[2]}, {43*16384 - 2048}, v{vSTR}"); A(f"v_add_u32 v{vS4J[3]}, {43*16384 + 8192 - 3072}, v{vSTR}")
        for j in (1, 2, 3): A(f"v_add_u32 v{vSTRQJ[j]}, {23552*j}, v{vSTRQ}")
        T = vT
        A(f"v_bfe_u32 v{T}, v{vL}, 2, 2")
        A(f"v_and_b32 v{T+1}, 3, v{vL}"); A(f"v_lshlrev_b32 v{T+1}, 3, v{T+1}")
        A(f"v_bfe_u32 v{T+2}, v{vL}, 4, 1"); A(f"v_lshl_add_u32 v{T+1}, v{T+2}, 5, v{T+1}")
        A(f"v_lshrrev_b32 v{T+2}, 1, v{T}")
        A(f"v_xor_b32 v{T+3}, s{sCG}, v{T+2}")
        A(f"v_lshlrev_b32 v{T+3}, 6, v{T+3}")
        A(f"v_lshl_add_u32 v{T+4}, v{T}, 7, v{T+1}")
        A(f"v_add_u32 v{T+4}, v{T+4}, v{T+3}")
        A(f"v_lshl_add_u32 v{vTRN}, v{vH}, 10, v{T+4}")
        A(f"v_lshl_add_u32 v{vTRC0}, v{vH}, 9, v{T+4}")
        A(f"v_xor_b32 v{vTRC1}, 64, v{vTRC0}")
        A(f"v_mul_u32_u24 v{T+5}, 192, v{T}"); A(f"v_add_u32 v{T+5}, v{T+5}, v{T+1}")
        A(f"v_mul_u32_u24 v{T+6}, 768, v{vH}"); A(f"v_add_u32 v{vTR3}, v{T+5}, v{T+6}")
        A(f"s_mov_b32 s{sT0}, 43691"); A(f"s_movk_i32 s{sT1}, 2752")
        for j in range(3):
            A(f"v_add_u32 v{T}, {64*j}, v{vL}")
            A(f"v_mul_u32_u24 v{T+1}, s{sT0}, v{T}"); A(f"v_lshrrev_b32 v{T+1}, 19, v{T+1}")
            A(f"v_mul_u32_u24 v{T+2}, 12, v{T+1}"); A(f"v_sub_u32 v{T+2}, v{T}, v{T+2}")
            A(f"v_mul_u32_u24 v{T+1}, s{sT1}, v{T+1}")
            A(f"v_lshl_add_u32 v{vW3[j]}, v{T+2}, 4, v{T+1}")
            if j: A(f"v_subrev_u32 v{vW3[j]}, {1024*j}, v{vW3[j]}")

    def p1_h(self):
        A = self.A
        T = vT
        vXA = [T, T+1, T+2, T+3]; vXS = [T+4, T+5]
        A(f"s_lshl_b32 s{sT0}, s{sRBK}, 5"); A(f"v_add_u32 v{T+6}, s{sT0}, v{vM}")
        A(f"v_bfe_u32 v{T+7}, v{T+6}, 1, 3"); A(f"v_xor_b32 v{T+7}, v{T+7}, v{vH}"); A(f"v_lshlrev_b32 v{T+7}, 4, v{T+7}")
        A(f"v_lshl_add_u32 v{vXA[0]}, v{T+6}, 7, v{T+7}")
        for s in range(1, 4): A(f"v_xor_b32 v{vXA[s]}, {32*s}, v{vXA[0]}")
        A(f"s_lshl_b32 s{sT0}, s{sCG}, 6"); A(f"v_xor_b32 v{vXS[0]}, s{sT0}, v{vXA[0]}"); A(f"v_xor_b32 v{vXS[1]}, 32, v{vXS[0]}")
        vXR = T+8
        A(f"v_bfe_u32 v{T+7}, v{T+6}, 1, 3"); A(f"s_lshl_b32 s{sT0}, s{sCG}, 2"); A(f"v_xor_b32 v{T+7}, s{sT0}, v{T+7}")
        A(f"v_lshlrev_b32 v{T+7}, 4, v{T+7}"); A(f"v_lshl_add_u32 v{T+7}, v{T+6}, 7, v{T+7}")
        A(f"v_lshl_add_u32 v{T+7}, v{vH}, 3, v{T+7}")
        A(f"s_sub_u32 s{sXSLOT}, s{sC}, s{sROT}"); A(f"s_and_b32 s{sXSLOT}, s{sXSLOT}, 7"); A(f"s_lshl_b32 s{sT0}, s{sXSLOT}, 13"); A(f"v_add_u32 v{vXR}, s{sT0}, v{T+7}")
        vWB = T+9
        A(f"v_add_u32 v{vWB}, {B0}, v{vTRN}")
        vS0, vS1, vQ0, vQ1, vC0, vC1 = T+10, T+11, T+12, T+13, T+14, T+15
        for r in (vS0, vS1, vQ0, vQ1, vC0, vC1): A(f"v_mov_b32 v{r}, 0")
        XT = T+16
        acc = vACC0
        def reads(q):
            L = []
            for s in range(4):
                b = vRING + 4*(4*(q & 1) + s)
                st = 4*q + s
                L.append([f"ds_read_b128 {a(4*st,4)}, v{vXA[s]} offset:{q*8192}",
                          f"ds_read_b64_tr_b16 {v(b,2)}, v{vWB} offset:{st*2048}",
                          f"ds_read_b64_tr_b16 {v(b+2,2)}, v{vWB} offset:{st*2048+512}"])
            L[0].append(f"ds_read_b128 {v(XT+8*(q&1),4)}, v{vXS[0]} offset:{q*8192}")
            L[1].append(f"ds_read_b128 {v(XT+8*(q&1)+4,4)}, v{vXS[1]} offset:{q*8192}")
            return L
        def burst(q):
            x = XT + 8*(q & 1)
            for i in range(8):
                A(f"v_dot2c_f32_bf16 v{vS0 + (i&1)}, s{sONES}, v{x+i}")
                A(f"v_dot2c_f32_bf16 v{vQ0 + (i&1)}, v{x+i}, v{x+i}")
            l1 = A.newlabel("cs"); l2 = A.newlabel("ce")
            b = vRING + 16*(q & 1)
            A(f"s_cmp_lg_u32 s{sRBK}, 0"); A(f"s_cbranch_scc1 {l1}")
            for i in range(8): A(f"v_dot2c_f32_bf16 v{vC0 + (i&1)}, s{sONES}, v{b+i}")
            A(f"s_branch {l2}")
            A.label(l1)
            for i in range(8): A(f"v_dot2c_f32_bf16 v{vC0 + (i&1)}, s{sONES}, v{b+8+i}")
            A.label(l2)
        for q in range(9):
            if q < 8:
                A.wait(vm=self.chunk_pos[q])
                if q == self.cfg.preA:
                    l = A.newlabel("fi")
                    A(f"s_cmp_lg_u32 s2, 0"); A(f"s_cbranch_scc1 {l}")
                    A(f"s_cmp_lg_u32 s{sW}, 3"); A(f"s_cbranch_scc1 {l}")
                    A("v_mov_b32 v250, 0"); A("v_mov_b32 v251, 1")
                    A(f"s_mov_b64 s[{sEXS}:{sEXS+1}], exec"); A("s_mov_b64 exec, 1")
                    A.opt(f"buffer_store_dword v251, v250, {srd(SRD_DBG)}, 0 offen sc1")
                    A(f"s_mov_b64 exec, s[{sEXS}:{sEXS+1}]")
                    A.label(l)
            A.wait_all_lg()
            if q < 8: A("s_barrier")
            rd = reads(q) if q < 8 else [[], [], [], []]
            if q < 8 and (q == 0 or self.cfg.chunkstamps):
                self.stamp(f"chunk{q}")
            if q in ((0, 2, 4, 6) if self.cfg.rot == 1 else range(8)):
                l = A.newlabel("xr")
                A(f"s_cmp_lg_u32 s{sXSLOT}, {q}"); A(f"s_cbranch_scc1 {l}")
                for g in range(4):
                    A(f"v_xor_b32 v{T+32}, {16*g}, v{vXR}")
                    A.opt(f"ds_read_b64 {v(vXRES+2*g,2)}, v{T+32}")
                A.label(l)
            if q == 0:
                for g in rd:
                    for ins in g: A(ins)
                continue
            p = q - 1
            nxt = q + self.cfg.pre_chunks - 1
            if nxt <= 7: self.side += self.chunk_dma(nxt)
            elif not self.kA_queued:
                assert q >= 6
                self.kA_queued = True
                self.queue(self.job_strip_qkv(1, 0, 8, C0))
                self.queue(self.job_strip_qkv(1, 8, 16, A0))
                self.queue(self.job_strip_qkv(1, 24, 8, A0 + 32768), "pos_kB")
                if self.cfg.early_kv: self.queue(self.job_strip_qkv(2, 0, 16, B0))
            if q == 6: self.init_poll_issue()
            if q == 5 and self.cfg.touch:
                A(f"s_mov_b64 s[{sEXS}:{sEXS+1}], exec"); A("s_mov_b64 exec, 1")
                A(f"s_add_u32 s{sT5}, s{sSLAB}, {WS_IDLE}")
                A(f"buffer_load_dword v255, v246, {srd(SRD_WS)}, s{sT5} offen")
                A(f"s_mov_b64 exec, s[{sEXS}:{sEXS+1}]")
            for s in range(4):
                st = 4*p + s
                b = vRING + 4*(4*(p & 1) + s)
                c = "0" if st == 0 else v(acc, 16)
                A(f"v_mfma_f32_32x32x16_bf16 {v(acc,16)}, {v(b,4)}, {a(4*st,4)}, {c}")
                for ins in rd[s]: A(ins)
                self.pump(self.cfg.hpump if q >= 6 else 1)
            burst(p)
        if self.cfg.hpump >= 2: self.flush_side()
        self.vS = (vS0, vS1, vQ0, vQ1, vC0, vC1)

    def colsum_finish(self, vC0, vC1, scr_off, tmp, pre=None, post=None):
        A = self.A
        A.nop(3)
        A(f"v_add_f32 v{vC0}, v{vC0}, v{vC1}")
        self.swap_add(vC0, tmp)
        A(f"s_lshl_b32 s{sT0}, s{sW}, 7"); A(f"v_lshl_add_u32 v{tmp}, v{vM}, 2, s{sT0}")
        A(f"v_add_u32 v{tmp}, {scr_off}, v{tmp}")
        A(f"ds_write_b32 v{tmp}, v{vC0}")
        if pre: pre()
        A.wait_all_lg()
        A("s_barrier")
        A(f"v_xor_b32 v{tmp}, 128, v{tmp}")
        A(f"ds_read_b32 v{vC1}, v{tmp}")
        if post: post()
        A(f"v_cmp_gt_u32 vcc, 32, v{vL}")
        A.wait_all_lg()
        A(f"v_add_f32 v{vC0}, v{vC0}, v{vC1}")
        A(f"v_cndmask_b32 v{vC0}, 0, v{vC0}, vcc")

    def p1_h_finish(self):
        A = self.A
        T = vT
        vS0, vS1, vQ0, vQ1, vC0, vC1 = self.vS
        acc = vACC0
        A.nop(3)
        A(f"v_add_f32 v{vS0}, v{vS0}, v{vS1}"); A(f"v_add_f32 v{vQ0}, v{vQ0}, v{vQ1}"); A(f"v_add_f32 v{vC0}, v{vC0}, v{vC1}")
        tmp = T+33
        self.swap_add2(vS0, vQ0, tmp, tmp+1); self.swap_add(vC0, tmp)
        A(f"s_lshl_b32 s{sT0}, s{sW}, 8"); A(f"v_lshl_add_u32 v{tmp}, v{vM}, 3, s{sT0}"); A(f"v_add_u32 v{tmp}, {SCR1}, v{tmp}")
        A(f"v_mov_b32 v{vS1}, v{vQ0}")
        A(f"ds_write_b64 v{tmp}, {v(vS0,2)}")
        A(f"s_lshl_b32 s{sT0}, s{sW}, 7"); A(f"v_lshl_add_u32 v{tmp+1}, v{vM}, 2, s{sT0}"); A(f"v_add_u32 v{tmp+1}, {SCR1+1024}, v{tmp+1}")
        A(f"ds_write_b32 v{tmp+1}, v{vC0}")
        A.wait_all_lg()
        A("s_barrier")
        A(f"v_xor_b32 v{tmp}, 512, v{tmp}"); A(f"v_xor_b32 v{tmp+1}, 128, v{tmp+1}")
        A(f"ds_read_b64 {v(vQ0,2)}, v{tmp}")
        A(f"ds_read_b32 v{vC1}, v{tmp+1}")
        if self.cfg.early_kv: self.queue(self.job_strip_qkv(2, 16, 16, B0 + 32768), "pos_v")
        else: self.queue(self.job_strip_qkv(2, 0, 32, B0), "pos_v")
        A.auto = self.cfg.auto_h
        A(f"v_cmp_gt_u32 vcc, 32, v{vL}")
        A.wait_all_lg()
        A(f"v_add_f32 v{vS0}, v{vS0}, v{vQ0}"); A(f"v_add_f32 v{vS1}, v{vS1}, v{vQ1}"); A(f"v_add_f32 v{vC0}, v{vC0}, v{vC1}")
        A(f"v_cndmask_b32 v{vC0}, 0, v{vC0}, vcc")
        self.fstamp("he", "he:exch")
        A(f"v_mul_f32 v{vS0}, {fbits(1/512)}, v{vS0}")
        A(f"v_mul_f32 v{vS1}, {fbits(1/512)}, v{vS1}")
        A(f"v_sub_f32 v{vNMU}, 0, v{vS0}")
        A(f"v_fma_f32 v{vS1}, v{vNMU}, v{vS0}, v{vS1}")
        A(f"v_max_f32 v{vS1}, 0, v{vS1}")
        A(f"v_mfma_f32_32x32x2_f32 {v(acc,16)}, v{vC0}, v{vNMU}, {v(acc,16)}")
        mk = A.mark()
        A(f"v_add_f32 v{vQ0}, {fbits(1e-5)}, v{vS1}")
        A(f"v_rsq_f32 v{vR}, v{vQ0}")
        A.nop(1)
        A(f"v_mul_f32 v{vQ0}, v{vR}, v{vR}"); A(f"v_mul_f32 v{vQ0}, v{vQ0}, v{vS1}")
        A(f"v_add_f32 v{vQ0}, {fbits(1e-5)}, v{vQ0}")
        A(f"v_rsq_f32 v{vQ0}, v{vQ0}")
        A.nop(1)
        A(f"v_mul_f32 v{vQ0}, v{vQ0}, v{vR}")
        self.fstamp("he", "he:stats")
        self.gelu_block(acc, vQ0, T+34, mk)
        self.fstamp("he", "he:gelu")
        self.frag_dest(sT0, WS_H)
        self.pstore(f"buffer_store_dwordx4 {v(acc,4)}, v{vL16}, {srd(SRD_WS)}, s{sT0} offen sc1")
        self.pstore(f"buffer_store_dwordx4 {v(acc+4,4)}, v{vL16}, {srd(SRD_WS)}, s{sT0} offen offset:1024 sc1")
        self.pos_h = A.vm_pos()
        A.auto = 0
        while not hasattr(self, "pos_kB"): self.pump(1)
        if self.cfg.hflush: self.flush_side()
        if self.cfg.touch_mode == "late": self.weight_touch()
        self.l2_touch("w2"); self.l2_touch("wq")

    def gelu_consts(self, vS, tmp):
        A = self.A
        K1, K0, RI = tmp, tmp+2, tmp+4
        A(f"v_mul_f32 v{K0}, {fbits(C0G)}, v{vS}")
        A(f"v_mul_f32 v{K1}, v{vS}, v{vS}"); A(f"v_mul_f32 v{K1}, v{K1}, v{vS}"); A(f"v_mul_f32 v{K1}, {fbits(C1G)}, v{K1}")
        A(f"v_rcp_f32 v{RI}, v{vS}")
        A(f"v_mov_b32 v{K0+1}, v{K0}"); A(f"v_mov_b32 v{K1+1}, v{K1}"); A(f"v_mov_b32 v{RI+1}, v{RI}")
        return (K1, K0, RI, tmp + 6)

    def gelu_body(self, acc, GK):
        A = self.A
        K1, K0, RI, t = GK
        for p in range(0, 16, 4):
            x0, x1 = acc + p, acc + p + 2
            u0, u1 = t, t + 2
            A(f"v_pk_mul_f32 {v(u0,2)}, {v(x0,2)}, {v(x0,2)}")
            A(f"v_pk_mul_f32 {v(u1,2)}, {v(x1,2)}, {v(x1,2)}")
            A(f"v_pk_fma_f32 {v(u0,2)}, {v(u0,2)}, {v(K1,2)}, {v(K0,2)}")
            A(f"v_pk_fma_f32 {v(u1,2)}, {v(u1,2)}, {v(K1,2)}, {v(K0,2)}")
            A(f"v_pk_mul_f32 {v(u0,2)}, {v(u0,2)}, {v(x0,2)}")
            A(f"v_pk_mul_f32 {v(u1,2)}, {v(u1,2)}, {v(x1,2)}")
            for r in (u0, u0+1, u1, u1+1): A(f"v_exp_f32 v{r}, v{r}")
            A(f"v_pk_fma_f32 {v(u0,2)}, {v(u0,2)}, {v(RI,2)}, {v(RI,2)}")
            A(f"v_pk_fma_f32 {v(u1,2)}, {v(u1,2)}, {v(RI,2)}, {v(RI,2)}")
            for r in (u0, u0+1, u1, u1+1): A(f"v_rcp_f32 v{r}, v{r}")
            A(f"v_pk_mul_f32 {v(u0,2)}, {v(u0,2)}, {v(x0,2)}")
            A(f"v_pk_mul_f32 {v(u1,2)}, {v(u1,2)}, {v(x1,2)}")
            A(f"v_cvt_pk_bf16_f32 v{acc + p//2}, v{u0}, v{u0+1}")
            A(f"v_cvt_pk_bf16_f32 v{acc + p//2 + 1}, v{u1}, v{u1+1}")

    def gelu_block(self, acc, vS, tmp, mk):
        GK = self.gelu_consts(vS, tmp)
        self.A.pad(mk, 18)
        self.gelu_body(acc, GK)

    def qkv_main(self, addr, hooks, side_rate=2, mid=None):
        A = self.A
        T = vT
        acc = vACC0
        PD = 2
        bases = {}
        for st in range(32):
            for d in (0, 512):
                win = (addr(st) + d) // 65536
                if win not in bases:
                    r = T + 40 + len(bases)
                    if win: A(f"v_add_u32 v{r}, {win*65536}, v{vTRN}")
                    else: A(f"v_mov_b32 v{r}, v{vTRN}")
                    bases[win] = r
        vC0, vC1 = T+14, T+15
        A(f"v_mov_b32 v{vC0}, 0"); A(f"v_mov_b32 v{vC1}, 0")
        lgpos = {}
        def burst(steps):
            for st in steps:
                b = vRING + 4*(st % 18)
                for i in range(4): A(f"v_dot2c_f32_bf16 v{vC0 + (i&1)}, s{sONES}, v{b+i}")
                self.tick(18)
        self.credit = 0
        for s in range(32 + PD):
            if s < 32:
                if s in hooks: hooks[s]()
                ad = addr(s)
                b = vRING + 4*(s % 18)
                for (kk, d) in ((0, 0), (2, 512)):
                    x = ad + d
                    A(f"ds_read_b64_tr_b16 {v(b+kk,2)}, v{bases[x // 65536]} offset:{x % 65536}")
                lgpos[s] = A.lg_pos()
            if s >= PD:
                t = s - PD
                A.wait(lg=lgpos[t])
                b = vRING + 4*(t % 18)
                c = "0" if t == 0 else v(acc, 16)
                A(f"v_mfma_f32_32x32x16_bf16 {v(acc,16)}, {v(b,4)}, {a(4*t,4)}, {c}")
                self.tick(33)
                if mid and t in mid: mid[t]()
                if t == 15:
                    self.fstamp("qkv", "t15>")
                    burst(range(0, 16))
                    self.fstamp("qkv", "t15<")
        self.fstamp("qkv", "loop<")
        burst(range(16, 32))

    def qkv_tail(self, dst, keep_auto=False):
        A = self.A
        T = vT
        acc = vACC0
        vC0, vC1 = T+14, T+15
        A(f"v_cmp_gt_u32 vcc, 32, v{vL}")
        A.nop(2)
        A(f"v_add_f32 v{vC0}, v{vC0}, v{vC1}")
        self.swap_add(vC0, T+33)
        A(f"v_cndmask_b32 v{vC0}, 0, v{vC0}, vcc")
        A.nop(2)
        A(f"v_mfma_f32_32x32x2_f32 {v(acc,16)}, v{vC0}, v{vNMU}, {v(acc,16)}")
        mk = A.mark()
        A.auto = 0
        self.pump(3)
        A.pad(mk, 18)
        A.auto = self.cfg.auto
        for i in range(8):
            A(f"v_mul_f32 v{acc+2*i}, v{vR}, v{acc+2*i}"); A(f"v_mul_f32 v{acc+2*i+1}, v{vR}, v{acc+2*i+1}")
            A(f"v_cvt_pk_bf16_f32 v{dst+i}, v{acc+2*i}, v{acc+2*i+1}")
        A.auto = 0
        A.nop(2)
        for i in range(4): A(f"v_permlane32_swap_b32 v{dst+i}, v{dst+4+i}")

    def shadow1(self):
        A = self.A
        def addr_k(s): return C0 + s*2048 if s < 8 else A0 + (s-8)*2048
        def hk0(): A.wait(vm=self.pos_kB); A("s_barrier"); self.stamp("hk0")
        n1 = self.cfg.w2_in_k
        mids = {8: lambda: self.l2_touch("w3")}
        if n1: mids[16] = lambda: self.queue(self.job_strip(SRD_W2, 64 - n1, n1, A0))
        self.qkv_main(addr_k, {0: hk0}, mid=mids)
        self.flush_side()
        self.stamp("k loop")
        A.wait(vm=self.pos_h)
        A("s_barrier")
        self.stamp("h drained")
        self.signal(CNT_H, sRB64, "h", init_check=True)
        self.queue(self.job_strip(SRD_W2, 0, 64 - n1, A0), "pos_w2")
        self.queue(self.job_w3(0, 8, C0) + self.job_w3_small(30, 2, C0 + 8*3072))
        self.qkv_tail(vKP)
        self.stamp("k done")
        self.p2_setup()
        def hv0(): A.wait(vm=self.pos_v); A("s_barrier"); self.stamp("hv0")
        hcode = [f"s_add_u32 s{sT5}, s{sRB64}, -1", f"v_add_u32 v250, s{sT5}, v{vL}",
                 "v_max_i32 v250, 0, v250", "v_min_i32 v250, 31, v250"] + self.cnt64_v(CNT_H)
        self.qkv_main(lambda s: B0 + s*2048, {0: hv0}, side_rate=1, mid={self.cfg.hpoll_at: lambda: self.poll_issue(hcode, 3, 8, "h"), 20: lambda: self.l2_touch("wo")})
        self.flush_side()
        self.stamp("v loop")

    def halo_publish(self):
        A = self.A
        l = A.newlabel("halo")
        A(f"s_cmp_lg_u32 s{sRBK}, 1"); A(f"s_cbranch_scc1 {l}")
        T = vT
        A(f"s_and_b32 s{sT0}, s{sRB64}, 3"); A(f"s_lshl_b32 s{sT0}, s{sT0}, 3"); A(f"s_add_u32 s{sT0}, s{sT0}, s{sC}"); A(f"s_lshl_b32 s{sT0}, s{sT0}, 12")
        A(f"s_lshl_b32 s{sT1}, s{sCG}, 10"); A(f"s_add_u32 s{sT0}, s{sT0}, s{sT1}"); A(f"s_add_u32 s{sT0}, s{sT0}, s{sSLAB}"); A(f"s_add_u32 s{sT0}, s{sT0}, {WS_KV}")
        A(f"v_subrev_u32 v{T}, 16, v{vM}"); A(f"v_lshlrev_b32 v{T}, 4, v{T}"); A(f"v_lshl_add_u32 v{T}, v{vH}, 9, v{T}")
        A(f"v_cmp_le_u32 vcc, 16, v{vM}")
        A(f"s_and_saveexec_b64 s[{sEXS}:{sEXS+1}], vcc")
        self.pstore(f"buffer_store_dwordx4 {v(vKP,4)}, v{T}, {srd(SRD_WS)}, s{sT0} offen sc1", opt=True)
        self.pstore(f"buffer_store_dwordx4 {v(vKP+4,4)}, v{T}, {srd(SRD_WS)}, s{sT0} offen offset:256 sc1", opt=True)
        self.pstore(f"buffer_store_dwordx4 {v(vVP,4)}, v{T}, {srd(SRD_WS)}, s{sT0} offen offset:2048 sc1", opt=True)
        self.pstore(f"buffer_store_dwordx4 {v(vVP+4,4)}, v{T}, {srd(SRD_WS)}, s{sT0} offen offset:2304 sc1", opt=True)
        A(f"s_mov_b64 exec, s[{sEXS}:{sEXS+1}]")
        A.label(l)
        self.pos_halo = A.vm_pos()

    def ksplit_gemm(self, nsteps, wbase_vregs, waddr, act_load, first, nring_regs, PDL, hooks=None, side_rate=1, tail=None, pre=None, window=None, mid=None):
        A = self.A
        hooks = hooks or {}
        acts = {}; apos = {}
        def issue(i):
            acts[i] = act_load(i); apos[i] = A.vm_pos()
        if act_load is None:
            acts, apos = pre
        elif window:
            rest = self.side
            self.side = [[(lambda i=i: issue(i))] for i in range(min(PDL, nsteps))]
            self.pump(2)
            assert not rest
            window()
            while len(apos) < min(PDL, nsteps): self.pump(1)
        else:
            for i in range(min(PDL, nsteps)): issue(i)
        PD = 2
        lgpos = {}
        def wreads(s, cb):
            ad = waddr(s)
            if ad is None: return
            b = vRING + 4*(2*(s % 4) + cb)
            A(f"ds_read_b64_tr_b16 {v(b,2)}, v{wbase_vregs[cb]} offset:{ad}")
            A(f"ds_read_b64_tr_b16 {v(b+2,2)}, v{wbase_vregs[cb]} offset:{ad+1024}")
        for s in range(min(PD, nsteps)):
            wreads(s, 0); wreads(s, 1); lgpos[s] = A.lg_pos()
        for t in range(nsteps):
            s = t + PD
            A.wait(vm=apos[t], lg=lgpos[t] if waddr(t) is not None else None)
            for cb in range(2):
                acc = (vACC0, vACC1)[cb]
                c = "0" if (first and t == 0) else v(acc, 16)
                if waddr(t) is not None:
                    wa = v(vRING + 4*(2*(t % 4) + cb), 4)
                else:
                    wa = a(tail(t)[cb], 4)
                A(f"v_mfma_f32_32x32x16_bf16 {v(acc,16)}, {wa}, {a(acts[t],4)}, {c}")
                if s < nsteps: wreads(s, cb)
                if cb == 0 and waddr(t) is None:
                    if t % side_rate == 0: self.pump(1)
            if s < nsteps: lgpos[s] = A.lg_pos()
            if act_load is not None and t + PDL < nsteps: issue(t + PDL)
            elif waddr(t) is not None and t % side_rate == 0: self.pump(1)
            if mid and t in mid: mid[t]()

    def pair_reduce(self, scr, pre=None, post=None):
        A = self.A
        T = vT
        A(f"s_lshl_b32 s{sT0}, s{sW}, 12"); A(f"s_add_u32 s{sT1}, s{sT0}, {scr}"); A(f"v_add_u32 v{T}, s{sT1}, v{vL16}")
        A(f"s_xor_b32 s{sT0}, s{sT0}, 8192"); A(f"s_add_u32 s{sT0}, s{sT0}, {scr}"); A(f"v_add_u32 v{T+1}, s{sT0}, v{vL16}")
        A.nop(12 - 6)
        for j in range(4): A(f"ds_write_b128 v{T}, {v(vACC1+4*j,4)} offset:{1024*j}")
        self.fstamp("p2e", "red:written")
        if pre: pre()
        A.wait_all_lg()
        self.fstamp("p2e", "red:waited")
        A("s_barrier")
        self.fstamp("p2e", "red:barrier")
        for j in range(4): A(f"ds_read_b128 {v(T+4+4*j,4)}, v{T+1} offset:{1024*j}")
        if post: post()
        for j in range(4):
            A.wait(lg=A.lg_pos() - (3 - j))
            for i in range(4): A(f"v_add_f32 v{vACC0+4*j+i}, v{vACC0+4*j+i}, v{T+4+4*j+i}")

    def p2_setup(self):
        A = self.A
        T = vT
        vA, vB = T+50, T+51
        A(f"s_lshl_b32 s{sT0}, s{sRB64}, 6"); A(f"s_lshl_b32 s{sT1}, s{sRBK}, 5"); A(f"s_add_u32 s{sT0}, s{sT0}, s{sT1}")
        A(f"s_add_u32 s{sT1}, s{sCG}, 1")
        for (dst, sign) in ((vA, -1), (vB, +1)):
            A(f"v_add_u32 v{T}, s{sT0}, v{vM}")
            if sign < 0: A(f"v_subrev_u32 v{T}, s{sT1}, v{T}")
            else: A(f"v_add_u32 v{T}, s{sT1}, v{T}")
            A(f"v_lshrrev_b32 v{T+1}, 8, v{T}"); A(f"v_lshlrev_b32 v{T+1}, {SLAB_SH}, v{T+1}")
            A(f"v_bfe_u32 v{T+2}, v{T}, 5, 3"); A(f"v_lshl_add_u32 v{T+1}, v{T+2}, 15, v{T+1}")
            A(f"v_and_b32 v{T+2}, 31, v{T}"); A(f"v_lshl_add_u32 v{T+1}, v{T+2}, 4, v{T+1}")
            A(f"v_lshl_add_u32 v{T+1}, v{vH}, 9, v{T+1}")
            A(f"v_mov_b32 v{T+2}, 0x80000000")
            A(f"s_movk_i32 s{sT2}, 2048"); A(f"v_cmp_gt_u32 vcc, s{sT2}, v{T}")
            A.nop(2)
            A(f"v_cndmask_b32 v{dst}, v{T+2}, v{T+1}, vcc")
        vW0, vW1 = T+52, T+53
        A(f"s_lshl_b32 s{sT0}, s{sCG}, 15"); A(f"v_add_u32 v{vW0}, s{sT0}, v{vTRC0}"); A(f"v_add_u32 v{vW1}, s{sT0}, v{vTRC1}")

    def p2(self):
        A = self.A
        T = vT
        vA, vB = T+50, T+51
        vW0, vW1 = T+52, T+53
        A(f"s_lshl_b32 s{sAS}, s{sCG}, 14"); A(f"s_add_u32 s{sAS}, s{sAS}, {WS_H}")
        A(f"s_add_u32 s{sAE}, s{sAS}, 8192"); A(f"s_lshl_b32 s{sT3}, s{sKR}, 10"); A(f"s_add_u32 s{sT3}, s{sT3}, s{sAS}")
        A.wait(vm=self.pos_w2)
        self.poll_check()
        self.stamp("sync1")
        def act(i):
            r = 128 + 4*i
            if not self.cfg.krot:
                if i % 4 == 0 and i > 0: A(f"s_add_u32 s{sT3}, s{sT3}, 4096")
                A(f"buffer_load_dwordx4 {a(r,4)}, v{vA if i < 8 else vB}, {srd(SRD_WS)}, s{sT3} offen offset:{(i%4)*1024} sc1")
                return r
            if i == 8:
                A(f"s_add_u32 s{sAS}, s{sAS}, 8192"); A(f"s_add_u32 s{sAE}, s{sAE}, 8192")
                A(f"s_lshl_b32 s{sT3}, s{sKR}, 10"); A(f"s_add_u32 s{sT3}, s{sT3}, s{sAS}")
            elif i > 0:
                A(f"s_add_u32 s{sT3}, s{sT3}, 1024"); A(f"s_cmp_eq_u32 s{sT3}, s{sAE}"); A(f"s_cselect_b32 s{sT3}, s{sAS}, s{sT3}")
            A(f"buffer_load_dwordx4 {a(r,4)}, v{vA if i < 8 else vB}, {srd(SRD_WS)}, s{sT3} offen sc1")
            return r
        def window():
            A.auto = self.cfg.auto
            self.qkv_tail(vVP, keep_auto=True)
            A.auto = 0
            self.halo_publish()
            qj = self.job_strip_qkv(0, 0, 32, B0)
            for J in range(4): self.queue(qj[4*J:4*J+4], f"pos_q{J}")
            self.stamp("v tail")
        self.ksplit_gemm(16, (vW0, vW1), lambda i: i*2048, act, True, 0, self.cfg.pdl2, side_rate=1, window=window)
        A("s_barrier")
        self.stamp("p2 main")
        self.pair_reduce(A0 + 51200, pre=lambda: A.wait(vm=self.pos_halo), post=lambda: self.signal(CNT_KV, sRB64, "kv halo"))
        self.fstamp("p2e", "red:done")
        A.auto = self.cfg.auto
        X = T+20
        for j in range(8):
            A(f"v_lshlrev_b32 v{X+2*j}, 16, v{vXRES+j}"); A(f"v_and_b32 v{X+2*j+1}, 0xffff0000, v{vXRES+j}")
        S0, S1 = T+40, T+41
        NM, RR, TT, SA, SB = T+36, T+38, T+42, T+44, T+46
        A(f"v_mov_b32 v{NM}, v{vNMU}"); A(f"v_mov_b32 v{NM+1}, v{vNMU}"); A(f"v_mov_b32 v{RR}, v{vR}"); A(f"v_mov_b32 v{RR+1}, v{vR}")
        for i in range(0, 16, 2):
            A(f"v_pk_add_f32 {v(TT,2)}, {v(X+i,2)}, {v(NM,2)}")
            A(f"v_pk_fma_f32 {v(vACC0+i,2)}, {v(TT,2)}, {v(RR,2)}, {v(vACC0+i,2)}")
            A(f"v_pk_add_f32 {v(vRESID+i,2)}, {v(X+i,2)}, {v(vACC0+i,2)}")
            if i == 0:
                A(f"v_mov_b32 v{SA}, v{vACC0}"); A(f"v_mov_b32 v{SA+1}, v{vACC0+1}")
                A(f"v_pk_mul_f32 {v(SB,2)}, {v(vACC0,2)}, {v(vACC0,2)}")
            else:
                A(f"v_pk_add_f32 {v(SA,2)}, {v(SA,2)}, {v(vACC0+i,2)}")
                A(f"v_pk_fma_f32 {v(SB,2)}, {v(vACC0+i,2)}, {v(vACC0+i,2)}, {v(SB,2)}")
        A(f"v_add_f32 v{S0}, v{SA}, v{SA+1}"); A(f"v_add_f32 v{S1}, v{SB}, v{SB+1}")
        for i in range(8): A(f"v_cvt_pk_bf16_f32 v{X+i}, v{vACC0+2*i}, v{vACC0+2*i+1}")
        self.fstamp("p2e", "epi:math")
        self.frag_dest(sT2, WS_X1)
        self.pstore(f"buffer_store_dwordx4 {v(X,4)}, v{vL16}, {srd(SRD_WS)}, s{sT2} offen sc1")
        self.pstore(f"buffer_store_dwordx4 {v(X+4,4)}, v{vL16}, {srd(SRD_WS)}, s{sT2} offen offset:1024 sc1")
        self.swap_add2(S0, S1, T+42, T+43)
        A(f"s_lshl_b32 s{sT0}, s{sR32L}, 12"); A(f"s_lshl_b32 s{sT1}, s{sC}, 9"); A(f"s_add_u32 s{sT0}, s{sT0}, s{sT1}")
        A(f"s_lshl_b32 s{sT1}, s{sCG}, 8"); A(f"s_add_u32 s{sT0}, s{sT0}, s{sT1}"); A(f"s_add_u32 s{sT0}, s{sT0}, s{sSLAB}"); A(f"s_add_u32 s{sT0}, s{sT0}, {WS_X1S}")
        A(f"v_lshlrev_b32 v{T+42}, 3, v{vM}")
        self.pstore(f"buffer_store_dwordx2 {v(S0,2)}, v{T+42}, {srd(SRD_WS)}, s{sT0} offen sc1")
        self.pos_x1 = A.vm_pos()
        A.auto = 0
        self.fstamp("p2e", "epi:stored")
        self.flush_side()

    def shadow2(self):
        A = self.A
        T = vT
        def hqJ(J):
            A.wait(vm=getattr(self, f"pos_q{J}")); A("s_barrier")
        def hq0():
            hqJ(0)
            self.stamp("hq0")
            self.l2_touch("w4")
            self.queue(self.job_w3(8, 15, A0), "pos_w3a")
        kvcode = self.cnt_addr(CNT_KV, sRB64, -1)
        H = T+44
        def halo_load():
            self.stamp("kv chk>")
            self.poll_check()
            self.stamp("kv chk<")
            A(f"v_mov_b32 v{H}, 0"); A(f"v_mov_b32 v{H+1}, 0"); A(f"v_mov_b32 v{H+2}, 0"); A(f"v_mov_b32 v{H+3}, 0")
            l = A.newlabel("nohalo")
            A(f"s_cmp_eq_u32 s{sRB64}, 0"); A(f"s_cbranch_scc1 {l}")
            A(f"s_add_u32 s{sT1}, s{sRB64}, -1"); A(f"s_and_b32 s{sT0}, s{sT1}, 3"); A(f"s_lshl_b32 s{sT0}, s{sT0}, 3"); A(f"s_add_u32 s{sT0}, s{sT0}, s{sC}")
            A(f"s_lshl_b32 s{sT0}, s{sT0}, 12"); A(f"s_lshr_b32 s{sT1}, s{sT1}, 2"); A(f"s_lshl_b32 s{sT1}, s{sT1}, {SLAB_SH}")
            A(f"s_add_u32 s{sT0}, s{sT0}, s{sT1}"); A(f"s_add_u32 s{sT0}, s{sT0}, {WS_KV}")
            A(f"v_lshlrev_b32 v{T+48}, 4, v0")
            A.opt(f"buffer_load_dwordx4 {v(H,4)}, v{T+48}, {srd(SRD_WS)}, s{sT0} offen sc1")
            A.label(l)
            self.pos_hl = A.vm_pos()
        self.qkv_main(lambda s: B0 + s*2048, {0: hq0, 8: lambda: hqJ(1), 16: lambda: hqJ(2), 24: lambda: hqJ(3)}, side_rate=2,
                      mid={self.cfg.kvpoll_at: lambda: self.poll_issue(kvcode, 1, 8, "kv halo"), self.cfg.kvchk_at: halo_load})
        self.flush_side()
        self.stamp("q loop")
        A.wait(vm=self.pos_x1)
        A("s_barrier")
        self.stamp("x1 drained")
        self.signal(CNT_X1, sRB128, "x1")
        self.queue(self.job_strip(SRD_WO, 0, 64, B0), "pos_wo")
        self.qkv_tail(vQP)
        self.stamp("q done")
        pos_hl = self.pos_hl
        KV = A0 + 46080
        vKA = T
        A(f"s_lshl_b32 s{sT0}, s{sCG}, 1"); A(f"v_add_u32 v{T+1}, s{sT0}, v{vH}")
        A(f"v_mul_u32_u24 v{T+1}, 2560, v{T+1}")
        A(f"s_lshl_b32 s{sT0}, s{sRBK}, 5"); A(f"s_add_u32 s{sT0}, s{sT0}, 16"); A(f"v_add_u32 v{T+2}, s{sT0}, v{vM}")
        A(f"v_lshl_add_u32 v{vKA}, v{T+2}, 4, v{T+1}"); A(f"v_add_u32 v{vKA}, {KV}, v{vKA}")
        A(f"ds_write_b128 v{vKA}, {v(vKP,4)}"); A(f"ds_write_b128 v{vKA}, {v(vKP+4,4)} offset:1280")
        A(f"ds_write_b128 v{vKA}, {v(vVP,4)} offset:10240"); A(f"ds_write_b128 v{vKA}, {v(vVP+4,4)} offset:11520")
        A.wait(vm=pos_hl)
        A(f"v_lshrrev_b32 v{T+8}, 4, v0"); A(f"v_mul_u32_u24 v{T+8}, 1280, v{T+8}")
        A(f"v_and_b32 v{T+9}, 15, v0"); A(f"v_lshl_add_u32 v{T+8}, v{T+9}, 4, v{T+8}"); A(f"v_add_u32 v{T+8}, {KV}, v{T+8}")
        A(f"ds_write_b128 v{T+8}, {v(H,4)}")
        A.wait_all_lg()
        A("s_barrier")
        A.auto = self.cfg.auto
        self.stamp("kv staged")
        Q = vQP
        KB = vRING
        LG = T+12
        A(f"v_subrev_u32 v{T+10}, {14*16}, v{vKA}")
        for w in range(8):
            off = (14 - 2*w) * 16
            A(f"ds_read_b128 {v(KB+8*w,4)}, v{T+10} offset:{off}")
            A(f"ds_read_b128 {v(KB+8*w+4,4)}, v{T+10} offset:{off+1280}")
        base_lg = A.lg_pos() - 16
        for w in range(8): A(f"v_mov_b32 v{LG+w}, 0")
        for w in range(8):
            A.wait(lg=base_lg + 2*(w+1))
            for i in range(8): A(f"v_dot2c_f32_bf16 v{LG+w}, v{Q+i}, v{KB+8*w+i}")
        self.fstamp("at", "at:qk")
        au = A.auto; A.auto = 0
        self.poll_issue(self.cnt_addr(CNT_X1, sRB128), 1, 16, "x1")
        A.auto = au
        A.nop(3)
        for w in range(8):
            off = (14 - 2*w) * 16
            A(f"ds_read_b128 {v(KB+8*w,4)}, v{T+10} offset:{off+10240}")
            A(f"ds_read_b128 {v(KB+8*w+4,4)}, v{T+10} offset:{off+11520}")
        base_lg = A.lg_pos() - 16
        l = A.newlabel("nomask")
        A.auto = 0
        A(f"s_cmp_lg_u32 s{sRB64}, 0"); A(f"s_cbranch_scc1 {l}")
        A(f"s_lshl_b32 s{sT0}, s{sRBK}, 5"); A(f"v_add_u32 v{T+11}, s{sT0}, v{vM}")
        A(f"v_mov_b32 v{T+20}, 0xff800000")
        for w in range(1, 8):
            A(f"v_cmp_le_u32 vcc, {2*w}, v{T+11}")
            A.nop(2)
            A(f"v_cndmask_b32 v{LG+w}, v{T+20}, v{LG+w}, vcc")
        A.label(l)
        A.auto = self.cfg.auto
        MX = T+20
        A(f"v_max3_f32 v{MX}, v{LG}, v{LG+1}, v{LG+2}"); A(f"v_max3_f32 v{MX}, v{MX}, v{LG+3}, v{LG+4}")
        A(f"v_max3_f32 v{MX}, v{MX}, v{LG+5}, v{LG+6}"); A(f"v_max_f32 v{MX}, v{MX}, v{LG+7}")
        cs = 0.25 * 1.4426950408889634
        A(f"s_mov_b32 s{sT0}, {fbits(cs)}")
        A(f"v_mul_f32 v{MX}, {fbits(-cs)}, v{MX}")
        for w in range(8): A(f"v_fma_f32 v{LG+w}, v{LG+w}, s{sT0}, v{MX}")
        for w in range(8): A(f"v_exp_f32 v{LG+w}, v{LG+w}")
        SM = T+21
        A(f"v_add_f32 v{SM}, v{LG}, v{LG+1}")
        for w in range(2, 8): A(f"v_add_f32 v{SM}, v{SM}, v{LG+w}")
        A(f"v_rcp_f32 v{SM}, v{SM}")
        A.nop(1)
        for w in range(8): A(f"v_mul_f32 v{LG+w}, v{SM}, v{LG+w}")
        PP = T+22
        for u in range(4): A(f"v_cvt_pk_bf16_f32 v{PP+u}, v{LG+2*u}, v{LG+2*u+1}")
        self.fstamp("at", "at:sm")
        A.auto = 0
        self.flush_side()
        self.p3_bases()
        self.poll_check()
        self.stamp("sync2")
        self.queue_x1_acts()
        A.auto = self.cfg.auto
        O = vACC0
        TP = T+26
        for u in range(4):
            A.wait(lg=base_lg + 4*(u+1))
            va, vb = KB + 16*u, KB + 16*u + 8
            for i in range(8):
                t0, t1 = TP + 2*(i & 1), TP + 2*(i & 1) + 1
                A(f"v_perm_b32 v{t0}, v{vb+i}, v{va+i}, s{sPLO}")
                A(f"v_perm_b32 v{t1}, v{vb+i}, v{va+i}, s{sPHI}")
                if u == 0:
                    A(f"v_dot2_f32_bf16 v{O+2*i}, v{t0}, v{PP+u}, 0"); A(f"v_dot2_f32_bf16 v{O+2*i+1}, v{t1}, v{PP+u}, 0")
                else:
                    A(f"v_dot2c_f32_bf16 v{O+2*i}, v{t0}, v{PP+u}"); A(f"v_dot2c_f32_bf16 v{O+2*i+1}, v{t1}, v{PP+u}")
        A.nop(3)
        self.fstamp("at", "at:pv")
        OP = T+32
        for i in range(8): A(f"v_cvt_pk_bf16_f32 v{OP+i}, v{O+2*i}, v{O+2*i+1}")
        A.nop(2)
        for i in range(4): A(f"v_permlane32_swap_b32 v{OP+i}, v{OP+4+i}")
        self.frag_dest(sT0, WS_O)
        self.pstore(f"buffer_store_dwordx4 {v(OP,4)}, v{vL16}, {srd(SRD_WS)}, s{sT0} offen sc1")
        self.pstore(f"buffer_store_dwordx4 {v(OP+4,4)}, v{vL16}, {srd(SRD_WS)}, s{sT0} offen offset:1024 sc1")
        self.pos_o = A.vm_pos()
        A.auto = 0
        self.fstamp("at", "at:flushed")
        A.wait(vm=self.pos_wo)
        A("s_barrier")
        self.fstamp("at", "at:bar")
        self.emit_groups(self.job_w3(23, 7, A0 + 46080))
        self.pos_w3 = A.vm_pos()
        self.stamp("attn done")

    def c3_pass(self):
        A = self.A
        T = vT
        vLo, vHi = T, T+1
        A(f"s_add_u32 s{sT0}, s{sW}, -1"); A(f"s_mul_i32 s{sT0}, s{sT0}, {8*3072}")
        A(f"s_cmp_eq_u32 s{sW}, 0"); A(f"s_cselect_b32 s{sT0}, {C0}, s{sT0}")
        A(f"s_cmp_eq_u32 s{sW}, 3"); A(f"s_cselect_b32 s{sT1}, {C0 + 2*3072}, s{sT0}")
        A(f"v_add_u32 v{vLo}, s{sT0}, v{vTR3}"); A(f"v_add_u32 v{vHi}, s{sT1}, v{vTR3}")
        CS = T+8
        for i in range(6): A(f"v_mov_b32 v{CS+i}, 0")
        A.auto = self.cfg.auto
        def c3_reads(i):
            for blk in range(3):
                b = vRING + 4*(3*(i % 3) + blk)
                r = vLo if i < 6 else vHi
                A(f"ds_read_b64_tr_b16 {v(b,2)}, v{r} offset:{i*3072 + blk*64}")
                A(f"ds_read_b64_tr_b16 {v(b+2,2)}, v{r} offset:{i*3072 + blk*64+1536}")
            return A.lg_pos()
        cpos = {0: c3_reads(0), 1: c3_reads(1)}
        for i in range(8):
            if i + 2 < 8: cpos[i+2] = c3_reads(i+2)
            A.wait(lg=cpos[i])
            for blk in range(3):
                b = vRING + 4*(3*(i % 3) + blk)
                for r in range(4): A(f"v_dot2c_f32_bf16 v{CS+2*blk+(r&1)}, s{sONES}, v{b+r}")
        A.auto = 0
        A.nop(3)
        SC3 = B0
        for blk in range(3):
            A(f"v_add_f32 v{CS+2*blk}, v{CS+2*blk}, v{CS+2*blk+1}")
            self.swap_add(CS+2*blk, T+4)
        A(f"s_mul_i32 s{sT0}, s{sW}, 384"); A(f"v_lshl_add_u32 v{T+4}, v{vM}, 2, s{sT0}"); A(f"v_add_u32 v{T+4}, {SC3}, v{T+4}")
        for blk in range(3): A(f"ds_write_b32 v{T+4}, v{CS+2*blk} offset:{128*blk}")
        A.wait(vm=self.pos_o)
        A.wait_all_lg()
        A("s_barrier")
        self.signal(CNT_O, sRB64, "o")
        A(f"v_lshlrev_b32 v{T+4}, 2, v{vM}"); A(f"v_add_u32 v{T+4}, {SC3}, v{T+4}")
        for w in range(4):
            for blk in range(3): A(f"ds_read_b32 v{T+16+4*blk+w}, v{T+4} offset:{384*w+128*blk}")
        A(f"v_cmp_gt_u32 vcc, 32, v{vL}")
        A.wait_all_lg()
        self.vC3 = [T+46, T+47, T+48]
        for blk in range(3):
            b = T+16+4*blk
            A(f"v_add_f32 v{b}, v{b}, v{b+1}"); A(f"v_add_f32 v{b+2}, v{b+2}, v{b+3}"); A(f"v_add_f32 v{b}, v{b}, v{b+2}")
            A(f"v_cndmask_b32 v{self.vC3[blk]}, 0, v{b}, vcc")
        A("s_barrier")
        self.stamp("c3 done")

    def job_w3_small(self, s0, ns, lds0):
        return self.job_w3(s0, ns, lds0)

    def w3_addr(self, s):
        if s < 8: return C0 + s*3072
        if s < 30: return A0 + (s-8)*3072
        return C0 + (s-22)*3072

    def p3_bases(self):
        A = self.A
        A(f"s_lshl_b32 s{sP2}, s{sR32P}, 15"); A(f"s_add_u32 s{sP2}, s{sP2}, s{sSLAB}"); A(f"s_add_u32 s{sP2}, s{sP2}, {WS_X1}")
        A(f"s_lshl_b32 s{sP3}, s{sR32P}, 12"); A(f"s_add_u32 s{sP3}, s{sP3}, s{sSLAB}"); A(f"s_add_u32 s{sP3}, s{sP3}, {WS_X1S}")
        A(f"s_mul_i32 s{sP4}, s{sR32P}, {86*1024}"); A(f"s_add_u32 s{sP4}, s{sP4}, s{sSLAB}"); A(f"s_add_u32 s{sP4}, s{sP4}, {WS_G}")
        A(f"s_lshl_b32 s{sT1}, s{sCB0}, 11"); A(f"s_add_u32 s{sP4}, s{sP4}, s{sT1}")

    def queue_x1_acts(self):
        A = self.A
        self.x1_pos = {}
        for i in range(32):
            g = []
            if i % 4 == 0:
                g += [f"s_add_u32 s{sAS}, s{sR3}, {i//4}", f"s_and_b32 s{sAS}, s{sAS}, 7", f"s_lshl_b32 s{sAS}, s{sAS}, 12", f"s_add_u32 s{sAS}, s{sAS}, s{sP2}"]
            g.append(f"buffer_load_dwordx4 {a(4*i,4)}, v{vL16}, {srd(SRD_WS)}, s{sAS} offen offset:{(i%4)*1024} sc1")
            def m(i=i): self.x1_pos[i] = A.vm_pos()
            g.append(m)
            self.side.append(g)

    def p3(self):
        A = self.A
        T = vT
        vA0, vA1 = T+54, T+55
        A(f"s_lshl_b32 s{sT0}, s{sCG}, 15"); A(f"s_add_u32 s{sT0}, s{sT0}, {B0}")
        A(f"v_add_u32 v{vA0}, s{sT0}, v{vTRC0}"); A(f"v_add_u32 v{vA1}, s{sT0}, v{vTRC1}")
        A.auto = self.cfg.auto
        for i in range(16):
            for cb in range(2):
                r = 128 + 8*i + 4*cb
                A(f"ds_read_b64_tr_b16 {a(r,2)}, v{(vA0,vA1)[cb]} offset:{i*2048}")
                A(f"ds_read_b64_tr_b16 {a(r+2,2)}, v{(vA0,vA1)[cb]} offset:{i*2048 + 1024}")
        A.auto = 0
        A.wait(vm=self.pos_w3a)
        A.wait_all_lg()
        A("s_barrier")
        self.stamp("wo->reg")
        apos = self.x1_pos
        A(f"v_lshlrev_b32 v{T+3}, 3, v{vM}"); A(f"v_lshl_add_u32 v{T+3}, v{vH}, 11, v{T+3}")
        for j in range(8):
            A(f"buffer_load_dwordx2 {v(T+20+2*j,2)}, v{T+3}, {srd(SRD_WS)}, s{sP3} offen offset:{256*j} sc1")
        spos = A.vm_pos()
        self.queue(self.job_w4([39, 40, 41, 42], lambda i: B0 + 12*4096 + (i-39)*4096), "pos_tails")
        self.queue(self.job_w4(list(range(0, 12))), "pos_w4b")
        vB = [T, T+1, T+2]
        A(f"v_mov_b32 v{vB[0]}, v{vTR3}"); A(f"v_add_u32 v{vB[1]}, 65536, v{vTR3}"); A(f"v_add_u32 v{vB[2]}, 131072, v{vTR3}")
        CS = T+8
        for i in range(6): A(f"v_mov_b32 v{CS+i}, 0")
        def buf(s, blk): return vRING + 4*(3*(s % 6) + blk)
        def wread(s, blk):
            ad = self.w3_addr(s) + blk*64
            for (k, d) in ((0, 0), (2, 1536)):
                x = ad + d
                A(f"ds_read_b64_tr_b16 {v(buf(s, blk)+k,2)}, v{vB[x // 65536]} offset:{x % 65536}")
        def main_loop(nb):
            PD = 2
            lgpos = {}
            for s in range(PD):
                for blk in range(nb): wread(s, blk)
                lgpos[s] = A.lg_pos()
            for t in range(32):
                s = t + PD
                while t not in apos: self.pump(1)
                if t == 8:
                    A.wait(vm=self.pos_o)
                    A("s_barrier")
                    self.signal(CNT_O, sRB64, "o")
                if t == 19:
                    A.wait(vm=self.pos_w3)
                    A("s_barrier")
                if t == 22: self.poll_issue(self.cnt_addr(CNT_O, sRB64), 1, 8, "o")
                A.wait(vm=apos[t], lg=lgpos[t])
                if t in (0, 8, 16, 24) and nb == 3: self.fstamp("p4", f"p3:t{t}")
                for blk in range(nb):
                    acc = (vACC0, vACC1, vACC2)[blk]
                    c = "0" if t == 0 else v(acc, 16)
                    A(f"v_mfma_f32_32x32x16_bf16 {v(acc,16)}, {v(buf(t, blk),4)}, {a(4*t,4)}, {c}")
                    if s < 32: wread(s, blk)
                if s < 32: lgpos[s] = A.lg_pos()
                self.pump(1)
                if t % 4 == 3:
                    l = A.newlabel("cb")
                    A(f"s_cmp_lg_u32 s{sW}, {t >> 3}"); A(f"s_cbranch_scc1 {l}")
                    for tt in range(t - 3, t + 1):
                        for blk in range(nb):
                            for r in range(4): A(f"v_dot2c_f32_bf16 v{CS+2*blk+(r&1)}, s{sONES}, v{buf(tt, blk)+r}")
                    A.label(l)
        if not self.cfg.p3two:
            main_loop(3)
        else:
            l2 = A.newlabel("p3two"); le = A.newlabel("p3end")
            A(f"s_cmp_lt_u32 s{sNBLK}, 3"); A(f"s_cbranch_scc1 {l2}")
            st = (A.vm, A.lg, list(self.side), dict(apos))
            main_loop(3)
            en = (A.vm, A.lg, len(self.side), self.poll_state)
            A(f"s_branch {le}")
            A.label(l2)
            A.vm, A.lg = st[0], st[1]; self.side = list(st[2]); apos.clear(); apos.update(st[3])
            main_loop(2)
            assert A.vm == en[0] and len(self.side) == en[2] and self.poll_state[:2] == en[3][:2]
            A.lg = max(A.lg, en[1])
            A.label(le)
        self.fstamp("p3", "pass1<")
        self.flush_side()
        SC3 = C0
        A.nop(3)
        for blk in range(3):
            A(f"v_add_f32 v{CS+2*blk}, v{CS+2*blk}, v{CS+2*blk+1}")
            self.swap_add(CS+2*blk, T+4)
        A(f"s_mul_i32 s{sT0}, s{sW}, 384"); A(f"v_lshl_add_u32 v{T+4}, v{vM}, 2, s{sT0}"); A(f"v_add_u32 v{T+4}, {SC3}, v{T+4}")
        for blk in range(3): A(f"ds_write_b32 v{T+4}, v{CS+2*blk} offset:{128*blk}")
        A.wait(vm=spos)
        S0, S1 = T+20, T+21
        for j in range(1, 8):
            A(f"v_add_f32 v{S0}, v{S0}, v{T+20+2*j}"); A(f"v_add_f32 v{S1}, v{S1}, v{T+21+2*j}")
        self.swap_add2(S0, S1, T+7, T+14)
        NMU1, R1 = T+5, T+6
        A(f"v_mul_f32 v{S0}, {fbits(1/512)}, v{S0}"); A(f"v_mul_f32 v{S1}, {fbits(1/512)}, v{S1}")
        A(f"v_sub_f32 v{NMU1}, 0, v{S0}"); A(f"v_fma_f32 v{S1}, v{NMU1}, v{S0}, v{S1}"); A(f"v_max_f32 v{S1}, 0, v{S1}")
        A(f"v_add_f32 v{S1}, {fbits(1e-5)}, v{S1}"); A(f"v_rsq_f32 v{R1}, v{S1}")
        A.wait(vm=self.pos_tails)
        A.wait_all_lg()
        self.poll_check()
        self.stamp("p3 main")
        A(f"v_lshlrev_b32 v{T+4}, 2, v{vM}"); A(f"v_add_u32 v{T+4}, {SC3}, v{T+4}")
        for w in range(4):
            for blk in range(3): A(f"ds_read_b32 v{T+16+4*blk+w}, v{T+4} offset:{384*w+128*blk}")
        A(f"v_cmp_gt_u32 vcc, 32, v{vL}")
        A(f"s_lshl_b32 s{sOA}, s{sR32L}, 15"); A(f"s_lshl_b32 s{sT1}, s{sCG}, 14"); A(f"s_add_u32 s{sOA}, s{sOA}, s{sT1}")
        A(f"s_add_u32 s{sOA}, s{sOA}, s{sSLAB}"); A(f"s_add_u32 s{sOA}, s{sOA}, {WS_O}")
        self.o_acts = {}; self.o_pos = {}
        A(f"s_mov_b32 s{sAS}, s{sOA}"); A(f"s_add_u32 s{sAE}, s{sOA}, 16384")
        A(f"s_lshl_b32 s{sT1}, s{sKR}, 11"); A(f"s_and_b32 s{sT1}, s{sT1}, 16383"); A(f"s_add_u32 s{sOA}, s{sOA}, s{sT1}")
        for i in range(16):
            g = []
            if not self.cfg.krot:
                if i % 4 == 0 and i > 0: g.append(f"s_add_u32 s{sOA}, s{sOA}, 4096")
                g.append(f"buffer_load_dwordx4 {a(4*i,4)}, v{vL16}, {srd(SRD_WS)}, s{sOA} offen offset:{(i%4)*1024} sc1")
            else:
                if i > 0: g += [f"s_add_u32 s{sOA}, s{sOA}, 1024", f"s_cmp_eq_u32 s{sOA}, s{sAE}", f"s_cselect_b32 s{sOA}, s{sAS}, s{sOA}"]
                g.append(f"buffer_load_dwordx4 {a(4*i,4)}, v{vL16}, {srd(SRD_WS)}, s{sOA} offen sc1")
            def m(i=i):
                self.o_acts[i] = 4*i; self.o_pos[i] = A.vm_pos()
            g.append(m)
            self.side.append(g)
        ne = self.cfg.w4_in_ge
        if ne: self.queue(self.job_w4(list(range(12, 12 + ne))))
        GK = self.gelu_consts(R1, T+34)
        A.wait_all_lg()
        self.vC3 = [T+46, T+47, T+48]
        for blk in range(3):
            b = T+16+4*blk
            A(f"v_add_f32 v{b}, v{b}, v{b+1}"); A(f"v_add_f32 v{b+2}, v{b+2}, v{b+3}"); A(f"v_add_f32 v{b}, v{b}, v{b+2}")
            A(f"v_cndmask_b32 v{self.vC3[blk]}, 0, v{b}, vcc")
        A.nop(2)
        A(f"v_mfma_f32_32x32x2_f32 {v(vACC0,16)}, v{self.vC3[0]}, v{NMU1}, {v(vACC0,16)}")
        mk0 = A.mark()
        A(f"v_mfma_f32_32x32x2_f32 {v(vACC1,16)}, v{self.vC3[1]}, v{NMU1}, {v(vACC1,16)}")
        A(f"v_mfma_f32_32x32x2_f32 {v(vACC2,16)}, v{self.vC3[2]}, v{NMU1}, {v(vACC2,16)}")
        self.pump(3)
        A.pad(mk0, 19)
        self.fstamp("ge", "g:start")
        self.pos_g = {}
        for blk in range(3):
            acc = (vACC0, vACC1, vACC2)[blk]
            if blk == 2:
                lskip3 = A.newlabel("nog2")
                A(f"s_cmp_lt_u32 s{sNBLK}, 3"); A(f"s_cbranch_scc1 {lskip3}")
            else:
                A.auto = self.cfg.auto_g
            self.gelu_body(acc, GK)
            A.auto = 0
            if blk < 2: self.fstamp("ge", f"g:blk{blk}")
            i1 = f"buffer_store_dwordx4 {v(acc,4)}, v{vL16}, {srd(SRD_WS)}, s{sP4} offen offset:{blk*2048 % 4096} sc1"
            i2 = f"buffer_store_dwordx4 {v(acc+4,4)}, v{vL16}, {srd(SRD_WS)}, s{sP4} offen offset:{blk*2048 % 4096 + 1024} sc1"
            if blk == 2:
                A(f"s_add_u32 s{sP4}, s{sP4}, 4096")
                self.pstore(i1, opt=True); self.pstore(i2, opt=True)
                A.label(lskip3)
            else:
                self.pstore(i1); self.pstore(i2)
            self.pos_g[blk] = A.vm_pos()
        vA0, vA1 = T+54, T+55
        A(f"s_lshl_b32 s{sT0}, s{sCG}, 11"); A(f"v_add_u32 v{vA0}, s{sT0}, v{vTRC0}"); A(f"v_add_u32 v{vA1}, s{sT0}, v{vTRC1}")
        A(f"v_add_u32 v{T+52}, {B0 + 12*4096}, v{vA0}"); A(f"v_add_u32 v{T+53}, {B0 + 12*4096}, v{vA1}")
        for i in range(4):
            for cb in range(2):
                r = 96 + 8*i + 4*cb
                A(f"ds_read_b64_tr_b16 {v(r,2)}, v{T+52+cb} offset:{i*4096}")
                A(f"ds_read_b64_tr_b16 {v(r+2,2)}, v{T+52+cb} offset:{i*4096 + 1024}")
        self.queue(self.job_w4(list(range(12 + ne, 28))), "pos_w4a")
        self.w4c_job = self.job_w4(list(range(28, 35)))

    def job_w4(self, slots, lds_of=None):
        lds_of = lds_of or self.w4_slot
        groups = []
        for J in range((len(slots) + 3)//4):
            rd = [slots[min(4*J + w, len(slots) - 1)] for w in range(4)]
            cb = [CB4[i] for i in rd]; ld = [lds_of(i) for i in rd]
            dc = cb[1] - cb[0]; dl = ld[1] - ld[0]
            affine = all(cb[w] == cb[0] + w*dc and ld[w] == ld[0] + w*dl for w in range(4)) and dl == 4096 and dc in (2, 3)
            if affine:
                pre = [f"s_add_u32 m0, s{sW4K}, {ld[0]}", f"s_add_u32 s{sG}, s{sW4S[dc]}, {cb[0]*32768}"]
            else:
                pre = [f"s_mov_b32 s{sD0}, {cb[0]*32768}", f"s_mov_b32 s{sD1}, {ld[0]}"]
                for w in range(1, 4):
                    if cb[w] == cb[w-1] and ld[w] == ld[w-1] and all(cb[x] == cb[w] for x in range(w, 4)) and w > 1 and False: continue
                    pre += [f"s_cmp_ge_u32 s{sW}, {w}", f"s_cselect_b32 s{sD0}, {cb[w]*32768}, s{sD0}", f"s_cselect_b32 s{sD1}, {ld[w]}, s{sD1}"]
                pre += [f"s_mov_b32 m0, s{sD1}", f"s_lshl_b32 s{sG}, s{sC}, 7", f"s_add_u32 s{sG}, s{sG}, s{sD0}"]
            groups += self.quad(pre, SRD_W4, vSTRJ)
        return groups

    def w4_slot(self, i):
        if i < 12: return B0 + i*4096
        if i < 28: return A0 + (i-12)*4096
        if i < 35: return C0 + (i-28)*4096
        return B0 + 12*4096 + (i-35)*4096

    def p4(self):
        A = self.A
        T = vT
        vA0, vA1 = T+54, T+55
        A(f"s_mul_i32 s{sT4}, s{sR32L}, {86*1024}"); A(f"s_lshl_b32 s{sT1}, s{sCG}, 10"); A(f"s_add_u32 s{sT4}, s{sT4}, s{sT1}")
        A(f"s_add_u32 s{sT4}, s{sT4}, s{sSLAB}"); A(f"s_add_u32 s{sAS}, s{sT4}, {WS_G}")
        def gsig(b, extra_lg=False):
            A.wait(vm=self.pos_g[b])
            if extra_lg: A.wait_all_lg()
            A("s_barrier")
            self.signal(CNT_G + 2*b, sRB128, f"g{b}")
        gsig(0, extra_lg=True)
        self.stamp("g0 sig")
        self.queue(self.w4c_job, "pos_w4e")
        self.queue(self.job_w4([35, 36, 37, 38]), "pos_w4l")
        while len(self.o_pos) < 16: self.pump(1)
        def mid8(): gsig(1)
        def mid12(): self.poll_issue(self.cnt_addr(CNT_G, sRB128), 1, 16, "g0")
        self.ksplit_gemm(16, None, lambda i: None, None, True, 0, 16, side_rate=1, pre=(self.o_acts, self.o_pos),
                         tail=lambda i: (128 + 8*i, 128 + 8*i + 4), mid={self.cfg.g1sig_at: mid8, 13: mid12})
        self.stamp("wo done")
        gsig(2)
        self.stamp("g drained")
        self.flush_side()
        vb = {}
        for win in range(3):
            for cb in range(2):
                r = T + 44 + 2*win + cb
                A(f"v_add_u32 v{r}, {win*65536}, v{(vA0,vA1)[cb]}")
                vb[(win, cb)] = r
        A.wait(vm=self.pos_w4b)
        self.poll_check()
        self.stamp("sync3")
        self.poll_issue(self.cnt_addr(CNT_G + 2, sRB128), 1, 16, "g1")
        acts = {}; apos = {}
        def act_g(i):
            if i == 16:
                self.poll_check()
                self.poll_issue(self.cnt_addr(CNT_G + 4, sRB128), 1, 16, "g2")
            if i == 32: self.poll_check()
            A(f"s_add_u32 s{sT4}, s{sAS}, {CB4[i]*2048}")
            r = 4*(i % 32)
            A(f"buffer_load_dwordx4 {a(r,4)}, v{vL16}, {srd(SRD_WS)}, s{sT4} offen sc1")
            acts[i] = r; apos[i] = A.vm_pos()
        PDL = self.cfg.pdl4; PD = 2; N = 43
        for i in range(PDL): act_g(i)
        lgpos = {}
        def w4reads(s, cb):
            if s >= 39: return
            ad = self.w4_slot(s)
            b = vRING + 4*(2*(s % 4) + cb)
            for (k, d) in ((0, 0), (2, 1024)):
                x = ad + d
                A(f"ds_read_b64_tr_b16 {v(b+k,2)}, v{vb[(x // 65536, cb)]} offset:{x % 65536}")
        for s in range(PD):
            w4reads(s, 0); w4reads(s, 1); lgpos[s] = A.lg_pos()
        for t in range(N):
            s = t + PD
            if s == 12 and not (1 <= 16 - PDL <= 9):
                A("s_barrier")
            A.wait(vm=apos[t], lg=lgpos[t] if t < 39 else None)
            if t in (0, 8, 16, 24, 32, 40): self.fstamp("p4", f"p4:t{t}")
            for cb in range(2):
                acc = (vACC0, vACC1)[cb]
                wa = v(vRING + 4*(2*(t % 4) + cb), 4) if t < 39 else v(96 + 8*(t-39) + 4*cb, 4)
                A(f"v_mfma_f32_32x32x16_bf16 {v(acc,16)}, {wa}, {a(acts[t],4)}, {v(acc,16)}")
                if s < N: w4reads(s, cb)
            if s < N: lgpos[s] = A.lg_pos()
            if t + PDL < N: act_g(t + PDL)
        self.stamp("p4 main")
        self.pair_reduce(B0)
        for i in range(16): A(f"v_add_f32 v{vACC0+i}, v{vACC0+i}, v{vRESID+i}")
        P = T+24
        for i in range(8): A(f"v_cvt_pk_bf16_f32 v{P+i}, v{vACC0+2*i}, v{vACC0+2*i+1}")
        A.nop(2)
        for (x, y) in ((0, 2), (1, 3), (4, 6), (5, 7)):
            A(f"v_permlane32_swap_b32 v{P+x}, v{P+y}")
        fl = {0: "", 1: " sc1", 2: " sc0 sc1", 3: " nt", 4: " sc1 nt", 5: " sc0 sc1 nt"}[self.cfg.out_mode]
        if self.cfg.out_lds:
            OT = B0 + 16384
            A(f"s_lshl_b32 s{sT0}, s{sRBK}, 5"); A(f"v_add_u32 v{T}, s{sT0}, v{vM}")
            A(f"s_lshl_b32 s{sT1}, s{sCG}, 2"); A(f"v_add_u32 v{T+1}, s{sT1}, v{vH}")
            A(f"v_and_b32 v{T+2}, 7, v{T}"); A(f"v_xor_b32 v{T+3}, v{T+1}, v{T+2}"); A(f"v_add_u32 v{T+1}, 2, v{T+1}"); A(f"v_xor_b32 v{T+4}, v{T+1}, v{T+2}")
            A(f"v_lshlrev_b32 v{T}, 7, v{T}"); A(f"v_add_u32 v{T}, {OT}, v{T}")
            A(f"v_lshl_add_u32 v{T+3}, v{T+3}, 4, v{T}"); A(f"v_lshl_add_u32 v{T+4}, v{T+4}, 4, v{T}")
            A(f"ds_write_b128 v{T+3}, {v(P,4)}"); A(f"ds_write_b128 v{T+4}, {v(P+4,4)}")
            A(f"v_lshrrev_b32 v{T+5}, 3, v{vL}"); A(f"s_lshl_b32 s{sT0}, s{sW}, 4"); A(f"v_add_u32 v{T+5}, s{sT0}, v{T+5}")
            A(f"v_and_b32 v{T+6}, 7, v{vL}"); A(f"v_and_b32 v{T+7}, 7, v{T+5}"); A(f"v_xor_b32 v{T+7}, v{T+6}, v{T+7}")
            A(f"v_lshlrev_b32 v{T+8}, 7, v{T+5}"); A(f"v_lshl_add_u32 v{T+8}, v{T+7}, 4, v{T+8}"); A(f"v_add_u32 v{T+8}, {OT}, v{T+8}")
            A(f"s_lshl_b32 s{sT0}, s{sRB64}, 6"); A(f"v_add_u32 v{T+5}, s{sT0}, v{T+5}"); A(f"v_lshlrev_b32 v{T+5}, 10, v{T+5}"); A(f"v_lshl_add_u32 v{T+5}, v{T+6}, 4, v{T+5}")
            A(f"s_lshl_b32 s{sT0}, s{sC}, 7")
            A.wait_all_lg()
            A("s_barrier")
            A(f"ds_read_b128 {v(P,4)}, v{T+8}"); A(f"ds_read_b128 {v(P+4,4)}, v{T+8} offset:1024")
            A.wait(lg=A.lg_pos() - 1)
            A(f"buffer_store_dwordx4 {v(P,4)}, v{T+5}, {srd(SRD_OUT)}, s{sT0} offen{fl}")
            A(f"s_add_u32 s{sT0}, s{sT0}, 8192")
            A.wait_all_lg()
            A(f"buffer_store_dwordx4 {v(P+4,4)}, v{T+5}, {srd(SRD_OUT)}, s{sT0} offen{fl}")
        else:
            A(f"s_lshl_b32 s{sT0}, s{sRB64}, 6"); A(f"s_lshl_b32 s{sT1}, s{sRBK}, 5"); A(f"s_add_u32 s{sT0}, s{sT0}, s{sT1}")
            A(f"v_add_u32 v{T}, s{sT0}, v{vM}"); A(f"v_lshlrev_b32 v{T}, 10, v{T}"); A(f"v_lshl_add_u32 v{T}, v{vH}, 4, v{T}")
            A(f"s_lshl_b32 s{sT0}, s{sC}, 7"); A(f"s_lshl_b32 s{sT1}, s{sCG}, 6"); A(f"s_add_u32 s{sT0}, s{sT0}, s{sT1}")
            A(f"buffer_store_dwordx4 {v(P,4)}, v{T}, {srd(SRD_OUT)}, s{sT0} offen{fl}")
            A(f"buffer_store_dwordx4 {v(P+4,4)}, v{T}, {srd(SRD_OUT)}, s{sT0} offen offset:32{fl}")
        self.stamp("stored")

    def build(self):
        A = self.A
        stop = self.cfg.stop_after
        self.prologue()
        self.t0_dma()
        self.setup2()
        self.stamp("setup2")
        self.t0_dma2()
        self.stamp("start")
        self.p1_h(); self.stamp("h main")
        self.p1_h_finish(); self.stamp("h pub")
        if stop != "h":
            self.shadow1(); self.stamp("kv pub")
            if stop != "kv":
                self.p2(); self.stamp("x1 pub")
                if stop != "x1":
                    self.shadow2()
                    if stop != "o":
                        self.p3(); self.stamp("g pub")
                        if stop != "g":
                            self.p4()
        self.flush_side()
        if self.cfg.final_wait or self.cfg.stamps: A("s_waitcnt vmcnt(0)")
        self.stamp("end")
        self.stamp_end()
        A.label("L_end")
        A("s_endpgm")
        return A

HEADER = """; out = x + attn(LN x) + mixer(LN x)   (S = 2048 rows, D = 512, F = 1376) -- one persistent launch, 256 workgroups (one per CU,
;       h = gelu(...) is published first, k / v / q and the sliding-window attention (true row maximum) fill the hand-off latencies.
;   P2  x1 = LN(x) + shift(h) W2  (64 x 64 tile, K split over wave pairs), row sums of x1 published with it.
;   P3  g = gelu(LN(x1) W3)       (128 x 96 tile).
;   P4  out = x + x1 + o Wo + g W4 (64 x 64 tile).
; Hand-offs between workgroups: write-through (sc1) stores, vmcnt wait, barrier, one atomic add on a counter in its own line; consumers poll
; with sc1 loads and read the data with sc1 loads.  The counters sit in d_ws and are zeroed by workgroup 0, which then raises d_debug[0].
; @launch grid=(256,1,1) block=(256,1,1) lds=163840
.amdgcn_target "amdgcn-amd-amdhsa--gfx950"
.text
.globl {name}
.p2align 8
.type {name},@function
{name}:
"""
FOOTER = """
.section .rodata,"a"
.p2align 6
.amdhsa_kernel {name}
  .amdhsa_next_free_vgpr 512
  .amdhsa_next_free_sgpr 102
  .amdhsa_accum_offset 256
  .amdhsa_group_segment_fixed_size 0
  .amdhsa_kernarg_size 88
  .amdhsa_user_sgpr_count 2
  .amdhsa_user_sgpr_kernarg_segment_ptr 1
  .amdhsa_system_sgpr_workgroup_id_x 1
.end_amdhsa_kernel
"""

def generate(cfg):
    k = K(cfg)
    A = k.build()
    if cfg.nodma:
        keep = (srd(SRD_X), srd(SRD_W1))
        A.lines = [l for l in A.lines if not (l.endswith(" lds") and "buffer_load" in l and not any(k_ in l for k_ in keep))]
    if cfg.dma_flag:
        fl = cfg.dma_flag.replace("+", " ")
        A.lines = [l[:-4] + f" {fl} lds" if (l.endswith(" lds") and "buffer_load" in l and srd(SRD_X) not in l) else l for l in A.lines]
    probs = check_hazards(A.lines)
    generate.names = k.stamp_names
    return HEADER.format(name=NAME) + A.text() + FOOTER.format(name=NAME), probs

if __name__ == "__main__":
    cfg = Cfg()
    out = sys.argv[1] if len(sys.argv) > 1 else "parallel_sum__sliding_local_dilated__mixer_s_mlp__prompt.s"
    for arg in sys.argv[2:]:
        k, val = arg.split("=")
        setattr(cfg, k, {"True": True, "False": False, "None": None}.get(val, int(val) if val.isdigit() else val))
    txt, probs = generate(cfg)
    for p in probs: print("HAZARD:", p)
    open(out, "w").write(txt)
    print("wrote", out, len(txt), "bytes;", txt.count("\n"), "lines;", len(probs), "hazards")
```

```python
import sys, os
from asmlib import Asm, check_hazards

NAME = "parallel_sum__sliding_local_dilated__mixer_s_mlp__prompt_kernel"

class Cfg:
    stamps = False
    stop_after = None
    spin_limit = 400000
    dbgtime = False
    wallonly = False
    fine = None
    pre_chunks = 3
    preA = 2
    touch = 1
    hpoll_at = 26
    auto = 64
    cost_w3 = 96
    pdl2 = 8
    pdl3 = 22
    pdl4 = 10
    kvchk_at = 24
    kvpoll_at = 10
    auto_g = 48
    w4_in_ge = 8
    w4_before_sig = 8
    early_kv = 1
    w2_in_k = 0
    rot = 1
    nopoll = ""
    g0_early = 0
    slowt = "w4q"
    p3two = 0
    out_lds = 1
    jrot = 0
    hpump = 2
    auto_h = 64
    hflush = 0
    wgxor = 0
    g1sig_at = 12
    code0 = 48
    map2d = 1
    wo_in_drain = 0
    tlb1 = 0
    tlb1_wave = 0
    nodma = 0
    dma_flag = ""
    out_mode = 3
    final_wait = 0
    dstore = 0
    krot = 0
    ftswap = 1
    cxor = 0
    chunkstamps = 0
    touch_mode = "late"
    stouch = 0
    l2touch = ""
    mallt = 1
    stouch_wave = 1
    early_touch = 0

SLAB_SH = 21
WS_H    = 0x000000
WS_O    = 0x040000
WS_X1   = 0x080000
WS_G    = 0x0C0000
WS_X1S  = 0x170000
WS_KV   = 0x180000
WS_CNT  = 0x1A0000
WS_IDLE = 0x1F0000
CNT_H, CNT_KV, CNT_X1, CNT_O, CNT_G = 0, 4, 8, 12, 16
CNT_STRIDE = 256
WS_STAMP= 0x1000000
WS_SIZE = 0x1100000

A0 = 0
B0 = 67584
C0 = 133120
SCR1 = 160768
LDS_TOTAL = 163840

sW, sRBK, sCG = 3, 4, 5
sRB64, sC, sRB128, sFT = 6, 7, 8, 9
SRD_X, SRD_WQKV, SRD_WO, SRD_W1, SRD_W2, SRD_W3, SRD_W4, SRD_OUT, SRD_WS, SRD_DBG = 40, 44, 48, 52, 56, 60, 64, 68, 72, 76
sONES, sPLO, sPHI = 80, 81, 82
sG, sG2, sT0, sT1, sT2, sT3 = 83, 84, 85, 86, 87, 88
sCB0, sNBLK = 89, 90
sSPIN = 91
sSTAMP = 22
sEXS = 94
sT4, sT5 = 96, 97
sXG, sW1G, sWL = 10, 11, 38
sD0, sD1 = 39, 92
sP2, sP3, sP4 = 16, 17, 18
sSLAB, sR32L, sR32P = 19, 20, 21
sBW, sRW2, sRWO, sR3, sR3W, sW3L, sBW4, sG4E, sAS, sAE = 27, 28, 29, 30, 31, 32, 33, 34, 35, 36
sKR = 37
sW4K = 12
sW4S = {3: 33, 2: 34}
sXSLOT = 26
sOA = 93
sROT = 14
sROT8 = 15
sRT0, sCY0 = 98, 100
vST = 253

def srd(n): return f"s[{n}:{n+3}]"

vL, vM, vH, vL16 = 1, 2, 3, 4
vSTR, vSTRQ = 5, 6
vW3 = (7, 8, 9)
vTRN, vTRC0, vTRC1, vTR3 = 10, 11, 12, 13
vNMU, vR = 14, 15
vXRES = 16
vRESID = 24
vKP, vVP, vQP = 40, 48, 56
vRING = 64
vSTRJ = (5, 136, 137, 138)
vS4J = (5, 136, 139, 140)
vSTRQJ = (6, 141, 142, 143)
vX2 = 179
vACC0, vACC1, vACC2 = 144, 160, 176
vT = 192

def v(i, n=1): return f"v{i}" if n == 1 else f"v[{i}:{i+n-1}]"
def a(i, n=1): return f"a{i}" if n == 1 else f"a[{i}:{i+n-1}]"

C0G = -2.0 * 0.7978845608028654 * 1.4426950408889634
C1G = C0G * 0.044715
import struct
def fbits(x): return "0x%08x" % struct.unpack("<I", struct.pack("<f", x))[0]

CB4 = [3*i if i <= 11 else 33 + 2*(i - 11) for i in range(16)] + [3*j + 1 if j <= 11 else 34 + 2*(j - 11) for j in range(16)] + [3*j + 2 for j in range(11)]
assert sorted(CB4) == list(range(43))

class K:
    def __init__(self, cfg):
        self.cfg = cfg
        self.A = Asm()
        self.side = []
        self.nstamp = 0
        self.stamp_names = []
        self.kA_queued = False
        self.A.pump_cb = self.paced_pump
        self.credit = 0

    def pump(self, n=1):
        for _ in range(n):
            if self.side:
                g = self.side.pop(0)
                for ins in g:
                    if callable(ins): ins()
                    else: self.A(ins)

    def group_cost(self, g):
        for x in g:
            if isinstance(x, str) and x.startswith("buffer_load") and srd(SRD_W3) in x: return self.cfg.cost_w3
        return self.cfg.auto

    def paced_pump(self, cost):
        if self.side and cost >= self.group_cost(self.side[0]):
            self.pump(1)
            return True
        return False

    def tick(self, cycles):
        self.credit += cycles
        while self.side and self.credit >= self.group_cost(self.side[0]):
            self.credit -= self.group_cost(self.side[0])
            self.pump(1)
        if not self.side: self.credit = min(self.credit, self.cfg.auto)

    def queue(self, groups, mark=None):
        groups = [list(g) for g in groups]
        if mark:
            def m(mark=mark): setattr(self, mark, self.A.vm_pos())
            groups[-1].append(m)
        self.side += groups

    def pstore(self, text, opt=False):
        A = self.A
        f = A.opt if opt else A
        f(text)
        if self.cfg.dstore: f(text.replace(" sc1", ""))

    def flush_side(self):
        self.pump(len(self.side))

    def stamp(self, name):
        if not self.cfg.stamps: return
        if self.cfg.wallonly and name != "end": return
        if self.cfg.fine and name in ("kernarg", "touched", "preA", "setup2", "start", "hk0", "hk12>", "hk12<", "hv0", "hq0", "v loop", "kv chk>", "kv chk<", "h drained", "x1 drained", "g drained"): return
        A = self.A
        i = self.nstamp; self.nstamp += 1
        self.stamp_names.append(name)
        cur = sSTAMP + 2*(i & 1); prev = sSTAMP + 2*((i+1) & 1)
        if i > 0: A(f"v_writelane_b32 v{vST}, s{prev}, {i-1}")
        A(f"s_memtime s[{cur}:{cur+1}]")

    def fstamp(self, region, name):
        if self.cfg.fine == region: self.stamp(name)

    def stamp_end(self):
        A = self.A
        if self.cfg.stamps:
            i = self.nstamp
            prev = sSTAMP + 2*((i+1) & 1)
            A("s_waitcnt lgkmcnt(0)")
            A(f"v_writelane_b32 v{vST}, s{prev}, {i-1}")
            A(f"s_memrealtime s[{sSTAMP}:{sSTAMP+1}]")
            A("s_waitcnt lgkmcnt(0)")
            A(f"v_writelane_b32 v{vST}, s{sSTAMP}, 62")
            A(f"v_writelane_b32 v{vST}, s{sRT0}, 61")
            A(f"v_writelane_b32 v{vST}, s{sCY0}, 60")
            A(f"s_lshl_b32 s{sT5}, s2, 2"); A(f"s_add_u32 s{sT5}, s{sT5}, s{sW}"); A(f"s_lshl_b32 s{sT5}, s{sT5}, 8")
            A(f"s_add_u32 s{sT5}, s{sT5}, {WS_STAMP}")
            A(f"v_lshlrev_b32 v254, 2, v{vL}")
            A(f"buffer_store_dword v{vST}, v254, {srd(SRD_WS)}, s{sT5} offen")
        if self.cfg.dbgtime:
            l = A.newlabel("dt")
            A("s_cmp_ge_u32 s2, 7"); A(f"s_cbranch_scc1 {l}")
            A(f"s_cmp_lg_u32 s{sW}, 0"); A(f"s_cbranch_scc1 {l}")
            A(f"s_memrealtime s[{sSTAMP}:{sSTAMP+1}]"); A(f"s_memtime s[{sSTAMP+2}:{sSTAMP+3}]")
            A("s_waitcnt lgkmcnt(0)")
            A(f"s_sub_u32 s{sT0}, s{sSTAMP}, s{sRT0}"); A(f"s_sub_u32 s{sT1}, s{sSTAMP+2}, s{sCY0}")
            A(f"v_mov_b32 v250, s{sT0}"); A(f"v_mov_b32 v251, s{sT1}")
            A(f"s_lshl_b32 s{sT0}, s2, 3"); A(f"s_add_u32 s{sT0}, s{sT0}, 8"); A(f"v_mov_b32 v252, s{sT0}")
            A("s_mov_b64 exec, 1")
            A(f"buffer_store_dwordx2 v[250:251], v252, {srd(SRD_DBG)}, 0 offen")
            A.label(l)

    def dma_units(self, srdn, vregs, gbase_code, gstep, lds0, n, lstep=None):
        m = len(vregs)
        if lstep is None: lstep = 1024 * m
        assert n >= 4
        groups = []
        rounds = (n + 3) // 4
        for j in range(rounds):
            if j == 0:
                g = list(gbase_code)
                g += [f"s_mul_i32 s{sD0}, s{sW}, {lstep}", f"s_add_u32 m0, s{sD0}, {lds0}",
                      f"s_mul_i32 s{sD0}, s{sW}, {gstep}", f"s_add_u32 s{sG}, s{sG2}, s{sD0}"]
            elif 4 * j + 3 < n:
                g = [f"s_add_u32 m0, m0, {4*lstep - (m-1)*1024}", f"s_add_u32 s{sG}, s{sG}, {4*gstep}"]
            else:
                g = [f"s_add_u32 s{sD0}, s{sW}, {4*j}", f"s_min_u32 s{sD0}, s{sD0}, {n-1}",
                     f"s_mul_i32 s{sD1}, s{sD0}, {lstep}", f"s_add_u32 m0, s{sD1}, {lds0}",
                     f"s_mul_i32 s{sD1}, s{sD0}, {gstep}", f"s_add_u32 s{sG}, s{sG2}, s{sD1}"]
            for i, vr in enumerate(vregs):
                if i > 0:
                    groups.append(g)
                    g = ["s_add_u32 m0, m0, 1024", "s_nop 0"]
                g = g + [f"buffer_load_dwordx4 v{vr}, {srd(srdn)}, s{sG} offen lds"]
            groups.append(g)
        return groups

    def poll_issue(self, addr_code, nl, target, what):
        A = self.A
        skip = A.newlabel("piskip")
        A(f"s_cmp_lg_u32 s{sW}, 3"); A(f"s_cbranch_scc1 {skip}")
        for ins in addr_code: A(ins)
        A(f"v_mov_b32 v251, {target}")
        A(f"s_mov_b64 s[{sEXS}:{sEXS+1}], exec"); A(f"s_mov_b64 exec, {(1 << nl) - 1}")
        A.opt(f"buffer_load_dword v252, v250, {srd(SRD_WS)}, 0 offen sc1")
        A(f"s_mov_b64 exec, s[{sEXS}:{sEXS+1}]")
        A.label(skip)
        self.poll_state = (nl, A.vm_pos(), what)

    def poll_check(self, srdn=None):
        A = self.A
        nl, pos, what = self.poll_state
        if what in self.cfg.nopoll.split("+"):
            A("s_barrier"); return
        skip = A.newlabel("pskip"); loop = A.newlabel("ploop"); done = A.newlabel("pdone"); chk = A.newlabel("pchk")
        A(f"s_cmp_lg_u32 s{sW}, 3"); A(f"s_cbranch_scc1 {skip}")
        A(f"s_mov_b64 s[{sEXS}:{sEXS+1}], exec"); A(f"s_mov_b64 exec, {(1 << nl) - 1}")
        A(f"s_mov_b32 s{sSPIN}, {self.cfg.spin_limit}")
        A.wait(vm=pos)
        A(f"s_branch {chk}")
        A.label(loop)
        A.opt(f"buffer_load_dword v252, v250, {srd(SRD_WS)}, 0 offen sc1")
        A("s_waitcnt vmcnt(0)")
        A.label(chk)
        A("v_cmp_ge_u32 vcc, v252, v251")
        A(f"s_sub_u32 s{sSPIN}, s{sSPIN}, 1"); A(f"s_cbranch_scc1 {done}")
        A("s_cmp_eq_u64 vcc, exec"); A(f"s_cbranch_scc0 {loop}")
        A.label(done)
        A(f"s_mov_b64 exec, s[{sEXS}:{sEXS+1}]")
        A.label(skip)
        A("s_barrier")

    def poll(self, addr_code, nl, target, what):
        self.poll_issue(addr_code, nl, target, what)
        self.poll_check()

    def signal(self, cnt, sidx, what, init_check=False):
        A = self.A
        skip = A.newlabel("askip")
        A(f"s_cmp_lg_u32 s{sW}, 3"); A(f"s_cbranch_scc1 {skip}")
        A(f"s_mov_b64 s[{sEXS}:{sEXS+1}], exec"); A("s_mov_b64 exec, 1")
        if init_check:
            loop = A.newlabel("iloop"); done = A.newlabel("idone"); chk = A.newlabel("ichk")
            A(f"s_mov_b32 s{sSPIN}, {self.cfg.spin_limit}")
            A(f"s_branch {chk}")
            A.label(loop)
            A.opt(f"buffer_load_dword v247, v246, {srd(SRD_DBG)}, 0 offen sc1")
            A("s_waitcnt vmcnt(0)")
            A.label(chk)
            A("v_cmp_eq_u32 vcc, 1, v247")
            A(f"s_sub_u32 s{sSPIN}, s{sSPIN}, 1"); A(f"s_cbranch_scc1 {done}")
            A("s_cmp_eq_u64 vcc, exec"); A(f"s_cbranch_scc0 {loop}")
            A.label(done)
        A(f"s_and_b32 s{sT5}, s{sidx}, {3 if sidx == sRB64 else 1}"); A(f"s_lshl_b32 s{sT5}, s{sT5}, 8"); A(f"s_add_u32 s{sT5}, s{sT5}, s{sSLAB}")
        A(f"s_add_u32 s{sT5}, s{sT5}, {WS_CNT + cnt*CNT_STRIDE}")
        A(f"v_mov_b32 v248, s{sT5}"); A("v_mov_b32 v249, 1")
        A.opt(f"buffer_atomic_add v249, v248, {srd(SRD_WS)}, 0 offen")
        A(f"s_mov_b64 exec, s[{sEXS}:{sEXS+1}]")
        A.label(skip)

    def init_poll_issue(self):
        A = self.A
        skip = A.newlabel("iiskip")
        A(f"s_cmp_lg_u32 s{sW}, 3"); A(f"s_cbranch_scc1 {skip}")
        A.opt(f"buffer_load_dword v247, v246, {srd(SRD_DBG)}, 0 offen sc1")
        A.label(skip)

    def cnt_addr(self, cnt, sidx, delta=0):
        if delta == 0:
            return [f"s_and_b32 s{sT5}, s{sidx}, {3 if sidx == sRB64 else 1}", f"s_lshl_b32 s{sT5}, s{sT5}, 8", f"s_add_u32 s{sT5}, s{sT5}, s{sSLAB}",
                    f"s_add_u32 s{sT5}, s{sT5}, {WS_CNT + cnt*CNT_STRIDE}", f"v_mov_b32 v250, s{sT5}"]
        assert sidx == sRB64
        return [f"s_add_u32 s{sT5}, s{sidx}, {delta}", f"s_max_i32 s{sT5}, s{sT5}, 0", f"v_mov_b32 v250, s{sT5}"] + self.cnt64_v(cnt)

    def cnt64_v(self, cnt):
        return ["v_lshrrev_b32 v251, 2, v250", f"v_lshlrev_b32 v251, {SLAB_SH}, v251", "v_and_b32 v250, 3, v250",
                "v_lshl_add_u32 v250, v250, 8, v251", f"v_add_u32 v250, {WS_CNT + cnt*CNT_STRIDE}, v250"]

    def frag_dest(self, sdst, region):
        A = self.A
        A(f"s_lshl_b32 s{sdst}, s{sR32L}, 15"); A(f"s_lshl_b32 s{sT1}, s{sC}, 12"); A(f"s_add_u32 s{sdst}, s{sdst}, s{sT1}")
        A(f"s_lshl_b32 s{sT1}, s{sCG}, 11"); A(f"s_add_u32 s{sdst}, s{sdst}, s{sT1}"); A(f"s_add_u32 s{sdst}, s{sdst}, s{sSLAB}")
        A(f"s_add_u32 s{sdst}, s{sdst}, {region}")

    def swap_add2(self, x, y, t1, t2):
        A = self.A
        A(f"v_mov_b32 v{t1}, v{x}"); A(f"v_mov_b32 v{t2}, v{y}")
        A.nop(1)
        A(f"v_permlane32_swap_b32 v{x}, v{t1}"); A(f"v_permlane32_swap_b32 v{y}, v{t2}")
        A(f"v_add_f32 v{x}, v{x}, v{t1}"); A(f"v_add_f32 v{y}, v{y}, v{t2}")

    def swap_add(self, x, tmp):
        A = self.A
        A(f"v_mov_b32 v{tmp}, v{x}")
        A.nop(2)
        A(f"v_permlane32_swap_b32 v{x}, v{tmp}")
        A.nop(1)
        A(f"v_add_f32 v{x}, v{x}, v{tmp}")

    def prologue(self):
        A = self.A
        A("s_cmp_ge_u32 s2, 256"); A("s_cbranch_scc1 L_end")
        if self.cfg.wgxor: A(f"s_xor_b32 s2, s2, {self.cfg.wgxor}")
        if self.cfg.stamps or self.cfg.dbgtime:
            A(f"s_memrealtime s[{sRT0}:{sRT0+1}]"); A(f"s_memtime s[{sCY0}:{sCY0+1}]")
        A("s_load_dwordx16 s[16:31], s[0:1], 0")
        A("s_load_dwordx4 s[32:35], s[0:1], 64")
        A("s_load_dwordx2 s[36:37], s[0:1], 80")
        if self.cfg.code0:
            A("s_getpc_b64 s[96:97]")
            A("v_lshlrev_b32 v6, 7, v0")
            A(f"v_cmp_gt_u32 vcc, {self.cfg.code0}, v0")
            A(f"s_and_saveexec_b64 s[{sEXS}:{sEXS+1}], vcc")
            l0 = A.newlabel("c0")
            A(f"s_cbranch_execz {l0}")
            A.opt("global_load_dword v255, v6, s[96:97]")
            A.label(l0)
            A(f"s_mov_b64 exec, s[{sEXS}:{sEXS+1}]")
        A(f"v_lshrrev_b32 v5, 6, v0")
        A(f"v_and_b32 v{vL}, 63, v0")
        A(f"v_readfirstlane_b32 s{sW}, v5")
        A(f"v_and_b32 v{vM}, 31, v{vL}")
        A(f"v_lshrrev_b32 v{vH}, 5, v{vL}")
        A(f"v_lshlrev_b32 v{vL16}, 4, v{vL}")
        A("s_and_b32 s10, s2, 7"); A("s_lshr_b32 s11, s2, 3")
        if self.cfg.map2d:
            A(f"s_lshr_b32 s{sT1}, s10, 1"); A(f"s_and_b32 s{sT2}, s10, 1")
            A(f"s_lshr_b32 s{sT0}, s11, 2"); A(f"s_lshl_b32 s{sRB64}, s{sT1}, 3"); A(f"s_add_u32 s{sRB64}, s{sRB64}, s{sT0}")
            A(f"s_and_b32 s{sC}, s11, 3"); A(f"s_lshl_b32 s{sT0}, s{sT2}, 2"); A(f"s_add_u32 s{sC}, s{sC}, s{sT0}")
            A(f"s_lshr_b32 s{sT0}, s11, 3"); A(f"s_lshl_b32 s{sRB128}, s{sT1}, 2"); A(f"s_add_u32 s{sRB128}, s{sRB128}, s{sT0}")
            A(f"s_and_b32 s{sFT}, s11, 7"); A(f"s_lshl_b32 s{sT0}, s{sT2}, 3"); A(f"s_add_u32 s{sFT}, s{sFT}, s{sT0}")
        else:
            A(f"s_lshr_b32 s{sT0}, s11, 3"); A(f"s_lshl_b32 s{sRB64}, s10, 2"); A(f"s_add_u32 s{sRB64}, s{sRB64}, s{sT0}")
            A(f"s_and_b32 s{sC}, s11, 7")
            if self.cfg.cxor: A(f"s_xor_b32 s{sC}, s{sC}, {self.cfg.cxor}")
            A(f"s_lshr_b32 s{sT0}, s11, 4"); A(f"s_lshl_b32 s{sRB128}, s10, 1"); A(f"s_add_u32 s{sRB128}, s{sRB128}, s{sT0}")
            A(f"s_and_b32 s{sFT}, s11, 15")
        A(f"s_and_b32 s{sRBK}, s{sW}, 1"); A(f"s_lshr_b32 s{sCG}, s{sW}, 1")
        if self.cfg.rot == 2:
            A(f"s_add_u32 s{sROT}, s{sRB64}, s{sC}"); A(f"s_and_b32 s{sROT}, s{sROT}, 7")
        elif self.cfg.rot == 3:
            A(f"s_lshl_b32 s{sROT}, s{sC}, 1"); A(f"s_add_u32 s{sROT}, s{sROT}, s{sRB64}"); A(f"s_and_b32 s{sROT}, s{sROT}, 7")
        elif self.cfg.rot:
            A(f"s_and_b32 s{sROT}, s{sRB64}, 3"); A(f"s_lshl_b32 s{sROT}, s{sROT}, 1"); A(f"s_add_u32 s{sROT}, s{sROT}, s{sC}"); A(f"s_and_b32 s{sROT}, s{sROT}, 7")
        else:
            A(f"s_mov_b32 s{sROT}, 0")
        A(f"s_lshl_b32 s{sROT8}, s{sROT}, 1"); A(f"s_add_u32 s{sROT8}, s{sROT8}, s{sW}"); A(f"s_lshl_b32 s{sROT8}, s{sROT8}, 2")
        A(f"s_lshl_b32 s{sW4K}, s{sW}, 12")
        A(f"s_lshr_b32 s{sT3}, s2, 3")
        A(f"v_lshrrev_b32 v7, 3, v{vL}")
        A(f"v_and_b32 v8, 7, v{vL}")
        A(f"v_bfe_u32 v9, v{vL}, 4, 1"); A("v_lshlrev_b32 v9, 2, v9"); A("v_xor_b32 v9, v8, v9"); A("v_lshlrev_b32 v9, 4, v9")
        A(f"v_lshl_add_u32 v{vSTR}, v7, 10, v9")
        A(f"v_mul_u32_u24 v{vSTRQ}, 3072, v7"); A(f"v_add_u32 v{vSTRQ}, v{vSTRQ}, v9")
        A(f"v_lshrrev_b32 v9, 4, v{vL}"); A("v_xor_b32 v9, v8, v9"); A("v_lshlrev_b32 v9, 4, v9"); A("v_lshl_add_u32 v14, v7, 10, v9")
        A(f"v_xor_b32 v{vX2}, 64, v14"); A(f"v_add_u32 v{vX2}, 7168, v{vX2}")
        A(f"v_add_u32 v{vSTRJ[1]}, 7168, v{vSTR}")
        A("s_waitcnt lgkmcnt(0)")
        self.stamp("kernarg")
        if self.cfg.tlb1:
            wsel = self.cfg.tlb1_wave
            l = A.newlabel("tl")
            if wsel >= 0: A(f"s_cmp_lg_u32 s{sW}, {wsel}"); A(f"s_cbranch_scc1 {l}")
            ptrs = [16, 24, 18, 36, 26, 28, 20, 30, 32, 34][:self.cfg.tlb1]
            A("v_mov_b32 v250, s16"); A("v_mov_b32 v251, s17")
            A(f"s_lshr_b32 s{sT0}, s{sRB64}, 2"); A(f"s_lshl_b32 s{sT0}, s{sT0}, {SLAB_SH}"); A(f"s_add_u32 s{sT0}, s{sT0}, s36"); A(f"s_addc_u32 s{sT1}, s37, 0")
            for i, p in enumerate(ptrs):
                if i == 0: continue
                lo, hi = (sT0, sT1) if p == 36 else (p, p + 1)
                A(f"v_writelane_b32 v250, s{lo}, {i}"); A(f"v_writelane_b32 v251, s{hi}, {i}")
            A(f"s_mov_b64 s[{sEXS}:{sEXS+1}], exec"); A(f"s_bfm_b64 exec, {len(ptrs)}, 0")
            (A if wsel < 0 else A.opt)("global_load_dword v255, v[250:251], off")
            A(f"s_mov_b64 exec, s[{sEXS}:{sEXS+1}]")
            A.label(l)
        self.build_srds(((SRD_X, 16, 2097152), (SRD_W1, 24, 524288), (SRD_WQKV, 18, 1572864)))

    def scalar_touch(self):
        A = self.A
        if not self.cfg.stouch: return
        l = A.newlabel("st")
        A(f"s_cmp_lg_u32 s{sW}, {self.cfg.stouch_wave}"); A(f"s_cbranch_scc1 {l}")
        for p in (18, 26, 28, 20, 30, 32, 34):
            A(f"s_load_dword s{sT4}, s[{p}:{p+1}], 0")
        A("s_mov_b32 s12, s36"); A("s_mov_b32 s13, s37")
        for i in range(8):
            A(f"s_load_dword s{sT4}, s[12:13], 0")
            if i < 7: A("s_add_u32 s12, s12, 0x200000"); A("s_addc_u32 s13, s13, 0")
        A.label(l)

    def build_srds(self, lst):
        A = self.A
        for (n, p, size) in lst:
            A(f"s_mov_b32 s{n}, s{p}"); A(f"s_and_b32 s{n+1}, s{p+1}, 0xffff")
            A(f"s_mov_b32 s{n+2}, {size}"); A(f"s_mov_b32 s{n+3}, 0x20000")

    def emit_groups(self, gs):
        for g in gs:
            for ins in g:
                if callable(ins): ins()
                else: self.A(ins)

    def t0_dma(self):
        A = self.A
        self.stamp("touched")
        A(f"s_lshl_b32 s{sXG}, s{sRB64}, 16"); A(f"s_lshl_b32 s{sT0}, s{sW}, 14"); A(f"s_add_u32 s{sXG}, s{sXG}, s{sT0}")
        A(f"s_lshl_b32 s{sW1G}, s{sC}, 7"); A(f"s_add_u32 s{sW1G}, s{sW1G}, s{sT0}")
        A(f"s_lshl_b32 s{sWL}, s{sW}, 11")
        self.chunk_pos = {}
        for q in range(self.cfg.preA): self.emit_groups(self.chunk_dma(q))
        self.scalar_touch()
        self.start_touch()
        if "qkv" in self.cfg.slowt.split("+"): self.slow_strip_touch_qkv(240)
        self.stamp("preA")
        self.build_srds(((SRD_WS, 36, WS_SIZE), (SRD_DBG, 34, 256), (SRD_WO, 20, 524288), (SRD_W2, 26, 524288),
                         (SRD_W3, 28, 1409024), (SRD_W4, 30, 1409024), (SRD_OUT, 32, 2097152)))
        A(f"s_lshr_b32 s{sSLAB}, s{sRB64}, 2"); A(f"s_lshl_b32 s{sSLAB}, s{sSLAB}, {SLAB_SH}")
        A(f"s_and_b32 s{sR32L}, s{sRB64}, 3"); A(f"s_lshl_b32 s{sR32L}, s{sR32L}, 1"); A(f"s_add_u32 s{sR32L}, s{sR32L}, s{sRBK}")
        A(f"s_and_b32 s{sR32P}, s{sRB128}, 1"); A(f"s_lshl_b32 s{sR32P}, s{sR32P}, 2"); A(f"s_add_u32 s{sR32P}, s{sR32P}, s{sW}")
        l = A.newlabel("zi")
        A(f"s_cmp_lg_u32 s2, 0"); A(f"s_cbranch_scc1 {l}")
        A(f"s_cmp_lg_u32 s{sW}, 3"); A(f"s_cbranch_scc1 {l}")
        A(f"v_lshrrev_b32 v250, 5, v{vL}"); A(f"v_lshlrev_b32 v250, {SLAB_SH}, v250"); A(f"v_and_b32 v251, 31, v{vL}")
        A("v_lshl_add_u32 v250, v251, 8, v250"); A(f"v_add_u32 v250, {WS_CNT}, v250"); A("v_mov_b32 v251, 0")
        for i in range(4):
            A.opt(f"buffer_store_dword v251, v250, {srd(SRD_WS)}, 0 offen sc1")
            if i < 3: A(f"v_add_u32 v250, {2 << SLAB_SH}, v250")
        A.label(l)
        A("v_mov_b32 v246, 0"); A("v_mov_b32 v250, 0")
        self.pos_zero = A.vm_pos()
        if self.cfg.touch_mode == "early": self.weight_touch()

    def start_touch(self):
        A = self.A
        if not self.cfg.touch: return
        le = A.newlabel("te")
        A(f"s_cmp_eq_u32 s{sW}, 3"); A(f"s_cbranch_scc0 {le}")
        A(f"s_mov_b64 s[{sEXS}:{sEXS+1}], exec")
        A("s_mov_b64 exec, 0xff")
        A("s_getpc_b64 s[96:97]")
        A.label("L_pc")
        A(f"s_lshl_b32 s{sT0}, s{sT3}, 10"); A(f"v_lshlrev_b32 v250, 7, v{vL}"); A(f"v_add_u32 v250, s{sT0}, v250")
        A("v_min_u32 v250, L_end-L_pc, v250")
        A.opt("global_load_dword v255, v250, s[96:97]")
        A("s_bfm_b64 exec, 48, 0")
        A(f"s_mul_i32 s{sT0}, s2, {48*128}"); A(f"v_lshlrev_b32 v250, 7, v{vL}")
        A.opt(f"buffer_load_dword v255, v250, {srd(SRD_WQKV)}, s{sT0} offen")
        A(f"s_mov_b64 exec, s[{sEXS}:{sEXS+1}]")
        A.label(le)

    def t0_dma2(self):
        for q in range(self.cfg.preA, self.cfg.pre_chunks): self.emit_groups(self.chunk_dma(q))

    def weight_touch(self, tlb_only=False, with_ws=True):
        A = self.A
        if not self.cfg.touch: return
        le = A.newlabel("lte")
        labels = [A.newlabel("lt") for _ in range(4)]
        A(f"s_mov_b64 s[{sEXS}:{sEXS+1}], exec")
        A(f"v_lshlrev_b32 v250, 7, v{vL}")
        plan = (((SRD_W2, 16, 0), (SRD_WO, 16, 0)), ((SRD_W3, 22, 0), (SRD_W3, 21, 22)), ((SRD_W4, 22, 0), (SRD_W4, 21, 22)), None)
        for w, items in enumerate(plan):
            A.label(labels[w])
            f = A if w == 0 else A.opt
            if w < 3:
                A(f"s_cmp_eq_u32 s{sW}, {w}"); A(f"s_cbranch_scc0 {labels[w+1]}")
                for (srdn, n, first) in items:
                    tot = 16 if srdn in (SRD_W2, SRD_WO) else 43
                    A(f"s_bfm_b64 exec, {n}, 0")
                    A(f"s_mul_i32 s{sT5}, s2, {tot*128}")
                    if first: A(f"s_add_u32 s{sT5}, s{sT5}, {first*128}")
                    f(f"buffer_load_dword v255, v250, {srd(srdn)}, s{sT5} offen")
                A(f"s_branch {le}")
            else:
                A("s_mov_b64 exec, 3"); A(f"v_lshlrev_b32 v250, 20, v{vL}")
                f(f"buffer_load_dword v255, v250, {srd(SRD_OUT)}, 0 offen")
                A("s_mov_b64 exec, 1"); A(f"s_add_u32 s{sT5}, s{sSLAB}, {WS_IDLE}")
                f(f"buffer_load_dword v255, v246, {srd(SRD_WS)}, s{sT5} offen")
        A.label(le)
        A(f"s_mov_b64 exec, s[{sEXS}:{sEXS+1}]")

    def l2_touch(self, what):
        A = self.A
        if what not in self.cfg.l2touch.split("+"): return
        T = 240
        srdn, nlines = {"w2": (SRD_W2, 4096), "wo": (SRD_WO, 4096), "w4": (SRD_W4, 11008), "w3": (SRD_W3, 11008),
                        "wq": (SRD_WQKV, 4096), "wv": (SRD_WQKV, 4096)}[what]
        per = nlines // 128
        A(f"s_lshr_b32 s{sT5}, s2, 3"); A(f"s_lshl_b32 s{sT5}, s{sT5}, 2"); A(f"s_add_u32 s{sT5}, s{sT5}, s{sW}")
        if what in ("wq", "wv"):
            A(f"s_mul_i32 s{sT5}, s{sT5}, {4*3072}")
            if what == "wv": A(f"s_add_u32 s{sT5}, s{sT5}, 2048")
            A(f"v_lshrrev_b32 v{T}, 3, v{vL}"); A(f"v_mul_u32_u24 v{T}, 3072, v{T}"); A(f"v_and_b32 v{T+1}, 7, v{vL}")
            A(f"v_lshl_add_u32 v{T}, v{T+1}, 7, v{T}")
        else:
            A(f"s_mul_i32 s{sT5}, s{sT5}, {per*128}")
            A(f"v_lshlrev_b32 v{T}, 7, v{vL}")
        A(f"s_mov_b64 s[{sEXS}:{sEXS+1}], exec")
        for r0 in range(0, per, 64):
            n = min(64, per - r0)
            if n < 64: A(f"s_bfm_b64 exec, {n}, 0")
            if r0: A(f"s_add_u32 s{sT5}, s{sT5}, {64*128}")
            A(f"buffer_load_dword v255, v{T}, {srd(srdn)}, s{sT5} offen")
        A(f"s_mov_b64 exec, s[{sEXS}:{sEXS+1}]")

    def l2_touch_rows(self, srdn, ranges, tmp):
        A = self.A
        A(f"s_lshr_b32 s{sT5}, s2, 3"); A(f"s_lshl_b32 s{sT5}, s{sT5}, 2"); A(f"s_add_u32 s{sT5}, s{sT5}, s{sW}")
        A(f"v_lshlrev_b32 v{tmp}, 7, v{vL}")
        A(f"s_mov_b64 s[{sEXS}:{sEXS+1}], exec")
        for (r0, nr) in ranges:
            per = (nr * 8 + 127) // 128
            assert per <= 64
            A(f"s_mul_i32 s{sT0}, s{sT5}, {per*128}"); A(f"s_add_u32 s{sT0}, s{sT0}, {r0*1024}")
            A(f"s_bfm_b64 exec, {per}, 0") if per < 64 else A("s_mov_b64 exec, -1")
            A(f"buffer_load_dword v255, v{tmp}, {srd(srdn)}, s{sT0} offen")
        A(f"s_mov_b64 exec, s[{sEXS}:{sEXS+1}]")

    def slow_strip_touch(self, srdn, nrows, tmp):
        A = self.A
        per = (nrows + 127) // 128
        A(f"s_lshr_b32 s{sT5}, s2, 3"); A(f"s_lshl_b32 s{sT5}, s{sT5}, 2"); A(f"s_add_u32 s{sT5}, s{sT5}, s{sW}")
        A(f"s_mul_i32 s{sT5}, s{sT5}, {per*1024}"); A(f"s_add_u32 s{sT5}, s{sT5}, 384")
        A(f"s_cmp_ge_u32 s{sC}, 4"); A(f"s_cselect_b32 s{sT5}, 0x7f000000, s{sT5}")
        A(f"v_lshlrev_b32 v{tmp}, 10, v{vL}")
        A(f"s_mov_b64 s[{sEXS}:{sEXS+1}], exec"); A(f"s_bfm_b64 exec, {per}, 0")
        A(f"buffer_load_dword v255, v{tmp}, {srd(srdn)}, s{sT5} offen")
        A(f"s_mov_b64 exec, s[{sEXS}:{sEXS+1}]")

    def slow_strip_touch_qkv(self, tmp):
        A = self.A
        A(f"s_lshr_b32 s{sT5}, s2, 3"); A(f"s_lshl_b32 s{sT5}, s{sT5}, 2"); A(f"s_add_u32 s{sT5}, s{sT5}, s{sW}")
        A(f"s_mul_i32 s{sT5}, s{sT5}, {4*3072}"); A(f"s_add_u32 s{sT5}, s{sT5}, 384")
        A(f"s_cmp_ge_u32 s{sC}, 4"); A(f"s_cselect_b32 s{sT5}, 0x7f000000, s{sT5}")
        A(f"v_and_b32 v{tmp}, 3, v{vL}"); A(f"v_mul_u32_u24 v{tmp}, 3072, v{tmp}"); A(f"v_lshrrev_b32 v{tmp+1}, 2, v{vL}"); A(f"v_lshl_add_u32 v{tmp}, v{tmp+1}, 10, v{tmp}")
        A(f"s_mov_b64 s[{sEXS}:{sEXS+1}], exec"); A("s_bfm_b64 exec, 12, 0")
        A(f"buffer_load_dword v255, v{tmp}, {srd(SRD_WQKV)}, s{sT5} offen")
        A(f"s_mov_b64 exec, s[{sEXS}:{sEXS+1}]")

    def chunk_dma(self, q):
        gs = [[f"s_add_u32 s{sD1}, s{sROT}, {q}", f"s_and_b32 s{sD1}, s{sD1}, 7", f"s_lshl_b32 s{sD0}, s{sD1}, 7",
               f"s_add_u32 m0, s{sWL}, {A0 + q*8192}", f"s_add_u32 s{sD0}, s{sD0}, s{sXG}",
               f"buffer_load_dwordx4 v14, {srd(SRD_X)}, s{sD0} offen lds"],
              [f"buffer_load_dwordx4 v{vX2}, {srd(SRD_X)}, s{sD0} offen offset:1024 lds"],
              [f"s_lshl_b32 s{sD0}, s{sD1}, 16",
               f"s_add_u32 m0, s{sWL}, {B0 + q*8192}", f"s_add_u32 s{sD0}, s{sD0}, s{sW1G}",
               f"buffer_load_dwordx4 v{vSTR}, {srd(SRD_W1)}, s{sD0} offen lds"],
              [f"buffer_load_dwordx4 v{vSTRJ[1]}, {srd(SRD_W1)}, s{sD0} offen offset:1024 lds"]]
        def mark(q=q): self.chunk_pos[q] = self.A.vm_pos()
        gs[-1].append(mark)
        return gs

    def quad(self, pre, srdn, vregs):
        return [(pre if j == 0 else []) + [f"buffer_load_dwordx4 v{vregs[j]}, {srd(srdn)}, s{sG} offen" + (f" offset:{1024*j}" if j else "") + " lds"]
                for j in range(4)]

    def job_strip_qkv(self, which, s0, ns, lds0):
        assert ns % 8 == 0
        groups = []
        for J in range(ns // 8):
            pre = [f"s_add_u32 m0, s{sW4K}, {lds0 + 16384*J}", f"s_add_u32 s{sD0}, s{sROT8}, {2*s0 + 16*J}", f"s_and_b32 s{sD0}, s{sD0}, 63",
                   f"s_mul_i32 s{sD0}, s{sD0}, {8*3072}", f"s_lshl_b32 s{sG}, s{sC}, 7", f"s_add_u32 s{sG}, s{sG}, s{sD0}"]
            if which: pre.append(f"s_add_u32 s{sG}, s{sG}, {which*1024}")
            groups += self.quad(pre, SRD_WQKV, vSTRQJ)
        return groups

    def job_strip(self, srdn, u0, nunits, lds_base):
        assert u0 % 16 == 0 and nunits % 16 == 0 and not self.cfg.krot
        groups = []
        for J in range(nunits // 16):
            u = u0 + 16*J
            if self.cfg.jrot and u0 == 0 and nunits == 64:
                pre = [f"s_add_u32 s{sD0}, s{sRB64}, {J}", f"s_and_b32 s{sD0}, s{sD0}, 3", f"s_lshl_b32 s{sD1}, s{sD0}, 14", f"s_add_u32 s{sD1}, s{sD1}, s{sW4K}",
                       f"s_add_u32 m0, s{sD1}, {lds_base}", f"s_lshl_b32 s{sD0}, s{sD0}, 17", f"s_add_u32 s{sG}, s{sBW}, s{sD0}"]
            else:
                pre = [f"s_add_u32 m0, s{sW4K}, {lds_base + 1024*u}", f"s_add_u32 s{sG}, s{sBW}, {u*8192}"]
            groups += self.quad(pre, srdn, vSTRJ)
        return groups

    def job_w3(self, s0, ns, lds0):
        groups = []
        full_prev = False
        for j in range((ns + 3)//4):
            full = 4*j + 3 < ns
            if full and full_prev:
                g = [f"s_add_u32 m0, m0, {4*3072}", f"s_add_u32 s{sG}, s{sG}, {4*16*2752}"]
            else:
                if full:
                    g = [f"s_add_u32 m0, s{sW3L}, {lds0 + 4*j*3072}", f"s_add_u32 s{sD0}, s{sW}, {s0 + 4*j}"]
                else:
                    g = [f"s_add_u32 s{sD1}, s{sW}, {4*j}", f"s_min_u32 s{sD1}, s{sD1}, {ns-1}", f"s_mul_i32 s{sD0}, s{sD1}, 3072",
                         f"s_add_u32 m0, s{sD0}, {lds0}", f"s_add_u32 s{sD0}, s{sD1}, {s0}"]
                g += [f"s_mul_i32 s{sD0}, s{sD0}, {16*2752}", f"s_lshl_b32 s{sD1}, s{sCB0}, 6", f"s_add_u32 s{sG}, s{sD0}, s{sD1}"]
            full_prev = full
            for i in range(3):
                ins = f"buffer_load_dwordx4 v{vW3[i]}, {srd(SRD_W3)}, s{sG} offen" + (f" offset:{1024*i}" if i else "") + " lds"
                groups.append((g if i == 0 else []) + [ins])
        return groups

    def setup2(self):
        A = self.A
        A(f"s_mov_b32 s{sONES}, 0x3f803f80"); A(f"s_mov_b32 s{sPLO}, 0x05040100"); A(f"s_mov_b32 s{sPHI}, 0x07060302")
        if self.cfg.ftswap:
            A(f"s_mov_b32 s{sT0}, s{sFT}")
            for (x, y) in ((3, 11), (11, 3), (7, 12), (12, 7)):
                A(f"s_cmp_eq_u32 s{sFT}, {x}"); A(f"s_cselect_b32 s{sT0}, {y}, s{sT0}")
            A(f"s_mov_b32 s{sFT}, s{sT0}")
        A(f"s_mul_i32 s{sCB0}, s{sFT}, 3"); A(f"s_mov_b32 s{sNBLK}, 3")
        A(f"s_cmp_lt_u32 s{sFT}, 11"); l = A.newlabel("ft"); A(f"s_cbranch_scc1 {l}")
        A(f"s_lshl_b32 s{sCB0}, s{sFT}, 1"); A(f"s_add_u32 s{sCB0}, s{sCB0}, 11"); A(f"s_mov_b32 s{sNBLK}, 2")
        A.label(l)
        A(f"s_lshl_b32 s{sBW}, s{sC}, 7"); A(f"s_lshl_b32 s{sT0}, s{sW}, 15"); A(f"s_add_u32 s{sBW}, s{sBW}, s{sT0}")
        A(f"s_lshl_b32 s{sT1}, s{sC}, 7"); A(f"s_mul_i32 s{sT0}, s{sW}, {3*32768}"); A(f"s_add_u32 s{sW4S[3]}, s{sT0}, s{sT1}")
        A(f"s_lshl_b32 s{sT0}, s{sW}, 16"); A(f"s_add_u32 s{sW4S[2]}, s{sT0}, s{sT1}")
        A(f"s_mul_i32 s{sW3L}, s{sW}, 3072")
        A(f"s_mov_b32 s{sR3}, 0"); A(f"s_mov_b32 s{sKR}, 0")
        for j in (2, 3): A(f"v_add_u32 v{vSTRJ[j]}, {7168*j}, v{vSTR}")
        A(f"v_add_u32 v{vS4J[2]}, {43*16384 - 2048}, v{vSTR}"); A(f"v_add_u32 v{vS4J[3]}, {43*16384 + 8192 - 3072}, v{vSTR}")
        for j in (1, 2, 3): A(f"v_add_u32 v{vSTRQJ[j]}, {23552*j}, v{vSTRQ}")
        T = vT
        A(f"v_bfe_u32 v{T}, v{vL}, 2, 2")
        A(f"v_and_b32 v{T+1}, 3, v{vL}"); A(f"v_lshlrev_b32 v{T+1}, 3, v{T+1}")
        A(f"v_bfe_u32 v{T+2}, v{vL}, 4, 1"); A(f"v_lshl_add_u32 v{T+1}, v{T+2}, 5, v{T+1}")
        A(f"v_lshrrev_b32 v{T+2}, 1, v{T}")
        A(f"v_xor_b32 v{T+3}, s{sCG}, v{T+2}")
        A(f"v_lshlrev_b32 v{T+3}, 6, v{T+3}")
        A(f"v_lshl_add_u32 v{T+4}, v{T}, 7, v{T+1}")
        A(f"v_add_u32 v{T+4}, v{T+4}, v{T+3}")
        A(f"v_lshl_add_u32 v{vTRN}, v{vH}, 10, v{T+4}")
        A(f"v_lshl_add_u32 v{vTRC0}, v{vH}, 9, v{T+4}")
        A(f"v_xor_b32 v{vTRC1}, 64, v{vTRC0}")
        A(f"v_mul_u32_u24 v{T+5}, 192, v{T}"); A(f"v_add_u32 v{T+5}, v{T+5}, v{T+1}")
        A(f"v_mul_u32_u24 v{T+6}, 768, v{vH}"); A(f"v_add_u32 v{vTR3}, v{T+5}, v{T+6}")
        A(f"s_mov_b32 s{sT0}, 43691"); A(f"s_movk_i32 s{sT1}, 2752")
        for j in range(3):
            A(f"v_add_u32 v{T}, {64*j}, v{vL}")
            A(f"v_mul_u32_u24 v{T+1}, s{sT0}, v{T}"); A(f"v_lshrrev_b32 v{T+1}, 19, v{T+1}")
            A(f"v_mul_u32_u24 v{T+2}, 12, v{T+1}"); A(f"v_sub_u32 v{T+2}, v{T}, v{T+2}")
            A(f"v_mul_u32_u24 v{T+1}, s{sT1}, v{T+1}")
            A(f"v_lshl_add_u32 v{vW3[j]}, v{T+2}, 4, v{T+1}")
            if j: A(f"v_subrev_u32 v{vW3[j]}, {1024*j}, v{vW3[j]}")

    def p1_h(self):
        A = self.A
        T = vT
        vXA = [T, T+1, T+2, T+3]; vXS = [T+4, T+5]
        A(f"s_lshl_b32 s{sT0}, s{sRBK}, 5"); A(f"v_add_u32 v{T+6}, s{sT0}, v{vM}")
        A(f"v_bfe_u32 v{T+7}, v{T+6}, 1, 3"); A(f"v_xor_b32 v{T+7}, v{T+7}, v{vH}"); A(f"v_lshlrev_b32 v{T+7}, 4, v{T+7}")
        A(f"v_lshl_add_u32 v{vXA[0]}, v{T+6}, 7, v{T+7}")
        for s in range(1, 4): A(f"v_xor_b32 v{vXA[s]}, {32*s}, v{vXA[0]}")
        A(f"s_lshl_b32 s{sT0}, s{sCG}, 6"); A(f"v_xor_b32 v{vXS[0]}, s{sT0}, v{vXA[0]}"); A(f"v_xor_b32 v{vXS[1]}, 32, v{vXS[0]}")
        vXR = T+8
        A(f"v_bfe_u32 v{T+7}, v{T+6}, 1, 3"); A(f"s_lshl_b32 s{sT0}, s{sCG}, 2"); A(f"v_xor_b32 v{T+7}, s{sT0}, v{T+7}")
        A(f"v_lshlrev_b32 v{T+7}, 4, v{T+7}"); A(f"v_lshl_add_u32 v{T+7}, v{T+6}, 7, v{T+7}")
        A(f"v_lshl_add_u32 v{T+7}, v{vH}, 3, v{T+7}")
        A(f"s_sub_u32 s{sXSLOT}, s{sC}, s{sROT}"); A(f"s_and_b32 s{sXSLOT}, s{sXSLOT}, 7"); A(f"s_lshl_b32 s{sT0}, s{sXSLOT}, 13"); A(f"v_add_u32 v{vXR}, s{sT0}, v{T+7}")
        vWB = T+9
        A(f"v_add_u32 v{vWB}, {B0}, v{vTRN}")
        vS0, vS1, vQ0, vQ1, vC0, vC1 = T+10, T+11, T+12, T+13, T+14, T+15
        for r in (vS0, vS1, vQ0, vQ1, vC0, vC1): A(f"v_mov_b32 v{r}, 0")
        XT = T+16
        acc = vACC0
        def reads(q):
            L = []
            for s in range(4):
                b = vRING + 4*(4*(q & 1) + s)
                st = 4*q + s
                L.append([f"ds_read_b128 {a(4*st,4)}, v{vXA[s]} offset:{q*8192}",
                          f"ds_read_b64_tr_b16 {v(b,2)}, v{vWB} offset:{st*2048}",
                          f"ds_read_b64_tr_b16 {v(b+2,2)}, v{vWB} offset:{st*2048+512}"])
            L[0].append(f"ds_read_b128 {v(XT+8*(q&1),4)}, v{vXS[0]} offset:{q*8192}")
            L[1].append(f"ds_read_b128 {v(XT+8*(q&1)+4,4)}, v{vXS[1]} offset:{q*8192}")
            return L
        def burst(q):
            x = XT + 8*(q & 1)
            for i in range(8):
                A(f"v_dot2c_f32_bf16 v{vS0 + (i&1)}, s{sONES}, v{x+i}")
                A(f"v_dot2c_f32_bf16 v{vQ0 + (i&1)}, v{x+i}, v{x+i}")
            l1 = A.newlabel("cs"); l2 = A.newlabel("ce")
            b = vRING + 16*(q & 1)
            A(f"s_cmp_lg_u32 s{sRBK}, 0"); A(f"s_cbranch_scc1 {l1}")
            for i in range(8): A(f"v_dot2c_f32_bf16 v{vC0 + (i&1)}, s{sONES}, v{b+i}")
            A(f"s_branch {l2}")
            A.label(l1)
            for i in range(8): A(f"v_dot2c_f32_bf16 v{vC0 + (i&1)}, s{sONES}, v{b+8+i}")
            A.label(l2)
        for q in range(9):
            if q < 8:
                A.wait(vm=self.chunk_pos[q])
                if q == self.cfg.preA:
                    l = A.newlabel("fi")
                    A(f"s_cmp_lg_u32 s2, 0"); A(f"s_cbranch_scc1 {l}")
                    A(f"s_cmp_lg_u32 s{sW}, 3"); A(f"s_cbranch_scc1 {l}")
                    A("v_mov_b32 v250, 0"); A("v_mov_b32 v251, 1")
                    A(f"s_mov_b64 s[{sEXS}:{sEXS+1}], exec"); A("s_mov_b64 exec, 1")
                    A.opt(f"buffer_store_dword v251, v250, {srd(SRD_DBG)}, 0 offen sc1")
                    A(f"s_mov_b64 exec, s[{sEXS}:{sEXS+1}]")
                    A.label(l)
            A.wait_all_lg()
            if q < 8: A("s_barrier")
            rd = reads(q) if q < 8 else [[], [], [], []]
            if q < 8 and (q == 0 or self.cfg.chunkstamps):
                self.stamp(f"chunk{q}")
            if q in ((0, 2, 4, 6) if self.cfg.rot == 1 else range(8)):
                l = A.newlabel("xr")
                A(f"s_cmp_lg_u32 s{sXSLOT}, {q}"); A(f"s_cbranch_scc1 {l}")
                for g in range(4):
                    A(f"v_xor_b32 v{T+32}, {16*g}, v{vXR}")
                    A.opt(f"ds_read_b64 {v(vXRES+2*g,2)}, v{T+32}")
                A.label(l)
            if q == 0:
                for g in rd:
                    for ins in g: A(ins)
                continue
            p = q - 1
            nxt = q + self.cfg.pre_chunks - 1
            if nxt <= 7: self.side += self.chunk_dma(nxt)
            elif not self.kA_queued:
                assert q >= 6
                self.kA_queued = True
                self.queue(self.job_strip_qkv(1, 0, 8, C0))
                self.queue(self.job_strip_qkv(1, 8, 16, A0))
                self.queue(self.job_strip_qkv(1, 24, 8, A0 + 32768), "pos_kB")
                if self.cfg.early_kv: self.queue(self.job_strip_qkv(2, 0, 16, B0))
            if q == 6: self.init_poll_issue()
            if q == 5 and self.cfg.touch:
                A(f"s_mov_b64 s[{sEXS}:{sEXS+1}], exec"); A("s_mov_b64 exec, 1")
                A(f"s_add_u32 s{sT5}, s{sSLAB}, {WS_IDLE}")
                A(f"buffer_load_dword v255, v246, {srd(SRD_WS)}, s{sT5} offen")
                A(f"s_mov_b64 exec, s[{sEXS}:{sEXS+1}]")
            for s in range(4):
                st = 4*p + s
                b = vRING + 4*(4*(p & 1) + s)
                c = "0" if st == 0 else v(acc, 16)
                A(f"v_mfma_f32_32x32x16_bf16 {v(acc,16)}, {v(b,4)}, {a(4*st,4)}, {c}")
                for ins in rd[s]: A(ins)
                self.pump(self.cfg.hpump if q >= 6 else 1)
            burst(p)
        if self.cfg.hpump >= 2: self.flush_side()
        self.vS = (vS0, vS1, vQ0, vQ1, vC0, vC1)

    def colsum_finish(self, vC0, vC1, scr_off, tmp, pre=None, post=None):
        A = self.A
        A.nop(3)
        A(f"v_add_f32 v{vC0}, v{vC0}, v{vC1}")
        self.swap_add(vC0, tmp)
        A(f"s_lshl_b32 s{sT0}, s{sW}, 7"); A(f"v_lshl_add_u32 v{tmp}, v{vM}, 2, s{sT0}")
        A(f"v_add_u32 v{tmp}, {scr_off}, v{tmp}")
        A(f"ds_write_b32 v{tmp}, v{vC0}")
        if pre: pre()
        A.wait_all_lg()
        A("s_barrier")
        A(f"v_xor_b32 v{tmp}, 128, v{tmp}")
        A(f"ds_read_b32 v{vC1}, v{tmp}")
        if post: post()
        A(f"v_cmp_gt_u32 vcc, 32, v{vL}")
        A.wait_all_lg()
        A(f"v_add_f32 v{vC0}, v{vC0}, v{vC1}")
        A(f"v_cndmask_b32 v{vC0}, 0, v{vC0}, vcc")

    def p1_h_finish(self):
        A = self.A
        T = vT
        vS0, vS1, vQ0, vQ1, vC0, vC1 = self.vS
        acc = vACC0
        A.nop(3)
        A(f"v_add_f32 v{vS0}, v{vS0}, v{vS1}"); A(f"v_add_f32 v{vQ0}, v{vQ0}, v{vQ1}"); A(f"v_add_f32 v{vC0}, v{vC0}, v{vC1}")
        tmp = T+33
        self.swap_add2(vS0, vQ0, tmp, tmp+1); self.swap_add(vC0, tmp)
        A(f"s_lshl_b32 s{sT0}, s{sW}, 8"); A(f"v_lshl_add_u32 v{tmp}, v{vM}, 3, s{sT0}"); A(f"v_add_u32 v{tmp}, {SCR1}, v{tmp}")
        A(f"v_mov_b32 v{vS1}, v{vQ0}")
        A(f"ds_write_b64 v{tmp}, {v(vS0,2)}")
        A(f"s_lshl_b32 s{sT0}, s{sW}, 7"); A(f"v_lshl_add_u32 v{tmp+1}, v{vM}, 2, s{sT0}"); A(f"v_add_u32 v{tmp+1}, {SCR1+1024}, v{tmp+1}")
        A(f"ds_write_b32 v{tmp+1}, v{vC0}")
        A.wait_all_lg()
        A("s_barrier")
        A(f"v_xor_b32 v{tmp}, 512, v{tmp}"); A(f"v_xor_b32 v{tmp+1}, 128, v{tmp+1}")
        A(f"ds_read_b64 {v(vQ0,2)}, v{tmp}")
        A(f"ds_read_b32 v{vC1}, v{tmp+1}")
        if self.cfg.early_kv: self.queue(self.job_strip_qkv(2, 16, 16, B0 + 32768), "pos_v")
        else: self.queue(self.job_strip_qkv(2, 0, 32, B0), "pos_v")
        A.auto = self.cfg.auto_h
        A(f"v_cmp_gt_u32 vcc, 32, v{vL}")
        A.wait_all_lg()
        A(f"v_add_f32 v{vS0}, v{vS0}, v{vQ0}"); A(f"v_add_f32 v{vS1}, v{vS1}, v{vQ1}"); A(f"v_add_f32 v{vC0}, v{vC0}, v{vC1}")
        A(f"v_cndmask_b32 v{vC0}, 0, v{vC0}, vcc")
        self.fstamp("he", "he:exch")
        A(f"v_mul_f32 v{vS0}, {fbits(1/512)}, v{vS0}")
        A(f"v_mul_f32 v{vS1}, {fbits(1/512)}, v{vS1}")
        A(f"v_sub_f32 v{vNMU}, 0, v{vS0}")
        A(f"v_fma_f32 v{vS1}, v{vNMU}, v{vS0}, v{vS1}")
        A(f"v_max_f32 v{vS1}, 0, v{vS1}")
        A(f"v_mfma_f32_32x32x2_f32 {v(acc,16)}, v{vC0}, v{vNMU}, {v(acc,16)}")
        mk = A.mark()
        A(f"v_add_f32 v{vQ0}, {fbits(1e-5)}, v{vS1}")
        A(f"v_rsq_f32 v{vR}, v{vQ0}")
        A.nop(1)
        A(f"v_mul_f32 v{vQ0}, v{vR}, v{vR}"); A(f"v_mul_f32 v{vQ0}, v{vQ0}, v{vS1}")
        A(f"v_add_f32 v{vQ0}, {fbits(1e-5)}, v{vQ0}")
        A(f"v_rsq_f32 v{vQ0}, v{vQ0}")
        A.nop(1)
        A(f"v_mul_f32 v{vQ0}, v{vQ0}, v{vR}")
        self.fstamp("he", "he:stats")
        self.gelu_block(acc, vQ0, T+34, mk)
        self.fstamp("he", "he:gelu")
        self.frag_dest(sT0, WS_H)
        self.pstore(f"buffer_store_dwordx4 {v(acc,4)}, v{vL16}, {srd(SRD_WS)}, s{sT0} offen sc1")
        self.pstore(f"buffer_store_dwordx4 {v(acc+4,4)}, v{vL16}, {srd(SRD_WS)}, s{sT0} offen offset:1024 sc1")
        self.pos_h = A.vm_pos()
        A.auto = 0
        while not hasattr(self, "pos_kB"): self.pump(1)
        if self.cfg.hflush: self.flush_side()
        if "w2" in self.cfg.slowt.split("+"): self.slow_strip_touch(SRD_W2, 512, 240)
        if self.cfg.touch_mode == "late": self.weight_touch()
        self.l2_touch("w2"); self.l2_touch("wq")

    def gelu_consts(self, vS, tmp):
        A = self.A
        K1, K0, RI = tmp, tmp+2, tmp+4
        A(f"v_mul_f32 v{K0}, {fbits(C0G)}, v{vS}")
        A(f"v_mul_f32 v{K1}, v{vS}, v{vS}"); A(f"v_mul_f32 v{K1}, v{K1}, v{vS}"); A(f"v_mul_f32 v{K1}, {fbits(C1G)}, v{K1}")
        A(f"v_rcp_f32 v{RI}, v{vS}")
        A(f"v_mov_b32 v{K0+1}, v{K0}"); A(f"v_mov_b32 v{K1+1}, v{K1}"); A(f"v_mov_b32 v{RI+1}, v{RI}")
        return (K1, K0, RI, tmp + 6)

    def gelu_body(self, acc, GK):
        A = self.A
        K1, K0, RI, t = GK
        for p in range(0, 16, 4):
            x0, x1 = acc + p, acc + p + 2
            u0, u1 = t, t + 2
            A(f"v_pk_mul_f32 {v(u0,2)}, {v(x0,2)}, {v(x0,2)}")
            A(f"v_pk_mul_f32 {v(u1,2)}, {v(x1,2)}, {v(x1,2)}")
            A(f"v_pk_fma_f32 {v(u0,2)}, {v(u0,2)}, {v(K1,2)}, {v(K0,2)}")
            A(f"v_pk_fma_f32 {v(u1,2)}, {v(u1,2)}, {v(K1,2)}, {v(K0,2)}")
            A(f"v_pk_mul_f32 {v(u0,2)}, {v(u0,2)}, {v(x0,2)}")
            A(f"v_pk_mul_f32 {v(u1,2)}, {v(u1,2)}, {v(x1,2)}")
            for r in (u0, u0+1, u1, u1+1): A(f"v_exp_f32 v{r}, v{r}")
            A(f"v_pk_fma_f32 {v(u0,2)}, {v(u0,2)}, {v(RI,2)}, {v(RI,2)}")
            A(f"v_pk_fma_f32 {v(u1,2)}, {v(u1,2)}, {v(RI,2)}, {v(RI,2)}")
            for r in (u0, u0+1, u1, u1+1): A(f"v_rcp_f32 v{r}, v{r}")
            A(f"v_pk_mul_f32 {v(u0,2)}, {v(u0,2)}, {v(x0,2)}")
            A(f"v_pk_mul_f32 {v(u1,2)}, {v(u1,2)}, {v(x1,2)}")
            A(f"v_cvt_pk_bf16_f32 v{acc + p//2}, v{u0}, v{u0+1}")
            A(f"v_cvt_pk_bf16_f32 v{acc + p//2 + 1}, v{u1}, v{u1+1}")

    def gelu_block(self, acc, vS, tmp, mk):
        GK = self.gelu_consts(vS, tmp)
        self.A.pad(mk, 18)
        self.gelu_body(acc, GK)

    def qkv_main(self, addr, hooks, side_rate=2, mid=None):
        A = self.A
        T = vT
        acc = vACC0
        PD = 2
        bases = {}
        for st in range(32):
            for d in (0, 512):
                win = (addr(st) + d) // 65536
                if win not in bases:
                    r = T + 40 + len(bases)
                    if win: A(f"v_add_u32 v{r}, {win*65536}, v{vTRN}")
                    else: A(f"v_mov_b32 v{r}, v{vTRN}")
                    bases[win] = r
        vC0, vC1 = T+14, T+15
        A(f"v_mov_b32 v{vC0}, 0"); A(f"v_mov_b32 v{vC1}, 0")
        lgpos = {}
        def burst(steps):
            for st in steps:
                b = vRING + 4*(st % 18)
                for i in range(4): A(f"v_dot2c_f32_bf16 v{vC0 + (i&1)}, s{sONES}, v{b+i}")
                self.tick(18)
        self.credit = 0
        for s in range(32 + PD):
            if s < 32:
                if s in hooks: hooks[s]()
                ad = addr(s)
                b = vRING + 4*(s % 18)
                for (kk, d) in ((0, 0), (2, 512)):
                    x = ad + d
                    A(f"ds_read_b64_tr_b16 {v(b+kk,2)}, v{bases[x // 65536]} offset:{x % 65536}")
                lgpos[s] = A.lg_pos()
            if s >= PD:
                t = s - PD
                A.wait(lg=lgpos[t])
                b = vRING + 4*(t % 18)
                c = "0" if t == 0 else v(acc, 16)
                A(f"v_mfma_f32_32x32x16_bf16 {v(acc,16)}, {v(b,4)}, {a(4*t,4)}, {c}")
                self.tick(33)
                if mid and t in mid: mid[t]()
                if t == 15:
                    self.fstamp("qkv", "t15>")
                    burst(range(0, 16))
                    self.fstamp("qkv", "t15<")
        self.fstamp("qkv", "loop<")
        burst(range(16, 32))

    def qkv_tail(self, dst, keep_auto=False):
        A = self.A
        T = vT
        acc = vACC0
        vC0, vC1 = T+14, T+15
        A(f"v_cmp_gt_u32 vcc, 32, v{vL}")
        A.nop(2)
        A(f"v_add_f32 v{vC0}, v{vC0}, v{vC1}")
        self.swap_add(vC0, T+33)
        A(f"v_cndmask_b32 v{vC0}, 0, v{vC0}, vcc")
        A.nop(2)
        A(f"v_mfma_f32_32x32x2_f32 {v(acc,16)}, v{vC0}, v{vNMU}, {v(acc,16)}")
        mk = A.mark()
        A.auto = 0
        self.pump(3)
        A.pad(mk, 18)
        A.auto = self.cfg.auto
        for i in range(8):
            A(f"v_mul_f32 v{acc+2*i}, v{vR}, v{acc+2*i}"); A(f"v_mul_f32 v{acc+2*i+1}, v{vR}, v{acc+2*i+1}")
            A(f"v_cvt_pk_bf16_f32 v{dst+i}, v{acc+2*i}, v{acc+2*i+1}")
        A.auto = 0
        A.nop(2)
        for i in range(4): A(f"v_permlane32_swap_b32 v{dst+i}, v{dst+4+i}")

    def shadow1(self):
        A = self.A
        def addr_k(s): return C0 + s*2048 if s < 8 else A0 + (s-8)*2048
        def hk0(): A.wait(vm=self.pos_kB); A("s_barrier"); self.stamp("hk0")
        n1 = self.cfg.w2_in_k
        mids = {8: lambda: self.l2_touch("w3")}
        if "wok" in self.cfg.slowt.split("+"): mids[20] = lambda: self.slow_strip_touch(SRD_WO, 512, 240)
        if "w4k" in self.cfg.slowt.split("+"): mids[22] = lambda: self.slow_strip_touch(SRD_W4, 1376, 240)
        if n1: mids[16] = lambda: self.queue(self.job_strip(SRD_W2, 64 - n1, n1, A0))
        self.qkv_main(addr_k, {0: hk0}, mid=mids)
        self.flush_side()
        self.stamp("k loop")
        A.wait(vm=self.pos_h)
        A("s_barrier")
        self.stamp("h drained")
        self.signal(CNT_H, sRB64, "h", init_check=True)
        self.queue(self.job_strip(SRD_W2, 0, 64 - n1, A0), "pos_w2")
        self.queue(self.job_w3(0, 8, C0) + self.job_w3_small(30, 2, C0 + 8*3072))
        self.qkv_tail(vKP)
        self.stamp("k done")
        self.p2_setup()
        def hv0(): A.wait(vm=self.pos_v); A("s_barrier"); self.stamp("hv0")
        hcode = [f"s_add_u32 s{sT5}, s{sRB64}, -1", f"v_add_u32 v250, s{sT5}, v{vL}",
                 "v_max_i32 v250, 0, v250", "v_min_i32 v250, 31, v250"] + self.cnt64_v(CNT_H)
        self.qkv_main(lambda s: B0 + s*2048, {0: hv0}, side_rate=1, mid={self.cfg.hpoll_at: lambda: self.poll_issue(hcode, 3, 8, "h"), 20: lambda: self.l2_touch("wo")})
        self.flush_side()
        self.stamp("v loop")

    def halo_publish(self):
        A = self.A
        l = A.newlabel("halo")
        A(f"s_cmp_lg_u32 s{sRBK}, 1"); A(f"s_cbranch_scc1 {l}")
        T = vT
        A(f"s_and_b32 s{sT0}, s{sRB64}, 3"); A(f"s_lshl_b32 s{sT0}, s{sT0}, 3"); A(f"s_add_u32 s{sT0}, s{sT0}, s{sC}"); A(f"s_lshl_b32 s{sT0}, s{sT0}, 12")
        A(f"s_lshl_b32 s{sT1}, s{sCG}, 10"); A(f"s_add_u32 s{sT0}, s{sT0}, s{sT1}"); A(f"s_add_u32 s{sT0}, s{sT0}, s{sSLAB}"); A(f"s_add_u32 s{sT0}, s{sT0}, {WS_KV}")
        A(f"v_subrev_u32 v{T}, 16, v{vM}"); A(f"v_lshlrev_b32 v{T}, 4, v{T}"); A(f"v_lshl_add_u32 v{T}, v{vH}, 9, v{T}")
        A(f"v_cmp_le_u32 vcc, 16, v{vM}")
        A(f"s_and_saveexec_b64 s[{sEXS}:{sEXS+1}], vcc")
        self.pstore(f"buffer_store_dwordx4 {v(vKP,4)}, v{T}, {srd(SRD_WS)}, s{sT0} offen sc1", opt=True)
        self.pstore(f"buffer_store_dwordx4 {v(vKP+4,4)}, v{T}, {srd(SRD_WS)}, s{sT0} offen offset:256 sc1", opt=True)
        self.pstore(f"buffer_store_dwordx4 {v(vVP,4)}, v{T}, {srd(SRD_WS)}, s{sT0} offen offset:2048 sc1", opt=True)
        self.pstore(f"buffer_store_dwordx4 {v(vVP+4,4)}, v{T}, {srd(SRD_WS)}, s{sT0} offen offset:2304 sc1", opt=True)
        A(f"s_mov_b64 exec, s[{sEXS}:{sEXS+1}]")
        A.label(l)
        self.pos_halo = A.vm_pos()

    def ksplit_gemm(self, nsteps, wbase_vregs, waddr, act_load, first, nring_regs, PDL, hooks=None, side_rate=1, tail=None, pre=None, window=None, mid=None):
        A = self.A
        hooks = hooks or {}
        acts = {}; apos = {}
        def issue(i):
            acts[i] = act_load(i); apos[i] = A.vm_pos()
        if act_load is None:
            acts, apos = pre
        elif window:
            rest = self.side
            self.side = [[(lambda i=i: issue(i))] for i in range(min(PDL, nsteps))]
            self.pump(2)
            assert not rest
            window()
            while len(apos) < min(PDL, nsteps): self.pump(1)
        else:
            for i in range(min(PDL, nsteps)): issue(i)
        PD = 2
        lgpos = {}
        def wreads(s, cb):
            ad = waddr(s)
            if ad is None: return
            b = vRING + 4*(2*(s % 4) + cb)
            A(f"ds_read_b64_tr_b16 {v(b,2)}, v{wbase_vregs[cb]} offset:{ad}")
            A(f"ds_read_b64_tr_b16 {v(b+2,2)}, v{wbase_vregs[cb]} offset:{ad+1024}")
        for s in range(min(PD, nsteps)):
            wreads(s, 0); wreads(s, 1); lgpos[s] = A.lg_pos()
        for t in range(nsteps):
            s = t + PD
            A.wait(vm=apos[t], lg=lgpos[t] if waddr(t) is not None else None)
            for cb in range(2):
                acc = (vACC0, vACC1)[cb]
                c = "0" if (first and t == 0) else v(acc, 16)
                if waddr(t) is not None:
                    wa = v(vRING + 4*(2*(t % 4) + cb), 4)
                else:
                    wa = a(tail(t)[cb], 4)
                A(f"v_mfma_f32_32x32x16_bf16 {v(acc,16)}, {wa}, {a(acts[t],4)}, {c}")
                if s < nsteps: wreads(s, cb)
                if cb == 0 and waddr(t) is None:
                    if t % side_rate == 0: self.pump(1)
            if s < nsteps: lgpos[s] = A.lg_pos()
            if act_load is not None and t + PDL < nsteps: issue(t + PDL)
            elif waddr(t) is not None and t % side_rate == 0: self.pump(1)
            if mid and t in mid: mid[t]()

    def pair_reduce(self, scr, pre=None, post=None):
        A = self.A
        T = vT
        A(f"s_lshl_b32 s{sT0}, s{sW}, 12"); A(f"s_add_u32 s{sT1}, s{sT0}, {scr}"); A(f"v_add_u32 v{T}, s{sT1}, v{vL16}")
        A(f"s_xor_b32 s{sT0}, s{sT0}, 8192"); A(f"s_add_u32 s{sT0}, s{sT0}, {scr}"); A(f"v_add_u32 v{T+1}, s{sT0}, v{vL16}")
        A.nop(12 - 6)
        for j in range(4): A(f"ds_write_b128 v{T}, {v(vACC1+4*j,4)} offset:{1024*j}")
        self.fstamp("p2e", "red:written")
        if pre: pre()
        A.wait_all_lg()
        self.fstamp("p2e", "red:waited")
        A("s_barrier")
        self.fstamp("p2e", "red:barrier")
        for j in range(4): A(f"ds_read_b128 {v(T+4+4*j,4)}, v{T+1} offset:{1024*j}")
        if post: post()
        for j in range(4):
            A.wait(lg=A.lg_pos() - (3 - j))
            for i in range(4): A(f"v_add_f32 v{vACC0+4*j+i}, v{vACC0+4*j+i}, v{T+4+4*j+i}")

    def p2_setup(self):
        A = self.A
        T = vT
        vA, vB = T+50, T+51
        A(f"s_lshl_b32 s{sT0}, s{sRB64}, 6"); A(f"s_lshl_b32 s{sT1}, s{sRBK}, 5"); A(f"s_add_u32 s{sT0}, s{sT0}, s{sT1}")
        A(f"s_add_u32 s{sT1}, s{sCG}, 1")
        for (dst, sign) in ((vA, -1), (vB, +1)):
            A(f"v_add_u32 v{T}, s{sT0}, v{vM}")
            if sign < 0: A(f"v_subrev_u32 v{T}, s{sT1}, v{T}")
            else: A(f"v_add_u32 v{T}, s{sT1}, v{T}")
            A(f"v_lshrrev_b32 v{T+1}, 8, v{T}"); A(f"v_lshlrev_b32 v{T+1}, {SLAB_SH}, v{T+1}")
            A(f"v_bfe_u32 v{T+2}, v{T}, 5, 3"); A(f"v_lshl_add_u32 v{T+1}, v{T+2}, 15, v{T+1}")
            A(f"v_and_b32 v{T+2}, 31, v{T}"); A(f"v_lshl_add_u32 v{T+1}, v{T+2}, 4, v{T+1}")
            A(f"v_lshl_add_u32 v{T+1}, v{vH}, 9, v{T+1}")
            A(f"v_mov_b32 v{T+2}, 0x80000000")
            A(f"s_movk_i32 s{sT2}, 2048"); A(f"v_cmp_gt_u32 vcc, s{sT2}, v{T}")
            A.nop(2)
            A(f"v_cndmask_b32 v{dst}, v{T+2}, v{T+1}, vcc")
        vW0, vW1 = T+52, T+53
        A(f"s_lshl_b32 s{sT0}, s{sCG}, 15"); A(f"v_add_u32 v{vW0}, s{sT0}, v{vTRC0}"); A(f"v_add_u32 v{vW1}, s{sT0}, v{vTRC1}")

    def p2(self):
        A = self.A
        T = vT
        vA, vB = T+50, T+51
        vW0, vW1 = T+52, T+53
        A(f"s_lshl_b32 s{sAS}, s{sCG}, 14"); A(f"s_add_u32 s{sAS}, s{sAS}, {WS_H}")
        A(f"s_add_u32 s{sAE}, s{sAS}, 8192"); A(f"s_lshl_b32 s{sT3}, s{sKR}, 10"); A(f"s_add_u32 s{sT3}, s{sT3}, s{sAS}")
        A.wait(vm=self.pos_w2)
        self.poll_check()
        self.stamp("sync1")
        def act(i):
            r = 128 + 4*i
            if not self.cfg.krot:
                if i % 4 == 0 and i > 0: A(f"s_add_u32 s{sT3}, s{sT3}, 4096")
                A(f"buffer_load_dwordx4 {a(r,4)}, v{vA if i < 8 else vB}, {srd(SRD_WS)}, s{sT3} offen offset:{(i%4)*1024} sc1")
                return r
            if i == 8:
                A(f"s_add_u32 s{sAS}, s{sAS}, 8192"); A(f"s_add_u32 s{sAE}, s{sAE}, 8192")
                A(f"s_lshl_b32 s{sT3}, s{sKR}, 10"); A(f"s_add_u32 s{sT3}, s{sT3}, s{sAS}")
            elif i > 0:
                A(f"s_add_u32 s{sT3}, s{sT3}, 1024"); A(f"s_cmp_eq_u32 s{sT3}, s{sAE}"); A(f"s_cselect_b32 s{sT3}, s{sAS}, s{sT3}")
            A(f"buffer_load_dwordx4 {a(r,4)}, v{vA if i < 8 else vB}, {srd(SRD_WS)}, s{sT3} offen sc1")
            return r
        def window():
            A.auto = self.cfg.auto
            self.qkv_tail(vVP, keep_auto=True)
            A.auto = 0
            self.halo_publish()
            qj = self.job_strip_qkv(0, 0, 32, B0)
            for J in range(4): self.queue(qj[4*J:4*J+4], f"pos_q{J}")
            self.stamp("v tail")
        self.ksplit_gemm(16, (vW0, vW1), lambda i: i*2048, act, True, 0, self.cfg.pdl2, side_rate=1, window=window)
        A("s_barrier")
        self.stamp("p2 main")
        self.pair_reduce(A0 + 51200, pre=lambda: A.wait(vm=self.pos_halo), post=lambda: self.signal(CNT_KV, sRB64, "kv halo"))
        self.fstamp("p2e", "red:done")
        A.auto = self.cfg.auto
        X = T+20
        for j in range(8):
            A(f"v_lshlrev_b32 v{X+2*j}, 16, v{vXRES+j}"); A(f"v_and_b32 v{X+2*j+1}, 0xffff0000, v{vXRES+j}")
        S0, S1 = T+40, T+41
        NM, RR, TT, SA, SB = T+36, T+38, T+42, T+44, T+46
        A(f"v_mov_b32 v{NM}, v{vNMU}"); A(f"v_mov_b32 v{NM+1}, v{vNMU}"); A(f"v_mov_b32 v{RR}, v{vR}"); A(f"v_mov_b32 v{RR+1}, v{vR}")
        for i in range(0, 16, 2):
            A(f"v_pk_add_f32 {v(TT,2)}, {v(X+i,2)}, {v(NM,2)}")
            A(f"v_pk_fma_f32 {v(vACC0+i,2)}, {v(TT,2)}, {v(RR,2)}, {v(vACC0+i,2)}")
            A(f"v_pk_add_f32 {v(vRESID+i,2)}, {v(X+i,2)}, {v(vACC0+i,2)}")
            if i == 0:
                A(f"v_mov_b32 v{SA}, v{vACC0}"); A(f"v_mov_b32 v{SA+1}, v{vACC0+1}")
                A(f"v_pk_mul_f32 {v(SB,2)}, {v(vACC0,2)}, {v(vACC0,2)}")
            else:
                A(f"v_pk_add_f32 {v(SA,2)}, {v(SA,2)}, {v(vACC0+i,2)}")
                A(f"v_pk_fma_f32 {v(SB,2)}, {v(vACC0+i,2)}, {v(vACC0+i,2)}, {v(SB,2)}")
        A(f"v_add_f32 v{S0}, v{SA}, v{SA+1}"); A(f"v_add_f32 v{S1}, v{SB}, v{SB+1}")
        for i in range(8): A(f"v_cvt_pk_bf16_f32 v{X+i}, v{vACC0+2*i}, v{vACC0+2*i+1}")
        self.fstamp("p2e", "epi:math")
        self.frag_dest(sT2, WS_X1)
        self.pstore(f"buffer_store_dwordx4 {v(X,4)}, v{vL16}, {srd(SRD_WS)}, s{sT2} offen sc1")
        self.pstore(f"buffer_store_dwordx4 {v(X+4,4)}, v{vL16}, {srd(SRD_WS)}, s{sT2} offen offset:1024 sc1")
        self.swap_add2(S0, S1, T+42, T+43)
        A(f"s_lshl_b32 s{sT0}, s{sR32L}, 12"); A(f"s_lshl_b32 s{sT1}, s{sC}, 9"); A(f"s_add_u32 s{sT0}, s{sT0}, s{sT1}")
        A(f"s_lshl_b32 s{sT1}, s{sCG}, 8"); A(f"s_add_u32 s{sT0}, s{sT0}, s{sT1}"); A(f"s_add_u32 s{sT0}, s{sT0}, s{sSLAB}"); A(f"s_add_u32 s{sT0}, s{sT0}, {WS_X1S}")
        A(f"v_lshlrev_b32 v{T+42}, 3, v{vM}")
        self.pstore(f"buffer_store_dwordx2 {v(S0,2)}, v{T+42}, {srd(SRD_WS)}, s{sT0} offen sc1")
        self.pos_x1 = A.vm_pos()
        A.auto = 0
        self.fstamp("p2e", "epi:stored")
        self.flush_side()

    def shadow2(self):
        A = self.A
        T = vT
        def hqJ(J):
            A.wait(vm=getattr(self, f"pos_q{J}")); A("s_barrier")
        def hq0():
            hqJ(0)
            self.stamp("hq0")
            self.l2_touch("w4")
            if "w4q" in self.cfg.slowt.split("+"): self.slow_strip_touch(SRD_W4, 1376, T+48)
            if "wo" in self.cfg.slowt.split("+"): self.slow_strip_touch(SRD_WO, 512, T+48)
            self.queue(self.job_w3(8, 15, A0), "pos_w3a")
        kvcode = self.cnt_addr(CNT_KV, sRB64, -1)
        H = T+44
        def halo_load():
            self.stamp("kv chk>")
            self.poll_check()
            self.stamp("kv chk<")
            A(f"v_mov_b32 v{H}, 0"); A(f"v_mov_b32 v{H+1}, 0"); A(f"v_mov_b32 v{H+2}, 0"); A(f"v_mov_b32 v{H+3}, 0")
            l = A.newlabel("nohalo")
            A(f"s_cmp_eq_u32 s{sRB64}, 0"); A(f"s_cbranch_scc1 {l}")
            A(f"s_add_u32 s{sT1}, s{sRB64}, -1"); A(f"s_and_b32 s{sT0}, s{sT1}, 3"); A(f"s_lshl_b32 s{sT0}, s{sT0}, 3"); A(f"s_add_u32 s{sT0}, s{sT0}, s{sC}")
            A(f"s_lshl_b32 s{sT0}, s{sT0}, 12"); A(f"s_lshr_b32 s{sT1}, s{sT1}, 2"); A(f"s_lshl_b32 s{sT1}, s{sT1}, {SLAB_SH}")
            A(f"s_add_u32 s{sT0}, s{sT0}, s{sT1}"); A(f"s_add_u32 s{sT0}, s{sT0}, {WS_KV}")
            A(f"v_lshlrev_b32 v{T+48}, 4, v0")
            A.opt(f"buffer_load_dwordx4 {v(H,4)}, v{T+48}, {srd(SRD_WS)}, s{sT0} offen sc1")
            A.label(l)
            self.pos_hl = A.vm_pos()
        self.qkv_main(lambda s: B0 + s*2048, {0: hq0, 8: lambda: hqJ(1), 16: lambda: hqJ(2), 24: lambda: hqJ(3)}, side_rate=2,
                      mid={self.cfg.kvpoll_at: lambda: self.poll_issue(kvcode, 1, 8, "kv halo"), self.cfg.kvchk_at: halo_load})
        self.flush_side()
        self.stamp("q loop")
        A.wait(vm=self.pos_x1)
        A("s_barrier")
        self.stamp("x1 drained")
        self.signal(CNT_X1, sRB128, "x1")
        self.queue(self.job_strip(SRD_WO, 0, 64, B0), "pos_wo")
        self.qkv_tail(vQP)
        self.stamp("q done")
        pos_hl = self.pos_hl
        KV = A0 + 46080
        vKA = T
        A(f"s_lshl_b32 s{sT0}, s{sCG}, 1"); A(f"v_add_u32 v{T+1}, s{sT0}, v{vH}")
        A(f"v_mul_u32_u24 v{T+1}, 2560, v{T+1}")
        A(f"s_lshl_b32 s{sT0}, s{sRBK}, 5"); A(f"s_add_u32 s{sT0}, s{sT0}, 16"); A(f"v_add_u32 v{T+2}, s{sT0}, v{vM}")
        A(f"v_lshl_add_u32 v{vKA}, v{T+2}, 4, v{T+1}"); A(f"v_add_u32 v{vKA}, {KV}, v{vKA}")
        A(f"ds_write_b128 v{vKA}, {v(vKP,4)}"); A(f"ds_write_b128 v{vKA}, {v(vKP+4,4)} offset:1280")
        A(f"ds_write_b128 v{vKA}, {v(vVP,4)} offset:10240"); A(f"ds_write_b128 v{vKA}, {v(vVP+4,4)} offset:11520")
        A.wait(vm=pos_hl)
        A(f"v_lshrrev_b32 v{T+8}, 4, v0"); A(f"v_mul_u32_u24 v{T+8}, 1280, v{T+8}")
        A(f"v_and_b32 v{T+9}, 15, v0"); A(f"v_lshl_add_u32 v{T+8}, v{T+9}, 4, v{T+8}"); A(f"v_add_u32 v{T+8}, {KV}, v{T+8}")
        A(f"ds_write_b128 v{T+8}, {v(H,4)}")
        A.wait_all_lg()
        A("s_barrier")
        A.auto = self.cfg.auto
        self.stamp("kv staged")
        Q = vQP
        KB = vRING
        LG = T+12
        A(f"v_subrev_u32 v{T+10}, {14*16}, v{vKA}")
        for w in range(8):
            off = (14 - 2*w) * 16
            A(f"ds_read_b128 {v(KB+8*w,4)}, v{T+10} offset:{off}")
            A(f"ds_read_b128 {v(KB+8*w+4,4)}, v{T+10} offset:{off+1280}")
        base_lg = A.lg_pos() - 16
        for w in range(8): A(f"v_mov_b32 v{LG+w}, 0")
        for w in range(8):
            A.wait(lg=base_lg + 2*(w+1))
            for i in range(8): A(f"v_dot2c_f32_bf16 v{LG+w}, v{Q+i}, v{KB+8*w+i}")
        self.fstamp("at", "at:qk")
        au = A.auto; A.auto = 0
        self.poll_issue(self.cnt_addr(CNT_X1, sRB128), 1, 16, "x1")
        A.auto = au
        A.nop(3)
        for w in range(8):
            off = (14 - 2*w) * 16
            A(f"ds_read_b128 {v(KB+8*w,4)}, v{T+10} offset:{off+10240}")
            A(f"ds_read_b128 {v(KB+8*w+4,4)}, v{T+10} offset:{off+11520}")
        base_lg = A.lg_pos() - 16
        l = A.newlabel("nomask")
        A.auto = 0
        A(f"s_cmp_lg_u32 s{sRB64}, 0"); A(f"s_cbranch_scc1 {l}")
        A(f"s_lshl_b32 s{sT0}, s{sRBK}, 5"); A(f"v_add_u32 v{T+11}, s{sT0}, v{vM}")
        A(f"v_mov_b32 v{T+20}, 0xff800000")
        for w in range(1, 8):
            A(f"v_cmp_le_u32 vcc, {2*w}, v{T+11}")
            A.nop(2)
            A(f"v_cndmask_b32 v{LG+w}, v{T+20}, v{LG+w}, vcc")
        A.label(l)
        A.auto = self.cfg.auto
        MX = T+20
        A(f"v_max3_f32 v{MX}, v{LG}, v{LG+1}, v{LG+2}"); A(f"v_max3_f32 v{MX}, v{MX}, v{LG+3}, v{LG+4}")
        A(f"v_max3_f32 v{MX}, v{MX}, v{LG+5}, v{LG+6}"); A(f"v_max_f32 v{MX}, v{MX}, v{LG+7}")
        cs = 0.25 * 1.4426950408889634
        A(f"s_mov_b32 s{sT0}, {fbits(cs)}")
        A(f"v_mul_f32 v{MX}, {fbits(-cs)}, v{MX}")
        for w in range(8): A(f"v_fma_f32 v{LG+w}, v{LG+w}, s{sT0}, v{MX}")
        for w in range(8): A(f"v_exp_f32 v{LG+w}, v{LG+w}")
        SM = T+21
        A(f"v_add_f32 v{SM}, v{LG}, v{LG+1}")
        for w in range(2, 8): A(f"v_add_f32 v{SM}, v{SM}, v{LG+w}")
        A(f"v_rcp_f32 v{SM}, v{SM}")
        A.nop(1)
        for w in range(8): A(f"v_mul_f32 v{LG+w}, v{SM}, v{LG+w}")
        PP = T+22
        for u in range(4): A(f"v_cvt_pk_bf16_f32 v{PP+u}, v{LG+2*u}, v{LG+2*u+1}")
        self.fstamp("at", "at:sm")
        A.auto = 0
        self.flush_side()
        self.p3_bases()
        self.poll_check()
        self.stamp("sync2")
        self.queue_x1_acts()
        A.auto = self.cfg.auto
        O = vACC0
        TP = T+26
        for u in range(4):
            A.wait(lg=base_lg + 4*(u+1))
            va, vb = KB + 16*u, KB + 16*u + 8
            for i in range(8):
                t0, t1 = TP + 2*(i & 1), TP + 2*(i & 1) + 1
                A(f"v_perm_b32 v{t0}, v{vb+i}, v{va+i}, s{sPLO}")
                A(f"v_perm_b32 v{t1}, v{vb+i}, v{va+i}, s{sPHI}")
                if u == 0:
                    A(f"v_dot2_f32_bf16 v{O+2*i}, v{t0}, v{PP+u}, 0"); A(f"v_dot2_f32_bf16 v{O+2*i+1}, v{t1}, v{PP+u}, 0")
                else:
                    A(f"v_dot2c_f32_bf16 v{O+2*i}, v{t0}, v{PP+u}"); A(f"v_dot2c_f32_bf16 v{O+2*i+1}, v{t1}, v{PP+u}")
        A.nop(3)
        self.fstamp("at", "at:pv")
        OP = T+32
        for i in range(8): A(f"v_cvt_pk_bf16_f32 v{OP+i}, v{O+2*i}, v{O+2*i+1}")
        A.nop(2)
        for i in range(4): A(f"v_permlane32_swap_b32 v{OP+i}, v{OP+4+i}")
        self.frag_dest(sT0, WS_O)
        self.pstore(f"buffer_store_dwordx4 {v(OP,4)}, v{vL16}, {srd(SRD_WS)}, s{sT0} offen sc1")
        self.pstore(f"buffer_store_dwordx4 {v(OP+4,4)}, v{vL16}, {srd(SRD_WS)}, s{sT0} offen offset:1024 sc1")
        self.pos_o = A.vm_pos()
        A.auto = 0
        self.fstamp("at", "at:flushed")
        A.wait(vm=self.pos_wo)
        A("s_barrier")
        self.fstamp("at", "at:bar")
        self.emit_groups(self.job_w3(23, 7, A0 + 46080))
        self.pos_w3 = A.vm_pos()
        self.stamp("attn done")

    def c3_pass(self):
        A = self.A
        T = vT
        vLo, vHi = T, T+1
        A(f"s_add_u32 s{sT0}, s{sW}, -1"); A(f"s_mul_i32 s{sT0}, s{sT0}, {8*3072}")
        A(f"s_cmp_eq_u32 s{sW}, 0"); A(f"s_cselect_b32 s{sT0}, {C0}, s{sT0}")
        A(f"s_cmp_eq_u32 s{sW}, 3"); A(f"s_cselect_b32 s{sT1}, {C0 + 2*3072}, s{sT0}")
        A(f"v_add_u32 v{vLo}, s{sT0}, v{vTR3}"); A(f"v_add_u32 v{vHi}, s{sT1}, v{vTR3}")
        CS = T+8
        for i in range(6): A(f"v_mov_b32 v{CS+i}, 0")
        A.auto = self.cfg.auto
        def c3_reads(i):
            for blk in range(3):
                b = vRING + 4*(3*(i % 3) + blk)
                r = vLo if i < 6 else vHi
                A(f"ds_read_b64_tr_b16 {v(b,2)}, v{r} offset:{i*3072 + blk*64}")
                A(f"ds_read_b64_tr_b16 {v(b+2,2)}, v{r} offset:{i*3072 + blk*64+1536}")
            return A.lg_pos()
        cpos = {0: c3_reads(0), 1: c3_reads(1)}
        for i in range(8):
            if i + 2 < 8: cpos[i+2] = c3_reads(i+2)
            A.wait(lg=cpos[i])
            for blk in range(3):
                b = vRING + 4*(3*(i % 3) + blk)
                for r in range(4): A(f"v_dot2c_f32_bf16 v{CS+2*blk+(r&1)}, s{sONES}, v{b+r}")
        A.auto = 0
        A.nop(3)
        SC3 = B0
        for blk in range(3):
            A(f"v_add_f32 v{CS+2*blk}, v{CS+2*blk}, v{CS+2*blk+1}")
            self.swap_add(CS+2*blk, T+4)
        A(f"s_mul_i32 s{sT0}, s{sW}, 384"); A(f"v_lshl_add_u32 v{T+4}, v{vM}, 2, s{sT0}"); A(f"v_add_u32 v{T+4}, {SC3}, v{T+4}")
        for blk in range(3): A(f"ds_write_b32 v{T+4}, v{CS+2*blk} offset:{128*blk}")
        A.wait(vm=self.pos_o)
        A.wait_all_lg()
        A("s_barrier")
        self.signal(CNT_O, sRB64, "o")
        A(f"v_lshlrev_b32 v{T+4}, 2, v{vM}"); A(f"v_add_u32 v{T+4}, {SC3}, v{T+4}")
        for w in range(4):
            for blk in range(3): A(f"ds_read_b32 v{T+16+4*blk+w}, v{T+4} offset:{384*w+128*blk}")
        A(f"v_cmp_gt_u32 vcc, 32, v{vL}")
        A.wait_all_lg()
        self.vC3 = [T+46, T+47, T+48]
        for blk in range(3):
            b = T+16+4*blk
            A(f"v_add_f32 v{b}, v{b}, v{b+1}"); A(f"v_add_f32 v{b+2}, v{b+2}, v{b+3}"); A(f"v_add_f32 v{b}, v{b}, v{b+2}")
            A(f"v_cndmask_b32 v{self.vC3[blk]}, 0, v{b}, vcc")
        A("s_barrier")
        self.stamp("c3 done")

    def job_w3_small(self, s0, ns, lds0):
        return self.job_w3(s0, ns, lds0)

    def w3_addr(self, s):
        if s < 8: return C0 + s*3072
        if s < 30: return A0 + (s-8)*3072
        return C0 + (s-22)*3072

    def p3_bases(self):
        A = self.A
        A(f"s_lshl_b32 s{sP2}, s{sR32P}, 15"); A(f"s_add_u32 s{sP2}, s{sP2}, s{sSLAB}"); A(f"s_add_u32 s{sP2}, s{sP2}, {WS_X1}")
        A(f"s_lshl_b32 s{sP3}, s{sR32P}, 12"); A(f"s_add_u32 s{sP3}, s{sP3}, s{sSLAB}"); A(f"s_add_u32 s{sP3}, s{sP3}, {WS_X1S}")
        A(f"s_mul_i32 s{sP4}, s{sR32P}, {86*1024}"); A(f"s_add_u32 s{sP4}, s{sP4}, s{sSLAB}"); A(f"s_add_u32 s{sP4}, s{sP4}, {WS_G}")
        A(f"s_lshl_b32 s{sT1}, s{sCB0}, 11"); A(f"s_add_u32 s{sP4}, s{sP4}, s{sT1}")

    def queue_x1_acts(self):
        A = self.A
        self.x1_pos = {}
        for i in range(32):
            g = []
            if i % 4 == 0:
                g += [f"s_add_u32 s{sAS}, s{sR3}, {i//4}", f"s_and_b32 s{sAS}, s{sAS}, 7", f"s_lshl_b32 s{sAS}, s{sAS}, 12", f"s_add_u32 s{sAS}, s{sAS}, s{sP2}"]
            g.append(f"buffer_load_dwordx4 {a(4*i,4)}, v{vL16}, {srd(SRD_WS)}, s{sAS} offen offset:{(i%4)*1024} sc1")
            def m(i=i): self.x1_pos[i] = A.vm_pos()
            g.append(m)
            self.side.append(g)

    def p3(self):
        A = self.A
        T = vT
        vA0, vA1 = T+54, T+55
        A(f"s_lshl_b32 s{sT0}, s{sCG}, 15"); A(f"s_add_u32 s{sT0}, s{sT0}, {B0}")
        A(f"v_add_u32 v{vA0}, s{sT0}, v{vTRC0}"); A(f"v_add_u32 v{vA1}, s{sT0}, v{vTRC1}")
        A.auto = self.cfg.auto
        for i in range(16):
            for cb in range(2):
                r = 128 + 8*i + 4*cb
                A(f"ds_read_b64_tr_b16 {a(r,2)}, v{(vA0,vA1)[cb]} offset:{i*2048}")
                A(f"ds_read_b64_tr_b16 {a(r+2,2)}, v{(vA0,vA1)[cb]} offset:{i*2048 + 1024}")
        A.auto = 0
        A.wait(vm=self.pos_w3a)
        A.wait_all_lg()
        A("s_barrier")
        self.stamp("wo->reg")
        apos = self.x1_pos
        A(f"v_lshlrev_b32 v{T+3}, 3, v{vM}"); A(f"v_lshl_add_u32 v{T+3}, v{vH}, 11, v{T+3}")
        for j in range(8):
            A(f"buffer_load_dwordx2 {v(T+20+2*j,2)}, v{T+3}, {srd(SRD_WS)}, s{sP3} offen offset:{256*j} sc1")
        spos = A.vm_pos()
        if "w4" in self.cfg.slowt.split("+"): self.slow_strip_touch(SRD_W4, 1376, T+4)
        self.queue(self.job_w4([39, 40, 41, 42], lambda i: B0 + 12*4096 + (i-39)*4096), "pos_tails")
        self.queue(self.job_w4(list(range(0, 12))), "pos_w4b")
        vB = [T, T+1, T+2]
        A(f"v_mov_b32 v{vB[0]}, v{vTR3}"); A(f"v_add_u32 v{vB[1]}, 65536, v{vTR3}"); A(f"v_add_u32 v{vB[2]}, 131072, v{vTR3}")
        CS = T+8
        for i in range(6): A(f"v_mov_b32 v{CS+i}, 0")
        def buf(s, blk): return vRING + 4*(3*(s % 6) + blk)
        def wread(s, blk):
            ad = self.w3_addr(s) + blk*64
            for (k, d) in ((0, 0), (2, 1536)):
                x = ad + d
                A(f"ds_read_b64_tr_b16 {v(buf(s, blk)+k,2)}, v{vB[x // 65536]} offset:{x % 65536}")
        def main_loop(nb):
            PD = 2
            lgpos = {}
            for s in range(PD):
                for blk in range(nb): wread(s, blk)
                lgpos[s] = A.lg_pos()
            for t in range(32):
                s = t + PD
                while t not in apos: self.pump(1)
                if t == 8:
                    A.wait(vm=self.pos_o)
                    A("s_barrier")
                    self.signal(CNT_O, sRB64, "o")
                if t == 19:
                    A.wait(vm=self.pos_w3)
                    A("s_barrier")
                if t == 22: self.poll_issue(self.cnt_addr(CNT_O, sRB64), 1, 8, "o")
                A.wait(vm=apos[t], lg=lgpos[t])
                if t in (0, 8, 16, 24) and nb == 3: self.fstamp("p4", f"p3:t{t}")
                for blk in range(nb):
                    acc = (vACC0, vACC1, vACC2)[blk]
                    c = "0" if t == 0 else v(acc, 16)
                    A(f"v_mfma_f32_32x32x16_bf16 {v(acc,16)}, {v(buf(t, blk),4)}, {a(4*t,4)}, {c}")
                    if s < 32: wread(s, blk)
                if s < 32: lgpos[s] = A.lg_pos()
                self.pump(1)
                if t % 4 == 3:
                    l = A.newlabel("cb")
                    A(f"s_cmp_lg_u32 s{sW}, {t >> 3}"); A(f"s_cbranch_scc1 {l}")
                    for tt in range(t - 3, t + 1):
                        for blk in range(nb):
                            for r in range(4): A(f"v_dot2c_f32_bf16 v{CS+2*blk+(r&1)}, s{sONES}, v{buf(tt, blk)+r}")
                    A.label(l)
        if not self.cfg.p3two:
            main_loop(3)
        else:
            l2 = A.newlabel("p3two"); le = A.newlabel("p3end")
            A(f"s_cmp_lt_u32 s{sNBLK}, 3"); A(f"s_cbranch_scc1 {l2}")
            st = (A.vm, A.lg, list(self.side), dict(apos))
            main_loop(3)
            en = (A.vm, A.lg, len(self.side), self.poll_state)
            A(f"s_branch {le}")
            A.label(l2)
            A.vm, A.lg = st[0], st[1]; self.side = list(st[2]); apos.clear(); apos.update(st[3])
            main_loop(2)
            assert A.vm == en[0] and len(self.side) == en[2] and self.poll_state[:2] == en[3][:2]
            A.lg = max(A.lg, en[1])
            A.label(le)
        self.fstamp("p3", "pass1<")
        self.flush_side()
        SC3 = C0
        A.nop(3)
        for blk in range(3):
            A(f"v_add_f32 v{CS+2*blk}, v{CS+2*blk}, v{CS+2*blk+1}")
            self.swap_add(CS+2*blk, T+4)
        A(f"s_mul_i32 s{sT0}, s{sW}, 384"); A(f"v_lshl_add_u32 v{T+4}, v{vM}, 2, s{sT0}"); A(f"v_add_u32 v{T+4}, {SC3}, v{T+4}")
        for blk in range(3): A(f"ds_write_b32 v{T+4}, v{CS+2*blk} offset:{128*blk}")
        A.wait(vm=spos)
        S0, S1 = T+20, T+21
        for j in range(1, 8):
            A(f"v_add_f32 v{S0}, v{S0}, v{T+20+2*j}"); A(f"v_add_f32 v{S1}, v{S1}, v{T+21+2*j}")
        self.swap_add2(S0, S1, T+7, T+14)
        NMU1, R1 = T+5, T+6
        A(f"v_mul_f32 v{S0}, {fbits(1/512)}, v{S0}"); A(f"v_mul_f32 v{S1}, {fbits(1/512)}, v{S1}")
        A(f"v_sub_f32 v{NMU1}, 0, v{S0}"); A(f"v_fma_f32 v{S1}, v{NMU1}, v{S0}, v{S1}"); A(f"v_max_f32 v{S1}, 0, v{S1}")
        A(f"v_add_f32 v{S1}, {fbits(1e-5)}, v{S1}"); A(f"v_rsq_f32 v{R1}, v{S1}")
        A.wait(vm=self.pos_tails)
        A.wait_all_lg()
        self.poll_check()
        self.stamp("p3 main")
        A(f"v_lshlrev_b32 v{T+4}, 2, v{vM}"); A(f"v_add_u32 v{T+4}, {SC3}, v{T+4}")
        for w in range(4):
            for blk in range(3): A(f"ds_read_b32 v{T+16+4*blk+w}, v{T+4} offset:{384*w+128*blk}")
        A(f"v_cmp_gt_u32 vcc, 32, v{vL}")
        A(f"s_lshl_b32 s{sOA}, s{sR32L}, 15"); A(f"s_lshl_b32 s{sT1}, s{sCG}, 14"); A(f"s_add_u32 s{sOA}, s{sOA}, s{sT1}")
        A(f"s_add_u32 s{sOA}, s{sOA}, s{sSLAB}"); A(f"s_add_u32 s{sOA}, s{sOA}, {WS_O}")
        self.o_acts = {}; self.o_pos = {}
        A(f"s_mov_b32 s{sAS}, s{sOA}"); A(f"s_add_u32 s{sAE}, s{sOA}, 16384")
        A(f"s_lshl_b32 s{sT1}, s{sKR}, 11"); A(f"s_and_b32 s{sT1}, s{sT1}, 16383"); A(f"s_add_u32 s{sOA}, s{sOA}, s{sT1}")
        for i in range(16):
            g = []
            if not self.cfg.krot:
                if i % 4 == 0 and i > 0: g.append(f"s_add_u32 s{sOA}, s{sOA}, 4096")
                g.append(f"buffer_load_dwordx4 {a(4*i,4)}, v{vL16}, {srd(SRD_WS)}, s{sOA} offen offset:{(i%4)*1024} sc1")
            else:
                if i > 0: g += [f"s_add_u32 s{sOA}, s{sOA}, 1024", f"s_cmp_eq_u32 s{sOA}, s{sAE}", f"s_cselect_b32 s{sOA}, s{sAS}, s{sOA}"]
                g.append(f"buffer_load_dwordx4 {a(4*i,4)}, v{vL16}, {srd(SRD_WS)}, s{sOA} offen sc1")
            def m(i=i):
                self.o_acts[i] = 4*i; self.o_pos[i] = A.vm_pos()
            g.append(m)
            self.side.append(g)
        ne = self.cfg.w4_in_ge
        if ne: self.queue(self.job_w4(list(range(12, 12 + ne))))
        GK = self.gelu_consts(R1, T+34)
        A.wait_all_lg()
        self.vC3 = [T+46, T+47, T+48]
        for blk in range(3):
            b = T+16+4*blk
            A(f"v_add_f32 v{b}, v{b}, v{b+1}"); A(f"v_add_f32 v{b+2}, v{b+2}, v{b+3}"); A(f"v_add_f32 v{b}, v{b}, v{b+2}")
            A(f"v_cndmask_b32 v{self.vC3[blk]}, 0, v{b}, vcc")
        A.nop(2)
        A(f"v_mfma_f32_32x32x2_f32 {v(vACC0,16)}, v{self.vC3[0]}, v{NMU1}, {v(vACC0,16)}")
        mk0 = A.mark()
        A(f"v_mfma_f32_32x32x2_f32 {v(vACC1,16)}, v{self.vC3[1]}, v{NMU1}, {v(vACC1,16)}")
        A(f"v_mfma_f32_32x32x2_f32 {v(vACC2,16)}, v{self.vC3[2]}, v{NMU1}, {v(vACC2,16)}")
        self.pump(3)
        A.pad(mk0, 19)
        self.fstamp("ge", "g:start")
        self.pos_g = {}
        for blk in range(3):
            acc = (vACC0, vACC1, vACC2)[blk]
            if blk == 2:
                lskip3 = A.newlabel("nog2")
                A(f"s_cmp_lt_u32 s{sNBLK}, 3"); A(f"s_cbranch_scc1 {lskip3}")
            else:
                A.auto = self.cfg.auto_g
            self.gelu_body(acc, GK)
            A.auto = 0
            if blk < 2: self.fstamp("ge", f"g:blk{blk}")
            i1 = f"buffer_store_dwordx4 {v(acc,4)}, v{vL16}, {srd(SRD_WS)}, s{sP4} offen offset:{blk*2048 % 4096} sc1"
            i2 = f"buffer_store_dwordx4 {v(acc+4,4)}, v{vL16}, {srd(SRD_WS)}, s{sP4} offen offset:{blk*2048 % 4096 + 1024} sc1"
            if blk == 2:
                A(f"s_add_u32 s{sP4}, s{sP4}, 4096")
                self.pstore(i1, opt=True); self.pstore(i2, opt=True)
                A.label(lskip3)
            else:
                self.pstore(i1); self.pstore(i2)
            self.pos_g[blk] = A.vm_pos()
        vA0, vA1 = T+54, T+55
        A(f"s_lshl_b32 s{sT0}, s{sCG}, 11"); A(f"v_add_u32 v{vA0}, s{sT0}, v{vTRC0}"); A(f"v_add_u32 v{vA1}, s{sT0}, v{vTRC1}")
        A(f"v_add_u32 v{T+52}, {B0 + 12*4096}, v{vA0}"); A(f"v_add_u32 v{T+53}, {B0 + 12*4096}, v{vA1}")
        for i in range(4):
            for cb in range(2):
                r = 96 + 8*i + 4*cb
                A(f"ds_read_b64_tr_b16 {v(r,2)}, v{T+52+cb} offset:{i*4096}")
                A(f"ds_read_b64_tr_b16 {v(r+2,2)}, v{T+52+cb} offset:{i*4096 + 1024}")
        self.queue(self.job_w4(list(range(12 + ne, 28))), "pos_w4a")
        self.w4c_job = self.job_w4(list(range(28, 35)))

    def job_w4(self, slots, lds_of=None):
        lds_of = lds_of or self.w4_slot
        groups = []
        for J in range((len(slots) + 3)//4):
            rd = [slots[min(4*J + w, len(slots) - 1)] for w in range(4)]
            cb = [CB4[i] for i in rd]; ld = [lds_of(i) for i in rd]
            dc = cb[1] - cb[0]; dl = ld[1] - ld[0]
            affine = all(cb[w] == cb[0] + w*dc and ld[w] == ld[0] + w*dl for w in range(4)) and dl == 4096 and dc in (2, 3)
            if affine:
                pre = [f"s_add_u32 m0, s{sW4K}, {ld[0]}", f"s_add_u32 s{sG}, s{sW4S[dc]}, {cb[0]*32768}"]
            else:
                pre = [f"s_mov_b32 s{sD0}, {cb[0]*32768}", f"s_mov_b32 s{sD1}, {ld[0]}"]
                for w in range(1, 4):
                    if cb[w] == cb[w-1] and ld[w] == ld[w-1] and all(cb[x] == cb[w] for x in range(w, 4)) and w > 1 and False: continue
                    pre += [f"s_cmp_ge_u32 s{sW}, {w}", f"s_cselect_b32 s{sD0}, {cb[w]*32768}, s{sD0}", f"s_cselect_b32 s{sD1}, {ld[w]}, s{sD1}"]
                pre += [f"s_mov_b32 m0, s{sD1}", f"s_lshl_b32 s{sG}, s{sC}, 7", f"s_add_u32 s{sG}, s{sG}, s{sD0}"]
            groups += self.quad(pre, SRD_W4, vSTRJ)
        return groups

    def w4_slot(self, i):
        if i < 12: return B0 + i*4096
        if i < 28: return A0 + (i-12)*4096
        if i < 35: return C0 + (i-28)*4096
        return B0 + 12*4096 + (i-35)*4096

    def p4(self):
        A = self.A
        T = vT
        vA0, vA1 = T+54, T+55
        A(f"s_mul_i32 s{sT4}, s{sR32L}, {86*1024}"); A(f"s_lshl_b32 s{sT1}, s{sCG}, 10"); A(f"s_add_u32 s{sT4}, s{sT4}, s{sT1}")
        A(f"s_add_u32 s{sT4}, s{sT4}, s{sSLAB}"); A(f"s_add_u32 s{sAS}, s{sT4}, {WS_G}")
        def gsig(b, extra_lg=False):
            A.wait(vm=self.pos_g[b])
            if extra_lg: A.wait_all_lg()
            A("s_barrier")
            self.signal(CNT_G + 2*b, sRB128, f"g{b}")
        gsig(0, extra_lg=True)
        self.stamp("g0 sig")
        self.queue(self.w4c_job, "pos_w4e")
        self.queue(self.job_w4([35, 36, 37, 38]), "pos_w4l")
        while len(self.o_pos) < 16: self.pump(1)
        PDL = self.cfg.pdl4; PD = 2; N = 43
        acts = {}; apos = {}
        def act_g(i):
            if i == 16:
                self.poll_check()
                self.poll_issue(self.cnt_addr(CNT_G + 4, sRB128), 1, 16, "g2")
            if i == 32: self.poll_check()
            A(f"s_add_u32 s{sT4}, s{sAS}, {CB4[i]*2048}")
            r = 4*((i + 16) % 32)
            A(f"buffer_load_dwordx4 {a(r,4)}, v{vL16}, {srd(SRD_WS)}, s{sT4} offen sc1")
            acts[i] = r; apos[i] = A.vm_pos()
        early = self.cfg.g0_early
        def mid8(): gsig(1)
        def mid_poll(): self.poll_issue(self.cnt_addr(CNT_G, sRB128), 1, 16, "g0")
        def mid_check():
            A.wait(vm=self.pos_w4b)
            self.poll_check()
            self.poll_issue(self.cnt_addr(CNT_G + 2, sRB128), 1, 16, "g1")
            self.side = [[(lambda i=i: act_g(i))] for i in range(PDL)] + self.side
        mids = {self.cfg.g1sig_at: mid8}
        if early: mids[early - 7] = mid_poll; mids[early] = mid_check
        else: mids[13] = mid_poll
        assert len(mids) == (3 if early else 2)
        self.ksplit_gemm(16, None, lambda i: None, None, True, 0, 16, side_rate=1, pre=(self.o_acts, self.o_pos),
                         tail=lambda i: (128 + 8*i, 128 + 8*i + 4), mid=mids)
        self.stamp("wo done")
        if early:
            while len(apos) < PDL: self.pump(1)
        gsig(2)
        self.stamp("g drained")
        vb = {}
        for win in range(3):
            for cb in range(2):
                r = T + 44 + 2*win + cb
                A(f"v_add_u32 v{r}, {win*65536}, v{(vA0,vA1)[cb]}")
                vb[(win, cb)] = r
        if early:
            self.flush_side()
            self.pos_w4_all = A.vm_pos()
        else:
            self.flush_side()
            A.wait(vm=self.pos_w4b)
            self.poll_check()
            self.poll_issue(self.cnt_addr(CNT_G + 2, sRB128), 1, 16, "g1")
            for i in range(PDL): act_g(i)
        self.stamp("sync3")
        lgpos = {}
        def w4reads(s, cb):
            if s >= 39: return
            ad = self.w4_slot(s)
            b = vRING + 4*(2*(s % 4) + cb)
            for (k, d) in ((0, 0), (2, 1024)):
                x = ad + d
                A(f"ds_read_b64_tr_b16 {v(b+k,2)}, v{vb[(x // 65536, cb)]} offset:{x % 65536}")
        for s in range(PD):
            w4reads(s, 0); w4reads(s, 1); lgpos[s] = A.lg_pos()
        for t in range(N):
            s = t + PD
            if s == 12 and early:
                A.wait(vm=self.pos_w4_all)
                A("s_barrier")
            elif s == 12 and not (1 <= 16 - PDL <= 9):
                A("s_barrier")
            A.wait(vm=apos[t], lg=lgpos[t] if t < 39 else None)
            if t in (0, 8, 16, 24, 32, 40): self.fstamp("p4", f"p4:t{t}")
            for cb in range(2):
                acc = (vACC0, vACC1)[cb]
                wa = v(vRING + 4*(2*(t % 4) + cb), 4) if t < 39 else v(96 + 8*(t-39) + 4*cb, 4)
                A(f"v_mfma_f32_32x32x16_bf16 {v(acc,16)}, {wa}, {a(acts[t],4)}, {v(acc,16)}")
                if s < N: w4reads(s, cb)
            if s < N: lgpos[s] = A.lg_pos()
            if t + PDL < N: act_g(t + PDL)
        self.stamp("p4 main")
        self.pair_reduce(B0)
        for i in range(16): A(f"v_add_f32 v{vACC0+i}, v{vACC0+i}, v{vRESID+i}")
        P = T+24
        for i in range(8): A(f"v_cvt_pk_bf16_f32 v{P+i}, v{vACC0+2*i}, v{vACC0+2*i+1}")
        A.nop(2)
        for (x, y) in ((0, 2), (1, 3), (4, 6), (5, 7)):
            A(f"v_permlane32_swap_b32 v{P+x}, v{P+y}")
        fl = {0: "", 1: " sc1", 2: " sc0 sc1", 3: " nt", 4: " sc1 nt", 5: " sc0 sc1 nt"}[self.cfg.out_mode]
        if self.cfg.out_lds:
            OT = B0 + 16384
            A(f"s_lshl_b32 s{sT0}, s{sRBK}, 5"); A(f"v_add_u32 v{T}, s{sT0}, v{vM}")
            A(f"s_lshl_b32 s{sT1}, s{sCG}, 2"); A(f"v_add_u32 v{T+1}, s{sT1}, v{vH}")
            A(f"v_and_b32 v{T+2}, 7, v{T}"); A(f"v_xor_b32 v{T+3}, v{T+1}, v{T+2}"); A(f"v_add_u32 v{T+1}, 2, v{T+1}"); A(f"v_xor_b32 v{T+4}, v{T+1}, v{T+2}")
            A(f"v_lshlrev_b32 v{T}, 7, v{T}"); A(f"v_add_u32 v{T}, {OT}, v{T}")
            A(f"v_lshl_add_u32 v{T+3}, v{T+3}, 4, v{T}"); A(f"v_lshl_add_u32 v{T+4}, v{T+4}, 4, v{T}")
            A(f"ds_write_b128 v{T+3}, {v(P,4)}"); A(f"ds_write_b128 v{T+4}, {v(P+4,4)}")
            A(f"v_lshrrev_b32 v{T+5}, 3, v{vL}"); A(f"s_lshl_b32 s{sT0}, s{sW}, 4"); A(f"v_add_u32 v{T+5}, s{sT0}, v{T+5}")
            A(f"v_and_b32 v{T+6}, 7, v{vL}"); A(f"v_and_b32 v{T+7}, 7, v{T+5}"); A(f"v_xor_b32 v{T+7}, v{T+6}, v{T+7}")
            A(f"v_lshlrev_b32 v{T+8}, 7, v{T+5}"); A(f"v_lshl_add_u32 v{T+8}, v{T+7}, 4, v{T+8}"); A(f"v_add_u32 v{T+8}, {OT}, v{T+8}")
            A(f"s_lshl_b32 s{sT0}, s{sRB64}, 6"); A(f"v_add_u32 v{T+5}, s{sT0}, v{T+5}"); A(f"v_lshlrev_b32 v{T+5}, 10, v{T+5}"); A(f"v_lshl_add_u32 v{T+5}, v{T+6}, 4, v{T+5}")
            A(f"s_lshl_b32 s{sT0}, s{sC}, 7")
            A.wait_all_lg()
            A("s_barrier")
            A(f"ds_read_b128 {v(P,4)}, v{T+8}"); A(f"ds_read_b128 {v(P+4,4)}, v{T+8} offset:1024")
            A.wait(lg=A.lg_pos() - 1)
            A(f"buffer_store_dwordx4 {v(P,4)}, v{T+5}, {srd(SRD_OUT)}, s{sT0} offen{fl}")
            A(f"s_add_u32 s{sT0}, s{sT0}, 8192")
            A.wait_all_lg()
            A(f"buffer_store_dwordx4 {v(P+4,4)}, v{T+5}, {srd(SRD_OUT)}, s{sT0} offen{fl}")
        else:
            A(f"s_lshl_b32 s{sT0}, s{sRB64}, 6"); A(f"s_lshl_b32 s{sT1}, s{sRBK}, 5"); A(f"s_add_u32 s{sT0}, s{sT0}, s{sT1}")
            A(f"v_add_u32 v{T}, s{sT0}, v{vM}"); A(f"v_lshlrev_b32 v{T}, 10, v{T}"); A(f"v_lshl_add_u32 v{T}, v{vH}, 4, v{T}")
            A(f"s_lshl_b32 s{sT0}, s{sC}, 7"); A(f"s_lshl_b32 s{sT1}, s{sCG}, 6"); A(f"s_add_u32 s{sT0}, s{sT0}, s{sT1}")
            A(f"buffer_store_dwordx4 {v(P,4)}, v{T}, {srd(SRD_OUT)}, s{sT0} offen{fl}")
            A(f"buffer_store_dwordx4 {v(P+4,4)}, v{T}, {srd(SRD_OUT)}, s{sT0} offen offset:32{fl}")
        self.stamp("stored")

    def build(self):
        A = self.A
        stop = self.cfg.stop_after
        self.prologue()
        self.t0_dma()
        self.setup2()
        self.stamp("setup2")
        self.t0_dma2()
        self.stamp("start")
        self.p1_h(); self.stamp("h main")
        self.p1_h_finish(); self.stamp("h pub")
        if stop != "h":
            self.shadow1(); self.stamp("kv pub")
            if stop != "kv":
                self.p2(); self.stamp("x1 pub")
                if stop != "x1":
                    self.shadow2()
                    if stop != "o":
                        self.p3(); self.stamp("g pub")
                        if stop != "g":
                            self.p4()
        self.flush_side()
        if self.cfg.final_wait or self.cfg.stamps: A("s_waitcnt vmcnt(0)")
        self.stamp("end")
        self.stamp_end()
        A.label("L_end")
        A("s_endpgm")
        return A

HEADER = """; out = x + attn(LN x) + mixer(LN x)   (S = 2048 rows, D = 512, F = 1376) -- one persistent launch, 256 workgroups (one per CU,
;       h = gelu(...) is published first, k / v / q and the sliding-window attention (true row maximum) fill the hand-off latencies.
;   P2  x1 = LN(x) + shift(h) W2  (64 x 64 tile, K split over wave pairs), row sums of x1 published with it.
;   P3  g = gelu(LN(x1) W3)       (128 x 96 tile).
;   P4  out = x + x1 + o Wo + g W4 (64 x 64 tile).
; Hand-offs between workgroups: write-through (sc1) stores, vmcnt wait, barrier, one atomic add on a counter in its own line; consumers poll
; with sc1 loads and read the data with sc1 loads.  The counters sit in d_ws and are zeroed by workgroup 0, which then raises d_debug[0].
; Roles are assigned so that workgroups that share data usually share a die; any other placement is only slower.
; @launch grid=(256,1,1) block=(256,1,1) lds=163840
.amdgcn_target "amdgcn-amd-amdhsa--gfx950"
.text
.globl {name}
.p2align 8
.type {name},@function
{name}:
"""
FOOTER = """
.section .rodata,"a"
.p2align 6
.amdhsa_kernel {name}
  .amdhsa_next_free_vgpr 512
  .amdhsa_next_free_sgpr 102
  .amdhsa_accum_offset 256
  .amdhsa_group_segment_fixed_size 0
  .amdhsa_kernarg_size 88
  .amdhsa_user_sgpr_count 2
  .amdhsa_user_sgpr_kernarg_segment_ptr 1
  .amdhsa_system_sgpr_workgroup_id_x 1
.end_amdhsa_kernel
"""

def generate(cfg):
    k = K(cfg)
    A = k.build()
    if cfg.nodma:
        keep = (srd(SRD_X), srd(SRD_W1))
        A.lines = [l for l in A.lines if not (l.endswith(" lds") and "buffer_load" in l and not any(k_ in l for k_ in keep))]
    if cfg.dma_flag:
        fl = cfg.dma_flag.replace("+", " ")
        A.lines = [l[:-4] + f" {fl} lds" if (l.endswith(" lds") and "buffer_load" in l and srd(SRD_X) not in l) else l for l in A.lines]
    probs = check_hazards(A.lines)
    generate.names = k.stamp_names
    return HEADER.format(name=NAME) + A.text() + FOOTER.format(name=NAME), probs

if __name__ == "__main__":
    cfg = Cfg()
    out = sys.argv[1] if len(sys.argv) > 1 else "parallel_sum__sliding_local_dilated__mixer_s_mlp__prompt.s"
    for arg in sys.argv[2:]:
        k, val = arg.split("=")
        setattr(cfg, k, {"True": True, "False": False, "None": None}.get(val, int(val) if val.isdigit() else val))
    txt, probs = generate(cfg)
    for p in probs: print("HAZARD:", p)
    open(out, "w").write(txt)
    print("wrote", out, len(txt), "bytes;", txt.count("\n"), "lines;", len(probs), "hazards")
```
